```python
import torch

def _softmax(x, axis=-1):
    return torch.softmax(x, dim=axis)
def _gelu(x):
    return torch.nn.functional.gelu(x, approximate="tanh")
def _silu(x):
    return torch.nn.functional.silu(x)
def _sigmoid(x):
    return torch.sigmoid(x)
def _layernorm(x, axis=-1, eps=1e-5):
    m = x.mean(dim=axis, keepdim=True)
    v = x.var(dim=axis, keepdim=True, unbiased=False)
    return (x - m) / torch.sqrt(v + eps)
def _scatter_add(tgt, idx, src, axis=0):
    return tgt.clone().index_add_(axis, idx, src)
def _segment_sum(src, seg, n):
    out = torch.zeros((n,) + src.shape[1:], dtype=src.dtype)
    return out.index_add_(0, seg, src)
def _pad(x, pw):
    flat = tuple(v for pair in reversed(pw) for v in pair)
    return torch.nn.functional.pad(x, flat)

kernel_name = 'gather_scatter__edge_featured_mpnn_mpnn__graph'

def setup_inputs():

    _w = (lambda a: (lambda t: t.to(torch.bfloat16) if t.is_floating_point() else t)(torch.as_tensor(a)))
    N, deg, D, De = 10000, 64, 64, max(4, 1)
    E = N * deg
    H = 2 * D
    return {
        "x": _w((lambda *s: torch.randn(*s, dtype=torch.bfloat16) * 0.05)(N, D)),
        "e_attr": _w((lambda *s: torch.randn(*s, dtype=torch.bfloat16) * 1.6)(E, De)),
        "src": _w((lambda lo, hi, *s: torch.randint(lo, hi, s))(0, N, E).to(torch.int64)),
        "dst": _w((lambda lo, hi, *s: torch.randint(lo, hi, s))(0, N, E).to(torch.int64)),
        "w1": _w((lambda *s: torch.randn(*s, dtype=torch.bfloat16) * 1.6)(2 * D + De, H) * (1.0 / (2 * D + De) ** 0.5)),
        "b1": _w((lambda *s: torch.randn(*s, dtype=torch.bfloat16) * 3.2)(H) * 0.01),
        "w2": _w((lambda *s: torch.randn(*s, dtype=torch.bfloat16) * 0.05)(H, D) * (1.0 / H ** 0.5)),
        "b2": _w((lambda *s: torch.randn(*s, dtype=torch.bfloat16) * 0.05)(D) * 0.01),
    }

def reference(x, e_attr, src, dst, w1, b1, w2, b2):
    N, D = x.shape
    h_src = x[src]
    h_dst = x[dst]
    m_in = torch.concatenate([h_src, h_dst, e_attr], axis=-1)
    h = _silu(m_in @ w1 + b1)
    msg = h @ w2 + b2
    return _segment_sum(msg, dst, N)
```

```python
import sys, struct

NAME = "gather_scatter__edge_featured_mpnn_mpnn__graph"
N, E = 10000, 640000
NB, NC, CH = 256, 256, 2500
LOG2E = 1.4426950408889634
LN2 = 0.6931471805599453


def f32(x):
    return struct.unpack("<I", struct.pack("<f", x))[0]


WS_CELLS = 0
WS_W1A = 8 << 20
WS_W1B = WS_W1A + 16384
WS_W2 = WS_W1B + 16384
WS_WC = WS_W2 + 16384
WS_END = WS_WC + 2048
INVAL = 0xFFF00000

ROWB = 1536
L_ROWS = 0
L_CNT = 41 * ROWB
L_FLAG = L_CNT + 256
L_LA = 63488
L_LB = L_LA + 16384
L_XB = L_LB + 16384
L_END = L_XB + 8 * 4096
CAPB = (4096 - 96) * 4
PADW = (16383 << 6) | 40
PADE = 0x7FFFFFF
HB_STRIDE = 272
L_HBHI = L_LA
L_HBLO = L_LB


class Asm:
    def __init__(self):
        self.lines = []

    def __call__(self, s):
        for ln in s.split("\n"):
            ln = ln.strip()
            if ln:
                self.lines.append(("" if ln.endswith(":") or ln.startswith(".") else "    ") + ln)

    def text(self):
        return "\n".join(self.lines) + "\n"


class Regs:
    def __init__(self, first):
        self.n = first

    def a(self, cnt=1, align=1):
        self.n = (self.n + align - 1) // align * align
        r = self.n
        self.n += cnt
        return r


def v(r, n=1):
    return f"v{r}" if n == 1 else f"v[{r}:{r + n - 1}]"


def s(r, n=1):
    return f"s{r}" if n == 1 else f"s[{r}:{r + n - 1}]"


def gen_k1(A):
    A(f"""
.globl k1_kernel
.p2align 8
.type k1_kernel,@function
k1_kernel:
    s_cmp_ge_u32 s2, {NC}
    s_cbranch_scc1 K1_PREP
    s_load_dwordx4 s[4:7], s[0:1], 16
    s_load_dwordx2 s[8:9], s[0:1], 80
    v_lshlrev_b32 v1, 4, v0
    v_mov_b32 v4, {INVAL}
    v_mov_b32 v5, v4
    v_mov_b32 v6, v4
    v_mov_b32 v7, v4
    s_mul_i32 s3, s2, {CH * 4}
    s_mov_b32 s14, {E * 4}
    s_mov_b32 s15, 0x20000
    s_mov_b32 s18, {E * 4}
    s_mov_b32 s19, 0x20000
    s_waitcnt lgkmcnt(0)
    s_mov_b32 s12, s6
    s_and_b32 s13, s7, 0xffff
    s_mov_b32 s16, s4
    s_and_b32 s17, s5, 0xffff
    buffer_load_dwordx4 v[8:11], v1, s[12:15], s3 offen
    buffer_load_dwordx4 v[12:15], v1, s[16:19], s3 offen
    ds_write_b128 v1, v[4:7]
    ds_write_b128 v1, v[4:7] offset:10240
    ds_write_b128 v1, v[4:7] offset:20480
    ds_write_b128 v1, v[4:7] offset:22528
    s_mov_b32 s20, s8
    s_and_b32 s21, s9, 0xffff
    s_mov_b32 s22, {8 << 20}
    s_mov_b32 s23, 0x20000
    s_movk_i32 s24, 0x7c
    s_mov_b32 s25, {INVAL + 30 * 4}
    v_lshlrev_b32 v2, 22, v0
    v_mov_b32 v3, 4
    v_cmp_gt_u32 vcc, {CH // 4}, v0
    s_waitcnt lgkmcnt(0)
    s_barrier
    s_and_saveexec_b64 s[26:27], vcc
    s_waitcnt vmcnt(1)
""")
    for i in range(4):
        A(f"v_lshlrev_b32_sdwa v{16+i}, 7, v{8+i} dst_sel:DWORD dst_unused:UNUSED_PAD src0_sel:DWORD src1_sel:BYTE_0")
        A(f"v_lshl_add_u32 v{20+i}, v{8+i}, 2, -4")
    for i in range(4):
        A(f"v_and_or_b32 v{20+i}, v{20+i}, s24, v{16+i}")
        A(f"ds_add_rtn_u32 v{20+i}, v{20+i}, v3")
    for i in range(4):
        A(f"v_lshrrev_b32 v{24+i}, 8, v{8+i}")
        if i:
            A(f"v_add_u32 v2, {1 << 20}, v2")
        A(f"v_or_b32 v{24+i}, v{24+i}, v2")
    A("s_waitcnt vmcnt(0)")
    for i in range(4):
        A(f"v_lshl_or_b32 v{24+i}, v{12+i}, 6, v{24+i}")
    for i in range(4):
        A("s_waitcnt lgkmcnt(3)")
        A(f"v_min_u32 v{20+i}, s25, v{20+i}")
        A(f"v_lshl_add_u32 v{20+i}, v{8+i}, 2, v{20+i}")
        A(f"v_and_or_b32 v{20+i}, v{20+i}, s24, v{16+i}")
        A(f"ds_write_b32 v{20+i}, v{24+i}")
    A(f"""
    s_mov_b64 exec, s[26:27]
    v_lshrrev_b32 v2, 3, v0
    v_lshlrev_b32 v2, 15, v2
    v_and_b32 v3, 7, v0
    v_lshl_add_u32 v2, v3, 4, v2
    s_lshl_b32 s3, s2, 7
    s_add_u32 s4, s3, {80 * 32768}
    s_add_u32 s5, s3, {160 * 32768}
    s_add_u32 s6, s3, {176 * 32768}
    s_waitcnt lgkmcnt(0)
    s_barrier
    ds_read_b128 v[4:7], v1
    ds_read_b128 v[8:11], v1 offset:10240
    ds_read_b128 v[12:15], v1 offset:20480
    ds_read_b128 v[16:19], v1 offset:22528
    v_cmp_le_u32 vcc, 512, v0
    s_waitcnt lgkmcnt(3)
    buffer_store_dwordx4 v[4:7], v2, s[20:23], s3 offen
    s_waitcnt lgkmcnt(2)
    buffer_store_dwordx4 v[8:11], v2, s[20:23], s4 offen
    s_waitcnt lgkmcnt(1)
    buffer_store_dwordx4 v[12:15], v2, s[20:23], s5 offen
    s_cbranch_vccz K1_END
    s_waitcnt lgkmcnt(0)
    buffer_store_dwordx4 v[16:19], v2, s[20:23], s6 offen
K1_END:
    s_endpgm
""")
    A(f"""
K1_PREP:
    s_load_dwordx2 s[4:5], s[0:1], 32
    s_load_dwordx2 s[6:7], s[0:1], 48
    s_load_dwordx2 s[8:9], s[0:1], 80
    v_lshrrev_b32 v1, 6, v0
    s_sub_u32 s3, s2, {NC}
    s_mul_i32 s3, s3, 10
    v_readfirstlane_b32 s10, v1
    v_and_b32 v1, 63, v0
    s_nop 2
    s_add_u32 s3, s3, s10
    s_cmp_ge_u32 s3, 52
    s_cbranch_scc1 K1_END
    s_waitcnt lgkmcnt(0)
    s_mov_b32 s12, s4
    s_and_b32 s13, s5, 0xffff
    s_mov_b32 s14, {132 * 256}
    s_mov_b32 s15, 0x20000
    s_mov_b32 s16, s6
    s_and_b32 s17, s7, 0xffff
    s_mov_b32 s18, {128 * 128}
    s_mov_b32 s19, 0x20000
    s_mov_b32 s20, s8
    s_and_b32 s21, s9, 0xffff
    s_mov_b32 s22, {WS_END}
    s_mov_b32 s23, 0x20000
    v_and_b32 v2, 31, v1
    v_lshrrev_b32 v3, 5, v1
    s_cmp_ge_u32 s3, 48
    s_cbranch_scc1 K1_WC
    s_cmp_ge_u32 s3, 32
    s_cbranch_scc1 K1_W2
    s_lshr_b32 s24, s3, 4
    s_lshl_b32 s24, s24, 14
    s_and_b32 s25, s3, 3
    s_lshl_b32 s25, s25, 12
    s_add_u32 s24, s24, s25
    s_bfe_u32 s25, s3, 0x20002
    s_lshl_b32 s25, s25, 6
    s_add_u32 s24, s24, s25
    v_lshlrev_b32 v4, 11, v3
    v_lshl_add_u32 v4, v2, 1, v4
""")
    for e in range(8):
        A(f"buffer_load_ushort v{8+e}, v4, s[12:15], s24 offen offset:{e*256}")
    A(f"""
    s_cmp_lt_u32 s3, 16
    s_cselect_b32 s26, {f32(-LOG2E)}, 1.0
    s_branch K1_PACK
K1_W2:
    ; t=s3-32 : oh=t>>3, m=(t>>2)&1, ks=t&3 ; out = 32 oh + 8 (i/4) + 4 m + i%4 ; k = 32 ks + 8 (l/16) + e
    s_and_b32 s24, s3, 3
    s_lshl_b32 s24, s24, 12
    s_bfe_u32 s25, s3, 0x10003
    s_lshl_b32 s25, s25, 6
    s_add_u32 s24, s24, s25
    s_bfe_u32 s25, s3, 0x10002
    s_lshl_b32 s25, s25, 3
    s_add_u32 s24, s24, s25
    v_lshrrev_b32 v4, 4, v1
    v_lshlrev_b32 v4, 10, v4
    v_bfe_u32 v5, v1, 2, 2
    v_lshl_add_u32 v4, v5, 4, v4
    v_and_b32 v5, 3, v1
    v_lshl_add_u32 v4, v5, 1, v4
""")
    for e in range(8):
        A(f"buffer_load_ushort v{8+e}, v4, s[16:19], s24 offen offset:{e*128}")
    A(f"""
    s_mov_b32 s26, 1.0
K1_PACK:
    s_lshl_b32 s24, s3, 10
    s_add_u32 s24, s24, {WS_W1A}
    v_lshlrev_b32 v4, 4, v1
    s_waitcnt vmcnt(0)
""")
    for e in range(8):
        A(f"v_lshlrev_b32 v{8+e}, 16, v{8+e}")
    for e in range(8):
        A(f"v_mul_f32 v{8+e}, s26, v{8+e}")
    for e in range(4):
        A(f"v_cvt_pk_bf16_f32 v{16+e}, v{8+2*e}, v{9+2*e}")
    A(f"""
    buffer_store_dwordx4 v[16:19], v4, s[20:23], s24 offen
    s_endpgm
K1_WC:
    s_sub_u32 s25, s3, 48
    s_lshl_b32 s24, s25, 6
    s_add_u32 s24, s24, {128 * 256}
    v_lshlrev_b32 v4, 1, v2
""")
    for e in range(4):
        A(f"buffer_load_ushort v{8+e}, v4, s[12:15], s24 offen offset:{e*256}")
    A(f"""
    s_mov_b32 s26, {f32(-LOG2E)}
    s_lshl_b32 s24, s25, 9
    s_add_u32 s24, s24, {WS_WC}
    v_lshlrev_b32 v4, 3, v1
    v_cmp_eq_u32 vcc, 1, v3
    s_waitcnt vmcnt(0)
""")
    for e in range(4):
        A(f"v_lshlrev_b32 v{8+e}, 16, v{8+e}")
    for e in range(4):
        A(f"v_mul_f32 v{8+e}, s26, v{8+e}")
    for e in range(4):
        A(f"v_and_b32 v{12+e}, 0xffff0000, v{8+e}")
    for e in range(4):
        A(f"v_sub_f32 v{8+e}, v{8+e}, v{12+e}")
    for e in range(4):
        A(f"v_cndmask_b32 v{8+e}, v{12+e}, v{8+e}, vcc")
    A("""
    v_cvt_pk_bf16_f32 v16, v8, v9
    v_cvt_pk_bf16_f32 v17, v10, v11
    buffer_store_dwordx2 v[16:17], v4, s[20:23], s24 offen
    s_endpgm
""")
    return 32, 32


def gen_k2(A):
    R = Regs(1)
    lane = R.a()
    t0, t1, t2, t3 = R.a(), R.a(), R.a(), R.a()
    guard, deg, j8 = R.a(), R.a(), R.a()
    la_w, la_e, la_n = R.a(), R.a(), R.a()
    cw0, ce0, cn0 = R.a(), R.a(), R.a()
    le = R.a()
    ar = [R.a() for _ in range(4)]
    dq = [R.a() for _ in range(4)]
    lw = R.a(4, 2)
    nw = R.a(2, 2)
    ra = [R.a(2, 2), R.a(2, 2)]
    nn, dd, tt, rr, ss, c64a, c64b = [R.a(2, 2) for _ in range(7)]
    b2r = R.a(4, 2)
    npad = R.a()
    A5 = [R.a(4, 2), R.a(4, 2)]
    B5 = [R.a(4, 2) for _ in range(4)]
    AX = [R.a(4, 2) for _ in range(4)]
    D = [R.a(16, 2), R.a(16, 2)]
    EX = R.a(16, 2)
    W = [[R.a(4, 2) for q in range(4)] for n in range(4)]
    W2 = R.a(32, 2)
    nvgpr = R.n
    CW, RK, CA = D[0], D[1], EX
    EB = lw
    WB, DQ = W2, W2 + 16

    SX, SE, SXR, SW, SO, SS, SD = 28, 32, 36, 40, 44, 48, 52
    MK = 56
    s_wave, s_o3, s_o2, s_o1, s_msk, s_rowb, s_rem, s_first, s_slow, s_safe, s_chunk = range(88, 99)
    s_t, s_u, s_inv = 99, 100, 101
    sA, sB = 26, 27

    A(f"""
.globl k2_kernel
.p2align 8
.type k2_kernel,@function
k2_kernel:
    s_cmp_ge_u32 s2, {NB}
    s_cbranch_scc1 K2_END
    s_load_dwordx2 s[24:25], s[0:1], 80
    s_load_dwordx16 s[4:19], s[0:1], 0
    s_load_dwordx2 s[20:21], s[0:1], 64
    v_lshrrev_b32 {v(t0)}, 6, v0
    v_and_b32 {v(lane)}, 63, v0
    v_readfirstlane_b32 {s(s_wave)}, {v(t0)}
    s_mov_b32 {s(SW+2)}, {WS_END}
    s_mov_b32 {s(SW+3)}, 0x20000
    s_mov_b32 {s(SX+2)}, {N * 64}
    s_mov_b32 {s(SX+3)}, 0x20000
    s_mov_b32 {s(SE+2)}, {E}
    s_mov_b32 {s(SE+3)}, 0x20000
    s_mov_b32 {s(SXR+2)}, {N * 128}
    s_mov_b32 {s(SXR+3)}, 0x20000
    s_mov_b32 {s(SO+2)}, {N * 128}
    s_mov_b32 {s(SO+3)}, 0x20000
    s_mov_b32 {s(SS+2)}, {E * 4}
    s_mov_b32 {s(SS+3)}, 0x20000
    s_mov_b32 {s(SD+2)}, {E * 4}
    s_mov_b32 {s(SD+3)}, 0x20000
    s_movk_i32 {s(s_o3)}, 3072
    s_movk_i32 {s(s_o2)}, 2048
    s_movk_i32 {s(s_o1)}, 1024
    s_mov_b32 {s(s_msk)}, 0xfffc0
    s_movk_i32 {s(s_rowb)}, {ROWB}
    s_mov_b32 {s(s_inv)}, {INVAL}
    s_mov_b32 {s(s_first)}, 1
    s_mov_b32 {s(s_safe)}, 0
    s_lshl_b32 {s(s_t)}, {s(s_wave)}, 12
    s_add_u32 m0, {s(s_t)}, {L_XB}
    s_waitcnt lgkmcnt(0)
    s_mov_b32 {s(SW)}, s24
    s_and_b32 {s(SW+1)}, s25, 0xffff
K2_RESTART:
    s_lshl_b32 {s(s_u)}, s2, 15
    s_lshl_b32 {s(s_t)}, {s(s_wave)}, 12
    s_add_u32 {s(s_u)}, {s(s_u)}, {s(s_t)}
    v_lshlrev_b32 {v(t0)}, 4, {v(lane)}
""")
    for q in range(4):
        A(f"buffer_load_dwordx4 {v(CW+4*q,4)}, {v(t0)}, {s(SW,4)}, {s(s_u)} offen offset:{q*1024}")
    A(f"""
    v_lshrrev_b32 {v(t1)}, 3, {v(lane)}
    s_lshl_b32 {s(s_t)}, {s(s_wave)}, 5
    v_add_u32 {v(t1)}, {s(s_t)}, {v(t1)}
    v_mul_u32_u24 {v(EB)}, {CH}, {v(t1)}
    v_add_u32 {v(EB+1)}, {8*CH}, {v(EB)}
    v_add_u32 {v(EB+2)}, {16*CH}, {v(EB)}
    v_add_u32 {v(EB+3)}, {24*CH}, {v(EB)}
    s_mov_b32 {s(s_slow)}, 0
    s_cmp_eq_u32 {s(s_first)}, 0
    s_cbranch_scc1 K2_INIT
    s_sub_u32 {s(SX)}, s4, 3072
    s_subb_u32 {s(SX+1)}, s5, 0
    s_and_b32 {s(SX+1)}, {s(SX+1)}, 0xffff
    s_or_b32 {s(SX+1)}, {s(SX+1)}, {2 << 16}
    s_mov_b32 {s(SE)}, s6
    s_and_b32 {s(SE+1)}, s7, 0xffff
    s_or_b32 {s(SE+1)}, {s(SE+1)}, {8 << 16}
    s_mov_b32 {s(SXR)}, s4
    s_and_b32 {s(SXR+1)}, s5, 0xffff
    s_mov_b32 {s(SO)}, s20
    s_and_b32 {s(SO+1)}, s21, 0xffff
    s_mov_b32 {s(SS)}, s8
    s_and_b32 {s(SS+1)}, s9, 0xffff
    s_mov_b32 {s(SD)}, s10
    s_and_b32 {s(SD+1)}, s11, 0xffff
    v_and_b32 {v(t1)}, 31, {v(lane)}
    v_lshrrev_b32 {v(t2)}, 5, {v(lane)}
    v_lshlrev_b32 {v(t3)}, 15, {v(t1)}
    v_lshl_add_u32 {v(t3)}, {v(t2)}, 4, {v(t3)}
    s_lshr_b32 {s(s_t)}, {s(s_wave)}, 2
    s_lshl_b32 {s(s_t)}, {s(s_t)}, 20
    s_lshl_b32 {s(s_u)}, s2, 7
    s_add_u32 {s(s_t)}, {s(s_t)}, {s(s_u)}
""")
    for q in range(4):
        A(f"buffer_load_dwordx4 {v(AX[q],4)}, {v(t3)}, {s(SXR,4)}, {s(s_t)} offen offset:{q*32}")
    A(f"""
    s_and_b32 {s(s_u)}, {s(s_wave)}, 3
    s_lshl_b32 {s(s_t)}, {s(s_u)}, 12
    s_add_u32 {s(s_t)}, {s(s_t)}, {WS_W1B}
""")
    for q in range(4):
        A(f"buffer_load_dwordx4 {v(WB+4*q,4)}, {v(t0)}, {s(SW,4)}, {s(s_t)} offen offset:{q*1024}")
    A(f"""
    s_lshl_b32 {s(s_t)}, {s(s_u)}, 6
    v_lshl_add_u32 {v(t3)}, {v(t1)}, 1, {s(s_t)}
    global_load_ushort {v(npad)}, {v(t3)}, s[14:15]
""")
    NW_AFTER_Q = 0
    for n in range(4):
        A(f"s_mov_b32 {s(s_t)}, {WS_W1A + n*4096}")
        for q in range(4):
            A(f"buffer_load_dwordx4 {v(W[n][q],4)}, {v(t0)}, {s(SW,4)}, {s(s_t)} offen offset:{q*1024}")
            NW_AFTER_Q += 1
    A(f"v_lshlrev_b32 {v(t3)}, 3, {v(lane)}")
    A(f"s_mov_b32 {s(s_t)}, {WS_WC}")
    for n in range(4):
        A(f"buffer_load_dwordx2 {v(B5[n],2)}, {v(t3)}, {s(SW,4)}, {s(s_t)} offen offset:{n*512}")
        NW_AFTER_Q += 1
    A(f"""
    v_lshrrev_b32 {v(t3)}, 4, {v(lane)}
    v_lshlrev_b32 {v(t3)}, 4, {v(t3)}
    s_and_b32 {s(s_t)}, {s(s_wave)}, 1
    s_lshl_b32 {s(s_t)}, {s(s_t)}, 6
    v_add_u32 {v(t3)}, {s(s_t)}, {v(t3)}
    global_load_dwordx4 {v(b2r,4)}, {v(t3)}, s[18:19]
""")
    NW_AFTER_Q += 1
    NW_AFTER_CELLS = NW_AFTER_Q + 9
    A(f"""
    v_lshlrev_b32 {v(j8)}, 3, {v(t1)}
    v_bfe_u32 {v(t3)}, {v(t1)}, 1, 1
    v_lshrrev_b32 {v(ce0)}, 3, {v(t1)}
    v_lshl_or_b32 {v(ce0)}, {v(ce0)}, 1, {v(t3)}
    v_and_b32 {v(t3)}, 1, {v(t1)}
    v_lshl_or_b32 {v(ce0)}, {v(t3)}, 3, {v(ce0)}
    v_bfe_u32 {v(t3)}, {v(t1)}, 2, 1
    v_lshl_or_b32 {v(ce0)}, {v(t3)}, 4, {v(ce0)}
    v_lshrrev_b32 {v(t3)}, 3, {v(ce0)}
    v_lshlrev_b32 {v(cn0)}, 1, {v(t2)}
    v_sub_u32 {v(t3)}, {v(t3)}, {v(cn0)}
    v_mov_b32 {v(cn0)}, 0x3f803f80
    v_cmp_eq_u32 vcc, 0, {v(t3)}
    s_nop 1
    v_cndmask_b32 {v(A5[0]+2)}, 0, {v(cn0)}, vcc
    v_cndmask_b32 {v(A5[1]+2)}, 0, {v(cn0)}, vcc
    v_cmp_eq_u32 vcc, 1, {v(t3)}
    s_nop 1
    v_cndmask_b32 {v(A5[0]+3)}, 0, {v(cn0)}, vcc
    v_cndmask_b32 {v(A5[1]+3)}, 0, {v(cn0)}, vcc
    v_and_b32 {v(t3)}, 3, {v(ce0)}
    v_lshlrev_b32 {v(cw0)}, 10, {v(t3)}
    v_lshrrev_b32 {v(cn0)}, 2, {v(ce0)}
    v_lshl_add_u32 {v(cw0)}, {v(cn0)}, 7, {v(cw0)}
    v_add_u32 {v(cw0)}, m0, {v(cw0)}
    v_and_b32 {v(cn0)}, 1, {v(t1)}
    v_lshl_or_b32 {v(t3)}, {v(cn0)}, 2, {v(t3)}
    v_xor_b32 {v(t3)}, {v(t3)}, {v(t2)}
""")
    for q in range(4):
        A(f"v_xor_b32 {v(ar[q])}, {2*q}, {v(t3)}")
        A(f"v_lshl_add_u32 {v(ar[q])}, {v(ar[q])}, 4, {v(cw0)}")
    A(f"""
    v_bfe_u32 {v(t3)}, {v(lane)}, 4, 1
    v_lshlrev_b32 {v(t3)}, 2, {v(t3)}
    v_and_b32 {v(cn0)}, 7, {v(lane)}
    v_xor_b32 {v(t3)}, {v(t3)}, {v(cn0)}
""")
    for q in range(4):
        A(f"v_xor_b32 {v(dq[q])}, {q}, {v(t3)}")
        A(f"v_lshlrev_b32 {v(dq[q])}, 3, {v(dq[q])}")
    A(f"""
    v_lshlrev_b32 {v(ce0)}, 2, {v(ce0)}
    v_add_u32 {v(ce0)}, {L_LB}, {v(ce0)}
    v_lshrrev_b32 {v(cw0)}, 3, {v(lane)}
    v_lshlrev_b32 {v(cw0)}, 4, {v(cw0)}
    v_add_u32 {v(cw0)}, {L_LA}, {v(cw0)}
    v_lshlrev_b32 {v(cn0)}, 6, {v(t2)}
    v_add_u32 {v(cn0)}, {L_LA}, {v(cn0)}
K2_INIT:
    v_mov_b32 {v(nn)}, 0
    v_mov_b32 {v(nn+1)}, 0
    v_mov_b32 {v(dd)}, 0
    v_mov_b32 {v(dd+1)}, 0
    v_mov_b32 {v(guard)}, 0
    v_mov_b32 {v(deg)}, 0
    s_mul_i32 {s(s_t)}, {s(s_wave)}, {ROWB}
    v_lshlrev_b32 {v(t0)}, 4, {v(lane)}
    v_add_u32 {v(t1)}, {s(s_t)}, {v(t0)}
""")
    assert dd == nn + 2
    for k in range(5):
        A(f"ds_write_b128 {v(t1)}, {v(nn,4)} offset:{k*8*ROWB}")
    A(f"""
    v_lshlrev_b32 {v(t1)}, 2, v0
    v_cmp_gt_u32 vcc, {ROWB // 4}, v0
    s_and_saveexec_b64 {s(sA,2)}, vcc
    ds_write_b32 {v(t1)}, {v(nn)} offset:{40*ROWB}
    s_mov_b64 exec, {s(sA,2)}
K2_ROUND:
    v_mov_b32 {v(tt)}, {PADW}
    v_mov_b32 {v(tt+1)}, {PADW}
    v_mov_b32 {v(rr)}, {PADW}
    v_mov_b32 {v(rr+1)}, {PADW}
    v_mov_b32 {v(ss)}, {PADE}
    v_mov_b32 {v(ss+1)}, {PADE}
    v_mov_b32 {v(c64a)}, {PADE}
    v_mov_b32 {v(c64a+1)}, {PADE}
    v_lshlrev_b32 {v(t1)}, 4, v0
    v_add_u32 {v(t1)}, {L_LA}, {v(t1)}
    v_mov_b32 {v(t2)}, 0
    v_lshlrev_b32 {v(t3)}, 2, v0
    ds_write_b128 {v(t1)}, {v(tt,4)}
    ds_write_b128 {v(t1)}, {v(tt,4)} offset:8192
    ds_write_b128 {v(t1)}, {v(ss,4)} offset:16384
    ds_write_b128 {v(t1)}, {v(ss,4)} offset:24576
    v_cmp_gt_u32 vcc, 68, v0
    s_and_saveexec_b64 {s(sA,2)}, vcc
    ds_write_b32 {v(t3)}, {v(t2)} offset:{L_CNT}
    s_mov_b64 exec, {s(sA,2)}
    v_mov_b32 {v(t3)}, 4
    s_waitcnt lgkmcnt(0)
    s_barrier
    s_cmp_eq_u32 {s(s_first)}, 0
    s_cbranch_scc1 K2_W0
    s_waitcnt vmcnt({NW_AFTER_CELLS})
    s_branch K2_W1
K2_W0:
    s_waitcnt vmcnt(0)
K2_W1:
""")
    assert rr == tt + 2 and c64a == ss + 2
    for k in range(16):
        A(f"v_cmp_gt_u32 {s(MK+2*k,2)}, {s(s_inv)}, {v(CW+k)}")
        A(f"v_lshlrev_b32_sdwa {v(CA+k)}, 2, {v(CW+k)} dst_sel:BYTE_0 dst_unused:UNUSED_PAD src0_sel:DWORD src1_sel:DWORD")
    for k in range(16):
        A(f"s_mov_b64 exec, {s(MK+2*k,2)}")
        A(f"ds_add_rtn_u32 {v(RK+k)}, {v(CA+k)}, {v(t3)} offset:{L_CNT}")
    A("s_mov_b64 exec, -1")
    A(f"v_max3_u32 {v(t1)}, {v(CW)}, {v(CW+1)}, {v(CW+2)}")
    for k in range(3, 15, 2):
        A(f"v_max3_u32 {v(t1)}, {v(t1)}, {v(CW+k)}, {v(CW+k+1)}")
    A(f"""
    v_max_u32 {v(t1)}, {v(t1)}, {v(CW+15)}
    v_cmp_lt_u32 vcc, {INVAL + 31*4}, {v(t1)}
    s_cbranch_vccz K2_NOOVF
    v_mov_b32 {v(t2)}, {L_FLAG}
    ds_write_b32 {v(t2)}, {v(t3)}
K2_NOOVF:
    s_cmp_eq_u32 {s(s_first)}, 0
    s_cbranch_scc1 K2_NOQ
    s_waitcnt vmcnt({NW_AFTER_Q})
""")
    for q in range(4):
        c = "0" if q == 0 else v(DQ, 16)
        A(f"v_mfma_f32_32x32x16_bf16 {v(DQ,16)}, {v(AX[q],4)}, {v(WB+4*q,4)}, {c}")
    A(f"""
    s_mov_b32 {s(s_t)}, {f32(-LOG2E)}
    v_lshlrev_b32 {v(npad)}, 16, {v(npad)}
    v_mul_f32 {v(npad)}, {s(s_t)}, {v(npad)}
    v_lshrrev_b32 {v(t2)}, 5, {v(lane)}
    v_mul_u32_u24 {v(t2)}, {4*ROWB}, {v(t2)}
    v_add_u32 {v(t2)}, {v(t2)}, {v(j8)}
    s_lshr_b32 {s(sA)}, {s(s_wave)}, 2
    s_mul_i32 {s(sA)}, {s(sA)}, {32*ROWB}
    s_bfe_u32 {s(sB)}, {s(s_wave)}, 0x10001
    s_lshl_b32 {s(sB)}, {s(sB)}, 8
    s_add_u32 {s(sA)}, {s(sA)}, {s(sB)}
    s_and_b32 {s(sB)}, {s(s_wave)}, 1
    s_lshl_b32 {s(sB)}, {s(sB)}, 2
    s_add_u32 {s(sA)}, {s(sA)}, {s(sB)}
    v_add_u32 {v(t2)}, {s(sA)}, {v(t2)}
    s_nop 7
""")

    def qpart(rs):
        for r in rs:
            A(f"v_fma_f32 {v(DQ+r)}, {v(DQ+r)}, {s(s_t)}, {v(npad)}")
        for r in rs:
            A(f"v_and_b32 {v(WB+r)}, 0xffff0000, {v(DQ+r)}")
        for r in rs:
            A(f"v_sub_f32 {v(DQ+r)}, {v(DQ+r)}, {v(WB+r)}")
        for r in rs:
            A(f"v_cvt_pk_bf16_f32 {v(DQ+r)}, {v(WB+r)}, {v(DQ+r)}")
        for r in rs:
            A(f"ds_write_b32 {v(t2)}, {v(DQ+r)} offset:{1024 + (8*(r//4) + r%4)*ROWB}")
    qpart(range(4))
    A(f"s_cmp_ge_u32 {s(s_wave)}, 4\ns_cbranch_scc1 K2_QD")
    qpart(range(4, 16))
    A(f"""
K2_QD:
    s_and_b32 {s(s_t)}, {s(s_wave)}, 1
    s_lshl_b32 {s(s_t)}, {s(s_t)}, 13
    s_add_u32 {s(s_t)}, {s(s_t)}, {WS_W2}
    s_add_u32 {s(s_u)}, {s(s_t)}, 4096
    v_lshlrev_b32 {v(t0)}, 4, {v(lane)}
    s_waitcnt lgkmcnt(0)
""")
    for i in range(8):
        A(f"buffer_load_dwordx4 {v(W2+4*i,4)}, {v(t0)}, {s(SW,4)}, {s(s_t if i < 4 else s_u)} offen offset:{(i%4)*1024}")
    A(f"""
    s_mov_b32 {s(s_first)}, 0
K2_NOQ:
    v_lshlrev_b32 {v(t0)}, 2, {v(lane)}
    v_mov_b32 {v(t2)}, {L_FLAG}
    s_waitcnt lgkmcnt(0)
    s_barrier
    ds_read_b32 {v(t1)}, {v(t0)} offset:{L_CNT}
    ds_read_b32 {v(t2)}, {v(t2)}
    s_waitcnt lgkmcnt(0)
    v_add_u32 {v(t3)}, 31, {v(t1)}
    v_and_b32 {v(t3)}, -32, {v(t3)}
    v_readfirstlane_b32 {s(sA)}, {v(t2)}
    v_mov_b32 {v(t0)}, {v(t3)}
    v_sub_u32 {v(npad)}, {v(t3)}, {v(t1)}
    s_nop 0
    v_add_u32_dpp {v(t0)}, {v(t0)}, {v(t0)} row_shr:1 row_mask:0xf bank_mask:0xf bound_ctrl:0
    s_nop 1
    v_add_u32_dpp {v(t0)}, {v(t0)}, {v(t0)} row_shr:2 row_mask:0xf bank_mask:0xf bound_ctrl:0
    s_nop 1
    v_add_u32_dpp {v(t0)}, {v(t0)}, {v(t0)} row_shr:4 row_mask:0xf bank_mask:0xf bound_ctrl:0
    s_nop 1
    v_add_u32_dpp {v(t0)}, {v(t0)}, {v(t0)} row_shr:8 row_mask:0xf bank_mask:0xf bound_ctrl:0
    s_nop 1
    v_add_u32_dpp {v(t0)}, {v(t0)}, {v(t0)} row_bcast:15 row_mask:0xa bank_mask:0xf
    s_nop 1
    v_add_u32_dpp {v(t0)}, {v(t0)}, {v(t0)} row_bcast:31 row_mask:0xc bank_mask:0xf
    s_nop 1
    v_readlane_b32 {s(sB)}, {v(t0)}, 63
    v_sub_u32 {v(t0)}, {v(t0)}, {v(t3)}
    v_add_u32 {v(t0)}, {L_LA}, {v(t0)}
    s_cmp_gt_u32 {s(sB)}, {CAPB}
    s_cselect_b32 {s(s_t)}, 1, 0
    s_or_b32 {s(sA)}, {s(sA)}, {s(s_t)}
    s_cbranch_scc1 K2_GOSLOW
""")
    for k in range(16):
        A(f"ds_bpermute_b32 {v(CA+k)}, {v(CA+k)}, {v(t0)}")
    A(f"v_add_u32 {v(deg)}, {v(deg)}, {v(t1)}")
    A(f"""
    s_add_u32 {s(sB)}, {s(sB)}, 127
    s_lshr_b32 {s(sB)}, {s(sB)}, 7
    s_add_u32 {s(s_rem)}, {s(sB)}, 7
    s_sub_u32 {s(s_rem)}, {s(s_rem)}, {s(s_wave)}
    s_lshr_b32 {s(s_rem)}, {s(s_rem)}, 3
    s_lshr_b32 {s(s_t)}, {s(sB)}, 3
    s_mul_i32 {s(s_t)}, {s(s_t)}, {s(s_wave)}
    s_and_b32 {s(sB)}, {s(sB)}, 7
    s_min_u32 {s(sB)}, {s(sB)}, {s(s_wave)}
    s_add_u32 {s(s_t)}, {s(s_t)}, {s(sB)}
    s_lshl_b32 {s(s_t)}, {s(s_t)}, 7
    v_add_u32 {v(la_w)}, {s(s_t)}, {v(cw0)}
    v_add_u32 {v(la_e)}, {s(s_t)}, {v(ce0)}
    v_add_u32 {v(la_n)}, {s(s_t)}, {v(cn0)}
""")
    EI = AX[0]
    for k in range(16):
        A(f"v_lshrrev_b32 {v(EI+k)}, 20, {v(CW+k)}")
        A(f"v_add_u32 {v(EI+k)}, {v(EI+k)}, {v(EB + k//4)}")
    for k in range(16):
        if k % 4 == 0:
            A(f"s_waitcnt lgkmcnt({12 - k})")
        A(f"v_add_u32 {v(CA+k)}, {v(CA+k)}, {v(RK+k)}")
    for k in range(16):
        A(f"s_mov_b64 exec, {s(MK+2*k,2)}")
        A(f"ds_write2st64_b32 {v(CA+k)}, {v(CW+k)}, {v(EI+k)} offset0:0 offset1:64")
    A("s_mov_b64 exec, -1")
    A(f"""
    s_waitcnt lgkmcnt(0)
    s_barrier
""")

    def dma():
        so = [s(s_o3), s(s_o2), s(s_o1), "0"]
        return [f"buffer_load_dwordx4 {v(lw+q)}, {s(SX,4)}, {so[q]} idxen offset:{q*1024} lds" for q in range(4)]

    def idx():
        return [f"v_and_or_b32 {v(lw+q)}, {v(lw+q)}, {s(s_msk)}, {v(dq[q])}" for q in range(4)]

    def rowaddr(p):
        return [f"v_and_b32 {v(nw)}, 63, {v(nw)}", f"v_and_b32 {v(nw+1)}, 63, {v(nw+1)}",
                f"v_mad_u32_u24 {v(ra[p])}, {v(nw)}, {s(s_rowb)}, {v(j8)}",
                f"v_mad_u32_u24 {v(ra[p]+1)}, {v(nw+1)}, {s(s_rowb)}, {v(j8)}"]

    def qread(n, p):
        off = 1024 + (n // 2) * 256 + (n % 2) * 4
        return [f"ds_read_b32 {v(B5[n]+2+c)}, {v(ra[p]+c)} offset:{off}" for c in range(2)]

    def aread(q):
        return f"ds_read_b128 {v(AX[q],4)}, {v(ar[q])}"

    def mf(n, dst, p):
        m = []
        for q in range(4):
            c = "0" if q == 0 else v(dst, 16)
            m.append(f"v_mfma_f32_32x32x16_bf16 {v(dst,16)}, {v(AX[q],4)}, {v(W[n][q],4)}, {c}")
        m.append(f"v_mfma_f32_32x32x16_bf16 {v(dst,16)}, {v(A5[p],4)}, {v(B5[n],4)}, {v(dst,16)}")
        return m

    A(f"""
    ds_read_b128 {v(lw,4)}, {v(la_w)}
    ds_read_b32 {v(le)}, {v(la_e)}
    ds_read2_b32 {v(nw,2)}, {v(la_n)} offset0:0 offset1:8
    s_waitcnt lgkmcnt(2)
""")
    A("\n".join(idx()))
    A("\n".join(dma()))
    A(f"s_waitcnt lgkmcnt(0)")
    A(f"buffer_load_dwordx2 {v(A5[0],2)}, {v(le)}, {s(SE,4)}, 0 idxen")
    A(f"ds_read_b128 {v(lw,4)}, {v(la_w)} offset:128")
    A(f"ds_read_b32 {v(le)}, {v(la_e)} offset:128")
    A("\n".join(rowaddr(0)))
    for n in range(4):
        A("\n".join(qread(n, 0)))
    QV = D[1]
    A(f"""
    s_mul_i32 {s(s_t)}, {s(s_wave)}, {ROWB}
    v_lshrrev_b32 {v(t0)}, 5, {v(lane)}
    v_lshl_add_u32 {v(t1)}, {v(t0)}, 8, {v(j8)}
    v_add_u32 {v(t1)}, {s(s_t)}, {v(t1)}
    v_lshl_add_u32 {v(t2)}, {v(t0)}, 8, {v(t1)}
    v_cvt_f32_u32 {v(npad)}, {v(npad)}
    v_mul_f32 {v(npad)}, {f32(-0.25)}, {v(npad)}
""")
    for k in range(5):
        A(f"ds_read_b64 {v(QV+2*k,2)}, {v(t1)} offset:{1024 + k*8*ROWB}")
    for k in range(5):
        A(f"s_add_u32 {s(s_t)}, {s(s_wave)}, {8*k}")
        A(f"v_readlane_b32 {s(MK+k)}, {v(npad)}, {s(s_t)}")
    A("s_waitcnt lgkmcnt(0)")
    for r in range(10):
        A(f"v_lshlrev_b32 {v(EX+r)}, 16, {v(QV+r)}")
        A(f"v_and_b32 {v(QV+r)}, 0xffff0000, {v(QV+r)}")
        A(f"v_add_f32 {v(QV+r)}, {v(QV+r)}, {v(EX+r)}")
    for r in range(10):
        A(f"v_exp_f32 {v(EX+r)}, {v(QV+r)}")
    for r in range(10):
        A(f"v_add_f32 {v(EX+r)}, 1.0, {v(EX+r)}")
    for r in range(10):
        A(f"v_rcp_f32 {v(EX+r)}, {v(EX+r)}")
    for r in range(10):
        A(f"v_mul_f32 {v(QV+r)}, {v(QV+r)}, {v(EX+r)}")
    for r in range(10):
        A(f"v_mul_f32 {v(QV+r)}, {s(MK + r//2)}, {v(QV+r)}")
    C6 = D[0]
    for r in range(8):
        A(f"v_cvt_f64_f32 {v(C6+2*r,2)}, {v(QV+r)}")
    A(f"v_cvt_f64_f32 {v(EX,2)}, {v(QV+8)}")
    A(f"v_cvt_f64_f32 {v(EX+2,2)}, {v(QV+9)}")
    for r in range(10):
        src = C6 + 2 * r if r < 8 else EX + 2 * (r - 8)
        A(f"ds_add_f64 {v(t2)}, {v(src,2)} offset:{(r//2)*8*ROWB + (r%2)*256}")
    A("\n".join(idx()))
    A(f"""
    v_mov_b32 {v(nn)}, 0
    v_mov_b32 {v(nn+1)}, 0
    v_mov_b32 {v(dd)}, 1.0
    v_mov_b32 {v(dd+1)}, 1.0
    v_add_u32 {v(ra[1])}, {40*ROWB}, {v(j8)}
    v_add_u32 {v(ra[1]+1)}, {40*ROWB}, {v(j8)}
    s_cmp_eq_u32 {s(s_rem)}, 0
    s_cbranch_scc1 K2_DONE
    s_setprio 3
    s_waitcnt vmcnt(0)
""")
    for q in range(4):
        A(aread(q))
    A("s_waitcnt lgkmcnt(0)")
    A("\n".join(dma()))
    A(f"buffer_load_dwordx2 {v(A5[1],2)}, {v(le)}, {s(SE,4)}, 0 idxen")
    A("\n".join(mf(0, D[0], 0)))
    A(f"""
    s_nop 15
    s_cmp_eq_u32 {s(s_safe)}, 0
    s_cbranch_scc0 K2_LOOP_S
""")

    def flush(bprev, p, safe):
        o = []
        if not safe:
            o.append(f"v_pk_mul_f32 {v(ss,2)}, {v(nn,2)}, {v(rr,2)}")
            src = ss
        else:
            src = nn
        o2 = [f"v_cvt_f64_f32 {v(c64a,2)}, {v(src)}", f"v_cvt_f64_f32 {v(c64b,2)}, {v(src+1)}"]
        o3 = [f"ds_add_f64 {v(ra[p])}, {v(c64a,2)} offset:{bprev*256}",
              f"ds_add_f64 {v(ra[p]+1)}, {v(c64b,2)} offset:{bprev*256}"]
        return o, o2, o3

    def step(b, p, safe):
        cur, nxt = D[b % 2], D[(b + 1) % 2]
        nb = (b + 1) % 4
        m = mf(nb, nxt, p if b < 3 else p ^ 1)
        tr = []
        if not safe:
            tr += [f"v_rcp_f32 {v(rr)}, {v(dd)}", f"v_rcp_f32 {v(rr+1)}, {v(dd+1)}"]
        tr += [f"v_exp_f32 {v(EX+i)}, {v(cur+i)}" for i in range(16)]
        pre = [[] for _ in range(5)]
        post = [[] for _ in range(5)]
        tail = []
        if b == 0:
            post[0] += [f"ds_read2_b32 {v(nw,2)}, {v(la_n)} offset0:{32*(p+1)} offset1:{32*(p+1)+8}",
                        f"ds_read_b128 {v(lw,4)}, {v(la_w)} offset:{128*(p+2)}",
                        f"ds_read_b32 {v(le)}, {v(la_e)} offset:{128*(p+2)}"]
            if p == 1:
                tail += [f"v_add_u32 {v(x)}, 256, {v(x)}" for x in (la_w, la_e, la_n)]
        if b == 1:
            pre[0] += ["s_waitcnt lgkmcnt(2)"]
            tail += rowaddr(p ^ 1) + idx()
        if b == 2:
            pre[0] += qread(0, p ^ 1) + qread(1, p ^ 1) + ["s_waitcnt vmcnt(1)"]
            for q in range(4):
                post[q].append(aread(q))
        if b == 3:
            pre[0] += ["s_waitcnt lgkmcnt(2)"]
            post[0] += dma()
            post[1] += [f"buffer_load_dwordx2 {v(A5[p],2)}, {v(le)}, {s(SE,4)}, 0 idxen"]
            post[2] += qread(2, p ^ 1) + qread(3, p ^ 1)
            pre[4] += ["s_waitcnt vmcnt(5)"]
        o = []
        ti = 0
        for k in range(5):
            o += pre[k] + [m[k]] + post[k]
            if k < 4:
                o += tr[ti:ti + 3]
                ti += 3
        o += tr[ti:]
        if not safe:
            o.append(f"v_max3_f32 {v(guard)}, {v(guard)}, {v(dd)}, {v(dd+1)}")
        o += tail
        f1, f2, f3 = flush((b - 1) % 4, p if b > 0 else p ^ 1, safe)
        if not safe:
            o += f1
            o.append(f"v_pk_add_f32 {v(dd,2)}, {v(EX,2)}, 1.0 op_sel_hi:[1,0]")
            o += f2 + f3
            n_ = v(cur, 2)
            for k in range(1, 8):
                e_, z_ = v(EX + 2 * k, 2), v(cur + 2 * k, 2)
                o.append(f"v_pk_fma_f32 {v(tt,2)}, {n_}, {e_}, {n_}")
                o.append(f"v_pk_fma_f32 {v(nn,2)}, {z_}, {v(dd,2)}, {v(tt,2)}")
                o.append(f"v_pk_fma_f32 {v(dd,2)}, {v(dd,2)}, {e_}, {v(dd,2)}")
                n_ = v(nn, 2)
        else:
            o += f2 + f3
            for k in range(8):
                o.append(f"v_pk_add_f32 {v(EX+2*k,2)}, {v(EX+2*k,2)}, 1.0 op_sel_hi:[1,0]")
            for i in range(16):
                o.append(f"v_rcp_f32 {v(EX+i)}, {v(EX+i)}")
            o.append(f"v_pk_mul_f32 {v(nn,2)}, {v(cur,2)}, {v(EX,2)}")
            for k in range(1, 8):
                o.append(f"v_pk_fma_f32 {v(nn,2)}, {v(cur+2*k,2)}, {v(EX+2*k,2)}, {v(nn,2)}")
        return o

    for safe in (False, True):
        sf = "S" if safe else "F"
        A(f".p2align 6\nK2_LOOP_{sf}:")
        for p in range(2):
            A(f"""
            s_cmp_gt_u32 {s(s_rem)}, 3
            s_cbranch_scc0 K2_PRIO_{sf}{p}
K2_PB_{sf}{p}:
""")
            for b in range(4):
                A("\n".join(step(b, p, safe)))
            A(f"s_sub_u32 {s(s_rem)}, {s(s_rem)}, 1")
            A(f"s_cmp_eq_u32 {s(s_rem)}, 0")
            if p == 0:
                A(f"s_cbranch_scc1 K2_DRAIN_{sf}0")
            else:
                A(f"s_cbranch_scc0 K2_LOOP_{sf}")
        for p in (1, 0):
            A(f"K2_DRAIN_{sf}{p}:")
            if not safe:
                A(f"v_rcp_f32 {v(rr)}, {v(dd)}\nv_rcp_f32 {v(rr+1)}, {v(dd+1)}")
                A(f"v_max3_f32 {v(guard)}, {v(guard)}, {v(dd)}, {v(dd+1)}")
            f1, f2, f3 = flush(3, p, safe)
            A("\n".join(f1 + f2 + f3))
            A("s_branch K2_DONE")
        for p in range(2):
            A(f"""
K2_PRIO_{sf}{p}:
            s_setprio 2
            s_cmp_eq_u32 {s(s_rem)}, 3
            s_cbranch_scc1 K2_PB_{sf}{p}
            s_setprio 1
            s_cmp_eq_u32 {s(s_rem)}, 2
            s_cbranch_scc1 K2_PB_{sf}{p}
            s_setprio 0
            s_branch K2_PB_{sf}{p}
""")

    A(f"""
K2_GOSLOW:
    s_mov_b32 {s(s_slow)}, 1
    s_mov_b32 {s(s_chunk)}, 0
K2_SLOWLOAD:
    s_waitcnt vmcnt(0) lgkmcnt(0)
    s_barrier
    s_mul_i32 {s(s_t)}, {s(s_chunk)}, {CH * 4}
    v_lshlrev_b32 {v(t0)}, 2, v0
""")
    for k in range(5):
        if k == 2:
            A(f"s_add_u32 {s(s_t)}, {s(s_t)}, 4096")
        if k == 4:
            A(f"s_add_u32 {s(s_t)}, {s(s_t)}, 4096")
        A(f"buffer_load_dword {v(RK+k)}, {v(t0)}, {s(SD,4)}, {s(s_t)} offen offset:{(k%2)*2048}")
        A(f"buffer_load_dword {v(RK+8+k)}, {v(t0)}, {s(SS,4)}, {s(s_t)} offen offset:{(k%2)*2048}")
    A(f"""
    s_mul_i32 {s(s_t)}, {s(s_chunk)}, {CH}
    v_mov_b32 {v(EB)}, {s(s_t)}
    v_mov_b32 {v(EB+1)}, {s(s_t)}
    v_mov_b32 {v(EB+2)}, {s(s_t)}
    v_mov_b32 {v(EB+3)}, {s(s_t)}
    v_mov_b32 {v(t3)}, {s(s_inv)}
""")
    for k in range(5, 16):
        A(f"v_mov_b32 {v(CW+k)}, {s(s_inv)}")
    A("s_waitcnt vmcnt(0)")
    for k in range(5):
        A(f"""
        v_add_u32 {v(t1)}, {512*k}, v0
        v_lshrrev_b32 {v(t2)}, 8, {v(RK+k)}
        v_lshl_or_b32 {v(t2)}, {v(RK+8+k)}, 6, {v(t2)}
        v_lshl_or_b32 {v(t2)}, {v(t1)}, 20, {v(t2)}
        v_and_b32 {v(RK+k)}, 255, {v(RK+k)}
        v_cmp_eq_u32 vcc, s2, {v(RK+k)}
        v_cmp_gt_u32 {s(sA,2)}, {s(s_u)}, {v(t1)}
        s_and_b64 vcc, vcc, {s(sA,2)}
        v_cndmask_b32 {v(CW+k)}, {v(t3)}, {v(t2)}, vcc
""".replace(f"v_add_u32 {v(t1)}, {512*k}, v0", f"s_movk_i32 {s(s_u)}, {CH}\nv_add_u32 {v(t1)}, {512*k}, v0"))
    A("s_branch K2_ROUND")

    A(f"""
K2_DONE:
    s_setprio 0
    s_cmp_eq_u32 {s(s_slow)}, 0
    s_cbranch_scc1 K2_FIN
    s_add_u32 {s(s_chunk)}, {s(s_chunk)}, 1
    s_cmp_lt_u32 {s(s_chunk)}, {NC}
    s_cbranch_scc1 K2_SLOWLOAD
K2_FIN:
    v_lshrrev_b32 {v(t0)}, 4, v0
    v_and_b32 {v(t1)}, 15, v0
    v_mul_u32_u24 {v(t2)}, {ROWB}, {v(t0)}
    v_lshl_add_u32 {v(t2)}, {v(t1)}, 6, {v(t2)}
    v_mul_u32_u24 {v(t3)}, {HB_STRIDE}, {v(t0)}
    v_lshl_add_u32 {v(t3)}, {v(t1)}, 4, {v(t3)}
    v_add_u32 {v(t3)}, {L_HBHI}, {v(t3)}
    s_waitcnt vmcnt(0) lgkmcnt(0)
    s_barrier
""")

    def stage1(roff):
        H = D[0]
        for i in range(4):
            A(f"ds_read_b128 {v(H+4*i,4)}, {v(t2)} offset:{roff*ROWB + 16*i}")
        for i in range(8):
            if i % 2 == 0:
                A(f"s_waitcnt lgkmcnt({3 - i//2})")
            A(f"v_cvt_f32_f64 {v(EX+i)}, {v(H+2*i,2)}")
        for i in range(0, 8, 2):
            A(f"v_max3_f32 {v(guard)}, abs({v(EX+i)}), abs({v(EX+i+1)}), {v(guard)}")
            A(f"v_cmp_u_f32 vcc, {v(EX+i)}, {v(EX+i+1)}")
            A(f"s_or_b64 {s(sA,2)}, {s(sA,2)}, vcc")
        for i in range(8):
            A(f"v_and_b32 {v(EX+8+i)}, 0xffff0000, {v(EX+i)}")
        for i in range(8):
            A(f"v_sub_f32 {v(EX+i)}, {v(EX+i)}, {v(EX+8+i)}")
        for i in range(4):
            A(f"v_cvt_pk_bf16_f32 {v(D[1]+i)}, {v(EX+8+2*i)}, {v(EX+9+2*i)}")
        for i in range(4):
            A(f"v_cvt_pk_bf16_f32 {v(D[1]+4+i)}, {v(EX+2*i)}, {v(EX+1+2*i)}")
        A(f"ds_write_b128 {v(t3)}, {v(D[1],4)} offset:{roff*HB_STRIDE}")
        A(f"ds_write_b128 {v(t3)}, {v(D[1]+4,4)} offset:{roff*HB_STRIDE + 16384}")
    A(f"s_mov_b64 {s(sA,2)}, 0")
    stage1(0)
    A(f"s_cmp_ge_u32 {s(s_wave)}, 2\ns_cbranch_scc1 K2_S1D")
    stage1(32)
    A(f"""
K2_S1D:
    v_cmp_lt_f32 vcc, {f32(2.0**100)}, {v(guard)}
    s_or_b64 vcc, vcc, {s(sA,2)}
    v_mov_b32 {v(t2)}, {L_FLAG + 4}
    s_cbranch_vccz K2_NOFL
    ds_write_b32 {v(t2)}, {v(t2)}
K2_NOFL:
    v_and_b32 {v(t0)}, 15, {v(lane)}
    s_lshr_b32 {s(s_t)}, {s(s_wave)}, 1
    s_lshl_b32 {s(s_t)}, {s(s_t)}, 4
    v_add_u32 {v(t0)}, {s(s_t)}, {v(t0)}
    v_lshrrev_b32 {v(t1)}, 4, {v(lane)}
    v_mul_u32_u24 {v(t3)}, {HB_STRIDE}, {v(t0)}
    v_lshl_add_u32 {v(t3)}, {v(t1)}, 4, {v(t3)}
    v_add_u32 {v(t3)}, {L_HBHI}, {v(t3)}
    v_lshlrev_b32 {v(le)}, 2, {v(t0)}
    ds_bpermute_b32 {v(le)}, {v(le)}, {v(deg)}
    s_waitcnt lgkmcnt(0)
    s_barrier
    ds_read_b32 {v(t2)}, {v(t2)}
""")
    for ks in range(4):
        A(f"ds_read_b128 {v(D[0]+4*ks,4)}, {v(t3)} offset:{ks*64}")
        A(f"ds_read_b128 {v(D[1]+4*ks,4)}, {v(t3)} offset:{ks*64 + 16384}")
    A(f"""
    s_waitcnt lgkmcnt(8)
    v_readfirstlane_b32 {s(sA)}, {v(t2)}
    s_cmp_lg_u32 {s(s_safe)}, 0
    s_cbranch_scc1 K2_GEMM
    s_cmp_eq_u32 {s(sA)}, 0
    s_cbranch_scc1 K2_GEMM
    s_mov_b32 {s(s_safe)}, 1
    s_waitcnt lgkmcnt(0)
    s_barrier
    s_branch K2_RESTART
K2_GEMM:
    s_cmp_ge_u32 {s(s_wave)}, 6
    s_cbranch_scc1 K2_END
    v_lshlrev_b32 {v(t0)}, 15, {v(t0)}
    v_lshl_add_u32 {v(t0)}, {v(t1)}, 4, {v(t0)}
    s_lshl_b32 {s(s_t)}, s2, 7
    s_and_b32 {s(s_u)}, {s(s_wave)}, 1
    s_lshl_b32 {s(s_u)}, {s(s_u)}, 6
    s_add_u32 {s(s_t)}, {s(s_t)}, {s(s_u)}
    v_cvt_f32_u32 {v(le)}, {v(le)}
    v_mul_f32 {v(le)}, 0.5, {v(le)}
    v_mul_f32 {v(le)}, 0.5, {v(le)}
""")
    O = EX
    for ks in range(4):
        for hl in range(2):
            A(f"s_waitcnt lgkmcnt({7 - 2*ks - hl})")
            for m in range(2):
                c = "0" if ks == 0 and hl == 0 else v(O + 4 * m, 4)
                A(f"v_mfma_f32_16x16x32_bf16 {v(O+4*m,4)}, {v(W2 + (m*4+ks)*4,4)}, {v(D[hl]+4*ks,4)}, {c}")
    BB = EX + 8
    for i in range(4):
        A(f"v_lshlrev_b32 {v(BB+2*i)}, 16, {v(b2r+i)}")
        A(f"v_and_b32 {v(BB+2*i+1)}, 0xffff0000, {v(b2r+i)}")
    for i in range(8):
        A(f"v_mul_f32 {v(BB+i)}, {v(le)}, {v(BB+i)}")
    A(f"s_mov_b32 {s(s_u)}, {f32(-LN2)}")
    for i in range(8):
        A(f"v_fma_f32 {v(O+i)}, {v(O+i)}, {s(s_u)}, {v(BB+i)}")
    for i in range(4):
        A(f"v_cvt_pk_bf16_f32 {v(BB+i)}, {v(O+2*i)}, {v(O+2*i+1)}")
    A(f"""
    buffer_store_dwordx4 {v(BB,4)}, {v(t0)}, {s(SO,4)}, {s(s_t)} offen
K2_END:
    s_endpgm
""")
    return nvgpr, 102


def kd(name, vg, sg):
    acc = (vg + 3) // 4 * 4
    return f""".p2align 6
.amdhsa_kernel {name}
  .amdhsa_next_free_vgpr {vg}
  .amdhsa_next_free_sgpr {sg}
  .amdhsa_accum_offset {acc}
  .amdhsa_group_segment_fixed_size 0
  .amdhsa_kernarg_size 88
  .amdhsa_user_sgpr_count 2
  .amdhsa_user_sgpr_kernarg_segment_ptr 1
  .amdhsa_system_sgpr_workgroup_id_x 1
  .amdhsa_float_denorm_mode_32 3
.end_amdhsa_kernel
"""


def main():
    ref = open(f"cdna_kernels/{NAME}.s.ref").read().split("\n")
    head = [l for l in ref if l.startswith(";") and "@launch" not in l and "Override" not in l and "grid=ceil" not in l]
    A = Asm()
    v1, s1 = gen_k1(A)
    v2, s2 = gen_k2(A)
    out = "\n".join(head) + "\n"
    out += f"; @launch kernel=k1_kernel grid=({NC + 6},1,1) block=(640,1,1) lds=32768\n"
    out += f"; @launch kernel=k2_kernel grid=({NB},1,1) block=(512,1,1) lds={L_END}\n"
    out += '.amdgcn_target "amdgcn-amd-amdhsa--gfx950"\n.text\n'
    out += A.text()
    out += '.section .rodata,"a"\n' + kd("k1_kernel", v1, s1) + kd("k2_kernel", v2, s2)
    path = sys.argv[1] if len(sys.argv) > 1 else f"cdna_kernels/{NAME}.s"
    open(path, "w").write(out)
    print("vgprs", v1, v2, "->", path)


if __name__ == "__main__":
    main()
```

```python
import sys, struct, os

NAME = "gather_scatter__edge_featured_mpnn_mpnn__graph"
KERN = NAME + "_kernel"
N, E = 10000, 640000
NB, CH = 256, 2500
LOG2E = 1.4426950408889634
LN2 = 0.6931471805599453
STAMP = int(os.environ.get("STAMP", "0"))
TM = "s_memtime" if STAMP == 2 else "s_memrealtime"
WS_STAMP = 24 << 20
POLLPOS = int(os.environ.get("POLLPOS", "1"))


def f32(x):
    return struct.unpack("<I", struct.pack("<f", x))[0]


CELLB = 128
BUCKB = 256 * CELLB
WS_L2 = NB * BUCKB
WS_CELLS_END = 2 * NB * BUCKB
WS_EPOCH = 20 << 20
STGB = 192
INVAL = 0xFFF00000

ROWB = 1536
L_CNT = 41 * ROWB
L_FLAG = L_CNT + 256
L_LA = 63488
L_LB = L_LA + 16384
L_XB = L_LB + 16384
L_W2S = L_XB + 8 * 4096
L_CNT1 = L_W2S + 16384
L_WBS = L_CNT1 + 1024
L_END = L_WBS + 16384
L_WA = L_XB
L_XO = L_XB + 24576
WAS = 320
CAPB = (4096 - 96) * 4
PADW = (16383 << 6) | 40
PADE = 0x7FFFFFF
HB_STRIDE = 272
L_HBHI = L_LA


class Asm:
    def __init__(self):
        self.lines = []

    def __call__(self, s):
        if isinstance(s, list):
            s = "\n".join(s)
        for ln in s.split("\n"):
            ln = ln.strip()
            if ln:
                self.lines.append(("" if ln.endswith(":") or ln.startswith(".") else "    ") + ln)

    def text(self):
        return "\n".join(self.lines) + "\n"


class Regs:
    def __init__(self, first):
        self.n = first

    def a(self, cnt=1, align=1):
        self.n = (self.n + align - 1) // align * align
        r = self.n
        self.n += cnt
        return r


def v(r, n=1):
    return f"v{r}" if n == 1 else f"v[{r}:{r + n - 1}]"


def s(r, n=1):
    return f"s{r}" if n == 1 else f"s[{r}:{r + n - 1}]"


def gen(A):
    R = Regs(1)
    lane = R.a()
    t0, t1, t2, t3 = R.a(), R.a(), R.a(), R.a()
    guard, deg, j8 = R.a(), R.a(), R.a()
    la_w, la_e, la_n = R.a(), R.a(), R.a()
    cw0, ce0, cn0 = R.a(), R.a(), R.a()
    le = R.a()
    ar = [R.a() for _ in range(4)]
    dq = [R.a() for _ in range(4)]
    lw = R.a(4, 2)
    nw = R.a(2, 2)
    ra = [R.a(2, 2), R.a(2, 2)]
    nn, dd, tt, rr, ss, c64a, c64b = [R.a(2, 2) for _ in range(7)]
    b2r = R.a(4, 2)
    npad = R.a()
    l16 = R.a()
    A5 = [R.a(4, 2), R.a(4, 2)]
    B5 = [R.a(4, 2) for _ in range(4)]
    D = [R.a(16, 2), R.a(16, 2)]
    EX = R.a(16, 2)
    AX = [R.a(4, 2) for _ in range(4)]
    XT = R.a(8, 2)
    W = [[R.a(4, 2) for q in range(4)] for n in range(4)]
    W2 = R.a(32, 2)
    nvgpr = R.n
    assert nvgpr <= 256, nvgpr
    POOL = D[0]
    CG = POOL
    RK = POOL + 20
    CA = POOL + 35
    EI = POOL + 50
    EB = POOL + 65
    junk = POOL + 70
    ova = POOL + 71
    assert AX[0] == POOL + 48 and XT == POOL + 64
    WB = POOL + 20
    DQ = W2 + 16
    W0 = W[0][0]
    DS_, SR_, CAD, WW, SD = W0, W0 + 8, W0 + 16, W0 + 24, W0 + 32
    GO = W0 + 52
    CI = W0 + 60
    WR = W2
    WCR = W2 + 8

    SX, SE, SXR, SW, SO, SS, SD_ = 28, 32, 36, 40, 44, 48, 52
    MK = 56
    s_tag, s_to = 86, 87
    s_wave, s_o3, s_o2, s_o1, s_msk, s_rowb, s_rem, s_x, s_slow, s_safe, s_chunk = range(88, 99)
    s_t, s_u, s_inv = 99, 100, 101
    sA, sB = 26, 27
    s_pb = 3
    OVM = 0
    STR = [MK + 28, 8, 10, 14, 4, 6, 12, 16, 18, 20]

    def stamp(i):
        if STAMP:
            A(f"s_waitcnt lgkmcnt(0)\n{TM} {s(STR[i],2)}\ns_waitcnt lgkmcnt(0)")

    def polls(k0):
        return [f"buffer_load_dwordx4 {v(CG+4*k,4)}, {v(l16)}, {s(SW,4)}, {s(s_pb)} offen offset:{k*1024} sc1" for k in range(k0, 4)]

    def ebase():
        o = [f"s_lshl_b32 {s(s_t)}, {s(s_wave)}, 5", f"v_lshrrev_b32 {v(EB)}, 3, {v(lane)}",
             f"v_add_u32 {v(EB)}, {s(s_t)}, {v(EB)}", f"v_mul_u32_u24 {v(EB)}, {CH}, {v(EB)}"]
        o += [f"v_add_u32 {v(EB+k)}, {8*CH*k}, {v(EB)}" for k in range(1, 4)]
        o += [f"v_mov_b32 {v(ova)}, 0"]
        return o

    def prefill():
        A(f"""
        v_mov_b32 {v(tt)}, {PADW}
        v_mov_b32 {v(tt+1)}, {PADW}
        v_mov_b32 {v(rr)}, {PADW}
        v_mov_b32 {v(rr+1)}, {PADW}
        v_mov_b32 {v(ss)}, {PADE}
        v_mov_b32 {v(ss+1)}, {PADE}
        v_mov_b32 {v(c64a)}, {PADE}
        v_mov_b32 {v(c64a+1)}, {PADE}
        v_lshlrev_b32 {v(t1)}, 4, v0
        v_add_u32 {v(t1)}, {L_LA}, {v(t1)}
        v_mov_b32 {v(t2)}, 0
        v_lshlrev_b32 {v(t3)}, 2, v0
        ds_write_b128 {v(t1)}, {v(tt,4)}
        ds_write_b128 {v(t1)}, {v(tt,4)} offset:8192
        ds_write_b128 {v(t1)}, {v(ss,4)} offset:16384
        ds_write_b128 {v(t1)}, {v(ss,4)} offset:24576
        v_cmp_gt_u32 vcc, 68, v0
        s_and_saveexec_b64 {s(sA,2)}, vcc
        ds_write_b32 {v(t3)}, {v(t2)} offset:{L_CNT}
        s_mov_b64 exec, {s(sA,2)}
""")
    assert rr == tt + 2 and c64a == ss + 2 and dd == nn + 2

    def zero_hsum():
        A(f"""
        v_mov_b32 {v(nn)}, 0
        v_mov_b32 {v(nn+1)}, 0
        v_mov_b32 {v(dd)}, 0
        v_mov_b32 {v(dd+1)}, 0
        v_mov_b32 {v(guard)}, 0
        v_mov_b32 {v(deg)}, 0
        s_mul_i32 {s(s_t)}, {s(s_wave)}, {ROWB}
        v_add_u32 {v(t1)}, {s(s_t)}, {v(l16)}
""")
        for k in range(5):
            A(f"ds_write_b128 {v(t1)}, {v(nn,4)} offset:{k*8*ROWB}")
        A(f"""
        v_lshlrev_b32 {v(t1)}, 2, v0
        v_cmp_gt_u32 vcc, {ROWB // 4}, v0
        s_and_saveexec_b64 {s(sA,2)}, vcc
        ds_write_b32 {v(t1)}, {v(nn)} offset:{40*ROWB}
        s_mov_b64 exec, {s(sA,2)}
""")

    A(f"""
.globl {KERN}
.p2align 8
.type {KERN},@function
{KERN}:
    s_cmp_ge_u32 s2, {NB}
    s_cbranch_scc1 K_END
    s_load_dwordx16 s[4:19], s[0:1], 0
    s_load_dwordx4 s[20:23], s[0:1], 64
    s_load_dwordx2 s[24:25], s[0:1], 80
    {TM + " " + s(STR[0],2) if STAMP else ""}
    v_lshrrev_b32 {v(t0)}, 6, v0
    v_and_b32 {v(lane)}, 63, v0
    v_readfirstlane_b32 {s(s_wave)}, {v(t0)}
    v_lshlrev_b32 {v(t0)}, 4, v0
    v_lshlrev_b32 {v(t1)}, 2, v0
    v_lshlrev_b32 {v(l16)}, 4, {v(lane)}
    s_mul_i32 {s(s_t)}, s2, {CH * 4}
    s_add_u32 {s(s_u)}, {s(s_t)}, 8192
    s_mov_b32 {s(SS+2)}, {E * 4}
    s_mov_b32 {s(SS+3)}, 0x20000
    s_mov_b32 {s(SD_+2)}, {E * 4}
    s_mov_b32 {s(SD_+3)}, 0x20000
    v_mov_b32 {v(nn)}, {INVAL}
    v_mov_b32 {v(nn+1)}, {INVAL}
    v_mov_b32 {v(dd)}, {INVAL}
    v_mov_b32 {v(dd+1)}, {INVAL}
    s_waitcnt lgkmcnt(0)
    {"s_mov_b32 " + s(s_x) + ", " + s(STR[0]) if STAMP else ""}
    s_mov_b32 {s(SD_)}, s10
    s_and_b32 {s(SD_+1)}, s11, 0xffff
    s_mov_b32 {s(SS)}, s8
    s_and_b32 {s(SS+1)}, s9, 0xffff
    buffer_load_dwordx4 {v(DS_,4)}, {v(t0)}, {s(SD_,4)}, {s(s_t)} offen
    buffer_load_dword {v(DS_+4)}, {v(t1)}, {s(SD_,4)}, {s(s_u)} offen
    buffer_load_dwordx4 {v(SR_,4)}, {v(t0)}, {s(SS,4)}, {s(s_t)} offen
    buffer_load_dword {v(SR_+4)}, {v(t1)}, {s(SS,4)}, {s(s_u)} offen
    s_add_u32 s26, s24, {WS_EPOCH}
    s_addc_u32 s27, s25, 0
    s_load_dword {s(s_tag)}, s[26:27], 0
""")
    for k in range(6):
        A(f"ds_write_b128 {v(t0)}, {v(nn,4)} offset:{8192*k}")
    A(f"""
    v_mul_u32_u24 {v(CI)}, {4*STGB}, {v(lane)}
    v_add_u32 {v(CI+1)}, {STGB}, {v(CI)}
    v_add_u32 {v(CI+2)}, {2*STGB}, {v(CI)}
    v_add_u32 {v(CI+3)}, {3*STGB}, {v(CI)}
    v_add_u32 {v(cw0)}, {L_CNT1}, {v(l16)}
    ds_write_b128 {v(cw0)}, {v(CI,4)}
    v_add_u32 {v(t2)}, 8192, {v(t0)}
    global_load_dwordx4 {v(WR,4)}, {v(t0)}, s[12:13]
    global_load_dwordx4 {v(WR+4,4)}, {v(t2)}, s[12:13]
    v_add_u32 {v(t2)}, {128*256}, {v(l16)}
    global_load_dwordx4 {v(WCR,4)}, {v(t2)}, s[12:13]
    s_mov_b32 {s(SXR)}, s4
    s_and_b32 {s(SXR+1)}, s5, 0xffff
    s_mov_b32 {s(SXR+2)}, {N * 128}
    s_mov_b32 {s(SXR+3)}, 0x20000
    v_lshrrev_b32 {v(t2)}, 3, v0
    v_xor_b32 {v(t3)}, v0, {v(t0)}
    v_and_b32 {v(t3)}, 0x70, {v(t3)}
    v_lshl_add_u32 {v(t3)}, {v(t2)}, 15, {v(t3)}
    s_lshl_b32 {s(s_u)}, s2, 7
    s_lshl_b32 {s(s_t)}, {s(s_wave)}, 10
    s_add_u32 m0, {s(s_t)}, {L_XO}
    v_lshlrev_b32 {v(GO)}, 15, {v(t2)}
    buffer_load_dwordx4 {v(t3)}, {s(SXR,4)}, {s(s_u)} offen lds
    v_lshrrev_b32 {v(t3)}, 4, {v(lane)}
    v_lshlrev_b32 {v(j8)}, 6, {v(t3)}
    v_sub_u32 {v(j8)}, {v(l16)}, {v(j8)}
    v_and_b32 {v(j8)}, 0xff, {v(j8)}
    v_lshl_add_u32 {v(j8)}, {v(t3)}, 8, {v(j8)}
    s_lshl_b32 {s(s_t)}, {s(s_wave)}, 11
    s_add_u32 m0, {s(s_t)}, {L_WBS}
    s_add_u32 {s(s_u)}, {s(s_t)}, 16384
    v_add_u32 {v(j8)}, {s(s_u)}, {v(j8)}
    global_load_lds_dwordx4 {v(j8)}, s[12:13]
    global_load_lds_dwordx4 {v(j8)}, s[12:13] offset:1024
    v_and_b32 {v(t1)}, 31, {v(lane)}
    s_and_b32 {s(s_u)}, {s(s_wave)}, 3
    s_lshl_b32 {s(s_t)}, {s(s_u)}, 6
    v_lshl_add_u32 {v(t3)}, {v(t1)}, 1, {s(s_t)}
    global_load_ushort {v(npad)}, {v(t3)}, s[14:15]
""")
    NV0 = 11
    A(f"""
    s_mov_b32 {s(SW)}, s24
    s_and_b32 {s(SW+1)}, s25, 0xffff
    s_mov_b32 {s(SW+2)}, {WS_CELLS_END}
    s_mov_b32 {s(SW+3)}, 0x20000
    s_lshl_b32 {s(s_pb)}, s2, 15
    s_lshl_b32 {s(s_t)}, {s(s_wave)}, 12
    s_add_u32 {s(s_pb)}, {s(s_pb)}, {s(s_t)}
    v_and_b32 {v(t3)}, 7, v0
    v_lshl_add_u32 {v(GO)}, {v(t3)}, 4, {v(GO)}
    v_mul_u32_u24 {v(ce0)}, {STGB}, {v(t2)}
    v_mad_u32_u24 {v(ce0)}, {v(t3)}, 12, {v(ce0)}
    v_add_u32 {v(la_w)}, {64*STGB}, {v(ce0)}
    v_add_u32 {v(cn0)}, {128*STGB}, {v(ce0)}
    v_add_u32 {v(la_e)}, {192*STGB}, {v(ce0)}
    v_lshlrev_b32 {v(WW)}, 22, v0
    v_add_u32 {v(WW+1)}, {1 << 20}, {v(WW)}
    v_add_u32 {v(WW+2)}, {2 << 20}, {v(WW)}
    v_add_u32 {v(WW+3)}, {3 << 20}, {v(WW)}
    v_lshlrev_b32 {v(WW+4)}, 20, v0
    v_or_b32 {v(WW+4)}, {2048 << 20}, {v(WW+4)}
    v_mov_b32 {v(t3)}, 4
    s_movk_i32 {s(s_u)}, {CH - 2048}
    s_mov_b32 {s(s_t)}, {L_CNT1}
    v_cmp_gt_u32 {s(MK,2)}, {s(s_u)}, v0
    s_lshl_b32 {s(MK+2)}, s2, 7
    s_add_u32 {s(MK+3)}, {s(MK+2)}, {64*BUCKB}
    s_add_u32 {s(MK+4)}, {s(MK+2)}, {128*BUCKB}
    s_add_u32 {s(MK+5)}, {s(MK+2)}, {192*BUCKB}
    s_waitcnt lgkmcnt(0)
    s_mul_i32 {s(sA)}, {s(s_tag)}, 0x9e3779b1
    s_add_u32 {s(sA)}, {s(sA)}, 0x7f4a7c15
    s_andn2_b32 {s(sA)}, {s(sA)}, 3
    s_andn2_b32 {s(s_tag)}, {s(s_tag)}, 3
    s_cmp_eq_u32 {s(sA)}, {s(s_tag)}
    s_cselect_b32 {s(sB)}, 4, 0
    s_add_u32 {s(s_tag)}, {s(sA)}, {s(sB)}
    s_barrier
""")
    for k in range(4):
        A(f"v_mov_b32 {v(SD+4*k+3)}, {s(s_tag)}")
    A(f"s_waitcnt vmcnt({NV0 - 1})")
    stamp(1)
    for i in range(4):
        A(f"v_and_b32 {v(CAD+i)}, 255, {v(DS_+i)}")
        A(f"v_lshl_add_u32 {v(CAD+i)}, {v(CAD+i)}, 2, {s(s_t)}")
        A(f"ds_add_rtn_u32 {v(CAD+i)}, {v(CAD+i)}, {v(t3)}")
    A(f"""
    s_waitcnt vmcnt({NV0 - 2})
    v_and_b32 {v(CAD+4)}, 255, {v(DS_+4)}
    v_lshl_add_u32 {v(CAD+4)}, {v(CAD+4)}, 2, {s(s_t)}
    s_mov_b64 exec, {s(MK,2)}
    ds_add_rtn_u32 {v(CAD+4)}, {v(CAD+4)}, {v(t3)}
    s_mov_b64 exec, -1
""")
    for i in range(5):
        A(f"v_lshrrev_b32 {v(DS_+i)}, 8, {v(DS_+i)}")
        A(f"v_or_b32 {v(WW+i)}, {v(WW+i)}, {v(DS_+i)}")
    A(f"s_waitcnt vmcnt({NV0 - 4})")
    for i in range(5):
        A(f"v_lshl_or_b32 {v(WW+i)}, {v(SR_+i)}, 6, {v(WW+i)}")
    for i in range(5):
        if i == 4:
            A(f"s_mov_b64 exec, {s(MK,2)}")
        A(f"s_waitcnt lgkmcnt(4)")
        A(f"ds_write_b32 {v(CAD+i)}, {v(WW+i)}")
    A(f"""
    s_mov_b64 exec, -1
    s_waitcnt lgkmcnt(0)
    s_barrier
""")
    stamp(2)
    A(f"ds_read_b128 {v(DS_,4)}, {v(cw0)}")
    adr = [ce0, la_w, cn0, la_e]
    for k in range(4):
        A(f"ds_read2_b32 {v(SD+4*k,2)}, {v(adr[k])} offset0:0 offset1:1")
        A(f"ds_read_b32 {v(SD+4*k+2)}, {v(adr[k])} offset:8")
    A("s_waitcnt lgkmcnt(8)")
    for i in range(4):
        A(f"v_sub_u32 {v(DS_+i)}, {v(DS_+i)}, {v(CI+i)}")
    A(f"""
    v_max3_u32 {v(DS_)}, {v(DS_)}, {v(DS_+1)}, {v(DS_+2)}
    v_max_u32 {v(DS_)}, {v(DS_)}, {v(DS_+3)}
    v_cmp_lt_u32 vcc, 96, {v(DS_)}
    s_cbranch_vccnz K_POVF
K_PSTORE:
""")
    for k in range(4):
        A(f"s_waitcnt lgkmcnt({6 - 2*k})")
        A(f"buffer_store_dwordx4 {v(SD+4*k,4)}, {v(GO)}, {s(SW,4)}, {s(MK+2+k)} offen sc1")
    stamp(3)
    nlate = 4
    if POLLPOS == 0:
        A(polls(0))
        nlate += 4
    A(f"""
    s_mov_b32 {s(sA)}, {f32(-LOG2E)}
    s_mov_b32 {s(sB)}, {f32(-LOG2E)}
    s_mov_b32 {s(s_t)}, {L_WA}
    v_lshrrev_b32 {v(t1)}, 4, v0
    v_mul_u32_u24 {v(t1)}, {WAS}, {v(t1)}
    v_and_b32 {v(t2)}, 0xf0, {v(l16)}
    v_add3_u32 {v(t1)}, {v(t1)}, {v(t2)}, {s(s_t)}
    s_waitcnt vmcnt({nlate})
""")
    U = W0
    for i in range(8):
        A(f"v_lshlrev_b32 {v(U+2*i)}, 16, {v(WR+i)}")
        A(f"v_and_b32 {v(U+2*i+1)}, 0xffff0000, {v(WR+i)}")
    for i in range(8):
        A(f"v_pk_mul_f32 {v(U+2*i,2)}, {v(U+2*i,2)}, {s(sA,2)}")
    for i in range(8):
        A(f"v_cvt_pk_bf16_f32 {v(WR+i)}, {v(U+2*i)}, {v(U+2*i+1)}")
    A(f"""
    ds_write_b128 {v(t1)}, {v(WR,4)}
    ds_write_b128 {v(t1)}, {v(WR+4,4)} offset:{32*WAS}
    s_cmp_lg_u32 {s(s_wave)}, 0
    s_cbranch_scc1 K_NOWC
""")
    for i in range(4):
        A(f"v_lshlrev_b32 {v(U+2*i)}, 16, {v(WCR+i)}")
        A(f"v_and_b32 {v(U+2*i+1)}, 0xffff0000, {v(WCR+i)}")
    for i in range(4):
        A(f"v_pk_mul_f32 {v(U+2*i,2)}, {v(U+2*i,2)}, {s(sA,2)}")
    for i in range(8):
        A(f"v_and_b32 {v(U+8+i)}, 0xffff0000, {v(U+i)}")
    for i in range(8):
        A(f"v_sub_f32 {v(U+i)}, {v(U+i)}, {v(U+8+i)}")
    for i in range(4):
        A(f"v_cvt_pk_bf16_f32 {v(U+16+i)}, {v(U+8+2*i)}, {v(U+9+2*i)}")
        A(f"v_cvt_pk_bf16_f32 {v(U+20+i)}, {v(U+2*i)}, {v(U+1+2*i)}")
    A(f"""
    ds_write_b128 {v(t1)}, {v(U+16,4)} offset:{64*WAS}
    ds_write_b128 {v(t1)}, {v(U+20,4)} offset:{72*WAS}
K_NOWC:
    v_bfe_u32 {v(t2)}, {v(lane)}, 2, 2
    v_and_b32 {v(t3)}, 3, {v(lane)}
    v_lshlrev_b32 {v(t3)}, 3, {v(t3)}
    v_and_b32 {v(t0)}, 16, {v(lane)}
    v_lshl_add_u32 {v(t3)}, {v(t0)}, 1, {v(t3)}
    v_lshrrev_b32 {v(t0)}, 5, {v(lane)}
    v_lshl_add_u32 {v(la_w)}, {v(t0)}, 3, {v(t2)}
    v_mul_u32_u24 {v(la_e)}, {WAS}, {v(la_w)}
    v_add3_u32 {v(la_e)}, {v(la_e)}, {v(t3)}, {s(s_t)}
    v_add_u32 {v(la_n)}, {s(s_wave)}, {v(t2)}
    v_and_b32 {v(la_n)}, 3, {v(la_n)}
    v_lshl_add_u32 {v(la_n)}, {v(la_n)}, 6, {v(t3)}
    v_lshl_add_u32 {v(la_n)}, {v(la_w)}, 8, {v(la_n)}
    v_add_u32 {v(la_n)}, {L_WBS}, {v(la_n)}
    v_bfe_u32 {v(t2)}, {v(lane)}, 1, 3
    v_xor_b32 {v(t2)}, {v(t2)}, {v(t0)}
    v_and_b32 {v(t3)}, 31, {v(lane)}
    s_lshr_b32 {s(s_t)}, {s(s_wave)}, 2
    s_lshl_b32 {s(s_t)}, {s(s_t)}, 12
    s_add_u32 {s(s_t)}, {s(s_t)}, {L_XO}
    v_lshl_add_u32 {v(t3)}, {v(t3)}, 7, {s(s_t)}
""")
    for q in range(4):
        A(f"v_xor_b32 {v(ar[q])}, {2*q}, {v(t2)}")
        A(f"v_lshl_add_u32 {v(ar[q])}, {v(ar[q])}, 4, {v(t3)}")
    prefill()
    A(f"""
    v_and_b32 {v(t3)}, 16, {v(lane)}
    v_lshlrev_b32 {v(t3)}, 2, {v(t3)}
    v_xor_b32 {v(t3)}, {v(t3)}, {v(l16)}
    s_lshl_b32 {s(s_t)}, {s(s_wave)}, 11
    s_add_u32 m0, {s(s_t)}, {L_W2S}
    v_add_u32 {v(t3)}, {s(s_t)}, {v(t3)}
    global_load_lds_dwordx4 {v(t3)}, s[16:17]
    global_load_lds_dwordx4 {v(t3)}, s[16:17] offset:1024
    v_and_b32 {v(t3)}, 48, {v(lane)}
    s_and_b32 {s(s_t)}, {s(s_wave)}, 1
    s_lshl_b32 {s(s_t)}, {s(s_t)}, 6
    v_add_u32 {v(t3)}, {s(s_t)}, {v(t3)}
    global_load_dwordx4 {v(b2r,4)}, {v(t3)}, s[18:19]
    s_mov_b32 {s(SE)}, s6
    s_and_b32 {s(SE+1)}, s7, 0xffff
    s_or_b32 {s(SE+1)}, {s(SE+1)}, {8 << 16}
    s_mov_b32 {s(SE+2)}, {E}
    s_mov_b32 {s(SE+3)}, 0x20000
    s_cmp_ge_u32 {s(s_wave)}, 5
    s_cbranch_scc1 K_WARME
    s_lshr_b32 {s(s_t)}, s2, 3
    s_mul_i32 {s(s_t)}, {s(s_t)}, {313 * 128}
    v_lshlrev_b32 {v(t3)}, 7, v0
    buffer_load_dword {v(junk)}, {v(t3)}, {s(SXR,4)}, {s(s_t)} offen
    s_branch K_WARMD
K_WARME:
    s_mul_i32 {s(s_t)}, s2, {CH}
    s_sub_u32 {s(s_t)}, {s(s_t)}, {320 * 16}
    v_lshl_add_u32 {v(t3)}, v0, 4, {s(s_t)}
    buffer_load_dword {v(junk)}, {v(t3)}, {s(SE,4)}, 0 idxen
K_WARMD:
    s_sub_u32 {s(SX)}, s4, 3072
    s_subb_u32 {s(SX+1)}, s5, 0
    s_and_b32 {s(SX+1)}, {s(SX+1)}, 0xffff
    s_or_b32 {s(SX+1)}, {s(SX+1)}, {2 << 16}
    s_mov_b32 {s(SX+2)}, {N * 64}
    s_mov_b32 {s(SX+3)}, 0x20000
    s_mov_b32 {s(SO)}, s20
    s_and_b32 {s(SO+1)}, s21, 0xffff
    s_mov_b32 {s(SO+2)}, {N * 128}
    s_mov_b32 {s(SO+3)}, 0x20000
    s_movk_i32 {s(s_o3)}, 3072
    s_movk_i32 {s(s_o2)}, 2048
    s_movk_i32 {s(s_o1)}, 1024
    s_mov_b32 {s(s_msk)}, 0xfffc0
    s_movk_i32 {s(s_rowb)}, {ROWB}
    s_mov_b32 {s(s_inv)}, {INVAL}
    s_mov_b32 {s(s_safe)}, 0
    s_mov_b32 {s(s_slow)}, 0
    s_mov_b32 {s(s_to)}, 20000
    s_waitcnt lgkmcnt(0)
    s_barrier
""")
    if POLLPOS == 1:
        A(polls(0))
    for q in range(4):
        A(f"ds_read_b128 {v(AX[q],4)}, {v(ar[q])}")
        for h2 in range(2):
            A(f"ds_read_b64_tr_b16 {v(WB+4*q+2*h2,2)}, {v(la_n)} offset:{(16*q+4*h2)*256}")
    zero_hsum()
    A(ebase())
    A(f"""
    s_lshl_b32 {s(s_t)}, {s(s_wave)}, 12
    s_add_u32 m0, {s(s_t)}, {L_XB}
    v_and_b32 {v(t1)}, 31, {v(lane)}
    v_lshrrev_b32 {v(t2)}, 5, {v(lane)}
    v_lshlrev_b32 {v(j8)}, 3, {v(t1)}
    s_waitcnt lgkmcnt(5)
""")
    for q in range(4):
        c = "0" if q == 0 else v(DQ, 16)
        A(f"v_mfma_f32_32x32x16_bf16 {v(DQ,16)}, {v(AX[q],4)}, {v(WB+4*q,4)}, {c}")
    for n in range(4):
        for q in range(4):
            for h2 in range(2):
                A(f"ds_read_b64_tr_b16 {v(W[n][q]+2*h2,2)}, {v(la_e)} offset:{(16*q+4*h2)*WAS + 64*n}")
        A(f"ds_read_b64_tr_b16 {v(B5[n],2)}, {v(la_e)} offset:{64*WAS + 64*n}")
    A(f"""
    v_bfe_u32 {v(t3)}, {v(t1)}, 1, 1
    v_lshrrev_b32 {v(ce0)}, 3, {v(t1)}
    v_lshl_or_b32 {v(ce0)}, {v(ce0)}, 1, {v(t3)}
    v_and_b32 {v(t3)}, 1, {v(t1)}
    v_lshl_or_b32 {v(ce0)}, {v(t3)}, 3, {v(ce0)}
    v_bfe_u32 {v(t3)}, {v(t1)}, 2, 1
    v_lshl_or_b32 {v(ce0)}, {v(t3)}, 4, {v(ce0)}
    v_lshrrev_b32 {v(t3)}, 3, {v(ce0)}
    v_lshlrev_b32 {v(cn0)}, 1, {v(t2)}
    v_sub_u32 {v(t3)}, {v(t3)}, {v(cn0)}
    v_mov_b32 {v(cn0)}, 0x3f803f80
    v_cmp_eq_u32 vcc, 0, {v(t3)}
    v_cmp_eq_u32 {s(sA,2)}, 1, {v(t3)}
    v_and_b32 {v(t3)}, 3, {v(ce0)}
    v_lshlrev_b32 {v(cw0)}, 10, {v(t3)}
    v_cndmask_b32 {v(A5[0]+2)}, 0, {v(cn0)}, vcc
    v_cndmask_b32 {v(A5[1]+2)}, 0, {v(cn0)}, vcc
    v_cndmask_b32 {v(A5[0]+3)}, 0, {v(cn0)}, {s(sA,2)}
    v_cndmask_b32 {v(A5[1]+3)}, 0, {v(cn0)}, {s(sA,2)}
    v_lshrrev_b32 {v(cn0)}, 2, {v(ce0)}
    v_lshl_add_u32 {v(cw0)}, {v(cn0)}, 7, {v(cw0)}
    v_add_u32 {v(cw0)}, m0, {v(cw0)}
    v_and_b32 {v(cn0)}, 1, {v(t1)}
    v_lshl_or_b32 {v(t3)}, {v(cn0)}, 2, {v(t3)}
    v_xor_b32 {v(t3)}, {v(t3)}, {v(t2)}
""")
    for q in range(4):
        A(f"v_xor_b32 {v(ar[q])}, {2*q}, {v(t3)}")
        A(f"v_lshl_add_u32 {v(ar[q])}, {v(ar[q])}, 4, {v(cw0)}")
    A(f"""
    v_bfe_u32 {v(t3)}, {v(lane)}, 4, 1
    v_lshlrev_b32 {v(t3)}, 2, {v(t3)}
    v_and_b32 {v(cn0)}, 7, {v(lane)}
    v_xor_b32 {v(t3)}, {v(t3)}, {v(cn0)}
""")
    for q in range(4):
        A(f"v_xor_b32 {v(dq[q])}, {q}, {v(t3)}")
        A(f"v_lshlrev_b32 {v(dq[q])}, 3, {v(dq[q])}")
    A(f"""
    v_lshlrev_b32 {v(ce0)}, 2, {v(ce0)}
    v_add_u32 {v(ce0)}, {L_LB}, {v(ce0)}
    v_lshrrev_b32 {v(cw0)}, 3, {v(lane)}
    v_lshlrev_b32 {v(cw0)}, 4, {v(cw0)}
    v_add_u32 {v(cw0)}, {L_LA}, {v(cw0)}
    v_lshlrev_b32 {v(cn0)}, 6, {v(t2)}
    v_add_u32 {v(cn0)}, {L_LA}, {v(cn0)}
    s_mov_b32 {s(s_t)}, {f32(-LOG2E)}
    v_lshlrev_b32 {v(npad)}, 16, {v(npad)}
    v_mul_f32 {v(npad)}, {s(s_t)}, {v(npad)}
    v_mul_u32_u24 {v(t2)}, {4*ROWB}, {v(t2)}
    s_lshr_b32 {s(sA)}, {s(s_wave)}, 2
    s_mul_i32 {s(sA)}, {s(sA)}, {32*ROWB}
    s_bfe_u32 {s(sB)}, {s(s_wave)}, 0x10001
    s_lshl_b32 {s(sB)}, {s(sB)}, 8
    s_add_u32 {s(sA)}, {s(sA)}, {s(sB)}
    s_and_b32 {s(sB)}, {s(s_wave)}, 1
    s_lshl_b32 {s(sB)}, {s(sB)}, 2
    s_add_u32 {s(sA)}, {s(sA)}, {s(sB)}
    v_add3_u32 {v(t2)}, {v(t2)}, {v(j8)}, {s(sA)}
""")

    def qpart(rs):
        for r in rs:
            A(f"v_fma_f32 {v(DQ+r)}, {v(DQ+r)}, {s(s_t)}, {v(npad)}")
        for r in rs:
            A(f"v_and_b32 {v(WB+r)}, 0xffff0000, {v(DQ+r)}")
        for r in rs:
            A(f"v_sub_f32 {v(DQ+r)}, {v(DQ+r)}, {v(WB+r)}")
        for r in rs:
            A(f"v_cvt_pk_bf16_f32 {v(DQ+r)}, {v(WB+r)}, {v(DQ+r)}")
        for r in rs:
            A(f"ds_write_b32 {v(t2)}, {v(DQ+r)} offset:{1024 + (8*(r//4) + r%4)*ROWB}")
    qpart(range(4))
    A(f"s_cmp_ge_u32 {s(s_wave)}, 4\ns_cbranch_scc1 {'K_QDONE' if POLLPOS == 2 else 'K_PASS1'}")
    qpart(range(4, 16))

    if POLLPOS == 2:
        A("K_QDONE:")
        A(polls(0))
    A(f"K_PASS1:\nv_mov_b32 {v(t3)}, 4\ns_mov_b64 {s(OVM,2)}, 0")
    stamp(4)

    def p1words(k):
        for i in range(3):
            x = 3 * k + i
            A(f"v_cmp_gt_u32 {s(MK+2*x,2)}, {s(s_inv)}, {v(CG+4*k+i)}")
            A(f"v_lshlrev_b32_sdwa {v(CA+x)}, 2, {v(CG+4*k+i)} dst_sel:BYTE_0 dst_unused:UNUSED_PAD src0_sel:DWORD src1_sel:DWORD")
        for i in range(3):
            x = 3 * k + i
            A(f"s_mov_b64 exec, {s(MK+2*x,2)}")
            A(f"ds_add_rtn_u32 {v(RK+x)}, {v(CA+x)}, {v(t3)} offset:{L_CNT}")
        A("s_mov_b64 exec, -1")
    for k in range(4):
        A(f"""
K_CHK{k}:
        s_waitcnt vmcnt({3-k})
        v_cmp_ne_u32 vcc, {s(s_tag)}, {v(CG+4*k+3)}
        s_cbranch_vccnz K_RETRY{k}
K_OK{k}:
""")
        p1words(k)
    A(f"""
    s_cmp_lg_u64 {s(OVM,2)}, 0
    s_cbranch_scc1 K_COVF
K_P1D:
""")
    stamp(5)
    A(f"""
    v_lshlrev_b32 {v(t0)}, 2, {v(lane)}
    v_mov_b32 {v(t2)}, {L_FLAG}
    s_waitcnt lgkmcnt(0)
    s_barrier
    ds_read_b32 {v(t1)}, {v(t0)} offset:{L_CNT}
    ds_read_b32 {v(t2)}, {v(t2)}
""")
    for x in range(12):
        A(f"v_lshrrev_b32 {v(EI+x)}, 20, {v(CG + 4*(x//3) + x%3)}")
    A(f"""
    s_waitcnt lgkmcnt(0)
    v_add_u32 {v(t3)}, 31, {v(t1)}
    v_and_b32 {v(t3)}, -32, {v(t3)}
    v_mov_b32 {v(t0)}, {v(t3)}
    v_readfirstlane_b32 {s(sA)}, {v(t2)}
    v_sub_u32 {v(npad)}, {v(t3)}, {v(t1)}
""")
    fill = [f"v_add_u32 {v(EI+x)}, {v(EI+x)}, {v(EB + x//3)}" for x in range(12)]
    dpp = ["row_shr:1 row_mask:0xf bank_mask:0xf bound_ctrl:0", "row_shr:2 row_mask:0xf bank_mask:0xf bound_ctrl:0",
           "row_shr:4 row_mask:0xf bank_mask:0xf bound_ctrl:0", "row_shr:8 row_mask:0xf bank_mask:0xf bound_ctrl:0",
           "row_bcast:15 row_mask:0xa bank_mask:0xf", "row_bcast:31 row_mask:0xc bank_mask:0xf"]
    for d in dpp:
        A(f"v_add_u32_dpp {v(t0)}, {v(t0)}, {v(t0)} {d}")
        A(fill.pop())
        A(fill.pop())
    A(f"""
    v_readlane_b32 {s(sB)}, {v(t0)}, 63
    v_sub_u32 {v(t0)}, {v(t0)}, {v(t3)}
    v_add_u32 {v(t0)}, {L_LA}, {v(t0)}
    s_cmp_gt_u32 {s(sB)}, {CAPB}
    s_cselect_b32 {s(s_t)}, 1, 0
    s_or_b32 {s(sA)}, {s(sA)}, {s(s_t)}
    s_cbranch_scc1 K_GOSLOW
""")
    for x in range(12):
        A(f"ds_bpermute_b32 {v(CA+x)}, {v(CA+x)}, {v(t0)}")
    A(f"""
    v_add_u32 {v(deg)}, {v(deg)}, {v(t1)}
    s_add_u32 {s(sB)}, {s(sB)}, 127
    s_lshr_b32 {s(sB)}, {s(sB)}, 7
    s_add_u32 {s(s_rem)}, {s(sB)}, 7
    s_sub_u32 {s(s_rem)}, {s(s_rem)}, {s(s_wave)}
    s_lshr_b32 {s(s_rem)}, {s(s_rem)}, 3
    s_lshr_b32 {s(s_t)}, {s(sB)}, 3
    s_mul_i32 {s(s_t)}, {s(s_t)}, {s(s_wave)}
    s_and_b32 {s(sB)}, {s(sB)}, 7
    s_min_u32 {s(sB)}, {s(sB)}, {s(s_wave)}
    s_add_u32 {s(s_t)}, {s(s_t)}, {s(sB)}
    s_lshl_b32 {s(s_t)}, {s(s_t)}, 7
    v_add_u32 {v(la_w)}, {s(s_t)}, {v(cw0)}
    v_add_u32 {v(la_e)}, {s(s_t)}, {v(ce0)}
    v_add_u32 {v(la_n)}, {s(s_t)}, {v(cn0)}
""")
    for x in range(12):
        if x % 4 == 0:
            A(f"s_waitcnt lgkmcnt({8 - x})")
        A(f"v_add_u32 {v(CA+x)}, {v(CA+x)}, {v(RK+x)}")
    for x in range(12):
        A(f"s_mov_b64 exec, {s(MK+2*x,2)}")
        A(f"ds_write2st64_b32 {v(CA+x)}, {v(CG + 4*(x//3) + x%3)}, {v(EI+x)} offset0:0 offset1:64")
    A(f"""
    s_mov_b64 exec, -1
    s_cmp_lg_u64 {s(OVM,2)}, 0
    s_cbranch_scc1 K_COVF2
K_P2D:
    s_waitcnt lgkmcnt(0)
    s_barrier
""")
    stamp(6)

    def dma():
        so = [s(s_o3), s(s_o2), s(s_o1), "0"]
        return [f"buffer_load_dwordx4 {v(lw+q)}, {s(SX,4)}, {so[q]} idxen offset:{q*1024} lds" for q in range(4)]

    def idx():
        return [f"v_and_or_b32 {v(lw+q)}, {v(lw+q)}, {s(s_msk)}, {v(dq[q])}" for q in range(4)]

    def rowaddr(p):
        return [f"v_and_b32 {v(nw)}, 63, {v(nw)}", f"v_and_b32 {v(nw+1)}, 63, {v(nw+1)}",
                f"v_mad_u32_u24 {v(ra[p])}, {v(nw)}, {s(s_rowb)}, {v(j8)}",
                f"v_mad_u32_u24 {v(ra[p]+1)}, {v(nw+1)}, {s(s_rowb)}, {v(j8)}"]

    def qread(n, p):
        off = 1024 + (n // 2) * 256 + (n % 2) * 4
        return [f"ds_read_b32 {v(B5[n]+2+c)}, {v(ra[p]+c)} offset:{off}" for c in range(2)]

    def aread(q):
        return f"ds_read_b128 {v(AX[q],4)}, {v(ar[q])}"

    def mf(n, dst, p):
        m = []
        for q in range(4):
            c = "0" if q == 0 else v(dst, 16)
            m.append(f"v_mfma_f32_32x32x16_bf16 {v(dst,16)}, {v(AX[q],4)}, {v(W[n][q],4)}, {c}")
        m.append(f"v_mfma_f32_32x32x16_bf16 {v(dst,16)}, {v(A5[p],4)}, {v(B5[n],4)}, {v(dst,16)}")
        return m

    A(f"""
    ds_read_b128 {v(lw,4)}, {v(la_w)}
    ds_read_b32 {v(le)}, {v(la_e)}
    ds_read2_b32 {v(nw,2)}, {v(la_n)} offset0:0 offset1:8
    s_waitcnt lgkmcnt(2)
""")
    A(idx())
    A(dma())
    A(f"s_waitcnt lgkmcnt(0)")
    A(f"buffer_load_dwordx2 {v(A5[0],2)}, {v(le)}, {s(SE,4)}, 0 idxen")
    A(f"ds_read_b128 {v(lw,4)}, {v(la_w)} offset:128")
    A(f"ds_read_b32 {v(le)}, {v(la_e)} offset:128")
    A(rowaddr(0))
    for n in range(4):
        A(qread(n, 0))
    QV = D[1]
    A(f"""
    s_mul_i32 {s(s_t)}, {s(s_wave)}, {ROWB}
    v_lshrrev_b32 {v(t0)}, 5, {v(lane)}
    v_lshl_add_u32 {v(t1)}, {v(t0)}, 8, {v(j8)}
    v_add_u32 {v(t1)}, {s(s_t)}, {v(t1)}
    v_lshl_add_u32 {v(t2)}, {v(t0)}, 8, {v(t1)}
    v_cvt_f32_u32 {v(npad)}, {v(npad)}
    v_mul_f32 {v(npad)}, {f32(-0.25)}, {v(npad)}
""")
    for k in range(5):
        A(f"ds_read_b64 {v(QV+2*k,2)}, {v(t1)} offset:{1024 + k*8*ROWB}")
    for k in range(5):
        A(f"s_add_u32 {s(s_t)}, {s(s_wave)}, {8*k}")
        A(f"v_readlane_b32 {s(MK+k)}, {v(npad)}, {s(s_t)}")
    A(f"""
    v_and_b32 {v(t0)}, 3, {v(lane)}
    v_lshrrev_b32 {v(t3)}, 1, {v(lane)}
    v_and_b32 {v(t3)}, 4, {v(t3)}
    s_and_b32 {s(s_t)}, {s(s_wave)}, 1
    s_lshl_b32 {s(s_t)}, {s(s_t)}, 2
    v_xor_b32 {v(t3)}, {s(s_t)}, {v(t3)}
    v_or_b32 {v(t0)}, {v(t0)}, {v(t3)}
    v_lshlrev_b32 {v(t0)}, 4, {v(t0)}
    v_bfe_u32 {v(t3)}, {v(lane)}, 2, 2
    v_lshl_add_u32 {v(t0)}, {v(t3)}, 7, {v(t0)}
    v_lshrrev_b32 {v(t3)}, 4, {v(lane)}
    v_lshl_add_u32 {v(t0)}, {v(t3)}, 10, {v(t0)}
    v_add_u32 {v(t0)}, {L_W2S}, {v(t0)}
    s_waitcnt lgkmcnt(0)
""")
    for m in range(2):
        for ks in range(4):
            for h2 in range(2):
                A(f"ds_read_b64_tr_b16 {v(W2 + (m*4+ks)*4 + 2*h2, 2)}, {v(t0)} offset:{(32*ks + 4*h2)*128 + 8*m}")
    for r in range(10):
        A(f"v_lshlrev_b32 {v(EX+r)}, 16, {v(QV+r)}")
        A(f"v_and_b32 {v(QV+r)}, 0xffff0000, {v(QV+r)}")
        A(f"v_add_f32 {v(QV+r)}, {v(QV+r)}, {v(EX+r)}")
    for r in range(10):
        A(f"v_exp_f32 {v(EX+r)}, {v(QV+r)}")
    for r in range(10):
        A(f"v_add_f32 {v(EX+r)}, 1.0, {v(EX+r)}")
    for r in range(10):
        A(f"v_rcp_f32 {v(EX+r)}, {v(EX+r)}")
    for r in range(10):
        A(f"v_mul_f32 {v(QV+r)}, {v(QV+r)}, {v(EX+r)}")
    for r in range(10):
        A(f"v_mul_f32 {v(QV+r)}, {s(MK + r//2)}, {v(QV+r)}")
    C6 = D[0]
    for r in range(8):
        A(f"v_cvt_f64_f32 {v(C6+2*r,2)}, {v(QV+r)}")
    A(f"v_cvt_f64_f32 {v(EX,2)}, {v(QV+8)}")
    A(f"v_cvt_f64_f32 {v(EX+2,2)}, {v(QV+9)}")
    for r in range(10):
        src = C6 + 2 * r if r < 8 else EX + 2 * (r - 8)
        A(f"ds_add_f64 {v(t2)}, {v(src,2)} offset:{(r//2)*8*ROWB + (r%2)*256}")
    A(idx())
    A(f"""
    v_mov_b32 {v(nn)}, 0
    v_mov_b32 {v(nn+1)}, 0
    v_mov_b32 {v(dd)}, 1.0
    v_mov_b32 {v(dd+1)}, 1.0
    v_add_u32 {v(ra[1])}, {40*ROWB}, {v(j8)}
    v_add_u32 {v(ra[1]+1)}, {40*ROWB}, {v(j8)}
    s_cmp_eq_u32 {s(s_rem)}, 0
    s_cbranch_scc1 K_DONE
    s_setprio 3
    s_waitcnt vmcnt(0)
""")
    stamp(7)
    for q in range(4):
        A(aread(q))
    A("s_waitcnt lgkmcnt(0)")
    A(dma())
    A(f"buffer_load_dwordx2 {v(A5[1],2)}, {v(le)}, {s(SE,4)}, 0 idxen")
    A(mf(0, D[0], 0))
    A(f"""
    s_nop 15
    s_cmp_eq_u32 {s(s_safe)}, 0
    s_cbranch_scc0 K_LOOP_S
""")

    def flush(bprev, p, safe):
        o = []
        if not safe:
            o.append(f"v_pk_mul_f32 {v(ss,2)}, {v(nn,2)}, {v(rr,2)}")
            src = ss
        else:
            src = nn
        o2 = [f"v_cvt_f64_f32 {v(c64a,2)}, {v(src)}", f"v_cvt_f64_f32 {v(c64b,2)}, {v(src+1)}"]
        o3 = [f"ds_add_f64 {v(ra[p])}, {v(c64a,2)} offset:{bprev*256}",
              f"ds_add_f64 {v(ra[p]+1)}, {v(c64b,2)} offset:{bprev*256}"]
        return o, o2, o3

    def step(b, p, safe):
        cur, nxt = D[b % 2], D[(b + 1) % 2]
        nb = (b + 1) % 4
        m = mf(nb, nxt, p if b < 3 else p ^ 1)
        tr = []
        if not safe:
            tr += [f"v_rcp_f32 {v(rr)}, {v(dd)}", f"v_rcp_f32 {v(rr+1)}, {v(dd+1)}"]
        tr += [f"v_exp_f32 {v(EX+i)}, {v(cur+i)}" for i in range(16)]
        pre = [[] for _ in range(5)]
        post = [[] for _ in range(5)]
        tail = []
        if b == 0:
            post[0] += [f"ds_read2_b32 {v(nw,2)}, {v(la_n)} offset0:{32*(p+1)} offset1:{32*(p+1)+8}",
                        f"ds_read_b128 {v(lw,4)}, {v(la_w)} offset:{128*(p+2)}",
                        f"ds_read_b32 {v(le)}, {v(la_e)} offset:{128*(p+2)}"]
            if p == 1:
                tail += [f"v_add_u32 {v(x)}, 256, {v(x)}" for x in (la_w, la_e, la_n)]
        if b == 1:
            pre[0] += ["s_waitcnt lgkmcnt(2)"]
            tail += rowaddr(p ^ 1) + idx()
        if b == 2:
            pre[0] += qread(0, p ^ 1) + qread(1, p ^ 1) + ["s_waitcnt vmcnt(1)"]
            for q in range(4):
                post[q].append(aread(q))
        if b == 3:
            pre[0] += ["s_waitcnt lgkmcnt(2)"]
            post[0] += dma()
            post[1] += [f"buffer_load_dwordx2 {v(A5[p],2)}, {v(le)}, {s(SE,4)}, 0 idxen"]
            post[2] += qread(2, p ^ 1) + qread(3, p ^ 1)
            pre[4] += ["s_waitcnt vmcnt(5)"]
        o = []
        ti = 0
        for k in range(5):
            o += pre[k] + [m[k]] + post[k]
            if k < 4:
                o += tr[ti:ti + 3]
                ti += 3
        o += tr[ti:]
        if not safe:
            o.append(f"v_max3_f32 {v(guard)}, {v(guard)}, {v(dd)}, {v(dd+1)}")
        o += tail
        f1, f2, f3 = flush((b - 1) % 4, p if b > 0 else p ^ 1, safe)
        if not safe:
            o += f1
            o.append(f"v_pk_add_f32 {v(dd,2)}, {v(EX,2)}, 1.0 op_sel_hi:[1,0]")
            o += f2 + f3
            n_ = v(cur, 2)
            for k in range(1, 8):
                e_, z_ = v(EX + 2 * k, 2), v(cur + 2 * k, 2)
                o.append(f"v_pk_fma_f32 {v(tt,2)}, {n_}, {e_}, {n_}")
                o.append(f"v_pk_fma_f32 {v(nn,2)}, {z_}, {v(dd,2)}, {v(tt,2)}")
                o.append(f"v_pk_fma_f32 {v(dd,2)}, {v(dd,2)}, {e_}, {v(dd,2)}")
                n_ = v(nn, 2)
        else:
            o += f2 + f3
            for k in range(8):
                o.append(f"v_pk_add_f32 {v(EX+2*k,2)}, {v(EX+2*k,2)}, 1.0 op_sel_hi:[1,0]")
            for i in range(16):
                o.append(f"v_rcp_f32 {v(EX+i)}, {v(EX+i)}")
            o.append(f"v_pk_mul_f32 {v(nn,2)}, {v(cur,2)}, {v(EX,2)}")
            for k in range(1, 8):
                o.append(f"v_pk_fma_f32 {v(nn,2)}, {v(cur+2*k,2)}, {v(EX+2*k,2)}, {v(nn,2)}")
        return o

    def loop(safe):
        sf = "S" if safe else "F"
        A(f".p2align 6\nK_LOOP_{sf}:")
        for p in range(2):
            A(f"""
            s_cmp_gt_u32 {s(s_rem)}, 3
            s_cbranch_scc0 K_PRIO_{sf}{p}
K_PB_{sf}{p}:
""")
            for b in range(4):
                A(step(b, p, safe))
            A(f"s_sub_u32 {s(s_rem)}, {s(s_rem)}, 1")
            A(f"s_cmp_eq_u32 {s(s_rem)}, 0")
            if p == 0:
                A(f"s_cbranch_scc1 K_DRAIN_{sf}0")
            else:
                A(f"s_cbranch_scc0 K_LOOP_{sf}")
        for p in (1, 0):
            A(f"K_DRAIN_{sf}{p}:")
            if not safe:
                A(f"v_rcp_f32 {v(rr)}, {v(dd)}\nv_rcp_f32 {v(rr+1)}, {v(dd+1)}")
                A(f"v_max3_f32 {v(guard)}, {v(guard)}, {v(dd)}, {v(dd+1)}")
            f1, f2, f3 = flush(3, p, safe)
            A(f1 + f2 + f3)
            A("s_branch K_DONE")
        for p in range(2):
            A(f"""
K_PRIO_{sf}{p}:
            s_setprio 2
            s_cmp_eq_u32 {s(s_rem)}, 3
            s_cbranch_scc1 K_PB_{sf}{p}
            s_setprio 1
            s_cmp_eq_u32 {s(s_rem)}, 2
            s_cbranch_scc1 K_PB_{sf}{p}
            s_setprio 0
            s_branch K_PB_{sf}{p}
""")
    loop(False)

    A(f"""
K_DONE:
    s_setprio 0
    s_cmp_eq_u32 {s(s_slow)}, 0
    s_cbranch_scc0 K_NEXTCHUNK
K_FIN:
""")
    stamp(8)
    A(f"""
    v_lshrrev_b32 {v(t0)}, 4, v0
    v_and_b32 {v(t1)}, 15, v0
    v_mul_u32_u24 {v(t2)}, {ROWB}, {v(t0)}
    v_lshl_add_u32 {v(t2)}, {v(t1)}, 6, {v(t2)}
    v_mul_u32_u24 {v(t3)}, {HB_STRIDE}, {v(t0)}
    v_lshl_add_u32 {v(t3)}, {v(t1)}, 4, {v(t3)}
    v_add_u32 {v(t3)}, {L_HBHI}, {v(t3)}
    s_waitcnt vmcnt(0) lgkmcnt(0)
    s_barrier
""")

    def stage1(roff):
        H = D[0]
        for i in range(4):
            A(f"ds_read_b128 {v(H+4*i,4)}, {v(t2)} offset:{roff*ROWB + 16*i}")
        for i in range(8):
            if i % 2 == 0:
                A(f"s_waitcnt lgkmcnt({3 - i//2})")
            A(f"v_cvt_f32_f64 {v(EX+i)}, {v(H+2*i,2)}")
        for i in range(0, 8, 2):
            A(f"v_max3_f32 {v(guard)}, abs({v(EX+i)}), abs({v(EX+i+1)}), {v(guard)}")
            A(f"v_cmp_u_f32 vcc, {v(EX+i)}, {v(EX+i+1)}")
            A(f"s_or_b64 {s(sA,2)}, {s(sA,2)}, vcc")
        for i in range(8):
            A(f"v_and_b32 {v(EX+8+i)}, 0xffff0000, {v(EX+i)}")
        for i in range(8):
            A(f"v_sub_f32 {v(EX+i)}, {v(EX+i)}, {v(EX+8+i)}")
        for i in range(4):
            A(f"v_cvt_pk_bf16_f32 {v(D[1]+i)}, {v(EX+8+2*i)}, {v(EX+9+2*i)}")
        for i in range(4):
            A(f"v_cvt_pk_bf16_f32 {v(D[1]+4+i)}, {v(EX+2*i)}, {v(EX+1+2*i)}")
        A(f"ds_write_b128 {v(t3)}, {v(D[1],4)} offset:{roff*HB_STRIDE}")
        A(f"ds_write_b128 {v(t3)}, {v(D[1]+4,4)} offset:{roff*HB_STRIDE + 16384}")
    A(f"s_mov_b64 {s(sA,2)}, 0")
    stage1(0)
    A(f"s_cmp_ge_u32 {s(s_wave)}, 2\ns_cbranch_scc1 K_S1D")
    stage1(32)
    A(f"""
K_S1D:
    v_cmp_lt_f32 vcc, {f32(2.0**100)}, {v(guard)}
    s_or_b64 vcc, vcc, {s(sA,2)}
    v_mov_b32 {v(t2)}, {L_FLAG + 4}
    s_cbranch_vccz K_NOFL
    ds_write_b32 {v(t2)}, {v(t2)}
K_NOFL:
    v_and_b32 {v(t0)}, 15, {v(lane)}
    s_lshr_b32 {s(s_t)}, {s(s_wave)}, 1
    s_lshl_b32 {s(s_t)}, {s(s_t)}, 4
    v_add_u32 {v(t0)}, {s(s_t)}, {v(t0)}
    v_lshrrev_b32 {v(t1)}, 4, {v(lane)}
    v_mul_u32_u24 {v(t3)}, {HB_STRIDE}, {v(t0)}
    v_lshl_add_u32 {v(t3)}, {v(t1)}, 4, {v(t3)}
    v_add_u32 {v(t3)}, {L_HBHI}, {v(t3)}
    v_lshlrev_b32 {v(le)}, 2, {v(t0)}
    ds_bpermute_b32 {v(le)}, {v(le)}, {v(deg)}
    s_waitcnt lgkmcnt(0)
    s_barrier
    ds_read_b32 {v(t2)}, {v(t2)}
""")
    for ks in range(4):
        A(f"ds_read_b128 {v(D[0]+4*ks,4)}, {v(t3)} offset:{ks*64}")
        A(f"ds_read_b128 {v(D[1]+4*ks,4)}, {v(t3)} offset:{ks*64 + 16384}")
    A(f"""
    s_waitcnt lgkmcnt(8)
    v_readfirstlane_b32 {s(sA)}, {v(t2)}
    s_cmp_lg_u32 {s(s_safe)}, 0
    s_cbranch_scc1 K_GEMM
    s_cmp_eq_u32 {s(sA)}, 0
    s_cbranch_scc0 K_RESTART
K_GEMM:
    s_cmp_ge_u32 {s(s_wave)}, 6
    s_cbranch_scc1 K_EPOCH
    v_lshlrev_b32 {v(t0)}, 15, {v(t0)}
    v_lshl_add_u32 {v(t0)}, {v(t1)}, 4, {v(t0)}
    s_lshl_b32 {s(s_t)}, s2, 7
    s_and_b32 {s(s_u)}, {s(s_wave)}, 1
    s_lshl_b32 {s(s_u)}, {s(s_u)}, 6
    s_add_u32 {s(s_t)}, {s(s_t)}, {s(s_u)}
    v_cvt_f32_u32 {v(le)}, {v(le)}
    v_mul_f32 {v(le)}, {f32(0.25)}, {v(le)}
""")
    O = EX
    for ks in range(4):
        for hl in range(2):
            A(f"s_waitcnt lgkmcnt({7 - 2*ks - hl})")
            for m in range(2):
                c = "0" if ks == 0 and hl == 0 else v(O + 4 * m, 4)
                A(f"v_mfma_f32_16x16x32_bf16 {v(O+4*m,4)}, {v(W2 + (m*4+ks)*4,4)}, {v(D[hl]+4*ks,4)}, {c}")
    BB = EX + 8
    for i in range(4):
        A(f"v_lshlrev_b32 {v(BB+2*i)}, 16, {v(b2r+i)}")
        A(f"v_and_b32 {v(BB+2*i+1)}, 0xffff0000, {v(b2r+i)}")
    for i in range(8):
        A(f"v_mul_f32 {v(BB+i)}, {v(le)}, {v(BB+i)}")
    A(f"s_mov_b32 {s(s_u)}, {f32(-LN2)}")
    for i in range(8):
        A(f"v_fma_f32 {v(O+i)}, {v(O+i)}, {s(s_u)}, {v(BB+i)}")
    for i in range(4):
        A(f"v_cvt_pk_bf16_f32 {v(BB+i)}, {v(O+2*i)}, {v(O+2*i+1)}")
    A(f"buffer_store_dwordx4 {v(BB,4)}, {v(t0)}, {s(SO,4)}, {s(s_t)} offen")
    if STAMP:
        A("s_waitcnt vmcnt(0)")
        stamp(9)
        A(f"""
    v_cmp_eq_u32 vcc, 0, {v(lane)}
    s_and_saveexec_b64 {s(sA,2)}, vcc
    s_lshl_b32 {s(s_t)}, s2, 3
    s_add_u32 {s(s_t)}, {s(s_t)}, {s(s_wave)}
    s_lshl_b32 {s(s_t)}, {s(s_t)}, 6
    s_add_u32 {s(s_t)}, {s(s_t)}, {WS_STAMP}
    v_mov_b32 {v(t0)}, {s(s_t)}
""")
        for i in range(10):
            A(f"v_mov_b32 {v(D[0]+i)}, {s(STR[i]) if i else s(s_x)}")
        A(f"v_mov_b32 {v(D[0]+10)}, {s(s_to)}\nv_mov_b32 {v(D[0]+11)}, 0")
        for i in range(3):
            A(f"global_store_dwordx4 {v(t0)}, {v(D[0]+4*i,4)}, s[24:25] offset:{16*i}")
    A(f"""
K_END:
    s_endpgm
K_EPOCH:
    s_cmp_eq_u32 {s(s_wave)}, 7
    s_cbranch_scc0 K_END
    s_mov_b64 exec, 1
    v_mov_b32 {v(t0)}, 0
    v_mov_b32 {v(t1)}, 1
    global_atomic_add {v(t2)}, {v(t0)}, {v(t1)}, s[22:23] sc0
    v_mov_b32 {v(t0)}, {WS_EPOCH}
    v_mov_b32 {v(t1)}, {s(s_tag)}
    s_waitcnt vmcnt(0)
    v_cmp_eq_u32 vcc, {NB - 1}, {v(t2)}
    s_cbranch_vccz K_END
    global_store_dword {v(t0)}, {v(t1)}, s[24:25]
    s_endpgm
""")

    for k in range(4):
        A(f"""
K_RETRY{k}:
        s_or_b32 {s(sA)}, {s(s_tag)}, 3
        v_or_b32 {v(t0)}, 3, {v(CG+4*k+3)}
        v_cmp_ne_u32 vcc, {s(sA)}, {v(t0)}
        s_cbranch_vccz K_SPEC{k}
        s_cmp_eq_u32 {s(s_to)}, 0
        s_cbranch_scc1 K_GIVEUP{k}
        s_sub_u32 {s(s_to)}, {s(s_to)}, 1
""")
        A(polls(k))
        A(f"""
        s_branch K_CHK{k}
K_SPEC{k}:
        v_and_b32 {v(t0)}, 2, {v(CG+4*k+3)}
        v_cmp_ne_u32 vcc, 0, {v(t0)}
        s_cbranch_vccnz K_GIVEUP{k}
        v_cmp_ne_u32 vcc, {s(s_tag)}, {v(CG+4*k+3)}
        s_and_b64 {s(sA,2)}, vcc, {s(OVM,2)}
        s_cbranch_scc1 K_GIVEUP{k}
        s_or_b64 {s(OVM,2)}, vcc, {s(OVM,2)}
        s_mov_b64 exec, vcc
        v_add_u32 {v(ova)}, {WS_L2 + 1024*k}, {v(l16)}
        v_mov_b32 {v(EB+4)}, {v(EB+k)}
        s_mov_b64 exec, -1
        s_branch K_OK{k}
K_GIVEUP{k}:
        v_mov_b32 {v(t0)}, {L_FLAG}
        ds_write_b32 {v(t0)}, {v(t3)}
        s_branch K_OK{k}
""")
    A(f"""
K_COVF:
    v_mov_b32 {v(CG+16)}, {s(s_inv)}
    v_mov_b32 {v(CG+17)}, {s(s_inv)}
    v_mov_b32 {v(CG+18)}, {s(s_inv)}
    v_mov_b32 {v(CG+19)}, {s(s_tag)}
K_COVFL:
    s_mov_b64 exec, {s(OVM,2)}
    buffer_load_dwordx4 {v(CG+16,4)}, {v(ova)}, {s(SW,4)}, {s(s_pb)} offen sc1
    s_mov_b64 exec, -1
    s_waitcnt vmcnt(0)
    v_cmp_ne_u32 vcc, {s(s_tag)}, {v(CG+19)}
    s_cbranch_vccz K_COVFOK
    s_sub_u32 {s(s_to)}, {s(s_to)}, 1
    s_cbranch_scc0 K_COVFL
    s_mov_b32 {s(s_to)}, 0
    v_mov_b32 {v(t0)}, {L_FLAG}
    ds_write_b32 {v(t0)}, {v(t3)}
K_COVFOK:
""")
    p1words(4)
    A("s_branch K_P1D\nK_COVF2:")
    for x in range(12, 15):
        A(f"ds_bpermute_b32 {v(CA+x)}, {v(CA+x)}, {v(t0)}")
        A(f"v_lshrrev_b32 {v(EI+x)}, 20, {v(CG + 4 + x)}")
        A(f"v_add_u32 {v(EI+x)}, {v(EI+x)}, {v(EB+4)}")
    A("s_waitcnt lgkmcnt(0)")
    for x in range(12, 15):
        A(f"v_add_u32 {v(CA+x)}, {v(CA+x)}, {v(RK+x)}")
    for x in range(12, 15):
        A(f"s_mov_b64 exec, {s(MK+2*x,2)}")
        A(f"ds_write2st64_b32 {v(CA+x)}, {v(CG + 4 + x)}, {v(EI+x)} offset0:0 offset1:64")
    A("s_mov_b64 exec, -1\ns_branch K_P2D")
    A(f"""
K_POVF:
    v_cmp_lt_u32 vcc, {STGB}, {v(DS_)}
    s_cmp_lg_u64 vcc, 0
    s_cselect_b32 {s(sA)}, 2, 0
    s_or_b32 {s(sA)}, {s(sA)}, {s(s_tag)}
    v_lshrrev_b32 {v(t0)}, 3, v0
    v_lshlrev_b32 {v(t1)}, 2, {v(t0)}
    v_add_u32 {v(t1)}, {L_CNT1}, {v(t1)}
    v_mul_u32_u24 {v(t0)}, {STGB}, {v(t0)}
    v_add_u32 {v(t2)}, {WS_L2}, {v(GO)}
    v_mov_b32 {v(SR_+3)}, {s(s_tag)}
""")
    for k in range(4):
        A(f"""
        ds_read_b32 {v(DS_+4)}, {v(t1)} offset:{256*k}
        ds_read2_b32 {v(SR_,2)}, {v(adr[k])} offset0:24 offset1:25
        ds_read_b32 {v(SR_+2)}, {v(adr[k])} offset:104
        s_waitcnt lgkmcnt(0)
        v_sub_u32 {v(DS_+4)}, {v(DS_+4)}, {v(t0)}
        v_cmp_lt_u32 vcc, {96 + 64*STGB*k}, {v(DS_+4)}
        v_mov_b32 {v(SD+4*k+3)}, {s(sA)}
        s_cbranch_vccz K_POVF{k}
        s_mov_b64 exec, vcc
        v_or_b32 {v(SD+4*k+3)}, 1, {v(SD+4*k+3)}
        buffer_store_dwordx4 {v(SR_,4)}, {v(t2)}, {s(SW,4)}, {s(MK+2+k)} offen sc1
        s_mov_b64 exec, -1
        s_waitcnt vmcnt(0)
K_POVF{k}:
""")
    A("s_branch K_PSTORE")
    A(f"""
K_RESTART:
    s_mov_b32 {s(s_safe)}, 1
    s_mov_b32 {s(s_slow)}, 0
    s_waitcnt lgkmcnt(0)
    s_barrier
""")
    A(polls(0))
    A(ebase())
    zero_hsum()
    A("K_ROUND:")
    prefill()
    A(f"""
    s_waitcnt lgkmcnt(0)
    s_barrier
    s_branch K_PASS1
K_GOSLOW:
    s_mov_b32 {s(s_slow)}, 1
    s_mov_b32 {s(s_chunk)}, -1
K_NEXTCHUNK:
    s_add_u32 {s(s_chunk)}, {s(s_chunk)}, 1
    s_cmp_lt_u32 {s(s_chunk)}, {NB}
    s_cbranch_scc0 K_FIN
    s_waitcnt vmcnt(0) lgkmcnt(0)
    s_barrier
    s_mul_i32 {s(s_t)}, {s(s_chunk)}, {CH * 4}
    v_lshlrev_b32 {v(t0)}, 2, v0
""")
    for k in range(5):
        if k in (2, 4):
            A(f"s_add_u32 {s(s_t)}, {s(s_t)}, 4096")
        A(f"buffer_load_dword {v(RK+k)}, {v(t0)}, {s(SD_,4)}, {s(s_t)} offen offset:{(k%2)*2048}")
        A(f"buffer_load_dword {v(RK+8+k)}, {v(t0)}, {s(SS,4)}, {s(s_t)} offen offset:{(k%2)*2048}")
    A(f"s_mul_i32 {s(s_t)}, {s(s_chunk)}, {CH}\ns_movk_i32 {s(s_u)}, {CH}\nv_mov_b32 {v(t3)}, {s(s_inv)}")
    for k in range(4):
        A(f"""
        v_mov_b32 {v(EB+k)}, {s(s_t)}
        v_mov_b32 {v(CG+4*k+1)}, {s(s_inv)}
        v_mov_b32 {v(CG+4*k+2)}, {s(s_inv)}
        v_mov_b32 {v(CG+4*k+3)}, {s(s_tag)}
""")
    A("s_waitcnt vmcnt(0)")
    for k in range(5):
        A(f"""
        v_add_u32 {v(t1)}, {512*k}, v0
        v_lshrrev_b32 {v(t2)}, 8, {v(RK+k)}
        v_lshl_or_b32 {v(t2)}, {v(RK+8+k)}, 6, {v(t2)}
        v_lshl_or_b32 {v(t2)}, {v(t1)}, 20, {v(t2)}
        v_and_b32 {v(RK+k)}, 255, {v(RK+k)}
        v_cmp_eq_u32 vcc, s2, {v(RK+k)}
        v_cmp_gt_u32 {s(sA,2)}, {s(s_u)}, {v(t1)}
        s_and_b64 vcc, vcc, {s(sA,2)}
        v_cndmask_b32 {v(CG+4*k if k < 4 else CG+1)}, {v(t3)}, {v(t2)}, vcc
""")
    A("s_branch K_ROUND")
    loop(True)
    return nvgpr, 102


def kd(name, vg, sg):
    acc = (vg + 3) // 4 * 4
    return f""".p2align 6
.amdhsa_kernel {name}
  .amdhsa_next_free_vgpr {vg}
  .amdhsa_next_free_sgpr {sg}
  .amdhsa_accum_offset {acc}
  .amdhsa_group_segment_fixed_size 0
  .amdhsa_kernarg_size 88
  .amdhsa_user_sgpr_count 2
  .amdhsa_user_sgpr_kernarg_segment_ptr 1
  .amdhsa_system_sgpr_workgroup_id_x 1
  .amdhsa_float_denorm_mode_32 3
.end_amdhsa_kernel
"""


def main():
    ref = open(f"cdna_kernels/{NAME}.s.ref").read().split("\n")
    head = [l for l in ref if l.startswith(";") and "@launch" not in l]
    A = Asm()
    vg, sg = gen(A)
    out = "\n".join(head) + "\n"
    out += f"; @launch grid=({NB},1,1) block=(512,1,1) lds={L_END}\n"
    out += '.amdgcn_target "amdgcn-amd-amdhsa--gfx950"\n.text\n'
    out += A.text()
    out += '.section .rodata,"a"\n' + kd(KERN, vg, sg)
    path = sys.argv[1] if len(sys.argv) > 1 else f"cdna_kernels/{NAME}.s"
    open(path, "w").write(out)
    print("vgprs", vg, "->", path)


if __name__ == "__main__":
    main()
```

```python
import sys, struct, os

NAME = "gather_scatter__edge_featured_mpnn_mpnn__graph"
KERN = NAME + "_kernel"
N, E = 10000, 640000
NB, CH = 256, 2500
LOG2E = 1.4426950408889634
LN2 = 0.6931471805599453
STAMP = int(os.environ.get("STAMP", "0"))
TM = "s_memtime" if STAMP == 2 else "s_memrealtime"
WS_STAMP = 24 << 20
DL = [int(x) for x in os.environ.get("DL", "-1:0").split(":")]
POLLPOS = int(os.environ.get("POLLPOS", "1"))


def f32(x):
    return struct.unpack("<I", struct.pack("<f", x))[0]


CELLB = 128
BUCKB = 256 * CELLB
WS_L2 = NB * BUCKB
WS_CELLS_END = 2 * NB * BUCKB
WS_EPOCH = 20 << 20
STGB = 192
INVAL = 0xFFF00000

ROWB = 1536
L_CNT = 41 * ROWB
L_FLAG = L_CNT + 256
L_LA = 63488
L_LB = L_LA + 16384
L_XB = L_LB + 16384
L_W2S = L_XB + 8 * 4096
L_CNT1 = L_W2S + 16384
L_WBS = L_CNT1 + 1024
L_END = L_WBS + 16384
L_WA = L_XB
L_XO = L_XB + 24576
WAS = 320
CAPB = (4096 - 96) * 4
PADW = (16383 << 6) | 40
PADE = 0x7FFFFFF
HB_STRIDE = 272
L_HBHI = L_LA


class Asm:
    def __init__(self):
        self.lines = []

    def __call__(self, s):
        if isinstance(s, list):
            s = "\n".join(s)
        for ln in s.split("\n"):
            ln = ln.strip()
            if ln:
                self.lines.append(("" if ln.endswith(":") or ln.startswith(".") else "    ") + ln)

    def text(self):
        return "\n".join(self.lines) + "\n"


class Regs:
    def __init__(self, first):
        self.n = first

    def a(self, cnt=1, align=1):
        self.n = (self.n + align - 1) // align * align
        r = self.n
        self.n += cnt
        return r


def v(r, n=1):
    return f"v{r}" if n == 1 else f"v[{r}:{r + n - 1}]"


def s(r, n=1):
    return f"s{r}" if n == 1 else f"s[{r}:{r + n - 1}]"


def gen(A):
    R = Regs(1)
    lane = R.a()
    t0, t1, t2, t3 = R.a(), R.a(), R.a(), R.a()
    guard, deg, j8 = R.a(), R.a(), R.a()
    la_w, la_e, la_n = R.a(), R.a(), R.a()
    cw0, ce0, cn0 = R.a(), R.a(), R.a()
    le = R.a()
    ar = [R.a() for _ in range(4)]
    dq = [R.a() for _ in range(4)]
    lw = R.a(4, 2)
    nw = R.a(2, 2)
    ra = [R.a(2, 2), R.a(2, 2)]
    nn, dd, tt, rr, ss, c64a, c64b = [R.a(2, 2) for _ in range(7)]
    b2r = R.a(4, 2)
    npad = R.a()
    l16 = R.a()
    A5 = [R.a(4, 2), R.a(4, 2)]
    B5 = [R.a(4, 2) for _ in range(4)]
    D = [R.a(16, 2), R.a(16, 2)]
    EX = R.a(16, 2)
    AX = [R.a(4, 2) for _ in range(4)]
    XT = R.a(8, 2)
    W = [[R.a(4, 2) for q in range(4)] for n in range(4)]
    W2 = R.a(32, 2)
    nvgpr = R.n
    assert nvgpr <= 256, nvgpr
    POOL = D[0]
    CG = POOL
    RK = POOL + 20
    CA = POOL + 35
    EI = POOL + 50
    EB = POOL + 65
    junk = POOL + 70
    ova = POOL + 71
    assert AX[0] == POOL + 48 and XT == POOL + 64
    WB = POOL + 20
    DQ = W2 + 16
    W0 = W[0][0]
    DS_, SR_, CAD, WW, SD = W0, W0 + 8, W0 + 16, W0 + 24, W0 + 32
    GO = W0 + 52
    CI = W0 + 60
    WR = W2
    WCR = W2 + 8

    SX, SE, SXR, SW, SO, SS, SD_ = 28, 32, 36, 40, 44, 48, 52
    MK = 56
    s_tag, s_to = 86, 87
    s_wave, s_o3, s_o2, s_o1, s_msk, s_rowb, s_rem, s_x, s_slow, s_safe, s_chunk = range(88, 99)
    s_t, s_u, s_inv = 99, 100, 101
    sA, sB = 26, 27
    s_pb = 3
    OVM = 0
    STR = [MK + 28, 8, 10, 14, 4, 6, 12, 16, 18, 20]

    def stamp(i):
        if DL[0] == i:
            A(f"""
K_DL:
            s_waitcnt lgkmcnt(0)
            s_memrealtime {s(STR[i],2)}
            s_waitcnt lgkmcnt(0)
            s_sub_u32 {s(STR[i])}, {s(STR[i])}, {s(s_x)}
            s_cmp_lt_u32 {s(STR[i])}, {DL[1]*100}
            s_cbranch_scc1 K_DL
""")
        if STAMP:
            A(f"s_waitcnt lgkmcnt(0)\n{TM} {s(STR[i],2)}\ns_waitcnt lgkmcnt(0)")

    def polls(k0):
        return [f"buffer_load_dwordx4 {v(CG+4*k,4)}, {v(l16)}, {s(SW,4)}, {s(s_pb)} offen offset:{k*1024} sc1" for k in range(k0, 4)]

    def ebase():
        o = [f"s_lshl_b32 {s(s_t)}, {s(s_wave)}, 5", f"v_lshrrev_b32 {v(EB)}, 3, {v(lane)}",
             f"v_add_u32 {v(EB)}, {s(s_t)}, {v(EB)}", f"v_mul_u32_u24 {v(EB)}, {CH}, {v(EB)}"]
        o += [f"v_add_u32 {v(EB+k)}, {8*CH*k}, {v(EB)}" for k in range(1, 4)]
        o += [f"v_mov_b32 {v(ova)}, 0"]
        return o

    def prefill():
        A(f"""
        v_mov_b32 {v(tt)}, {PADW}
        v_mov_b32 {v(tt+1)}, {PADW}
        v_mov_b32 {v(rr)}, {PADW}
        v_mov_b32 {v(rr+1)}, {PADW}
        v_mov_b32 {v(ss)}, {PADE}
        v_mov_b32 {v(ss+1)}, {PADE}
        v_mov_b32 {v(c64a)}, {PADE}
        v_mov_b32 {v(c64a+1)}, {PADE}
        v_lshlrev_b32 {v(t1)}, 4, v0
        v_add_u32 {v(t1)}, {L_LA}, {v(t1)}
        v_mov_b32 {v(t2)}, 0
        v_lshlrev_b32 {v(t3)}, 2, v0
        ds_write_b128 {v(t1)}, {v(tt,4)}
        ds_write_b128 {v(t1)}, {v(tt,4)} offset:8192
        ds_write_b128 {v(t1)}, {v(ss,4)} offset:16384
        ds_write_b128 {v(t1)}, {v(ss,4)} offset:24576
        v_cmp_gt_u32 vcc, 68, v0
        s_and_saveexec_b64 {s(sA,2)}, vcc
        ds_write_b32 {v(t3)}, {v(t2)} offset:{L_CNT}
        s_mov_b64 exec, {s(sA,2)}
""")
    assert rr == tt + 2 and c64a == ss + 2 and dd == nn + 2

    def zero_hsum():
        A(f"""
        v_mov_b32 {v(nn)}, 0
        v_mov_b32 {v(nn+1)}, 0
        v_mov_b32 {v(dd)}, 0
        v_mov_b32 {v(dd+1)}, 0
        v_mov_b32 {v(guard)}, 0
        v_mov_b32 {v(deg)}, 0
        s_mul_i32 {s(s_t)}, {s(s_wave)}, {ROWB}
        v_add_u32 {v(t1)}, {s(s_t)}, {v(l16)}
""")
        for k in range(5):
            A(f"ds_write_b128 {v(t1)}, {v(nn,4)} offset:{k*8*ROWB}")
        A(f"""
        v_lshlrev_b32 {v(t1)}, 2, v0
        v_cmp_gt_u32 vcc, {ROWB // 4}, v0
        s_and_saveexec_b64 {s(sA,2)}, vcc
        ds_write_b32 {v(t1)}, {v(nn)} offset:{40*ROWB}
        s_mov_b64 exec, {s(sA,2)}
""")

    A(f"""
.globl {KERN}
.p2align 8
.type {KERN},@function
{KERN}:
    s_cmp_ge_u32 s2, {NB}
    s_cbranch_scc1 K_END
    s_load_dwordx16 s[4:19], s[0:1], 0
    s_load_dwordx4 s[20:23], s[0:1], 64
    s_load_dwordx2 s[24:25], s[0:1], 80
    {TM + " " + s(STR[0],2) if STAMP or DL[0] >= 0 else ""}
    v_lshrrev_b32 {v(t0)}, 6, v0
    v_and_b32 {v(lane)}, 63, v0
    v_readfirstlane_b32 {s(s_wave)}, {v(t0)}
    v_lshlrev_b32 {v(t0)}, 4, v0
    v_lshlrev_b32 {v(t1)}, 2, v0
    v_lshlrev_b32 {v(l16)}, 4, {v(lane)}
    s_mul_i32 {s(s_t)}, s2, {CH * 4}
    s_add_u32 {s(s_u)}, {s(s_t)}, 8192
    s_mov_b32 {s(SS+2)}, {E * 4}
    s_mov_b32 {s(SS+3)}, 0x20000
    s_mov_b32 {s(SD_+2)}, {E * 4}
    s_mov_b32 {s(SD_+3)}, 0x20000
    v_mov_b32 {v(nn)}, {INVAL}
    v_mov_b32 {v(nn+1)}, {INVAL}
    v_mov_b32 {v(dd)}, {INVAL}
    v_mov_b32 {v(dd+1)}, {INVAL}
    s_waitcnt lgkmcnt(0)
    {"s_mov_b32 " + s(s_x) + ", " + s(STR[0]) if STAMP or DL[0] >= 0 else ""}
    s_mov_b32 {s(SD_)}, s10
    s_and_b32 {s(SD_+1)}, s11, 0xffff
    s_mov_b32 {s(SS)}, s8
    s_and_b32 {s(SS+1)}, s9, 0xffff
    buffer_load_dwordx4 {v(DS_,4)}, {v(t0)}, {s(SD_,4)}, {s(s_t)} offen
    buffer_load_dword {v(DS_+4)}, {v(t1)}, {s(SD_,4)}, {s(s_u)} offen
    buffer_load_dwordx4 {v(SR_,4)}, {v(t0)}, {s(SS,4)}, {s(s_t)} offen
    buffer_load_dword {v(SR_+4)}, {v(t1)}, {s(SS,4)}, {s(s_u)} offen
    s_add_u32 s26, s24, {WS_EPOCH}
    s_addc_u32 s27, s25, 0
    s_load_dword {s(s_tag)}, s[26:27], 0
""")
    for k in range(6):
        A(f"ds_write_b128 {v(t0)}, {v(nn,4)} offset:{8192*k}")
    A(f"""
    v_mul_u32_u24 {v(CI)}, {4*STGB}, {v(lane)}
    v_add_u32 {v(CI+1)}, {STGB}, {v(CI)}
    v_add_u32 {v(CI+2)}, {2*STGB}, {v(CI)}
    v_add_u32 {v(CI+3)}, {3*STGB}, {v(CI)}
    v_add_u32 {v(cw0)}, {L_CNT1}, {v(l16)}
    ds_write_b128 {v(cw0)}, {v(CI,4)}
    v_add_u32 {v(t2)}, 8192, {v(t0)}
    global_load_dwordx4 {v(WR,4)}, {v(t0)}, s[12:13]
    global_load_dwordx4 {v(WR+4,4)}, {v(t2)}, s[12:13]
    v_add_u32 {v(t2)}, {128*256}, {v(l16)}
    global_load_dwordx4 {v(WCR,4)}, {v(t2)}, s[12:13]
    s_mov_b32 {s(SXR)}, s4
    s_and_b32 {s(SXR+1)}, s5, 0xffff
    s_mov_b32 {s(SXR+2)}, {N * 128}
    s_mov_b32 {s(SXR+3)}, 0x20000
    v_lshrrev_b32 {v(t2)}, 3, v0
    v_xor_b32 {v(t3)}, v0, {v(t0)}
    v_and_b32 {v(t3)}, 0x70, {v(t3)}
    v_lshl_add_u32 {v(t3)}, {v(t2)}, 15, {v(t3)}
    s_lshl_b32 {s(s_u)}, s2, 7
    s_lshl_b32 {s(s_t)}, {s(s_wave)}, 10
    s_add_u32 m0, {s(s_t)}, {L_XO}
    v_lshlrev_b32 {v(GO)}, 15, {v(t2)}
    buffer_load_dwordx4 {v(t3)}, {s(SXR,4)}, {s(s_u)} offen lds
    v_lshrrev_b32 {v(t3)}, 4, {v(lane)}
    v_lshlrev_b32 {v(j8)}, 6, {v(t3)}
    v_sub_u32 {v(j8)}, {v(l16)}, {v(j8)}
    v_and_b32 {v(j8)}, 0xff, {v(j8)}
    v_lshl_add_u32 {v(j8)}, {v(t3)}, 8, {v(j8)}
    s_lshl_b32 {s(s_t)}, {s(s_wave)}, 11
    s_add_u32 m0, {s(s_t)}, {L_WBS}
    s_add_u32 {s(s_u)}, {s(s_t)}, 16384
    v_add_u32 {v(j8)}, {s(s_u)}, {v(j8)}
    global_load_lds_dwordx4 {v(j8)}, s[12:13]
    global_load_lds_dwordx4 {v(j8)}, s[12:13] offset:1024
    v_and_b32 {v(t1)}, 31, {v(lane)}
    s_and_b32 {s(s_u)}, {s(s_wave)}, 3
    s_lshl_b32 {s(s_t)}, {s(s_u)}, 6
    v_lshl_add_u32 {v(t3)}, {v(t1)}, 1, {s(s_t)}
    global_load_ushort {v(npad)}, {v(t3)}, s[14:15]
""")
    NV0 = 11
    A(f"""
    s_mov_b32 {s(SW)}, s24
    s_and_b32 {s(SW+1)}, s25, 0xffff
    s_mov_b32 {s(SW+2)}, {WS_CELLS_END}
    s_mov_b32 {s(SW+3)}, 0x20000
    s_lshl_b32 {s(s_pb)}, s2, 15
    s_lshl_b32 {s(s_t)}, {s(s_wave)}, 12
    s_add_u32 {s(s_pb)}, {s(s_pb)}, {s(s_t)}
    v_and_b32 {v(t3)}, 7, v0
    v_lshl_add_u32 {v(GO)}, {v(t3)}, 4, {v(GO)}
    v_mul_u32_u24 {v(ce0)}, {STGB}, {v(t2)}
    v_mad_u32_u24 {v(ce0)}, {v(t3)}, 12, {v(ce0)}
    v_add_u32 {v(la_w)}, {64*STGB}, {v(ce0)}
    v_add_u32 {v(cn0)}, {128*STGB}, {v(ce0)}
    v_add_u32 {v(la_e)}, {192*STGB}, {v(ce0)}
    v_lshlrev_b32 {v(WW)}, 22, v0
    v_add_u32 {v(WW+1)}, {1 << 20}, {v(WW)}
    v_add_u32 {v(WW+2)}, {2 << 20}, {v(WW)}
    v_add_u32 {v(WW+3)}, {3 << 20}, {v(WW)}
    v_lshlrev_b32 {v(WW+4)}, 20, v0
    v_or_b32 {v(WW+4)}, {2048 << 20}, {v(WW+4)}
    v_mov_b32 {v(t3)}, 4
    s_movk_i32 {s(s_u)}, {CH - 2048}
    s_mov_b32 {s(s_t)}, {L_CNT1}
    v_cmp_gt_u32 {s(MK,2)}, {s(s_u)}, v0
    s_lshl_b32 {s(MK+2)}, s2, 7
    s_add_u32 {s(MK+3)}, {s(MK+2)}, {64*BUCKB}
    s_add_u32 {s(MK+4)}, {s(MK+2)}, {128*BUCKB}
    s_add_u32 {s(MK+5)}, {s(MK+2)}, {192*BUCKB}
    s_waitcnt lgkmcnt(0)
    s_mul_i32 {s(sA)}, {s(s_tag)}, 0x9e3779b1
    s_add_u32 {s(sA)}, {s(sA)}, 0x7f4a7c15
    s_andn2_b32 {s(sA)}, {s(sA)}, 3
    s_andn2_b32 {s(s_tag)}, {s(s_tag)}, 3
    s_cmp_eq_u32 {s(sA)}, {s(s_tag)}
    s_cselect_b32 {s(sB)}, 4, 0
    s_add_u32 {s(s_tag)}, {s(sA)}, {s(sB)}
    s_barrier
""")
    for k in range(4):
        A(f"v_mov_b32 {v(SD+4*k+3)}, {s(s_tag)}")
    A(f"s_waitcnt vmcnt({NV0 - 1})")
    stamp(1)
    for i in range(4):
        A(f"v_and_b32 {v(CAD+i)}, 255, {v(DS_+i)}")
        A(f"v_lshl_add_u32 {v(CAD+i)}, {v(CAD+i)}, 2, {s(s_t)}")
        A(f"ds_add_rtn_u32 {v(CAD+i)}, {v(CAD+i)}, {v(t3)}")
    A(f"""
    s_waitcnt vmcnt({NV0 - 2})
    v_and_b32 {v(CAD+4)}, 255, {v(DS_+4)}
    v_lshl_add_u32 {v(CAD+4)}, {v(CAD+4)}, 2, {s(s_t)}
    s_mov_b64 exec, {s(MK,2)}
    ds_add_rtn_u32 {v(CAD+4)}, {v(CAD+4)}, {v(t3)}
    s_mov_b64 exec, -1
""")
    for i in range(5):
        A(f"v_lshrrev_b32 {v(DS_+i)}, 8, {v(DS_+i)}")
        A(f"v_or_b32 {v(WW+i)}, {v(WW+i)}, {v(DS_+i)}")
    A(f"s_waitcnt vmcnt({NV0 - 4})")
    for i in range(5):
        A(f"v_lshl_or_b32 {v(WW+i)}, {v(SR_+i)}, 6, {v(WW+i)}")
    for i in range(5):
        if i == 4:
            A(f"s_mov_b64 exec, {s(MK,2)}")
        A(f"s_waitcnt lgkmcnt(4)")
        A(f"ds_write_b32 {v(CAD+i)}, {v(WW+i)}")
    A(f"""
    s_mov_b64 exec, -1
    s_waitcnt lgkmcnt(0)
    s_barrier
""")
    stamp(2)
    A(f"ds_read_b128 {v(DS_,4)}, {v(cw0)}")
    adr = [ce0, la_w, cn0, la_e]
    for k in range(4):
        A(f"ds_read2_b32 {v(SD+4*k,2)}, {v(adr[k])} offset0:0 offset1:1")
        A(f"ds_read_b32 {v(SD+4*k+2)}, {v(adr[k])} offset:8")
    A("s_waitcnt lgkmcnt(8)")
    for i in range(4):
        A(f"v_sub_u32 {v(DS_+i)}, {v(DS_+i)}, {v(CI+i)}")
    A(f"""
    v_max3_u32 {v(DS_)}, {v(DS_)}, {v(DS_+1)}, {v(DS_+2)}
    v_max_u32 {v(DS_)}, {v(DS_)}, {v(DS_+3)}
    v_cmp_lt_u32 vcc, 96, {v(DS_)}
    s_cbranch_vccnz K_POVF
K_PSTORE:
""")
    for k in range(4):
        A(f"s_waitcnt lgkmcnt({6 - 2*k})")
        A(f"buffer_store_dwordx4 {v(SD+4*k,4)}, {v(GO)}, {s(SW,4)}, {s(MK+2+k)} offen sc1")
    stamp(3)
    nlate = 4
    if POLLPOS == 0:
        A(polls(0))
        nlate += 4
    A(f"""
    s_mov_b32 {s(sA)}, {f32(-LOG2E)}
    s_mov_b32 {s(sB)}, {f32(-LOG2E)}
    s_mov_b32 {s(s_t)}, {L_WA}
    v_lshrrev_b32 {v(t1)}, 4, v0
    v_mul_u32_u24 {v(t1)}, {WAS}, {v(t1)}
    v_and_b32 {v(t2)}, 0xf0, {v(l16)}
    v_add3_u32 {v(t1)}, {v(t1)}, {v(t2)}, {s(s_t)}
    s_waitcnt vmcnt({nlate})
""")
    U = W0
    for i in range(8):
        A(f"v_lshlrev_b32 {v(U+2*i)}, 16, {v(WR+i)}")
        A(f"v_and_b32 {v(U+2*i+1)}, 0xffff0000, {v(WR+i)}")
    for i in range(8):
        A(f"v_pk_mul_f32 {v(U+2*i,2)}, {v(U+2*i,2)}, {s(sA,2)}")
    for i in range(8):
        A(f"v_cvt_pk_bf16_f32 {v(WR+i)}, {v(U+2*i)}, {v(U+2*i+1)}")
    A(f"""
    ds_write_b128 {v(t1)}, {v(WR,4)}
    ds_write_b128 {v(t1)}, {v(WR+4,4)} offset:{32*WAS}
    s_cmp_lg_u32 {s(s_wave)}, 0
    s_cbranch_scc1 K_NOWC
""")
    for i in range(4):
        A(f"v_lshlrev_b32 {v(U+2*i)}, 16, {v(WCR+i)}")
        A(f"v_and_b32 {v(U+2*i+1)}, 0xffff0000, {v(WCR+i)}")
    for i in range(4):
        A(f"v_pk_mul_f32 {v(U+2*i,2)}, {v(U+2*i,2)}, {s(sA,2)}")
    for i in range(8):
        A(f"v_and_b32 {v(U+8+i)}, 0xffff0000, {v(U+i)}")
    for i in range(8):
        A(f"v_sub_f32 {v(U+i)}, {v(U+i)}, {v(U+8+i)}")
    for i in range(4):
        A(f"v_cvt_pk_bf16_f32 {v(U+16+i)}, {v(U+8+2*i)}, {v(U+9+2*i)}")
        A(f"v_cvt_pk_bf16_f32 {v(U+20+i)}, {v(U+2*i)}, {v(U+1+2*i)}")
    A(f"""
    ds_write_b128 {v(t1)}, {v(U+16,4)} offset:{64*WAS}
    ds_write_b128 {v(t1)}, {v(U+20,4)} offset:{72*WAS}
K_NOWC:
    v_bfe_u32 {v(t2)}, {v(lane)}, 2, 2
    v_and_b32 {v(t3)}, 3, {v(lane)}
    v_lshlrev_b32 {v(t3)}, 3, {v(t3)}
    v_and_b32 {v(t0)}, 16, {v(lane)}
    v_lshl_add_u32 {v(t3)}, {v(t0)}, 1, {v(t3)}
    v_lshrrev_b32 {v(t0)}, 5, {v(lane)}
    v_lshl_add_u32 {v(la_w)}, {v(t0)}, 3, {v(t2)}
    v_mul_u32_u24 {v(la_e)}, {WAS}, {v(la_w)}
    v_add3_u32 {v(la_e)}, {v(la_e)}, {v(t3)}, {s(s_t)}
    v_add_u32 {v(la_n)}, {s(s_wave)}, {v(t2)}
    v_and_b32 {v(la_n)}, 3, {v(la_n)}
    v_lshl_add_u32 {v(la_n)}, {v(la_n)}, 6, {v(t3)}
    v_lshl_add_u32 {v(la_n)}, {v(la_w)}, 8, {v(la_n)}
    v_add_u32 {v(la_n)}, {L_WBS}, {v(la_n)}
    v_bfe_u32 {v(t2)}, {v(lane)}, 1, 3
    v_xor_b32 {v(t2)}, {v(t2)}, {v(t0)}
    v_and_b32 {v(t3)}, 31, {v(lane)}
    s_lshr_b32 {s(s_t)}, {s(s_wave)}, 2
    s_lshl_b32 {s(s_t)}, {s(s_t)}, 12
    s_add_u32 {s(s_t)}, {s(s_t)}, {L_XO}
    v_lshl_add_u32 {v(t3)}, {v(t3)}, 7, {s(s_t)}
""")
    for q in range(4):
        A(f"v_xor_b32 {v(ar[q])}, {2*q}, {v(t2)}")
        A(f"v_lshl_add_u32 {v(ar[q])}, {v(ar[q])}, 4, {v(t3)}")
    prefill()
    A(f"""
    v_and_b32 {v(t3)}, 16, {v(lane)}
    v_lshlrev_b32 {v(t3)}, 2, {v(t3)}
    v_xor_b32 {v(t3)}, {v(t3)}, {v(l16)}
    s_lshl_b32 {s(s_t)}, {s(s_wave)}, 11
    s_add_u32 m0, {s(s_t)}, {L_W2S}
    v_add_u32 {v(t3)}, {s(s_t)}, {v(t3)}
    global_load_lds_dwordx4 {v(t3)}, s[16:17]
    global_load_lds_dwordx4 {v(t3)}, s[16:17] offset:1024
    v_and_b32 {v(t3)}, 48, {v(lane)}
    s_and_b32 {s(s_t)}, {s(s_wave)}, 1
    s_lshl_b32 {s(s_t)}, {s(s_t)}, 6
    v_add_u32 {v(t3)}, {s(s_t)}, {v(t3)}
    global_load_dwordx4 {v(b2r,4)}, {v(t3)}, s[18:19]
    s_mov_b32 {s(SE)}, s6
    s_and_b32 {s(SE+1)}, s7, 0xffff
    s_or_b32 {s(SE+1)}, {s(SE+1)}, {8 << 16}
    s_mov_b32 {s(SE+2)}, {E}
    s_mov_b32 {s(SE+3)}, 0x20000
    s_cmp_ge_u32 {s(s_wave)}, 5
    s_cbranch_scc1 K_WARME
    s_lshr_b32 {s(s_t)}, s2, 3
    s_mul_i32 {s(s_t)}, {s(s_t)}, {313 * 128}
    v_lshlrev_b32 {v(t3)}, 7, v0
    buffer_load_dword {v(junk)}, {v(t3)}, {s(SXR,4)}, {s(s_t)} offen
    s_branch K_WARMD
K_WARME:
    s_mul_i32 {s(s_t)}, s2, {CH}
    s_sub_u32 {s(s_t)}, {s(s_t)}, {320 * 16}
    v_lshl_add_u32 {v(t3)}, v0, 4, {s(s_t)}
    buffer_load_dword {v(junk)}, {v(t3)}, {s(SE,4)}, 0 idxen
K_WARMD:
    s_sub_u32 {s(SX)}, s4, 3072
    s_subb_u32 {s(SX+1)}, s5, 0
    s_and_b32 {s(SX+1)}, {s(SX+1)}, 0xffff
    s_or_b32 {s(SX+1)}, {s(SX+1)}, {2 << 16}
    s_mov_b32 {s(SX+2)}, {N * 64}
    s_mov_b32 {s(SX+3)}, 0x20000
    s_mov_b32 {s(SO)}, s20
    s_and_b32 {s(SO+1)}, s21, 0xffff
    s_mov_b32 {s(SO+2)}, {N * 128}
    s_mov_b32 {s(SO+3)}, 0x20000
    s_movk_i32 {s(s_o3)}, 3072
    s_movk_i32 {s(s_o2)}, 2048
    s_movk_i32 {s(s_o1)}, 1024
    s_mov_b32 {s(s_msk)}, 0xfffc0
    s_movk_i32 {s(s_rowb)}, {ROWB}
    s_mov_b32 {s(s_inv)}, {INVAL}
    s_mov_b32 {s(s_safe)}, 0
    s_mov_b32 {s(s_slow)}, 0
    s_mov_b32 {s(s_to)}, 20000
    s_waitcnt lgkmcnt(0)
    s_barrier
""")
    if POLLPOS == 1:
        A(polls(0))
    for q in range(4):
        A(f"ds_read_b128 {v(AX[q],4)}, {v(ar[q])}")
        for h2 in range(2):
            A(f"ds_read_b64_tr_b16 {v(WB+4*q+2*h2,2)}, {v(la_n)} offset:{(16*q+4*h2)*256}")
    zero_hsum()
    A(ebase())
    A(f"""
    s_lshl_b32 {s(s_t)}, {s(s_wave)}, 12
    s_add_u32 m0, {s(s_t)}, {L_XB}
    v_and_b32 {v(t1)}, 31, {v(lane)}
    v_lshrrev_b32 {v(t2)}, 5, {v(lane)}
    v_lshlrev_b32 {v(j8)}, 3, {v(t1)}
    s_waitcnt lgkmcnt(5)
""")
    for q in range(4):
        c = "0" if q == 0 else v(DQ, 16)
        A(f"v_mfma_f32_32x32x16_bf16 {v(DQ,16)}, {v(AX[q],4)}, {v(WB+4*q,4)}, {c}")
    for n in range(4):
        for q in range(4):
            for h2 in range(2):
                A(f"ds_read_b64_tr_b16 {v(W[n][q]+2*h2,2)}, {v(la_e)} offset:{(16*q+4*h2)*WAS + 64*n}")
        A(f"ds_read_b64_tr_b16 {v(B5[n],2)}, {v(la_e)} offset:{64*WAS + 64*n}")
    A(f"""
    v_bfe_u32 {v(t3)}, {v(t1)}, 1, 1
    v_lshrrev_b32 {v(ce0)}, 3, {v(t1)}
    v_lshl_or_b32 {v(ce0)}, {v(ce0)}, 1, {v(t3)}
    v_and_b32 {v(t3)}, 1, {v(t1)}
    v_lshl_or_b32 {v(ce0)}, {v(t3)}, 3, {v(ce0)}
    v_bfe_u32 {v(t3)}, {v(t1)}, 2, 1
    v_lshl_or_b32 {v(ce0)}, {v(t3)}, 4, {v(ce0)}
    v_lshrrev_b32 {v(t3)}, 3, {v(ce0)}
    v_lshlrev_b32 {v(cn0)}, 1, {v(t2)}
    v_sub_u32 {v(t3)}, {v(t3)}, {v(cn0)}
    v_mov_b32 {v(cn0)}, 0x3f803f80
    v_cmp_eq_u32 vcc, 0, {v(t3)}
    v_cmp_eq_u32 {s(sA,2)}, 1, {v(t3)}
    v_and_b32 {v(t3)}, 3, {v(ce0)}
    v_lshlrev_b32 {v(cw0)}, 10, {v(t3)}
    v_cndmask_b32 {v(A5[0]+2)}, 0, {v(cn0)}, vcc
    v_cndmask_b32 {v(A5[1]+2)}, 0, {v(cn0)}, vcc
    v_cndmask_b32 {v(A5[0]+3)}, 0, {v(cn0)}, {s(sA,2)}
    v_cndmask_b32 {v(A5[1]+3)}, 0, {v(cn0)}, {s(sA,2)}
    v_lshrrev_b32 {v(cn0)}, 2, {v(ce0)}
    v_lshl_add_u32 {v(cw0)}, {v(cn0)}, 7, {v(cw0)}
    v_add_u32 {v(cw0)}, m0, {v(cw0)}
    v_and_b32 {v(cn0)}, 1, {v(t1)}
    v_lshl_or_b32 {v(t3)}, {v(cn0)}, 2, {v(t3)}
    v_xor_b32 {v(t3)}, {v(t3)}, {v(t2)}
""")
    for q in range(4):
        A(f"v_xor_b32 {v(ar[q])}, {2*q}, {v(t3)}")
        A(f"v_lshl_add_u32 {v(ar[q])}, {v(ar[q])}, 4, {v(cw0)}")
    A(f"""
    v_bfe_u32 {v(t3)}, {v(lane)}, 4, 1
    v_lshlrev_b32 {v(t3)}, 2, {v(t3)}
    v_and_b32 {v(cn0)}, 7, {v(lane)}
    v_xor_b32 {v(t3)}, {v(t3)}, {v(cn0)}
""")
    for q in range(4):
        A(f"v_xor_b32 {v(dq[q])}, {q}, {v(t3)}")
        A(f"v_lshlrev_b32 {v(dq[q])}, 3, {v(dq[q])}")
    A(f"""
    v_lshlrev_b32 {v(ce0)}, 2, {v(ce0)}
    v_add_u32 {v(ce0)}, {L_LB}, {v(ce0)}
    v_lshrrev_b32 {v(cw0)}, 3, {v(lane)}
    v_lshlrev_b32 {v(cw0)}, 4, {v(cw0)}
    v_add_u32 {v(cw0)}, {L_LA}, {v(cw0)}
    v_lshlrev_b32 {v(cn0)}, 6, {v(t2)}
    v_add_u32 {v(cn0)}, {L_LA}, {v(cn0)}
    s_mov_b32 {s(s_t)}, {f32(-LOG2E)}
    v_lshlrev_b32 {v(npad)}, 16, {v(npad)}
    v_mul_f32 {v(npad)}, {s(s_t)}, {v(npad)}
    v_mul_u32_u24 {v(t2)}, {4*ROWB}, {v(t2)}
    s_lshr_b32 {s(sA)}, {s(s_wave)}, 2
    s_mul_i32 {s(sA)}, {s(sA)}, {32*ROWB}
    s_bfe_u32 {s(sB)}, {s(s_wave)}, 0x10001
    s_lshl_b32 {s(sB)}, {s(sB)}, 8
    s_add_u32 {s(sA)}, {s(sA)}, {s(sB)}
    s_and_b32 {s(sB)}, {s(s_wave)}, 1
    s_lshl_b32 {s(sB)}, {s(sB)}, 2
    s_add_u32 {s(sA)}, {s(sA)}, {s(sB)}
    v_add3_u32 {v(t2)}, {v(t2)}, {v(j8)}, {s(sA)}
""")

    def qpart(rs):
        for r in rs:
            A(f"v_fma_f32 {v(DQ+r)}, {v(DQ+r)}, {s(s_t)}, {v(npad)}")
        for r in rs:
            A(f"v_and_b32 {v(WB+r)}, 0xffff0000, {v(DQ+r)}")
        for r in rs:
            A(f"v_sub_f32 {v(DQ+r)}, {v(DQ+r)}, {v(WB+r)}")
        for r in rs:
            A(f"v_cvt_pk_bf16_f32 {v(DQ+r)}, {v(WB+r)}, {v(DQ+r)}")
        for r in rs:
            A(f"ds_write_b32 {v(t2)}, {v(DQ+r)} offset:{1024 + (8*(r//4) + r%4)*ROWB}")
    qpart(range(4))
    A(f"s_cmp_ge_u32 {s(s_wave)}, 4\ns_cbranch_scc1 {'K_QDONE' if POLLPOS == 2 else 'K_PASS1'}")
    qpart(range(4, 16))

    if POLLPOS == 2:
        A("K_QDONE:")
        A(polls(0))
    A(f"K_PASS1:\nv_mov_b32 {v(t3)}, 4\ns_mov_b64 {s(OVM,2)}, 0")
    stamp(4)

    def p1words(k):
        for i in range(3):
            x = 3 * k + i
            A(f"v_cmp_gt_u32 {s(MK+2*x,2)}, {s(s_inv)}, {v(CG+4*k+i)}")
            A(f"v_lshlrev_b32_sdwa {v(CA+x)}, 2, {v(CG+4*k+i)} dst_sel:BYTE_0 dst_unused:UNUSED_PAD src0_sel:DWORD src1_sel:DWORD")
        for i in range(3):
            x = 3 * k + i
            A(f"s_mov_b64 exec, {s(MK+2*x,2)}")
            A(f"ds_add_rtn_u32 {v(RK+x)}, {v(CA+x)}, {v(t3)} offset:{L_CNT}")
        A("s_mov_b64 exec, -1")
    for k in range(4):
        A(f"""
K_CHK{k}:
        s_waitcnt vmcnt({3-k})
        v_cmp_ne_u32 vcc, {s(s_tag)}, {v(CG+4*k+3)}
        s_cbranch_vccnz K_RETRY{k}
K_OK{k}:
""")
        p1words(k)
    A(f"""
    s_cmp_lg_u64 {s(OVM,2)}, 0
    s_cbranch_scc1 K_COVF
K_P1D:
""")
    stamp(5)
    A(f"""
    v_lshlrev_b32 {v(t0)}, 2, {v(lane)}
    v_mov_b32 {v(t2)}, {L_FLAG}
    s_waitcnt lgkmcnt(0)
    s_barrier
    ds_read_b32 {v(t1)}, {v(t0)} offset:{L_CNT}
    ds_read_b32 {v(t2)}, {v(t2)}
""")
    for x in range(12):
        A(f"v_lshrrev_b32 {v(EI+x)}, 20, {v(CG + 4*(x//3) + x%3)}")
    A(f"""
    s_waitcnt lgkmcnt(0)
    v_add_u32 {v(t3)}, 31, {v(t1)}
    v_and_b32 {v(t3)}, -32, {v(t3)}
    v_mov_b32 {v(t0)}, {v(t3)}
    v_readfirstlane_b32 {s(sA)}, {v(t2)}
    v_sub_u32 {v(npad)}, {v(t3)}, {v(t1)}
""")
    fill = [f"v_add_u32 {v(EI+x)}, {v(EI+x)}, {v(EB + x//3)}" for x in range(12)]
    dpp = ["row_shr:1 row_mask:0xf bank_mask:0xf bound_ctrl:0", "row_shr:2 row_mask:0xf bank_mask:0xf bound_ctrl:0",
           "row_shr:4 row_mask:0xf bank_mask:0xf bound_ctrl:0", "row_shr:8 row_mask:0xf bank_mask:0xf bound_ctrl:0",
           "row_bcast:15 row_mask:0xa bank_mask:0xf", "row_bcast:31 row_mask:0xc bank_mask:0xf"]
    for d in dpp:
        A(f"v_add_u32_dpp {v(t0)}, {v(t0)}, {v(t0)} {d}")
        A(fill.pop())
        A(fill.pop())
    A(f"""
    v_readlane_b32 {s(sB)}, {v(t0)}, 63
    v_sub_u32 {v(t0)}, {v(t0)}, {v(t3)}
    v_add_u32 {v(t0)}, {L_LA}, {v(t0)}
    s_cmp_gt_u32 {s(sB)}, {CAPB}
    s_cselect_b32 {s(s_t)}, 1, 0
    s_or_b32 {s(sA)}, {s(sA)}, {s(s_t)}
    s_cbranch_scc1 K_GOSLOW
""")
    for x in range(12):
        A(f"ds_bpermute_b32 {v(CA+x)}, {v(CA+x)}, {v(t0)}")
    A(f"""
    v_add_u32 {v(deg)}, {v(deg)}, {v(t1)}
    s_add_u32 {s(sB)}, {s(sB)}, 127
    s_lshr_b32 {s(sB)}, {s(sB)}, 7
    s_add_u32 {s(s_rem)}, {s(sB)}, 7
    s_sub_u32 {s(s_rem)}, {s(s_rem)}, {s(s_wave)}
    s_lshr_b32 {s(s_rem)}, {s(s_rem)}, 3
    s_lshr_b32 {s(s_t)}, {s(sB)}, 3
    s_mul_i32 {s(s_t)}, {s(s_t)}, {s(s_wave)}
    s_and_b32 {s(sB)}, {s(sB)}, 7
    s_min_u32 {s(sB)}, {s(sB)}, {s(s_wave)}
    s_add_u32 {s(s_t)}, {s(s_t)}, {s(sB)}
    s_lshl_b32 {s(s_t)}, {s(s_t)}, 7
    v_add_u32 {v(la_w)}, {s(s_t)}, {v(cw0)}
    v_add_u32 {v(la_e)}, {s(s_t)}, {v(ce0)}
    v_add_u32 {v(la_n)}, {s(s_t)}, {v(cn0)}
""")
    for x in range(12):
        if x % 4 == 0:
            A(f"s_waitcnt lgkmcnt({8 - x})")
        A(f"v_add_u32 {v(CA+x)}, {v(CA+x)}, {v(RK+x)}")
    for x in range(12):
        A(f"s_mov_b64 exec, {s(MK+2*x,2)}")
        A(f"ds_write2st64_b32 {v(CA+x)}, {v(CG + 4*(x//3) + x%3)}, {v(EI+x)} offset0:0 offset1:64")
    A(f"""
    s_mov_b64 exec, -1
    s_cmp_lg_u64 {s(OVM,2)}, 0
    s_cbranch_scc1 K_COVF2
K_P2D:
    s_waitcnt lgkmcnt(0)
    s_barrier
""")
    stamp(6)

    def dma():
        so = [s(s_o3), s(s_o2), s(s_o1), "0"]
        return [f"buffer_load_dwordx4 {v(lw+q)}, {s(SX,4)}, {so[q]} idxen offset:{q*1024} lds" for q in range(4)]

    def idx():
        return [f"v_and_or_b32 {v(lw+q)}, {v(lw+q)}, {s(s_msk)}, {v(dq[q])}" for q in range(4)]

    def rowaddr(p):
        return [f"v_and_b32 {v(nw)}, 63, {v(nw)}", f"v_and_b32 {v(nw+1)}, 63, {v(nw+1)}",
                f"v_mad_u32_u24 {v(ra[p])}, {v(nw)}, {s(s_rowb)}, {v(j8)}",
                f"v_mad_u32_u24 {v(ra[p]+1)}, {v(nw+1)}, {s(s_rowb)}, {v(j8)}"]

    def qread(n, p):
        off = 1024 + (n // 2) * 256 + (n % 2) * 4
        return [f"ds_read_b32 {v(B5[n]+2+c)}, {v(ra[p]+c)} offset:{off}" for c in range(2)]

    def aread(q):
        return f"ds_read_b128 {v(AX[q],4)}, {v(ar[q])}"

    def mf(n, dst, p):
        m = []
        for q in range(4):
            c = "0" if q == 0 else v(dst, 16)
            m.append(f"v_mfma_f32_32x32x16_bf16 {v(dst,16)}, {v(AX[q],4)}, {v(W[n][q],4)}, {c}")
        m.append(f"v_mfma_f32_32x32x16_bf16 {v(dst,16)}, {v(A5[p],4)}, {v(B5[n],4)}, {v(dst,16)}")
        return m

    A(f"""
    ds_read_b128 {v(lw,4)}, {v(la_w)}
    ds_read_b32 {v(le)}, {v(la_e)}
    ds_read2_b32 {v(nw,2)}, {v(la_n)} offset0:0 offset1:8
    s_waitcnt lgkmcnt(2)
""")
    A(idx())
    A(dma())
    A(f"s_waitcnt lgkmcnt(0)")
    A(f"buffer_load_dwordx2 {v(A5[0],2)}, {v(le)}, {s(SE,4)}, 0 idxen")
    A(f"ds_read_b128 {v(lw,4)}, {v(la_w)} offset:128")
    A(f"ds_read_b32 {v(le)}, {v(la_e)} offset:128")
    A(rowaddr(0))
    for n in range(4):
        A(qread(n, 0))
    QV = D[1]
    A(f"""
    s_mul_i32 {s(s_t)}, {s(s_wave)}, {ROWB}
    v_lshrrev_b32 {v(t0)}, 5, {v(lane)}
    v_lshl_add_u32 {v(t1)}, {v(t0)}, 8, {v(j8)}
    v_add_u32 {v(t1)}, {s(s_t)}, {v(t1)}
    v_lshl_add_u32 {v(t2)}, {v(t0)}, 8, {v(t1)}
    v_cvt_f32_u32 {v(npad)}, {v(npad)}
    v_mul_f32 {v(npad)}, {f32(-0.25)}, {v(npad)}
""")
    for k in range(5):
        A(f"ds_read_b64 {v(QV+2*k,2)}, {v(t1)} offset:{1024 + k*8*ROWB}")
    for k in range(5):
        A(f"s_add_u32 {s(s_t)}, {s(s_wave)}, {8*k}")
        A(f"v_readlane_b32 {s(MK+k)}, {v(npad)}, {s(s_t)}")
    A(f"""
    v_and_b32 {v(t0)}, 3, {v(lane)}
    v_lshrrev_b32 {v(t3)}, 1, {v(lane)}
    v_and_b32 {v(t3)}, 4, {v(t3)}
    s_and_b32 {s(s_t)}, {s(s_wave)}, 1
    s_lshl_b32 {s(s_t)}, {s(s_t)}, 2
    v_xor_b32 {v(t3)}, {s(s_t)}, {v(t3)}
    v_or_b32 {v(t0)}, {v(t0)}, {v(t3)}
    v_lshlrev_b32 {v(t0)}, 4, {v(t0)}
    v_bfe_u32 {v(t3)}, {v(lane)}, 2, 2
    v_lshl_add_u32 {v(t0)}, {v(t3)}, 7, {v(t0)}
    v_lshrrev_b32 {v(t3)}, 4, {v(lane)}
    v_lshl_add_u32 {v(t0)}, {v(t3)}, 10, {v(t0)}
    v_add_u32 {v(t0)}, {L_W2S}, {v(t0)}
    s_waitcnt lgkmcnt(0)
""")
    for m in range(2):
        for ks in range(4):
            for h2 in range(2):
                A(f"ds_read_b64_tr_b16 {v(W2 + (m*4+ks)*4 + 2*h2, 2)}, {v(t0)} offset:{(32*ks + 4*h2)*128 + 8*m}")
    for r in range(10):
        A(f"v_lshlrev_b32 {v(EX+r)}, 16, {v(QV+r)}")
        A(f"v_and_b32 {v(QV+r)}, 0xffff0000, {v(QV+r)}")
        A(f"v_add_f32 {v(QV+r)}, {v(QV+r)}, {v(EX+r)}")
    for r in range(10):
        A(f"v_exp_f32 {v(EX+r)}, {v(QV+r)}")
    for r in range(10):
        A(f"v_add_f32 {v(EX+r)}, 1.0, {v(EX+r)}")
    for r in range(10):
        A(f"v_rcp_f32 {v(EX+r)}, {v(EX+r)}")
    for r in range(10):
        A(f"v_mul_f32 {v(QV+r)}, {v(QV+r)}, {v(EX+r)}")
    for r in range(10):
        A(f"v_mul_f32 {v(QV+r)}, {s(MK + r//2)}, {v(QV+r)}")
    C6 = D[0]
    for r in range(8):
        A(f"v_cvt_f64_f32 {v(C6+2*r,2)}, {v(QV+r)}")
    A(f"v_cvt_f64_f32 {v(EX,2)}, {v(QV+8)}")
    A(f"v_cvt_f64_f32 {v(EX+2,2)}, {v(QV+9)}")
    for r in range(10):
        src = C6 + 2 * r if r < 8 else EX + 2 * (r - 8)
        A(f"ds_add_f64 {v(t2)}, {v(src,2)} offset:{(r//2)*8*ROWB + (r%2)*256}")
    A(idx())
    A(f"""
    v_mov_b32 {v(nn)}, 0
    v_mov_b32 {v(nn+1)}, 0
    v_mov_b32 {v(dd)}, 1.0
    v_mov_b32 {v(dd+1)}, 1.0
    v_add_u32 {v(ra[1])}, {40*ROWB}, {v(j8)}
    v_add_u32 {v(ra[1]+1)}, {40*ROWB}, {v(j8)}
    s_cmp_eq_u32 {s(s_rem)}, 0
    s_cbranch_scc1 K_DONE
    s_setprio 3
    s_waitcnt vmcnt(0)
""")
    stamp(7)
    for q in range(4):
        A(aread(q))
    A("s_waitcnt lgkmcnt(0)")
    A(dma())
    A(f"buffer_load_dwordx2 {v(A5[1],2)}, {v(le)}, {s(SE,4)}, 0 idxen")
    A(mf(0, D[0], 0))
    A(f"""
    s_nop 15
    s_cmp_eq_u32 {s(s_safe)}, 0
    s_cbranch_scc0 K_LOOP_S
""")

    def flush(bprev, p, safe):
        o = []
        if not safe:
            o.append(f"v_pk_mul_f32 {v(ss,2)}, {v(nn,2)}, {v(rr,2)}")
            src = ss
        else:
            src = nn
        o2 = [f"v_cvt_f64_f32 {v(c64a,2)}, {v(src)}", f"v_cvt_f64_f32 {v(c64b,2)}, {v(src+1)}"]
        o3 = [f"ds_add_f64 {v(ra[p])}, {v(c64a,2)} offset:{bprev*256}",
              f"ds_add_f64 {v(ra[p]+1)}, {v(c64b,2)} offset:{bprev*256}"]
        return o, o2, o3

    def step(b, p, safe):
        cur, nxt = D[b % 2], D[(b + 1) % 2]
        nb = (b + 1) % 4
        m = mf(nb, nxt, p if b < 3 else p ^ 1)
        tr = []
        if not safe:
            tr += [f"v_rcp_f32 {v(rr)}, {v(dd)}", f"v_rcp_f32 {v(rr+1)}, {v(dd+1)}"]
        tr += [f"v_exp_f32 {v(EX+i)}, {v(cur+i)}" for i in range(16)]
        pre = [[] for _ in range(5)]
        post = [[] for _ in range(5)]
        tail = []
        if b == 0:
            post[0] += [f"ds_read2_b32 {v(nw,2)}, {v(la_n)} offset0:{32*(p+1)} offset1:{32*(p+1)+8}",
                        f"ds_read_b128 {v(lw,4)}, {v(la_w)} offset:{128*(p+2)}",
                        f"ds_read_b32 {v(le)}, {v(la_e)} offset:{128*(p+2)}"]
            if p == 1:
                tail += [f"v_add_u32 {v(x)}, 256, {v(x)}" for x in (la_w, la_e, la_n)]
        if b == 1:
            pre[0] += ["s_waitcnt lgkmcnt(2)"]
            tail += rowaddr(p ^ 1) + idx()
        if b == 2:
            pre[0] += qread(0, p ^ 1) + qread(1, p ^ 1) + ["s_waitcnt vmcnt(1)"]
            for q in range(4):
                post[q].append(aread(q))
        if b == 3:
            pre[0] += ["s_waitcnt lgkmcnt(2)"]
            post[0] += dma()
            post[1] += [f"buffer_load_dwordx2 {v(A5[p],2)}, {v(le)}, {s(SE,4)}, 0 idxen"]
            post[2] += qread(2, p ^ 1) + qread(3, p ^ 1)
            pre[4] += ["s_waitcnt vmcnt(5)"]
        o = []
        ti = 0
        for k in range(5):
            o += pre[k] + [m[k]] + post[k]
            if k < 4:
                o += tr[ti:ti + 3]
                ti += 3
        o += tr[ti:]
        if not safe:
            o.append(f"v_max3_f32 {v(guard)}, {v(guard)}, {v(dd)}, {v(dd+1)}")
        o += tail
        f1, f2, f3 = flush((b - 1) % 4, p if b > 0 else p ^ 1, safe)
        if not safe:
            o += f1
            o.append(f"v_pk_add_f32 {v(dd,2)}, {v(EX,2)}, 1.0 op_sel_hi:[1,0]")
            o += f2 + f3
            n_ = v(cur, 2)
            for k in range(1, 8):
                e_, z_ = v(EX + 2 * k, 2), v(cur + 2 * k, 2)
                o.append(f"v_pk_fma_f32 {v(tt,2)}, {n_}, {e_}, {n_}")
                o.append(f"v_pk_fma_f32 {v(nn,2)}, {z_}, {v(dd,2)}, {v(tt,2)}")
                o.append(f"v_pk_fma_f32 {v(dd,2)}, {v(dd,2)}, {e_}, {v(dd,2)}")
                n_ = v(nn, 2)
        else:
            o += f2 + f3
            for k in range(8):
                o.append(f"v_pk_add_f32 {v(EX+2*k,2)}, {v(EX+2*k,2)}, 1.0 op_sel_hi:[1,0]")
            for i in range(16):
                o.append(f"v_rcp_f32 {v(EX+i)}, {v(EX+i)}")
            o.append(f"v_pk_mul_f32 {v(nn,2)}, {v(cur,2)}, {v(EX,2)}")
            for k in range(1, 8):
                o.append(f"v_pk_fma_f32 {v(nn,2)}, {v(cur+2*k,2)}, {v(EX+2*k,2)}, {v(nn,2)}")
        return o

    def loop(safe):
        sf = "S" if safe else "F"
        A(f".p2align 6\nK_LOOP_{sf}:")
        for p in range(2):
            A(f"""
            s_cmp_gt_u32 {s(s_rem)}, 3
            s_cbranch_scc0 K_PRIO_{sf}{p}
K_PB_{sf}{p}:
""")
            for b in range(4):
                A(step(b, p, safe))
            A(f"s_sub_u32 {s(s_rem)}, {s(s_rem)}, 1")
            A(f"s_cmp_eq_u32 {s(s_rem)}, 0")
            if p == 0:
                A(f"s_cbranch_scc1 K_DRAIN_{sf}0")
            else:
                A(f"s_cbranch_scc0 K_LOOP_{sf}")
        for p in (1, 0):
            A(f"K_DRAIN_{sf}{p}:")
            if not safe:
                A(f"v_rcp_f32 {v(rr)}, {v(dd)}\nv_rcp_f32 {v(rr+1)}, {v(dd+1)}")
                A(f"v_max3_f32 {v(guard)}, {v(guard)}, {v(dd)}, {v(dd+1)}")
            f1, f2, f3 = flush(3, p, safe)
            A(f1 + f2 + f3)
            A("s_branch K_DONE")
        for p in range(2):
            A(f"""
K_PRIO_{sf}{p}:
            s_setprio 2
            s_cmp_eq_u32 {s(s_rem)}, 3
            s_cbranch_scc1 K_PB_{sf}{p}
            s_setprio 1
            s_cmp_eq_u32 {s(s_rem)}, 2
            s_cbranch_scc1 K_PB_{sf}{p}
            s_setprio 0
            s_branch K_PB_{sf}{p}
""")
    loop(False)

    A(f"""
K_DONE:
    s_setprio 0
    s_cmp_eq_u32 {s(s_slow)}, 0
    s_cbranch_scc0 K_NEXTCHUNK
K_FIN:
""")
    stamp(8)
    A(f"""
    v_lshrrev_b32 {v(t0)}, 4, v0
    v_and_b32 {v(t1)}, 15, v0
    v_mul_u32_u24 {v(t2)}, {ROWB}, {v(t0)}
    v_lshl_add_u32 {v(t2)}, {v(t1)}, 6, {v(t2)}
    v_mul_u32_u24 {v(t3)}, {HB_STRIDE}, {v(t0)}
    v_lshl_add_u32 {v(t3)}, {v(t1)}, 4, {v(t3)}
    v_add_u32 {v(t3)}, {L_HBHI}, {v(t3)}
    s_waitcnt vmcnt(0) lgkmcnt(0)
    s_barrier
""")

    def stage1(roff):
        H = D[0]
        for i in range(4):
            A(f"ds_read_b128 {v(H+4*i,4)}, {v(t2)} offset:{roff*ROWB + 16*i}")
        for i in range(8):
            if i % 2 == 0:
                A(f"s_waitcnt lgkmcnt({3 - i//2})")
            A(f"v_cvt_f32_f64 {v(EX+i)}, {v(H+2*i,2)}")
        for i in range(0, 8, 2):
            A(f"v_max3_f32 {v(guard)}, abs({v(EX+i)}), abs({v(EX+i+1)}), {v(guard)}")
            A(f"v_cmp_u_f32 vcc, {v(EX+i)}, {v(EX+i+1)}")
            A(f"s_or_b64 {s(sA,2)}, {s(sA,2)}, vcc")
        for i in range(8):
            A(f"v_and_b32 {v(EX+8+i)}, 0xffff0000, {v(EX+i)}")
        for i in range(8):
            A(f"v_sub_f32 {v(EX+i)}, {v(EX+i)}, {v(EX+8+i)}")
        for i in range(4):
            A(f"v_cvt_pk_bf16_f32 {v(D[1]+i)}, {v(EX+8+2*i)}, {v(EX+9+2*i)}")
        for i in range(4):
            A(f"v_cvt_pk_bf16_f32 {v(D[1]+4+i)}, {v(EX+2*i)}, {v(EX+1+2*i)}")
        A(f"ds_write_b128 {v(t3)}, {v(D[1],4)} offset:{roff*HB_STRIDE}")
        A(f"ds_write_b128 {v(t3)}, {v(D[1]+4,4)} offset:{roff*HB_STRIDE + 16384}")
    A(f"s_mov_b64 {s(sA,2)}, 0")
    stage1(0)
    A(f"s_cmp_ge_u32 {s(s_wave)}, 2\ns_cbranch_scc1 K_S1D")
    stage1(32)
    A(f"""
K_S1D:
    v_cmp_lt_f32 vcc, {f32(2.0**100)}, {v(guard)}
    s_or_b64 vcc, vcc, {s(sA,2)}
    v_mov_b32 {v(t2)}, {L_FLAG + 4}
    s_cbranch_vccz K_NOFL
    ds_write_b32 {v(t2)}, {v(t2)}
K_NOFL:
    v_and_b32 {v(t0)}, 15, {v(lane)}
    s_lshr_b32 {s(s_t)}, {s(s_wave)}, 1
    s_lshl_b32 {s(s_t)}, {s(s_t)}, 4
    v_add_u32 {v(t0)}, {s(s_t)}, {v(t0)}
    v_lshrrev_b32 {v(t1)}, 4, {v(lane)}
    v_mul_u32_u24 {v(t3)}, {HB_STRIDE}, {v(t0)}
    v_lshl_add_u32 {v(t3)}, {v(t1)}, 4, {v(t3)}
    v_add_u32 {v(t3)}, {L_HBHI}, {v(t3)}
    v_lshlrev_b32 {v(le)}, 2, {v(t0)}
    ds_bpermute_b32 {v(le)}, {v(le)}, {v(deg)}
    s_waitcnt lgkmcnt(0)
    s_barrier
    ds_read_b32 {v(t2)}, {v(t2)}
""")
    for ks in range(4):
        A(f"ds_read_b128 {v(D[0]+4*ks,4)}, {v(t3)} offset:{ks*64}")
        A(f"ds_read_b128 {v(D[1]+4*ks,4)}, {v(t3)} offset:{ks*64 + 16384}")
    A(f"""
    s_waitcnt lgkmcnt(8)
    v_readfirstlane_b32 {s(sA)}, {v(t2)}
    s_cmp_lg_u32 {s(s_safe)}, 0
    s_cbranch_scc1 K_GEMM
    s_cmp_eq_u32 {s(sA)}, 0
    s_cbranch_scc0 K_RESTART
K_GEMM:
    s_cmp_ge_u32 {s(s_wave)}, 6
    s_cbranch_scc1 K_EPOCH
    v_lshlrev_b32 {v(t0)}, 15, {v(t0)}
    v_lshl_add_u32 {v(t0)}, {v(t1)}, 4, {v(t0)}
    s_lshl_b32 {s(s_t)}, s2, 7
    s_and_b32 {s(s_u)}, {s(s_wave)}, 1
    s_lshl_b32 {s(s_u)}, {s(s_u)}, 6
    s_add_u32 {s(s_t)}, {s(s_t)}, {s(s_u)}
    v_cvt_f32_u32 {v(le)}, {v(le)}
    v_mul_f32 {v(le)}, {f32(0.25)}, {v(le)}
""")
    O = EX
    for ks in range(4):
        for hl in range(2):
            A(f"s_waitcnt lgkmcnt({7 - 2*ks - hl})")
            for m in range(2):
                c = "0" if ks == 0 and hl == 0 else v(O + 4 * m, 4)
                A(f"v_mfma_f32_16x16x32_bf16 {v(O+4*m,4)}, {v(W2 + (m*4+ks)*4,4)}, {v(D[hl]+4*ks,4)}, {c}")
    BB = EX + 8
    for i in range(4):
        A(f"v_lshlrev_b32 {v(BB+2*i)}, 16, {v(b2r+i)}")
        A(f"v_and_b32 {v(BB+2*i+1)}, 0xffff0000, {v(b2r+i)}")
    for i in range(8):
        A(f"v_mul_f32 {v(BB+i)}, {v(le)}, {v(BB+i)}")
    A(f"s_mov_b32 {s(s_u)}, {f32(-LN2)}")
    for i in range(8):
        A(f"v_fma_f32 {v(O+i)}, {v(O+i)}, {s(s_u)}, {v(BB+i)}")
    for i in range(4):
        A(f"v_cvt_pk_bf16_f32 {v(BB+i)}, {v(O+2*i)}, {v(O+2*i+1)}")
    A(f"buffer_store_dwordx4 {v(BB,4)}, {v(t0)}, {s(SO,4)}, {s(s_t)} offen")
    if DL[0] == 9:
        stamp(9)
    if STAMP:
        A("s_waitcnt vmcnt(0)")
        stamp(9)
        A(f"""
    v_cmp_eq_u32 vcc, 0, {v(lane)}
    s_and_saveexec_b64 {s(sA,2)}, vcc
    s_lshl_b32 {s(s_t)}, s2, 3
    s_add_u32 {s(s_t)}, {s(s_t)}, {s(s_wave)}
    s_lshl_b32 {s(s_t)}, {s(s_t)}, 6
    s_add_u32 {s(s_t)}, {s(s_t)}, {WS_STAMP}
    v_mov_b32 {v(t0)}, {s(s_t)}
""")
        for i in range(10):
            A(f"v_mov_b32 {v(D[0]+i)}, {s(STR[i]) if i else s(s_x)}")
        A(f"v_mov_b32 {v(D[0]+10)}, {s(s_to)}\nv_mov_b32 {v(D[0]+11)}, 0")
        for i in range(3):
            A(f"global_store_dwordx4 {v(t0)}, {v(D[0]+4*i,4)}, s[24:25] offset:{16*i}")
    A(f"""
K_END:
    s_endpgm
K_EPOCH:
    s_cmp_eq_u32 {s(s_wave)}, 7
    s_cbranch_scc0 K_END
    s_mov_b64 exec, 1
    v_mov_b32 {v(t0)}, 0
    v_mov_b32 {v(t1)}, 1
    global_atomic_add {v(t2)}, {v(t0)}, {v(t1)}, s[22:23] sc0
    v_mov_b32 {v(t0)}, {WS_EPOCH}
    v_mov_b32 {v(t1)}, {s(s_tag)}
    s_waitcnt vmcnt(0)
    v_cmp_eq_u32 vcc, {NB - 1}, {v(t2)}
    s_cbranch_vccz K_END
    global_store_dword {v(t0)}, {v(t1)}, s[24:25]
    s_endpgm
""")

    for k in range(4):
        A(f"""
K_RETRY{k}:
        s_or_b32 {s(sA)}, {s(s_tag)}, 3
        v_or_b32 {v(t0)}, 3, {v(CG+4*k+3)}
        v_cmp_ne_u32 vcc, {s(sA)}, {v(t0)}
        s_cbranch_vccz K_SPEC{k}
        s_cmp_eq_u32 {s(s_to)}, 0
        s_cbranch_scc1 K_GIVEUP{k}
        s_sub_u32 {s(s_to)}, {s(s_to)}, 1
""")
        A(polls(k))
        A(f"""
        s_branch K_CHK{k}
K_SPEC{k}:
        v_and_b32 {v(t0)}, 2, {v(CG+4*k+3)}
        v_cmp_ne_u32 vcc, 0, {v(t0)}
        s_cbranch_vccnz K_GIVEUP{k}
        v_cmp_ne_u32 vcc, {s(s_tag)}, {v(CG+4*k+3)}
        s_and_b64 {s(sA,2)}, vcc, {s(OVM,2)}
        s_cbranch_scc1 K_GIVEUP{k}
        s_or_b64 {s(OVM,2)}, vcc, {s(OVM,2)}
        s_mov_b64 exec, vcc
        v_add_u32 {v(ova)}, {WS_L2 + 1024*k}, {v(l16)}
        v_mov_b32 {v(EB+4)}, {v(EB+k)}
        s_mov_b64 exec, -1
        s_branch K_OK{k}
K_GIVEUP{k}:
        v_mov_b32 {v(t0)}, {L_FLAG}
        ds_write_b32 {v(t0)}, {v(t3)}
        s_branch K_OK{k}
""")
    A(f"""
K_COVF:
    v_mov_b32 {v(CG+16)}, {s(s_inv)}
    v_mov_b32 {v(CG+17)}, {s(s_inv)}
    v_mov_b32 {v(CG+18)}, {s(s_inv)}
    v_mov_b32 {v(CG+19)}, {s(s_tag)}
K_COVFL:
    s_mov_b64 exec, {s(OVM,2)}
    buffer_load_dwordx4 {v(CG+16,4)}, {v(ova)}, {s(SW,4)}, {s(s_pb)} offen sc1
    s_mov_b64 exec, -1
    s_waitcnt vmcnt(0)
    v_cmp_ne_u32 vcc, {s(s_tag)}, {v(CG+19)}
    s_cbranch_vccz K_COVFOK
    s_sub_u32 {s(s_to)}, {s(s_to)}, 1
    s_cbranch_scc0 K_COVFL
    s_mov_b32 {s(s_to)}, 0
    v_mov_b32 {v(t0)}, {L_FLAG}
    ds_write_b32 {v(t0)}, {v(t3)}
K_COVFOK:
""")
    p1words(4)
    A("s_branch K_P1D\nK_COVF2:")
    for x in range(12, 15):
        A(f"ds_bpermute_b32 {v(CA+x)}, {v(CA+x)}, {v(t0)}")
        A(f"v_lshrrev_b32 {v(EI+x)}, 20, {v(CG + 4 + x)}")
        A(f"v_add_u32 {v(EI+x)}, {v(EI+x)}, {v(EB+4)}")
    A("s_waitcnt lgkmcnt(0)")
    for x in range(12, 15):
        A(f"v_add_u32 {v(CA+x)}, {v(CA+x)}, {v(RK+x)}")
    for x in range(12, 15):
        A(f"s_mov_b64 exec, {s(MK+2*x,2)}")
        A(f"ds_write2st64_b32 {v(CA+x)}, {v(CG + 4 + x)}, {v(EI+x)} offset0:0 offset1:64")
    A("s_mov_b64 exec, -1\ns_branch K_P2D")
    A(f"""
K_POVF:
    v_cmp_lt_u32 vcc, {STGB}, {v(DS_)}
    s_cmp_lg_u64 vcc, 0
    s_cselect_b32 {s(sA)}, 2, 0
    s_or_b32 {s(sA)}, {s(sA)}, {s(s_tag)}
    v_lshrrev_b32 {v(t0)}, 3, v0
    v_lshlrev_b32 {v(t1)}, 2, {v(t0)}
    v_add_u32 {v(t1)}, {L_CNT1}, {v(t1)}
    v_mul_u32_u24 {v(t0)}, {STGB}, {v(t0)}
    v_add_u32 {v(t2)}, {WS_L2}, {v(GO)}
    v_mov_b32 {v(SR_+3)}, {s(s_tag)}
""")
    for k in range(4):
        A(f"""
        ds_read_b32 {v(DS_+4)}, {v(t1)} offset:{256*k}
        ds_read2_b32 {v(SR_,2)}, {v(adr[k])} offset0:24 offset1:25
        ds_read_b32 {v(SR_+2)}, {v(adr[k])} offset:104
        s_waitcnt lgkmcnt(0)
        v_sub_u32 {v(DS_+4)}, {v(DS_+4)}, {v(t0)}
        v_cmp_lt_u32 vcc, {96 + 64*STGB*k}, {v(DS_+4)}
        v_mov_b32 {v(SD+4*k+3)}, {s(sA)}
        s_cbranch_vccz K_POVF{k}
        s_mov_b64 exec, vcc
        v_or_b32 {v(SD+4*k+3)}, 1, {v(SD+4*k+3)}
        buffer_store_dwordx4 {v(SR_,4)}, {v(t2)}, {s(SW,4)}, {s(MK+2+k)} offen sc1
        s_mov_b64 exec, -1
        s_waitcnt vmcnt(0)
K_POVF{k}:
""")
    A("s_branch K_PSTORE")
    A(f"""
K_RESTART:
    s_mov_b32 {s(s_safe)}, 1
    s_mov_b32 {s(s_slow)}, 0
    s_waitcnt lgkmcnt(0)
    s_barrier
""")
    A(polls(0))
    A(ebase())
    zero_hsum()
    A("K_ROUND:")
    prefill()
    A(f"""
    s_waitcnt lgkmcnt(0)
    s_barrier
    s_branch K_PASS1
K_GOSLOW:
    s_mov_b32 {s(s_slow)}, 1
    s_mov_b32 {s(s_chunk)}, -1
K_NEXTCHUNK:
    s_add_u32 {s(s_chunk)}, {s(s_chunk)}, 1
    s_cmp_lt_u32 {s(s_chunk)}, {NB}
    s_cbranch_scc0 K_FIN
    s_waitcnt vmcnt(0) lgkmcnt(0)
    s_barrier
    s_mul_i32 {s(s_t)}, {s(s_chunk)}, {CH * 4}
    v_lshlrev_b32 {v(t0)}, 2, v0
""")
    for k in range(5):
        if k in (2, 4):
            A(f"s_add_u32 {s(s_t)}, {s(s_t)}, 4096")
        A(f"buffer_load_dword {v(RK+k)}, {v(t0)}, {s(SD_,4)}, {s(s_t)} offen offset:{(k%2)*2048}")
        A(f"buffer_load_dword {v(RK+8+k)}, {v(t0)}, {s(SS,4)}, {s(s_t)} offen offset:{(k%2)*2048}")
    A(f"s_mul_i32 {s(s_t)}, {s(s_chunk)}, {CH}\ns_movk_i32 {s(s_u)}, {CH}\nv_mov_b32 {v(t3)}, {s(s_inv)}")
    for k in range(4):
        A(f"""
        v_mov_b32 {v(EB+k)}, {s(s_t)}
        v_mov_b32 {v(CG+4*k+1)}, {s(s_inv)}
        v_mov_b32 {v(CG+4*k+2)}, {s(s_inv)}
        v_mov_b32 {v(CG+4*k+3)}, {s(s_tag)}
""")
    A("s_waitcnt vmcnt(0)")
    for k in range(5):
        A(f"""
        v_add_u32 {v(t1)}, {512*k}, v0
        v_lshrrev_b32 {v(t2)}, 8, {v(RK+k)}
        v_lshl_or_b32 {v(t2)}, {v(RK+8+k)}, 6, {v(t2)}
        v_lshl_or_b32 {v(t2)}, {v(t1)}, 20, {v(t2)}
        v_and_b32 {v(RK+k)}, 255, {v(RK+k)}
        v_cmp_eq_u32 vcc, s2, {v(RK+k)}
        v_cmp_gt_u32 {s(sA,2)}, {s(s_u)}, {v(t1)}
        s_and_b64 vcc, vcc, {s(sA,2)}
        v_cndmask_b32 {v(CG+4*k if k < 4 else CG+1)}, {v(t3)}, {v(t2)}, vcc
""")
    A("s_branch K_ROUND")
    loop(True)
    return nvgpr, 102


def kd(name, vg, sg):
    acc = (vg + 3) // 4 * 4
    return f""".p2align 6
.amdhsa_kernel {name}
  .amdhsa_next_free_vgpr {vg}
  .amdhsa_next_free_sgpr {sg}
  .amdhsa_accum_offset {acc}
  .amdhsa_group_segment_fixed_size 0
  .amdhsa_kernarg_size 88
  .amdhsa_user_sgpr_count 2
  .amdhsa_user_sgpr_kernarg_segment_ptr 1
  .amdhsa_system_sgpr_workgroup_id_x 1
  .amdhsa_float_denorm_mode_32 3
.end_amdhsa_kernel
"""


def main():
    ref = open(f"cdna_kernels/{NAME}.s.ref").read().split("\n")
    head = [l for l in ref if l.startswith(";") and "@launch" not in l]
    A = Asm()
    vg, sg = gen(A)
    out = "\n".join(head) + "\n"
    out += f"; @launch grid=({NB},1,1) block=(512,1,1) lds={L_END}\n"
    out += '.amdgcn_target "amdgcn-amd-amdhsa--gfx950"\n.text\n'
    out += A.text()
    out += '.section .rodata,"a"\n' + kd(KERN, vg, sg)
    path = sys.argv[1] if len(sys.argv) > 1 else f"cdna_kernels/{NAME}.s"
    open(path, "w").write(out)
    print("vgprs", vg, "->", path)


if __name__ == "__main__":
    main()
```

```python
import sys, struct, os

NAME = "gather_scatter__edge_featured_mpnn_mpnn__graph"
N, E = 10000, 640000
NB, CH = 256, 2500
LOG2E = 1.4426950408889634
LN2 = 0.6931471805599453
STAMP = int(os.environ.get("STAMP", "0"))
TM = "s_memtime" if STAMP == 2 else "s_memrealtime"
DL = [int(x) for x in os.environ.get("DL", "-1:0").split(":")]
ABL = os.environ.get("ABL", "").split(",")
OPT = os.environ.get("OPT", "").split(",")
WS_STAMP = 24 << 20


def f32(x):
    return struct.unpack("<I", struct.pack("<f", x))[0]


WS_P = 8 << 20
WS_Q = WS_P + (3 << 20)
WS_W2 = WS_Q + NB * 20480
WS_WC = WS_W2 + 16384
WS_END = WS_WC + 2048
INVAL = 0xFFF00000

L_HS = 0
L_QT = 40 * 1024
L_CNT = L_QT + 40 * 512
L_FLAG = L_CNT + 256
L_LA = L_CNT + 512
NE = 3584
L_LB = L_LA + NE * 4
L_PB = L_LB + NE * 4 + 256
PCS = 1040
PBW = 8 * PCS
L_END = L_PB + 8 * PBW + 16
CAPB = NE * 4
PADW = (16383 << 6)
PADE = 0x7FFFFFF
HB_STRIDE = 272
L_HBHI = L_PB
HB_LO = 20480


class Asm:
    def __init__(self):
        self.lines = []

    def __call__(self, s):
        if isinstance(s, list):
            s = "\n".join(s)
        for ln in s.split("\n"):
            ln = ln.strip()
            if ln:
                self.lines.append(("" if ln.endswith(":") or ln.startswith(".") else "    ") + ln)

    def text(self):
        return "\n".join(self.lines) + "\n"


class Regs:
    def __init__(self, first):
        self.n = first

    def a(self, cnt=1, align=1):
        self.n = (self.n + align - 1) // align * align
        r = self.n
        self.n += cnt
        return r


def v(r, n=1):
    return f"v{r}" if n == 1 else f"v[{r}:{r + n - 1}]"


def s(r, n=1):
    return f"s{r}" if n == 1 else f"s[{r}:{r + n - 1}]"


K1_CNT = 32768
K1_FLAG = K1_CNT + 1024
K1_LDS = 40960 + 1024
ST1 = "sc1" if "c_sc1" in OPT else ("nt" if "c_nt" in OPT else "")
ST2 = "sc1" if "n_sc1" in OPT else ("nt" if "n_nt" in OPT else "")


def gen_k1(A):
    A(f"""
.globl k1_kernel
.p2align 8
.type k1_kernel,@function
k1_kernel:
    s_cmp_ge_u32 s2, {NB}
    s_cbranch_scc1 K1_NODE
    s_load_dwordx4 s[4:7], s[0:1], 16
    s_load_dwordx2 s[8:9], s[0:1], 80
    {"s_memrealtime s[28:29]" if STAMP else ""}
    v_lshlrev_b32 v1, 4, v0
    v_mov_b32 v4, {INVAL}
    v_mov_b32 v5, v4
    v_mov_b32 v6, v4
    v_mov_b32 v7, v4
    s_mul_i32 s3, s2, {CH * 4}
    s_mov_b32 s14, {E * 4}
    s_mov_b32 s15, 0x20000
    s_mov_b32 s18, {E * 4}
    s_mov_b32 s19, 0x20000
    s_waitcnt lgkmcnt(0)
    s_mov_b32 s12, s6
    s_and_b32 s13, s7, 0xffff
    s_mov_b32 s16, s4
    s_and_b32 s17, s5, 0xffff
    buffer_load_dwordx4 v[8:11], v1, s[12:15], s3 offen
    buffer_load_dwordx4 v[12:15], v1, s[16:19], s3 offen
    ds_write_b128 v1, v[4:7]
    ds_write_b128 v1, v[4:7] offset:10240
    ds_write_b128 v1, v[4:7] offset:20480
    ds_write_b128 v1, v[4:7] offset:22528
    v_lshlrev_b32 v2, 2, v0
    v_mov_b32 v3, 0
    ds_write_b32 v2, v3 offset:{K1_CNT}
    s_mov_b32 s20, s8
    s_and_b32 s21, s9, 0xffff
    s_mov_b32 s22, {8 << 20}
    s_mov_b32 s23, 0x20000
    s_movk_i32 s24, 0x70
    v_lshlrev_b32 v24, 22, v0
    v_add_u32 v25, {1 << 20}, v24
    v_add_u32 v26, {2 << 20}, v24
    v_add_u32 v27, {3 << 20}, v24
    v_mov_b32 v3, 1
    v_lshrrev_b32 v2, 3, v0
    v_lshlrev_b32 v2, 15, v2
    v_and_b32 v28, 7, v0
    v_lshl_add_u32 v2, v28, 4, v2
    s_lshl_b32 s3, s2, 7
    s_add_u32 s4, s3, {80 * 32768}
    s_add_u32 s5, s3, {160 * 32768}
    s_add_u32 s6, s3, {176 * 32768}
    v_cmp_gt_u32 vcc, {CH // 4}, v0
    s_waitcnt lgkmcnt(0)
    s_barrier
    s_and_saveexec_b64 s[26:27], vcc
    s_waitcnt vmcnt(1)
    {"s_memrealtime s[30:31]" if STAMP else ""}
    {"s_waitcnt lgkmcnt(0)" if STAMP else ""}
""")
    for i in range(4):
        A(f"v_lshlrev_b32_sdwa v{16+i}, 2, v{8+i} dst_sel:DWORD dst_unused:UNUSED_PAD src0_sel:DWORD src1_sel:BYTE_0")
        A(f"ds_add_rtn_u32 v{20+i}, v{16+i}, v3 offset:{K1_CNT}")
    for i in range(4):
        A(f"v_lshrrev_b32 v{28+i}, 8, v{8+i}")
        A(f"v_or_b32 v{24+i}, v{24+i}, v{28+i}")
        A(f"v_lshlrev_b32 v{16+i}, 5, v{16+i}")
    A("s_waitcnt vmcnt(0)")
    for i in range(4):
        A(f"v_lshl_or_b32 v{24+i}, v{12+i}, 6, v{24+i}")
    for i in range(4):
        A("s_waitcnt lgkmcnt(3)")
        A(f"v_add_lshl_u32 v{28+i}, v{20+i}, v{8+i}, 4")
        A(f"v_and_or_b32 v{16+i}, v{28+i}, s24, v{16+i}")
        A(f"v_bfe_u32 v{28+i}, v{20+i}, 3, 2")
        A(f"v_lshl_add_u32 v{16+i}, v{28+i}, 2, v{16+i}")
        A(f"ds_write_b32 v{16+i}, v{24+i}")
    A(f"""
    v_max3_u32 v20, v20, v21, v22
    v_max_u32 v20, v20, v23
    v_cmp_lt_u32 vcc, 31, v20
    v_mov_b32 v28, {K1_FLAG}
    s_cbranch_vccz K1_NOOV
    ds_write_b32 v28, v3
K1_NOOV:
    s_mov_b64 exec, s[26:27]
    v_mov_b32 v28, {K1_FLAG}
    s_waitcnt lgkmcnt(0)
    s_barrier
    {"s_memrealtime s[32:33]" if STAMP else ""}
    {"s_waitcnt lgkmcnt(0)" if STAMP else ""}
    ds_read_b32 v28, v28
    ds_read_b128 v[4:7], v1
    ds_read_b128 v[8:11], v1 offset:10240
    ds_read_b128 v[12:15], v1 offset:20480
    ds_read_b128 v[16:19], v1 offset:22528
    s_waitcnt lgkmcnt(4)
    v_cmp_ne_u32 vcc, 0, v28
    s_cbranch_vccnz K1_POISON
K1_OUT:
    v_cmp_le_u32 vcc, 512, v0
    s_waitcnt lgkmcnt(3)
    buffer_store_dwordx4 v[4:7], v2, s[20:23], s3 offen {ST1}
    s_waitcnt lgkmcnt(2)
    buffer_store_dwordx4 v[8:11], v2, s[20:23], s4 offen {ST1}
    s_waitcnt lgkmcnt(1)
    buffer_store_dwordx4 v[12:15], v2, s[20:23], s5 offen {ST1}
    s_cbranch_vccz K1_ST
    s_waitcnt lgkmcnt(0)
    buffer_store_dwordx4 v[16:19], v2, s[20:23], s6 offen {ST1}
K1_ST:
""")
    if STAMP:
        A(f"""
    s_waitcnt vmcnt(0)
    s_memrealtime s[34:35]
    v_cmp_eq_u32 vcc, 0, v0
    s_and_saveexec_b64 s[26:27], vcc
    s_cbranch_execz K1_END
    s_lshl_b32 s3, s2, 4
    s_add_u32 s3, s3, {WS_STAMP + (1 << 17)}
    v_mov_b32 v2, s3
    s_waitcnt lgkmcnt(0)
    v_mov_b32 v4, s28
    v_mov_b32 v5, s30
    v_mov_b32 v6, s32
    v_mov_b32 v7, s34
    global_store_dwordx4 v2, v[4:7], s[8:9]
""")
    A(f"""
K1_END:
    s_endpgm
K1_POISON:
    s_waitcnt lgkmcnt(0)
    v_mov_b32 v6, -1
    v_mov_b32 v10, -1
    v_mov_b32 v14, -1
    v_mov_b32 v18, -1
    s_branch K1_OUT
""")
    XO = 32768
    A(f"""
K1_NODE:
    s_sub_u32 s2, s2, {NB}
    s_cmp_ge_u32 s2, {NB}
    s_cbranch_scc1 K1_END
    s_load_dwordx2 s[4:5], s[0:1], 0
    s_load_dwordx8 s[8:15], s[0:1], 32
    s_load_dwordx2 s[6:7], s[0:1], 80
    {"s_memrealtime s[36:37]" if STAMP else ""}
    v_lshrrev_b32 v1, 6, v0
    v_and_b32 v2, 63, v0
    v_readfirstlane_b32 s3, v1
    v_lshlrev_b32 v3, 4, v0
    v_lshrrev_b32 v4, 3, v0
    v_xor_b32 v5, v0, v3
    v_and_b32 v5, 0x70, v5
    v_lshl_add_u32 v5, v4, 15, v5
    s_cmp_ge_u32 s3, 8
    s_cbranch_scc1 K1_PREP
    ; W source: (64*(w>>2) + l/4 + 16 k)*256 + (w&3)*64 + (l&3)*16
    v_lshrrev_b32 v6, 2, v2
    v_and_b32 v7, 0x30, v3
    v_lshl_add_u32 v6, v6, 8, v7
    s_lshr_b32 s28, s3, 2
    s_and_b32 s29, s3, 3
    s_lshl_b32 s30, s28, 14
    s_lshl_b32 s31, s29, 6
    s_add_u32 s30, s30, s31
    v_add_u32 v6, s30, v6
    v_add_u32 v7, 3072, v6
    v_add_u32 v8, 6144, v6
    v_add_u32 v9, 9216, v6
    s_lshl_b32 s32, s2, 7
    s_lshl_b32 s33, s3, 10
    s_mov_b32 s18, {N * 128}
    s_mov_b32 s19, 0x20000
    s_add_u32 m0, s33, {XO}
    v_and_b32 v10, 31, v2
    v_lshl_add_u32 v11, v10, 1, s31
    s_waitcnt lgkmcnt(0)
    s_mov_b32 s16, s4
    s_and_b32 s17, s5, 0xffff
    buffer_load_dwordx4 v5, s[16:19], s32 offen lds
    s_lshl_b32 m0, s3, 12
    s_nop 0
    global_load_lds_dwordx4 v6, s[8:9]
    global_load_lds_dwordx4 v7, s[8:9] offset:1024
    global_load_lds_dwordx4 v8, s[8:9] offset:2048
    global_load_lds_dwordx4 v9, s[8:9] offset:3072
    global_load_ushort v12, v11, s[10:11]
    v_lshrrev_b32 v13, 5, v2
    v_bfe_u32 v14, v2, 2, 2
    v_lshl_add_u32 v14, v13, 3, v14
    v_and_b32 v15, 3, v2
    v_lshlrev_b32 v15, 3, v15
    v_lshl_add_u32 v14, v14, 6, v15
    v_and_b32 v15, 16, v2
    v_lshl_add_u32 v14, v15, 1, v14
    v_add_u32 v14, m0, v14
    ; x fragment addresses
    v_bfe_u32 v15, v2, 1, 3
    v_xor_b32 v15, v15, v13
    v_lshlrev_b32 v3, 7, v10
""")
    for q in range(4):
        A(f"v_xor_b32 v{6+q}, {2*q}, v15")
        A(f"v_lshl_add_u32 v{6+q}, v{6+q}, 4, v3")
    A(f"""
    s_add_u32 s20, s6, {WS_P}
    s_addc_u32 s21, s7, 0
    s_and_b32 s21, s21, 0xffff
    s_mov_b32 s22, {N * 256}
    s_mov_b32 s23, 0x20000
    s_add_u32 s24, s6, {WS_Q}
    s_addc_u32 s25, s7, 0
    s_and_b32 s25, s25, 0xffff
    s_mov_b32 s26, {NB * 20480}
    s_mov_b32 s27, 0x20000
    s_mov_b32 s34, {f32(-LOG2E)}
    s_waitcnt vmcnt(0)
    s_barrier
""")
    WF, XA, XB2, D0, D1 = 16, 32, 48, 64, 32
    for q in range(4):
        A(f"ds_read_b128 {v(XA+4*q,4)}, v{6+q} offset:{XO}")
        for h2 in range(2):
            A(f"ds_read_b64_tr_b16 {v(WF+4*q+2*h2,2)}, v14 offset:{(16*q+4*h2)*64}")
    for q in range(4):
        A(f"ds_read_b128 {v(XB2+4*q,4)}, v{6+q} offset:{XO+4096}")
    for q in range(4):
        A(f"s_waitcnt lgkmcnt({13 - 3*q})")
        A(f"v_mfma_f32_32x32x16_bf16 {v(D0,16)}, {v(XA+4*q,4)}, {v(WF+4*q,4)}, {'0' if q == 0 else v(D0,16)}")
    for q in range(4):
        A(f"s_waitcnt lgkmcnt({3 - q})")
        A(f"v_mfma_f32_32x32x16_bf16 {v(D1,16)}, {v(XB2+4*q,4)}, {v(WF+4*q,4)}, {'0' if q == 0 else v(D1,16)}")
    regs = [D0 + r for r in range(16)] + [D1 + r for r in range(4)]
    rows = [8 * (r // 4) + r % 4 for r in range(16)] + [32 + r for r in range(4)]
    A(f"""
    {"s_branch K1_NEND" if "nonode" in OPT else ""}
    s_cmp_lg_u32 s28, 0
    s_cbranch_scc1 {"K1_NEND" if "noq" in OPT else "K1_QOUT"}
    v_lshlrev_b32 v3, 18, v13
    v_lshl_add_u32 v3, v10, 1, v3
    s_lshl_b32 s32, s2, 8
    s_add_u32 s32, s32, s31
    s_nop 4
""")
    for x in range(0, 20, 2):
        if x == 16:
            A("s_nop 7")
        A(f"v_mul_f32 v{regs[x]}, s34, v{regs[x]}")
        A(f"v_mul_f32 v{regs[x+1]}, s34, v{regs[x+1]}")
        A(f"v_cvt_pk_bf16_f32 v{regs[x]}, v{regs[x]}, v{regs[x+1]}")
        A(f"s_add_u32 s33, s32, {rows[x] * 65536}")
        A(f"s_add_u32 s35, s32, {rows[x+1] * 65536}")
        A(f"buffer_store_short v{regs[x]}, v3, s[20:23], s33 offen {ST2}")
        A(f"buffer_store_short_d16_hi v{regs[x]}, v3, s[20:23], s35 offen {ST2}")
    A(f"""
    s_branch K1_NEND
K1_QOUT:
    v_lshlrev_b32 v3, 11, v13
    v_lshl_add_u32 v3, v10, 2, v3
    s_mul_i32 s32, s2, 20480
    s_lshl_b32 s33, s29, 7
    s_add_u32 s32, s32, s33
    v_lshlrev_b32 v12, 16, v12
    v_mul_f32 v12, s34, v12
    s_nop 2
""")
    for g in range(5):
        rs = regs[4 * g:4 * g + 4]
        for r in rs:
            A(f"v_fma_f32 v{r}, v{r}, s34, v12")
        for i, r in enumerate(rs):
            A(f"v_and_b32 v{XB2+i}, 0xffff0000, v{r}")
        for i, r in enumerate(rs):
            A(f"v_sub_f32 v{r}, v{r}, v{XB2+i}")
        for i, r in enumerate(rs):
            A(f"v_cvt_pk_bf16_f32 v{r}, v{XB2+i}, v{r}")
        for i, r in enumerate(rs):
            A(f"buffer_store_dword v{r}, v3, s[24:27], s32 offen offset:{i*512} {ST2}")
        A("s_add_u32 s32, s32, 4096")
    A("K1_NEND:")
    if STAMP:
        A(f"""
    s_waitcnt vmcnt(0)
    s_memrealtime s[38:39]
    v_cmp_eq_u32 vcc, 256, v0
    s_and_saveexec_b64 s[26:27], vcc
    s_cbranch_execz K1_END
    s_lshl_b32 s3, s2, 4
    s_add_u32 s3, s3, {WS_STAMP + (1 << 17) + 4096}
    v_mov_b32 v2, s3
    s_waitcnt lgkmcnt(0)
    v_mov_b32 v4, s36
    v_mov_b32 v5, s38
    global_store_dwordx2 v2, v[4:5], s[6:7]
""")
    A(f"""
    s_endpgm
K1_PREP:
    s_lshl_b32 s28, s2, 1
    s_add_u32 s3, s3, s28
    s_sub_u32 s3, s3, 8
    s_cmp_ge_u32 s3, 20
    s_cbranch_scc1 K1_END
    s_waitcnt lgkmcnt(0)
    s_cmp_ge_u32 s3, 16
    s_cbranch_scc1 K1_WC
    ; oh=t>>3, m=(t>>2)&1, ks=t&3 ; out = 32 oh + 8 (i/4) + 4 m + i%4 ; k = 32 ks + 8 (l/16) + e
    s_and_b32 s24, s3, 3
    s_lshl_b32 s24, s24, 12
    s_bfe_u32 s25, s3, 0x10003
    s_lshl_b32 s25, s25, 6
    s_add_u32 s24, s24, s25
    s_bfe_u32 s25, s3, 0x10002
    s_lshl_b32 s25, s25, 3
    s_add_u32 s24, s24, s25
    v_lshrrev_b32 v4, 4, v2
    v_lshlrev_b32 v4, 10, v4
    v_bfe_u32 v5, v2, 2, 2
    v_lshl_add_u32 v4, v5, 4, v4
    v_and_b32 v5, 3, v2
    v_lshl_add_u32 v4, v5, 1, v4
    v_add_u32 v4, s24, v4
""")
    for e in range(8):
        A(f"global_load_ushort v{8+e}, v4, s[12:13] offset:{e*128}")
    A(f"""
    s_lshl_b32 s24, s3, 10
    s_add_u32 s24, s24, {WS_W2}
    v_lshl_add_u32 v4, v2, 4, s24
    s_waitcnt vmcnt(0)
""")
    for e in range(4):
        A(f"v_lshl_or_b32 v{16+e}, v{9+2*e}, 16, v{8+2*e}")
    A(f"""
    global_store_dwordx4 v4, v[16:19], s[6:7]
    s_endpgm
K1_WC:
    s_sub_u32 s25, s3, 16
    s_lshl_b32 s24, s25, 6
    s_add_u32 s24, s24, {128 * 256}
    v_and_b32 v5, 31, v2
    v_lshl_add_u32 v4, v5, 1, s24
""")
    for e in range(4):
        A(f"global_load_ushort v{8+e}, v4, s[8:9] offset:{e*256}")
    A(f"""
    s_mov_b32 s26, {f32(-LOG2E)}
    s_lshl_b32 s24, s25, 9
    s_add_u32 s24, s24, {WS_WC}
    v_lshl_add_u32 v4, v2, 3, s24
    v_cmp_le_u32 vcc, 32, v2
    s_waitcnt vmcnt(0)
""")
    for e in range(4):
        A(f"v_lshlrev_b32 v{8+e}, 16, v{8+e}")
    for e in range(4):
        A(f"v_mul_f32 v{8+e}, s26, v{8+e}")
    for e in range(4):
        A(f"v_and_b32 v{12+e}, 0xffff0000, v{8+e}")
    for e in range(4):
        A(f"v_sub_f32 v{8+e}, v{8+e}, v{12+e}")
    for e in range(4):
        A(f"v_cndmask_b32 v{8+e}, v{12+e}, v{8+e}, vcc")
    A("""
    v_cvt_pk_bf16_f32 v16, v8, v9
    v_cvt_pk_bf16_f32 v17, v10, v11
    global_store_dwordx2 v4, v[16:17], s[6:7]
    s_endpgm
""")
    return 80, 40


def gen_k2(A):
    R = Regs(1)
    lane = R.a()
    t0, t1, t2, t3 = R.a(), R.a(), R.a(), R.a()
    guard, deg, j4, l16 = R.a(), R.a(), R.a(), R.a()
    la_w, la_e, le, tab, dq = R.a(), R.a(), R.a(), R.a(), R.a()
    cw0, ce0, grp = R.a(), R.a(), R.a()
    junk = R.a()
    TA = [[R.a(), R.a()], [R.a(), R.a()]]
    OH = R.a(2, 2)
    lw = R.a(4, 2)
    qa, ha = R.a(2, 2), R.a(2, 2)
    nn, dd, tt, rr = [R.a(2, 2) for _ in range(4)]
    acc = R.a(8, 2)
    b2r = R.a(4, 2)
    EB = R.a(4, 2)
    A5 = R.a(4, 2)
    ES = R.a(2, 2)
    B5 = [R.a(4, 2) for _ in range(4)]
    D = [R.a(16, 2) for _ in range(4)]
    EX = R.a(16, 2)
    C64 = R.a(16, 2)
    W2 = R.a(32, 2)
    nvgpr = R.n
    CW, RK, CA, EI = D[0], D[1], D[2], D[3]

    SP0, SP1, SE, SW, SO, SS, SD_ = 28, 32, 36, 40, 44, 48, 52
    MK = 56
    s_wave, s_o3, s_o2, s_o1, s_msk, s_ne, s_rem, s_x, s_slow, s_safe, s_chunk = range(88, 99)
    s_t, s_u, s_inv = 99, 100, 101
    sA, sB = 26, 27
    s_m0a, s_m0b, s_chg, s_hi = 0, 1, 3, 22
    s_oh = MK
    STR = [MK + 30, 4, 6, 8, 10, 12, 14, 16, 18, 20]

    def stamp(i):
        if DL[0] == i:
            A(f"""
K_DL:
            s_waitcnt lgkmcnt(0)
            s_memrealtime {s(STR[i],2)}
            s_waitcnt lgkmcnt(0)
            s_sub_u32 {s(STR[i])}, {s(STR[i])}, {s(s_x)}
            s_cmp_lt_u32 {s(STR[i])}, {DL[1]*100}
            s_cbranch_scc1 K_DL
""")
        if STAMP:
            A(f"s_waitcnt lgkmcnt(0)\n{TM} {s(STR[i],2)}\ns_waitcnt lgkmcnt(0)")

    def cell_loads():
        o = [f"s_lshl_b32 {s(s_u)}, s2, 15", f"s_lshl_b32 {s(s_t)}, {s(s_wave)}, 12", f"s_add_u32 {s(s_u)}, {s(s_u)}, {s(s_t)}"]
        return o, [f"buffer_load_dwordx4 {v(CW+4*k,4)}, {v(l16)}, {s(SW,4)}, {s(s_u)} offen offset:{k*1024}" for k in range(4)]

    def ebase():
        o = [f"s_lshl_b32 {s(s_t)}, {s(s_wave)}, 5", f"v_lshrrev_b32 {v(EB)}, 3, {v(lane)}",
             f"v_add_u32 {v(EB)}, {s(s_t)}, {v(EB)}", f"v_mul_u32_u24 {v(EB)}, {CH}, {v(EB)}"]
        o += [f"v_add_u32 {v(EB+k)}, {8*CH*k}, {v(EB)}" for k in range(1, 4)]
        return o

    def prefill():
        A(f"""
        v_mov_b32 {v(EX)}, {PADW}
        v_mov_b32 {v(EX+1)}, {PADW}
        v_mov_b64 {v(EX+2,2)}, {v(EX,2)}
        v_mov_b32 {v(EX+4)}, {PADE}
        v_mov_b32 {v(EX+5)}, {PADE}
        v_mov_b64 {v(EX+6,2)}, {v(EX+4,2)}
        v_lshlrev_b32 {v(t1)}, 4, v0
        v_add_u32 {v(t1)}, {L_LA}, {v(t1)}
        v_mov_b32 {v(t2)}, 0
        v_lshlrev_b32 {v(t3)}, 2, {v(lane)}
        ds_write_b128 {v(t1)}, {v(EX,4)}
        ds_write_b128 {v(t1)}, {v(EX,4)} offset:{NE*4 - 8192}
        ds_write_b128 {v(t1)}, {v(EX+4,4)} offset:{NE*4}
        ds_write_b128 {v(t1)}, {v(EX+4,4)} offset:{2*NE*4 + 256 - 8192}
        ds_write2st64_b32 {v(t3)}, {v(t2)}, {v(t2)} offset0:{L_CNT//256} offset1:{L_CNT//256 + 1}
""")

    def zero_hsum():
        A(f"""
        v_mov_b64 {v(nn,2)}, 0
        v_mov_b64 {v(dd,2)}, 0
        v_mov_b32 {v(guard)}, 0
        v_mov_b32 {v(deg)}, 0
        v_lshlrev_b32 {v(t1)}, 4, v0
""")
        for k in range(5):
            A(f"ds_write_b128 {v(t1)}, {v(nn,4)} offset:{k*8192}")
    assert dd == nn + 2

    pre, lds_ = cell_loads()
    A(f"""
.globl k2_kernel
.p2align 8
.type k2_kernel,@function
k2_kernel:
    s_cmp_ge_u32 s2, {NB}
    s_cbranch_scc1 K_END
    s_load_dwordx2 s[24:25], s[0:1], 80
    s_load_dwordx8 s[4:11], s[0:1], 0
    s_load_dwordx4 s[16:19], s[0:1], 56
    {TM + " " + s(STR[0],2) if STAMP or DL[0] >= 0 else ""}
    v_lshrrev_b32 {v(t0)}, 6, v0
    v_and_b32 {v(lane)}, 63, v0
    v_readfirstlane_b32 {s(s_wave)}, {v(t0)}
    v_lshlrev_b32 {v(l16)}, 4, {v(lane)}
    s_mov_b32 {s(SW+2)}, {WS_END}
    s_mov_b32 {s(SW+3)}, 0x20000
""")
    A(pre)
    A(f"""
    s_lshl_b32 {s(sA)}, {s(s_wave)}, 10
    s_add_u32 m0, {s(sA)}, {L_QT}
    s_mul_i32 {s(sB)}, s2, 20480
    s_add_u32 {s(sB)}, {s(sB)}, {s(sA)}
    s_add_u32 {s(sB)}, {s(sB)}, {WS_Q}
    s_waitcnt lgkmcnt(0)
    {"s_mov_b32 " + s(s_x) + ", " + s(STR[0]) if STAMP or DL[0] >= 0 else ""}
    s_mov_b32 {s(SW)}, s24
    s_and_b32 {s(SW+1)}, s25, 0xffff
""")
    A(lds_)
    A(f"""
    buffer_load_dwordx4 {v(l16)}, {s(SW,4)}, {s(sB)} offen lds
    s_add_u32 m0, m0, 8192
    s_add_u32 {s(sB)}, {s(sB)}, 8192
    buffer_load_dwordx4 {v(l16)}, {s(SW,4)}, {s(sB)} offen lds
    s_cmp_ge_u32 {s(s_wave)}, 4
    s_cselect_b32 {s(s_t)}, 4, 8
    s_lshl_b32 {s(s_t)}, {s(s_t)}, 10
    s_add_u32 m0, m0, {s(s_t)}
    s_add_u32 {s(sB)}, {s(sB)}, {s(s_t)}
    buffer_load_dwordx4 {v(l16)}, {s(SW,4)}, {s(sB)} offen lds
""")
    zero_hsum()
    prefill()
    A(f"""
    v_mul_u32_u24 {v(t1)}, {PCS}, {v(lane)}
    v_add_u32 {v(t1)}, {L_PB}, {v(t1)}
    ds_write_b128 {v(t1)}, {v(nn,4)}
    ds_write_b128 {v(t1)}, {v(nn,4)} offset:{PCS}
    ; Wc, b2, W2 fragments, cache warm-up
    v_lshlrev_b32 {v(t3)}, 3, {v(lane)}
    s_mov_b32 {s(s_t)}, {WS_WC}
""")
    for n in range(4):
        A(f"buffer_load_dwordx2 {v(B5[n],2)}, {v(t3)}, {s(SW,4)}, {s(s_t)} offen offset:{n*512}")
    A(f"""
    s_lshr_b32 {s(s_t)}, s2, 3
    s_mul_i32 {s(s_t)}, {s(s_t)}, {625 * 128}
    s_add_u32 {s(s_t)}, {s(s_t)}, {WS_P}
    v_lshlrev_b32 {v(t3)}, 7, v0
    {"v_mov_b32 " + v(t3) + ", 0" if "nowarm" in OPT else ""}
    buffer_load_dword {v(junk)}, {v(t3)}, {s(SW,4)}, {s(s_t)} offen
    s_add_u32 {s(s_t)}, {s(s_t)}, 65536
    v_lshlrev_b32 {v(t3)}, 5, v0
    {"v_mov_b32 " + v(t3) + ", 0" if "nowarm" in OPT else ""}
    buffer_load_dword {v(junk)}, {v(t3)}, {s(SW,4)}, {s(s_t)} offen
""")
    NLATE = 3 + 4 + 2
    A(ebase())
    A(f"""
    s_add_u32 {s(SP0)}, s24, {WS_P - 3*PCS}
    s_addc_u32 {s(SP0+1)}, s25, 0
    s_and_b32 {s(SP0+1)}, {s(SP0+1)}, 0xffff
    s_or_b32 {s(SP0+1)}, {s(SP0+1)}, {4 << 16}
    s_mov_b32 {s(SP0+2)}, {N * 64}
    s_mov_b32 {s(SP0+3)}, 0x20000
    s_add_u32 {s(SP1)}, s24, {WS_P - 3*PCS + 128}
    s_addc_u32 {s(SP1+1)}, s25, 0
    s_and_b32 {s(SP1+1)}, {s(SP1+1)}, 0xffff
    s_or_b32 {s(SP1+1)}, {s(SP1+1)}, {4 << 16}
    s_mov_b32 {s(SP1+2)}, {N * 64}
    s_mov_b32 {s(SP1+3)}, 0x20000
    s_mov_b32 {s(SE)}, s6
    s_and_b32 {s(SE+1)}, s7, 0xffff
    s_or_b32 {s(SE+1)}, {s(SE+1)}, {8 << 16}
    s_mov_b32 {s(SE+2)}, {E}
    s_mov_b32 {s(SE+3)}, 0x20000
    s_mov_b32 {s(SO)}, s18
    s_and_b32 {s(SO+1)}, s19, 0xffff
    s_mov_b32 {s(SO+2)}, {N * 128}
    s_mov_b32 {s(SO+3)}, 0x20000
    s_mov_b32 {s(SS)}, s8
    s_and_b32 {s(SS+1)}, s9, 0xffff
    s_mov_b32 {s(SS+2)}, {E * 4}
    s_mov_b32 {s(SS+3)}, 0x20000
    s_mov_b32 {s(SD_)}, s10
    s_and_b32 {s(SD_+1)}, s11, 0xffff
    s_mov_b32 {s(SD_+2)}, {E * 4}
    s_mov_b32 {s(SD_+3)}, 0x20000
    s_movk_i32 {s(s_o3)}, {3*PCS}
    s_movk_i32 {s(s_o2)}, {2*PCS}
    s_movk_i32 {s(s_o1)}, {PCS}
    s_mov_b32 {s(s_msk)}, 0xfffc0
    s_mov_b32 {s(s_ne)}, {E}
    s_mov_b32 {s(s_inv)}, {INVAL}
    s_mov_b32 {s(s_safe)}, 0
    s_mov_b32 {s(s_slow)}, 0
    s_mul_i32 {s(s_m0a)}, {s(s_wave)}, {PBW}
    s_add_u32 {s(s_m0a)}, {s(s_m0a)}, {L_PB + 16}
    s_add_u32 {s(s_m0b)}, {s(s_m0a)}, {4*PCS}
    v_and_b32 {v(t1)}, 31, {v(lane)}
    v_lshrrev_b32 {v(t2)}, 5, {v(lane)}
    v_lshlrev_b32 {v(j4)}, 2, {v(t1)}
    v_bfe_u32 {v(t3)}, {v(t1)}, 1, 1
    v_lshrrev_b32 {v(ce0)}, 3, {v(t1)}
    v_lshl_or_b32 {v(ce0)}, {v(ce0)}, 1, {v(t3)}
    v_lshlrev_b32 {v(ce0)}, 2, {v(ce0)}
    v_add_u32 {v(ce0)}, {L_LB}, {v(ce0)}
    v_and_b32 {v(grp)}, 1, {v(t1)}
    v_bfe_u32 {v(t3)}, {v(t1)}, 2, 1
    v_lshl_or_b32 {v(grp)}, {v(t3)}, 1, {v(grp)}
    v_lshlrev_b32 {v(t3)}, 1, {v(t2)}
    v_sub_u32 {v(t3)}, {v(grp)}, {v(t3)}
    v_mov_b32 {v(t0)}, 0x3f803f80
    v_cmp_eq_u32 vcc, 0, {v(t3)}
    v_cmp_eq_u32 {s(sA,2)}, 1, {v(t3)}
    v_and_b32 {v(cw0)}, 8, {v(lane)}
    v_lshlrev_b32 {v(cw0)}, 1, {v(cw0)}
    v_add_u32 {v(cw0)}, {L_LA}, {v(cw0)}
    v_cndmask_b32 {v(OH)}, 0, {v(t0)}, vcc
    v_cndmask_b32 {v(OH+1)}, 0, {v(t0)}, {s(sA,2)}
    ; dq = ((l&7) ^ (4*l4)) * 4
    v_lshlrev_b32 {v(dq)}, 2, {v(lane)}
    v_xor_b32 {v(dq)}, {v(dq)}, {v(lane)}
    v_and_b32 {v(t3)}, 16, {v(dq)}
    v_lshlrev_b32 {v(dq)}, 2, {v(lane)}
    v_and_or_b32 {v(dq)}, {v(dq)}, 12, {v(t3)}
    v_bfe_u32 {v(t3)}, {v(lane)}, 3, 1
    v_lshlrev_b32 {v(t0)}, 9, {v(t2)}
    v_mad_u32_u24 {v(t0)}, {v(t3)}, 64, {v(t0)}
    v_lshl_add_u32 {v(t0)}, {v(t3)}, 8, {v(t0)}
    v_and_b32 {v(t3)}, 16, {v(lane)}
    v_lshl_add_u32 {v(t0)}, {v(t3)}, 1, {v(t0)}
    v_and_b32 {v(t3)}, 3, {v(lane)}
    v_lshl_add_u32 {v(t0)}, {v(t3)}, 3, {v(t0)}
    v_xor_b32 {v(t1)}, 64, {v(t0)}
    v_and_b32 {v(t3)}, 4, {v(lane)}
    v_cmp_ne_u32 vcc, 0, {v(t3)}
    v_add_u32 {v(t2)}, 128, {v(t0)}
    v_add_u32 {v(t3)}, 128, {v(t1)}
    v_cndmask_b32 {v(TA[0][0])}, -16, {v(t0)}, vcc
    v_cndmask_b32 {v(TA[1][0])}, -16, {v(t1)}, vcc
    v_mov_b32 {v(t0)}, 1024
    v_cndmask_b32 {v(TA[0][1])}, {v(t0)}, {v(t2)}, vcc
    v_cndmask_b32 {v(TA[1][1])}, {v(t0)}, {v(t3)}, vcc
""")
    for a in (TA[0][0], TA[0][1], TA[1][0], TA[1][1]):
        A(f"v_add_u32 {v(a)}, {s(s_m0a)}, {v(a)}")
    A(f"""
    v_mov_b32 {v(t3)}, 4
    s_waitcnt lgkmcnt(0)
    s_barrier
    s_mov_b32 {s(s_hi)}, 0
""")

    def p1words(xs):
        for x in xs:
            A(f"v_cmp_gt_u32 {s(MK+2*x,2)}, {s(s_inv)}, {v(CW+x)}")
            A(f"v_lshlrev_b32_sdwa {v(CA+x)}, 2, {v(CW+x)} dst_sel:BYTE_0 dst_unused:UNUSED_PAD src0_sel:DWORD src1_sel:DWORD")
        for x in xs:
            A(f"s_mov_b64 exec, {s(MK+2*x,2)}")
            A(f"ds_add_rtn_u32 {v(RK+x)}, {v(CA+x)}, {v(t3)} offset:{L_CNT}")
        A("s_mov_b64 exec, -1")

    LO = [4 * k + i for k in range(4) for i in range(2)]
    A(f"s_waitcnt vmcnt({NLATE + 2})")
    stamp(1)
    A("K_PASS1:")
    p1words(LO[:4])
    A(f"s_waitcnt vmcnt({NLATE})")
    p1words(LO[4:])
    for k in range(4):
        A(f"""
        v_cmp_ne_u32 vcc, {s(s_inv)}, {v(CW+4*k+2)}
        s_cbranch_vccnz K_HI1_{k}
K_HB1_{k}:
""")
    A(f"""
    s_and_b32 {s(s_t)}, {s(s_wave)}, 1
    s_lshl_b32 {s(s_u)}, {s(s_t)}, 6
    v_and_b32 {v(t0)}, 48, {v(lane)}
    v_add_u32 {v(t0)}, {s(s_u)}, {v(t0)}
    global_load_dwordx4 {v(b2r,4)}, {v(t0)}, s[16:17]
    s_lshl_b32 {s(s_t)}, {s(s_t)}, 13
    s_add_u32 {s(s_t)}, {s(s_t)}, {WS_W2}
    s_add_u32 {s(s_u)}, {s(s_t)}, 4096
""")
    for i in range(8):
        A(f"buffer_load_dwordx4 {v(W2+4*i,4)}, {v(l16)}, {s(SW,4)}, {s(s_t if i < 4 else s_u)} offen offset:{(i%4)*1024}")
    stamp(2)
    A(f"""
    v_lshlrev_b32 {v(t0)}, 2, {v(lane)}
    v_mov_b32 {v(t2)}, {L_FLAG}
    s_waitcnt lgkmcnt(0)
    s_barrier
    ds_read_b32 {v(t1)}, {v(t0)} offset:{L_CNT}
    ds_read_b32 {v(t2)}, {v(t2)}
""")
    for x in LO:
        A(f"v_lshrrev_b32 {v(EI+x)}, 20, {v(CW+x)}")
    A(f"""
    s_waitcnt lgkmcnt(0)
    v_add_u32 {v(t3)}, 31, {v(t1)}
    v_and_b32 {v(t3)}, -32, {v(t3)}
    v_mov_b32 {v(t0)}, {v(t3)}
    v_readfirstlane_b32 {s(sA)}, {v(t2)}
    v_lshrrev_b32 {v(t2)}, 4, {v(lane)}
""")
    fill = [f"v_add_u32 {v(EI+x)}, {v(EI+x)}, {v(EB + x//4)}" for x in LO]
    dpp = ["row_shr:1 row_mask:0xf bank_mask:0xf bound_ctrl:0", "row_shr:2 row_mask:0xf bank_mask:0xf bound_ctrl:0",
           "row_shr:4 row_mask:0xf bank_mask:0xf bound_ctrl:0", "row_shr:8 row_mask:0xf bank_mask:0xf bound_ctrl:0",
           "row_bcast:15 row_mask:0xa bank_mask:0xf", "row_bcast:31 row_mask:0xc bank_mask:0xf"]
    for d in dpp:
        A(f"v_add_u32_dpp {v(t0)}, {v(t0)}, {v(t0)} {d}")
        if fill:
            A(fill.pop())
            A(fill.pop())
        else:
            A("s_nop 1")
    A(f"""
    v_readlane_b32 {s(sB)}, {v(t0)}, 63
    v_sub_u32 {v(t0)}, {v(t0)}, {v(t3)}
    v_add_u32 {v(t0)}, {L_LA}, {v(t0)}
    s_cmp_gt_u32 {s(sB)}, {CAPB}
    s_cselect_b32 {s(s_t)}, 1, 0
    s_or_b32 {s(sA)}, {s(sA)}, {s(s_t)}
    s_cbranch_scc1 K_GOSLOW
""")
    for x in LO:
        A(f"ds_bpermute_b32 {v(CA+x)}, {v(CA+x)}, {v(t0)}")
    A(f"""
    v_add_u32 {v(deg)}, {v(deg)}, {v(t1)}
    s_add_u32 {s(sB)}, {s(sB)}, 127
    s_lshr_b32 {s(sB)}, {s(sB)}, 7
    s_add_u32 {s(s_rem)}, {s(sB)}, 7
    s_sub_u32 {s(s_rem)}, {s(s_rem)}, {s(s_wave)}
    s_lshr_b32 {s(s_rem)}, {s(s_rem)}, 3
    s_lshr_b32 {s(s_t)}, {s(sB)}, 3
    s_mul_i32 {s(s_t)}, {s(s_t)}, {s(s_wave)}
    s_and_b32 {s(sB)}, {s(sB)}, 7
    s_min_u32 {s(sB)}, {s(sB)}, {s(s_wave)}
    s_add_u32 {s(s_t)}, {s(s_t)}, {s(sB)}
    s_lshl_b32 {s(s_t)}, {s(s_t)}, 7
    s_lshl_b32 {s(s_u)}, {s(s_rem)}, 5
    v_mul_u32_u24 {v(t2)}, {s(s_u)}, {v(t2)}
    v_add3_u32 {v(la_w)}, {v(t2)}, {v(cw0)}, {s(s_t)}
    v_mul_u32_u24 {v(la_e)}, {s(s_u)}, {v(grp)}
    v_add3_u32 {v(la_e)}, {v(la_e)}, {v(ce0)}, {s(s_t)}
    v_and_b32 {v(tab)}, 15, {v(lane)}
    v_lshl_add_u32 {v(tab)}, {v(tab)}, 5, {v(t2)}
    v_add_u32 {v(tab)}, {s(s_t)}, {v(tab)}
""")
    for n_, x in enumerate(LO):
        if n_ % 4 == 0:
            A(f"s_waitcnt lgkmcnt({4 - n_})")
        A(f"v_add_u32 {v(CA+x)}, {v(CA+x)}, {v(RK+x)}")
    for x in LO:
        A(f"s_mov_b64 exec, {s(MK+2*x,2)}")
        A(f"ds_write2st64_b32 {v(CA+x)}, {v(CW+x)}, {v(EI+x)} offset0:0 offset1:{NE*4//256}")
    A(f"""
    s_mov_b64 exec, -1
    s_cmp_lg_u32 {s(s_hi)}, 0
    s_cbranch_scc1 K_HI2
K_HB2:
    s_waitcnt vmcnt(9) lgkmcnt(0)
    s_barrier
""")
    stamp(3)

    def dma(u):
        so = [s(s_o3), s(s_o2), s(s_o1), "0"]
        srd = SP0 if u == 0 else SP1
        return [f"buffer_load_dwordx4 {v(lw+q)}, {s(srd,4)}, {so[q]} idxen offset:{q*PCS} lds" for q in range(4)]

    def setm0(u):
        return f"s_mov_b32 m0, {s(s_m0a if u == 0 else s_m0b)}"

    def idx():
        return [f"v_and_or_b32 {v(lw+q)}, {v(lw+q)}, {s(s_msk)}, {v(dq)}" for q in range(4)]

    def eload():
        return f"buffer_load_dwordx2 {v(ES,2)}, {v(le)}, {s(SE,4)}, 0 idxen" + (" nt" if "ent" in OPT else "")

    def ohcmp():
        return f"v_cmp_gt_u32 {s(s_oh,2)}, {s(s_ne)}, {v(le)}"

    def ohsel():
        return [f"v_cndmask_b32 {v(A5+2)}, 0, {v(OH)}, {s(s_oh,2)}", f"v_cndmask_b32 {v(A5+3)}, 0, {v(OH+1)}, {s(s_oh,2)}"]

    def lists():
        return [f"ds_read_b128 {v(lw,4)}, {v(la_w)}", f"ds_read_b32 {v(le)}, {v(la_e)}"]

    def laup():
        return [f"v_add_u32 {v(x)}, 32, {v(x)}" for x in (la_w, la_e)]

    def flush():
        o = [f"v_cvt_f64_f32 {v(C64+2*i,2)}, {v(acc+i)}" for i in range(8)]
        o2 = [f"ds_add_f64 {v(ha + i%2)}, {v(C64+2*i,2)} offset:{(i//2)*256}" for i in range(8)]
        return o, o2

    def change():
        c, a = flush()
        o = [f"v_mov_b32_dpp {v(qa)}, {v(tab)} row_newbcast:0 row_mask:0xf bank_mask:0xf",
             f"v_mov_b32_dpp {v(qa+1)}, {v(tab)} row_newbcast:0 row_mask:0xf bank_mask:0xf"]
        o += c[:2]
        o += [f"v_permlane16_swap_b32 {v(qa)}, {v(qa+1)}"]
        o += c[2:4]
        o += [f"v_add_u32 {v(qa)}, {v(qa)}, {v(j4)}", f"v_add_u32 {v(qa+1)}, {v(qa+1)}, {v(j4)}"]
        o += c[4:]
        for n in range(4):
            for k in range(2):
                o.append(f"ds_read_b32 {v(B5[n]+2+k)}, {v(qa+k)} offset:{L_QT + n*128}")
        o += a
        o += [f"v_mov_b64 {v(acc+2*n,2)}, 0" for n in range(4)]
        o += [f"v_lshlrev_b32 {v(ha+k)}, 1, {v(qa+k)}" for k in range(2)]
        return o

    def hread(u):
        o = []
        for n in (2 * u, 2 * u + 1):
            for m in range(8):
                o.append(f"ds_read_b64_tr_b16 {v(D[n]+2*m,2)}, {v(TA[n%2][m>>2])} offset:{(4*u + (m&3))*PCS}")
        return o

    def mf(n):
        return f"v_mfma_f32_32x32x16_bf16 {v(D[n],16)}, {v(A5,4)}, {v(B5[n],4)}, {v(D[n],16)}"

    A(lists())
    A(f"""
    ds_read_b32 {v(tab)}, {v(tab)} offset:{L_LA}
    s_cmp_eq_u32 {s(s_rem)}, 0
    s_cbranch_scc1 K_DONE
    {setm0(0)}
""")
    A(laup())
    A("s_waitcnt lgkmcnt(2)")
    A(idx())
    A(dma(0))
    A(f"{setm0(1)}\ns_waitcnt lgkmcnt(0)")
    A(eload())
    A(dma(1))
    A(ohcmp())
    A(lists())
    A(f"""
    v_and_b32 {v(tab)}, 63, {v(tab)}
    v_lshlrev_b32 {v(tab)}, 9, {v(tab)}
    v_lshlrev_b32 {v(ha)}, 1, {v(j4)}
    v_mov_b32 {v(t0)}, {v(tab)}
    v_lshlrev_b32 {v(ha+1)}, 1, {v(j4)}
""")
    A(laup())
    A(f"v_mov_b32_dpp {v(t0)}, {v(tab)} row_shr:1 row_mask:0xf bank_mask:0xf")
    A([f"v_mov_b64 {v(acc+2*n,2)}, 0" for n in range(4)])
    A(f"""
    v_cmp_ne_u32 vcc, {v(t0)}, {v(tab)}
    s_or_b32 {s(s_chg)}, vcc_lo, vcc_hi
    s_lshr_b32 {s(s_t)}, {s(s_chg)}, 16
    s_or_b32 {s(s_chg)}, {s(s_chg)}, {s(s_t)}
    s_or_b32 {s(s_chg)}, {s(s_chg)}, 1
""")
    stamp(4)
    A(f"""
    s_cmp_eq_u32 {s(s_safe)}, 0
    s_cbranch_scc0 K_LOOP_S
""")

    NLOW = int(os.environ.get("NLOW", "11"))
    SEG = int(os.environ.get("SEG", "0"))
    T0, T1, T2, T3, TP, AL, AG, AC, AV = MK+2, MK+4, MK+6, MK+8, MK+10, MK+11, MK+12, MK+13, MK+14
    if SEG:
        A(f"s_memtime {s(T1,2)}\ns_waitcnt lgkmcnt(0)\ns_mov_b32 {s(T2)}, {s(T1)}\ns_mov_b32 {s(TP)}, {s(T1)}")
        A([f"s_mov_b32 {s(x)}, 0" for x in (AL, AG, AC, AV)])

    def loadseg(sf):
        o = ([f"s_memtime {s(T0,2)}"] if SEG else []) + ["s_setprio 2", f"s_bitcmp1_b32 {s(s_chg)}, 0", f"s_cbranch_scc1 K_CB_{sf}", f"K_CR_{sf}:"]
        o += ["s_waitcnt vmcnt(5)"] + hread(0)
        o += ["s_waitcnt vmcnt(0)"] + ([f"s_memtime {s(T3,2)}"] if SEG else []) + hread(1)
        o += [f"v_mov_b64 {v(A5,2)}, {v(ES,2)}"] + ohsel() + [setm0(0)]
        o += ["s_waitcnt lgkmcnt(15)"] + idx() + [ohcmp()]
        o += dma(0) + [setm0(1), eload()]
        o += ["s_waitcnt lgkmcnt(0)", mf(0)] + dma(1)
        if SEG:
            o += [f"s_sub_u32 {s(s_t)}, {s(T1)}, {s(TP)}", f"s_add_u32 {s(AL)}, {s(AL)}, {s(s_t)}",
                  f"s_sub_u32 {s(s_t)}, {s(T2)}, {s(T1)}", f"s_add_u32 {s(AG)}, {s(AG)}, {s(s_t)}",
                  f"s_sub_u32 {s(s_t)}, {s(T0)}, {s(T2)}", f"s_add_u32 {s(AC)}, {s(AC)}, {s(s_t)}",
                  f"s_sub_u32 {s(s_t)}, {s(T3)}, {s(T0)}", f"s_add_u32 {s(AV)}, {s(AV)}, {s(s_t)}",
                  f"s_mov_b32 {s(TP)}, {s(T0)}"]
        o += lists()
        o += ([f"s_memtime {s(T1,2)}"] if SEG else []) + ["s_setprio 0"]
        return o

    def compute(safe):
        o = []
        misc = laup() + [f"v_mov_b32_dpp {v(tab)}, {v(tab)} row_shl:1 row_mask:0xf bank_mask:0xf bound_ctrl:0"]
        o += misc
        for b in range(4):
            cur = D[b]
            tr = []
            if not safe and b > 0:
                tr += [f"v_rcp_f32 {v(rr)}, {v(dd)}", f"v_rcp_f32 {v(rr+1)}, {v(dd+1)}"]
            tr += [f"v_exp_f32 {v(EX+i)}, {v(cur+i)}" for i in range(16)]
            if b == 0:
                tr = ["s_nop 1"] + tr[:NLOW] + ["s_setprio 1"] + ([f"s_memtime {s(T2,2)}"] if SEG else []) + [mf(1)] + tr[NLOW:]
            elif b < 3:
                tr = [mf(b + 1)] + tr
            o += tr
            if not safe:
                if b > 0:
                    o.append(f"v_max3_f32 {v(guard)}, {v(guard)}, {v(dd)}, {v(dd+1)}")
                    o.append(f"v_pk_fma_f32 {v(acc+2*(b-1),2)}, {v(nn,2)}, {v(rr,2)}, {v(acc+2*(b-1),2)}")
                o.append(f"v_pk_add_f32 {v(dd,2)}, {v(EX,2)}, 1.0 op_sel_hi:[1,0]")
                n_ = v(cur, 2)
                for k in range(1, 8):
                    e_, z_ = v(EX + 2 * k, 2), v(cur + 2 * k, 2)
                    last = (b == 3 and k == 7)
                    if last:
                        o.append(f"v_pk_fma_f32 {v(tt,2)}, {n_}, {e_}, {n_}")
                        o.append(f"v_pk_fma_f32 {v(nn,2)}, {z_}, {v(dd,2)}, {v(tt,2)}")
                        o.append(f"v_pk_fma_f32 {v(dd,2)}, {v(dd,2)}, {e_}, {v(dd,2)}")
                    else:
                        o.append(f"v_pk_fma_f32 {v(tt,2)}, {n_}, {e_}, {n_}")
                        o.append(f"v_pk_fma_f32 {v(nn,2)}, {z_}, {v(dd,2)}, {v(tt,2)}")
                        o.append(f"v_pk_fma_f32 {v(dd,2)}, {v(dd,2)}, {e_}, {v(dd,2)}")
                    n_ = v(nn, 2)
            else:
                for k in range(8):
                    o.append(f"v_pk_add_f32 {v(EX+2*k,2)}, {v(EX+2*k,2)}, 1.0 op_sel_hi:[1,0]")
                for i in range(16):
                    o.append(f"v_rcp_f32 {v(EX+i)}, {v(EX+i)}")
                for k in range(8):
                    o.append(f"v_pk_fma_f32 {v(acc+2*b,2)}, {v(cur+2*k,2)}, {v(EX+2*k,2)}, {v(acc+2*b,2)}")
        if not safe:
            o += [f"v_rcp_f32 {v(rr)}, {v(dd)}", f"v_rcp_f32 {v(rr+1)}, {v(dd+1)}",
                  f"v_max3_f32 {v(guard)}, {v(guard)}, {v(dd)}, {v(dd+1)}",
                  f"v_pk_fma_f32 {v(acc+6,2)}, {v(nn,2)}, {v(rr,2)}, {v(acc+6,2)}"]
        return o

    def loop(safe):
        sf = "S" if safe else "F"
        A(f".p2align 6\nK_LOOP_{sf}:")
        st = loadseg(sf) + compute(safe)
        if "E" in ABL: st = [x for x in st if not x.startswith("buffer_load_dwordx2")]
        if "X" in ABL: st = [x for x in st if not x.endswith(" lds")]
        if "A" in ABL: st = [x for x in st if not x.startswith("ds_read_b64_tr")]
        if "C" in ABL: st = [x for x in st if not x.startswith("s_cbranch_scc1 K_")]
        A(st)
        A(f"""
        s_lshr_b32 {s(s_chg)}, {s(s_chg)}, 1
        s_sub_u32 {s(s_rem)}, {s(s_rem)}, 1
        s_cmp_eq_u32 {s(s_rem)}, 0
        s_cbranch_scc0 K_LOOP_{sf}
        s_setprio 2
""")
        c, a = flush()
        A(c + a)
        A("s_branch K_DONE")
        A(f"K_CB_{sf}:")
        A(change())
        A(f"s_branch K_CR_{sf}")
    loop(False)

    A(f"""
K_DONE:
    s_setprio 0
    s_cmp_eq_u32 {s(s_slow)}, 0
    s_cbranch_scc0 K_NEXTCHUNK
K_FIN:
""")
    stamp(5)
    A(f"""
    v_lshrrev_b32 {v(t0)}, 4, v0
    v_and_b32 {v(t1)}, 15, v0
    v_lshlrev_b32 {v(t2)}, 6, v0
    v_mul_u32_u24 {v(t3)}, {HB_STRIDE}, {v(t0)}
    v_lshl_add_u32 {v(t3)}, {v(t1)}, 4, {v(t3)}
    v_add_u32 {v(t3)}, {L_HBHI}, {v(t3)}
    s_waitcnt vmcnt(0) lgkmcnt(0)
    s_barrier
""")
    stamp(6)

    def stage1(roff):
        H = D[0]
        for i in range(4):
            A(f"ds_read_b128 {v(H+4*i,4)}, {v(t2)} offset:{roff*1024 + 16*i}")
        for i in range(8):
            if i % 2 == 0:
                A(f"s_waitcnt lgkmcnt({3 - i//2})")
            A(f"v_cvt_f32_f64 {v(EX+i)}, {v(H+2*i,2)}")
        for i in range(0, 8, 2):
            A(f"v_max3_f32 {v(guard)}, abs({v(EX+i)}), abs({v(EX+i+1)}), {v(guard)}")
            A(f"v_cmp_u_f32 vcc, {v(EX+i)}, {v(EX+i+1)}")
            A(f"s_or_b64 {s(sA,2)}, {s(sA,2)}, vcc")
        for i in range(8):
            A(f"v_and_b32 {v(EX+8+i)}, 0xffff0000, {v(EX+i)}")
        for i in range(8):
            A(f"v_sub_f32 {v(EX+i)}, {v(EX+i)}, {v(EX+8+i)}")
        for i in range(4):
            A(f"v_cvt_pk_bf16_f32 {v(D[1]+i)}, {v(EX+8+2*i)}, {v(EX+9+2*i)}")
        for i in range(4):
            A(f"v_cvt_pk_bf16_f32 {v(D[1]+4+i)}, {v(EX+2*i)}, {v(EX+1+2*i)}")
        A(f"ds_write_b128 {v(t3)}, {v(D[1],4)} offset:{roff*HB_STRIDE}")
        A(f"ds_write_b128 {v(t3)}, {v(D[1]+4,4)} offset:{roff*HB_STRIDE + HB_LO}")
    A(f"s_mov_b64 {s(sA,2)}, 0")
    stage1(0)
    A(f"s_cmp_ge_u32 {s(s_wave)}, 2\ns_cbranch_scc1 K_S1D")
    stage1(32)
    A(f"""
K_S1D:
    v_cmp_lt_f32 vcc, {f32(2.0**100)}, {v(guard)}
    s_or_b64 vcc, vcc, {s(sA,2)}
    v_mov_b32 {v(t2)}, {L_FLAG + 4}
    s_cbranch_vccz K_NOFL
    ds_write_b32 {v(t2)}, {v(t2)}
K_NOFL:
    v_and_b32 {v(t0)}, 15, {v(lane)}
    s_lshr_b32 {s(s_t)}, {s(s_wave)}, 1
    s_lshl_b32 {s(s_t)}, {s(s_t)}, 4
    v_add_u32 {v(t0)}, {s(s_t)}, {v(t0)}
    v_lshrrev_b32 {v(t1)}, 4, {v(lane)}
    v_mul_u32_u24 {v(t3)}, {HB_STRIDE}, {v(t0)}
    v_lshl_add_u32 {v(t3)}, {v(t1)}, 4, {v(t3)}
    v_add_u32 {v(t3)}, {L_HBHI}, {v(t3)}
    v_lshlrev_b32 {v(le)}, 2, {v(t0)}
    ds_bpermute_b32 {v(le)}, {v(le)}, {v(deg)}
    s_waitcnt lgkmcnt(0)
    s_barrier
    ds_read_b32 {v(t2)}, {v(t2)}
""")
    for ks in range(4):
        A(f"ds_read_b128 {v(D[0]+4*ks,4)}, {v(t3)} offset:{ks*64}")
        A(f"ds_read_b128 {v(D[1]+4*ks,4)}, {v(t3)} offset:{ks*64 + HB_LO}")
    A(f"""
    s_waitcnt lgkmcnt(8)
    v_readfirstlane_b32 {s(sA)}, {v(t2)}
    s_cmp_lg_u32 {s(s_safe)}, 0
    s_cbranch_scc1 K_GEMM
    s_cmp_eq_u32 {s(sA)}, 0
    {"s_cbranch_scc0 K_RESTART" if ABL == [""] else ""}
K_GEMM:
    s_cmp_ge_u32 {s(s_wave)}, 6
    s_cbranch_scc1 K_END
    v_lshlrev_b32 {v(t0)}, 15, {v(t0)}
    v_lshl_add_u32 {v(t0)}, {v(t1)}, 4, {v(t0)}
    s_lshl_b32 {s(s_t)}, s2, 7
    s_and_b32 {s(s_u)}, {s(s_wave)}, 1
    s_lshl_b32 {s(s_u)}, {s(s_u)}, 6
    s_add_u32 {s(s_t)}, {s(s_t)}, {s(s_u)}
    v_cvt_f32_u32 {v(le)}, {v(le)}
    v_mul_f32 {v(le)}, {f32(0.25)}, {v(le)}
""")
    O = EX
    for ks in range(4):
        for hl in range(2):
            A(f"s_waitcnt lgkmcnt({7 - 2*ks - hl})")
            for m in range(2):
                c = "0" if ks == 0 and hl == 0 else v(O + 4 * m, 4)
                A(f"v_mfma_f32_16x16x32_bf16 {v(O+4*m,4)}, {v(W2 + (m*4+ks)*4,4)}, {v(D[hl]+4*ks,4)}, {c}")
    BB = EX + 8
    for i in range(4):
        A(f"v_lshlrev_b32 {v(BB+2*i)}, 16, {v(b2r+i)}")
        A(f"v_and_b32 {v(BB+2*i+1)}, 0xffff0000, {v(b2r+i)}")
    for i in range(8):
        A(f"v_mul_f32 {v(BB+i)}, {v(le)}, {v(BB+i)}")
    A(f"s_mov_b32 {s(s_u)}, {f32(-LN2)}")
    for i in range(8):
        A(f"v_fma_f32 {v(O+i)}, {v(O+i)}, {s(s_u)}, {v(BB+i)}")
    for i in range(4):
        A(f"v_cvt_pk_bf16_f32 {v(BB+i)}, {v(O+2*i)}, {v(O+2*i+1)}")
    A(f"buffer_store_dwordx4 {v(BB,4)}, {v(t0)}, {s(SO,4)}, {s(s_t)} offen")
    if DL[0] == 9:
        stamp(9)
    if STAMP:
        A("s_waitcnt vmcnt(0)")
        stamp(8)
        A(f"""
    v_cmp_eq_u32 vcc, 0, {v(lane)}
    s_and_saveexec_b64 {s(sA,2)}, vcc
    s_lshl_b32 {s(s_t)}, s2, 3
    s_add_u32 {s(s_t)}, {s(s_t)}, {s(s_wave)}
    s_lshl_b32 {s(s_t)}, {s(s_t)}, 6
    s_add_u32 {s(s_t)}, {s(s_t)}, {WS_STAMP}
    v_mov_b32 {v(t0)}, {s(s_t)}
""")
        for n_, i in enumerate([0, 1, 2, 3, 4, 5, 6, 8]):
            A(f"v_mov_b32 {v(D[0]+n_)}, {s(STR[i]) if i else s(s_x)}")
        for n_, x in enumerate((AL, AG, AC, AV)):
            A(f"v_mov_b32 {v(D[0]+8+n_)}, {s(x)}")
        for i in range(3):
            A(f"global_store_dwordx4 {v(t0)}, {v(D[0]+4*i,4)}, s[24:25] offset:{16*i}")
    A(f"""
K_END:
    s_endpgm
""")

    for k in range(4):
        A(f"""
K_HI1_{k}:
        s_bitset1_b32 {s(s_hi)}, {k}
        v_cmp_lt_u32 vcc, {s(s_inv)}, {v(CW+4*k+2)}
        s_cbranch_vccz K_HI1N_{k}
        v_mov_b32 {v(t0)}, {L_FLAG}
        ds_write_b32 {v(t0)}, {v(t3)}
K_HI1N_{k}:
""")
        p1words([4 * k + 2, 4 * k + 3])
        A(f"s_branch K_HB1_{k}")
    A("K_HI2:")
    for k in range(4):
        xs = [4 * k + 2, 4 * k + 3]
        A(f"s_bitcmp1_b32 {s(s_hi)}, {k}\ns_cbranch_scc0 K_HI2_{k}")
        for x in xs:
            A(f"ds_bpermute_b32 {v(CA+x)}, {v(CA+x)}, {v(t0)}")
        for x in xs:
            A(f"v_lshrrev_b32 {v(EI+x)}, 20, {v(CW+x)}")
            A(f"v_add_u32 {v(EI+x)}, {v(EI+x)}, {v(EB+k)}")
        A("s_waitcnt lgkmcnt(0)")
        for x in xs:
            A(f"v_add_u32 {v(CA+x)}, {v(CA+x)}, {v(RK+x)}")
        for x in xs:
            A(f"s_mov_b64 exec, {s(MK+2*x,2)}")
            A(f"ds_write2st64_b32 {v(CA+x)}, {v(CW+x)}, {v(EI+x)} offset0:0 offset1:{NE*4//256}")
        A(f"s_mov_b64 exec, -1\nK_HI2_{k}:")
    A("s_branch K_HB2")
    A(f"""
K_RESTART:
    s_mov_b32 {s(s_safe)}, 1
    s_mov_b32 {s(s_slow)}, 0
    s_waitcnt lgkmcnt(0)
    s_barrier
""")
    pre, lds_ = cell_loads()
    A(pre + lds_)
    A(ebase())
    zero_hsum()
    A(f"""
    v_mul_u32_u24 {v(t1)}, {PCS}, {v(lane)}
    v_add_u32 {v(t1)}, {L_PB}, {v(t1)}
    ds_write_b128 {v(t1)}, {v(nn,4)}
    ds_write_b128 {v(t1)}, {v(nn,4)} offset:{PCS}
K_ROUND:
""")
    prefill()
    A(f"""
    v_mov_b32 {v(t3)}, 4
    s_mov_b32 {s(s_hi)}, 0
    s_waitcnt vmcnt(0) lgkmcnt(0)
    s_barrier
    s_branch K_PASS1
K_GOSLOW:
    s_mov_b32 {s(s_slow)}, 1
    s_mov_b32 {s(s_chunk)}, -1
K_NEXTCHUNK:
    s_add_u32 {s(s_chunk)}, {s(s_chunk)}, 1
    s_cmp_lt_u32 {s(s_chunk)}, {NB}
    s_cbranch_scc0 K_FIN
    s_waitcnt vmcnt(0) lgkmcnt(0)
    s_barrier
    s_mul_i32 {s(s_t)}, {s(s_chunk)}, {CH * 4}
    v_lshlrev_b32 {v(t0)}, 2, v0
""")
    for k in range(5):
        if k in (2, 4):
            A(f"s_add_u32 {s(s_t)}, {s(s_t)}, 4096")
        A(f"buffer_load_dword {v(RK+k)}, {v(t0)}, {s(SD_,4)}, {s(s_t)} offen offset:{(k%2)*2048}")
        A(f"buffer_load_dword {v(RK+8+k)}, {v(t0)}, {s(SS,4)}, {s(s_t)} offen offset:{(k%2)*2048}")
    A(f"s_mul_i32 {s(s_t)}, {s(s_chunk)}, {CH}\ns_movk_i32 {s(s_u)}, {CH}\nv_mov_b32 {v(t3)}, {s(s_inv)}")
    for k in range(4):
        A(f"v_mov_b32 {v(EB+k)}, {s(s_t)}")
        for i in range(1, 4):
            A(f"v_mov_b32 {v(CW+4*k+i)}, {s(s_inv)}")
    A("s_waitcnt vmcnt(0)")
    for k in range(5):
        A(f"""
        v_add_u32 {v(t1)}, {512*k}, v0
        v_lshrrev_b32 {v(t2)}, 8, {v(RK+k)}
        v_lshl_or_b32 {v(t2)}, {v(RK+8+k)}, 6, {v(t2)}
        v_lshl_or_b32 {v(t2)}, {v(t1)}, 20, {v(t2)}
        v_and_b32 {v(RK+k)}, 255, {v(RK+k)}
        v_cmp_eq_u32 vcc, s2, {v(RK+k)}
        v_cmp_gt_u32 {s(sA,2)}, {s(s_u)}, {v(t1)}
        s_and_b64 vcc, vcc, {s(sA,2)}
        v_cndmask_b32 {v(CW+4*k if k < 4 else CW+1)}, {v(t3)}, {v(t2)}, vcc
""")
    A("s_branch K_ROUND")
    loop(True)
    return max(nvgpr, 136), 102


def kd(name, vg, sg):
    acc = (vg + 3) // 4 * 4
    return f""".p2align 6
.amdhsa_kernel {name}
  .amdhsa_next_free_vgpr {vg}
  .amdhsa_next_free_sgpr {sg}
  .amdhsa_accum_offset {acc}
  .amdhsa_group_segment_fixed_size 0
  .amdhsa_kernarg_size 88
  .amdhsa_user_sgpr_count 2
  .amdhsa_user_sgpr_kernarg_segment_ptr 1
  .amdhsa_system_sgpr_workgroup_id_x 1
  .amdhsa_float_denorm_mode_32 3
.end_amdhsa_kernel
"""


def main():
    ref = open(f"cdna_kernels/{NAME}.s.ref").read().split("\n")
    head = [l for l in ref if l.startswith(";") and "@launch" not in l and "Override" not in l and "grid=ceil" not in l]
    A = Asm()
    v1, s1 = gen_k1(A)
    v2, s2 = gen_k2(A)
    out = "\n".join(head) + "\n"
    out += f"; @launch kernel=k1_kernel grid=({2*NB},1,1) block=(640,1,1) lds={K1_LDS}\n"
    out += f"; @launch kernel=k2_kernel grid=({NB},1,1) block=(512,1,1) lds={L_END}\n"
    out += '.amdgcn_target "amdgcn-amd-amdhsa--gfx950"\n.text\n'
    out += A.text()
    out += '.section .rodata,"a"\n' + kd("k1_kernel", v1, s1) + kd("k2_kernel", v2, s2)
    path = sys.argv[1] if len(sys.argv) > 1 else f"cdna_kernels/{NAME}.s"
    open(path, "w").write(out)
    print("vgprs", v1, v2, "lds", L_END, "->", path)


if __name__ == "__main__":
    main()
```

```python
import sys, struct, os

NAME = "gather_scatter__edge_featured_mpnn_mpnn__graph"
N, E = 10000, 640000
NB, CH = 256, 2500
LOG2E = 1.4426950408889634
LN2 = 0.6931471805599453
STAMP = int(os.environ.get("STAMP", "0"))
TM = "s_memtime" if STAMP == 2 else "s_memrealtime"
DL = [int(x) for x in os.environ.get("DL", "-1:0").split(":")]
ABL = os.environ.get("ABL", "").split(",")
OPT = os.environ.get("OPT", "").split(",")
WS_STAMP = 24 << 20


def f32(x):
    return struct.unpack("<I", struct.pack("<f", x))[0]


RECB = 10240
WS_TAB = NB * RECB + 4096
WS_P = WS_TAB + NB * 1024
WS_W1B = WS_P + N * 256
WS_W2 = WS_W1B + 16384
WS_WC = WS_W2 + 16384
WS_END = WS_WC + 2048

NWV = 16
L_QT = 40 * 1024
L_CNT = L_QT + 40 * 512
L_FLAG = L_CNT + 256
L_LA = L_CNT + 512
NE = 4096
L_LB = L_LA + NE * 4
L_PB = L_LB + NE * 4
PCS = 1040
PBW = 4 * PCS
L_END = L_PB + NWV * PBW + 16
CAPB = (NE - 128) * 4
PADW = (16383 << 6)
PADE = 0x7FFFFFF
HB_STRIDE = 272
L_HBHI = L_LA
HB_LO = 16384


class Asm:
    def __init__(self):
        self.lines = []

    def __call__(self, s):
        if isinstance(s, list):
            s = "\n".join(s)
        for ln in s.split("\n"):
            ln = ln.strip()
            if ln:
                self.lines.append(("" if ln.endswith(":") or ln.startswith(".") else "    ") + ln)

    def text(self):
        return "\n".join(self.lines) + "\n"


class Regs:
    def __init__(self, first):
        self.n = first

    def a(self, cnt=1, align=1):
        self.n = (self.n + align - 1) // align * align
        r = self.n
        self.n += cnt
        return r


def v(r, n=1):
    return f"v{r}" if n == 1 else f"v[{r}:{r + n - 1}]"


def s(r, n=1):
    return f"s{r}" if n == 1 else f"s[{r}:{r + n - 1}]"


DPP_SCAN = ["row_shr:1 row_mask:0xf bank_mask:0xf bound_ctrl:0", "row_shr:2 row_mask:0xf bank_mask:0xf bound_ctrl:0",
            "row_shr:4 row_mask:0xf bank_mask:0xf bound_ctrl:0", "row_shr:8 row_mask:0xf bank_mask:0xf bound_ctrl:0",
            "row_bcast:15 row_mask:0xa bank_mask:0xf", "row_bcast:31 row_mask:0xc bank_mask:0xf"]
K1_CNT = 10240
K1_ST = K1_CNT + 2560
K1_LDS = 24576
NPW = 250


def gen_k1(A):
    A(f"""
.globl k1_kernel
.p2align 8
.type k1_kernel,@function
k1_kernel:
    s_cmp_ge_u32 s2, {NB}
    s_cbranch_scc1 K1_NODE
    s_load_dwordx4 s[4:7], s[0:1], 16
    s_load_dwordx2 s[8:9], s[0:1], 80
    {"s_memrealtime s[28:29]" if STAMP else ""}
    v_lshlrev_b32 v1, 4, v0
    s_mul_i32 s3, s2, {CH * 4}
    v_min_u32 v2, {CH * 4 - 16}, v1
    v_add_u32 v2, s3, v2
    v_lshlrev_b32 v3, 2, v0
    v_mov_b32 v4, 0
    ds_write_b32 v3, v4 offset:{K1_CNT}
    s_waitcnt lgkmcnt(0)
    global_load_dwordx4 v[8:11], v2, s[6:7]
    global_load_dwordx4 v[12:15], v2, s[4:5]
    s_barrier
    v_lshlrev_b32 v24, 22, v0
    v_add_u32 v25, {1 << 20}, v24
    v_add_u32 v26, {2 << 20}, v24
    v_add_u32 v27, {3 << 20}, v24
    v_mov_b32 v3, 4
    v_and_b32 v2, 0x3f0, v1
    s_mul_i32 s3, s2, {RECB}
    s_lshl_b32 s10, s2, 10
    s_add_u32 s10, s10, {WS_TAB}
    v_cmp_gt_u32 vcc, {CH // 4}, v0
    s_and_saveexec_b64 s[26:27], vcc
    s_mov_b64 s[24:25], exec
    s_waitcnt vmcnt(1)
    {"s_memrealtime s[30:31]" if STAMP else ""}
    {"s_waitcnt lgkmcnt(0)" if STAMP else ""}
""")
    for i in range(4):
        A(f"v_lshlrev_b32_sdwa v{16+i}, 2, v{8+i} dst_sel:DWORD dst_unused:UNUSED_PAD src0_sel:DWORD src1_sel:BYTE_0")
        A(f"ds_add_rtn_u32 v{20+i}, v{16+i}, v3 offset:{K1_CNT}")
    for i in range(4):
        A(f"v_lshrrev_b32 v{8+i}, 8, v{8+i}")
        A(f"v_or_b32 v{24+i}, v{24+i}, v{8+i}")
    A(f"""
    s_mov_b64 exec, s[26:27]
    s_waitcnt lgkmcnt(0)
    s_barrier
    ds_read_b128 v[4:7], v2 offset:{K1_CNT}
    s_waitcnt vmcnt(0)
""")
    for i in range(4):
        A(f"v_lshl_or_b32 v{24+i}, v{12+i}, 6, v{24+i}")
    A(f"""
    s_waitcnt lgkmcnt(0)
    v_add_u32 v9, v4, v5
    v_add_u32 v10, v9, v6
    v_add_u32 v11, v10, v7
    v_mov_b32 v28, v11
    v_add_u32 v29, s3, v1
    v_add_u32 v30, s10, v2
""")
    for d in DPP_SCAN:
        A(f"v_add_u32_dpp v28, v28, v28 {d}\ns_nop 1")
    A(f"""
    v_sub_u32 v12, v28, v11
    v_add_u32 v13, v12, v4
    v_add_u32 v14, v12, v9
    v_add_u32 v15, v12, v10
    ds_write_b128 v2, v[12:15] offset:{K1_ST}
    s_mov_b64 exec, s[24:25]
""")
    for i in range(4):
        A(f"ds_read_b32 v{16+i}, v{16+i} offset:{K1_ST}")
    for i in range(4):
        A(f"s_waitcnt lgkmcnt(3)")
        A(f"v_add_u32 v{16+i}, v{16+i}, v{20+i}")
        A(f"ds_write_b32 v{16+i}, v{24+i}")
    A(f"""
    s_mov_b64 exec, s[26:27]
    v_cmp_gt_u32 vcc, 64, v0
    s_cbranch_vccz K1_NOTAB
""")
    for i in range(4):
        A(f"v_lshl_or_b32 v{12+i}, v{4+i}, 16, v{12+i}")
    A(f"""
    global_store_dwordx4 v30, v[12:15], s[8:9]
K1_NOTAB:
    s_waitcnt lgkmcnt(0)
    s_barrier
    {"s_memrealtime s[32:33]" if STAMP else ""}
    {"s_waitcnt lgkmcnt(0)" if STAMP else ""}
    ds_read_b128 v[4:7], v1
    s_waitcnt lgkmcnt(0)
    global_store_dwordx4 v29, v[4:7], s[8:9]
""")
    if STAMP:
        A(f"""
    s_waitcnt vmcnt(0)
    s_memrealtime s[34:35]
    v_cmp_eq_u32 vcc, 0, v0
    s_and_saveexec_b64 s[26:27], vcc
    s_cbranch_execz K1_END
    s_lshl_b32 s3, s2, 4
    s_add_u32 s3, s3, {WS_STAMP + (1 << 18)}
    v_mov_b32 v2, s3
    s_waitcnt lgkmcnt(0)
    v_mov_b32 v4, s28
    v_mov_b32 v5, s30
    v_mov_b32 v6, s32
    v_mov_b32 v7, s34
    global_store_dwordx4 v2, v[4:7], s[8:9]
""")
    A(f"""
K1_END:
    s_endpgm
""")
    XO = 16384
    A(f"""
K1_NODE:
    s_sub_u32 s2, s2, {NB}
    s_cmp_ge_u32 s2, {NPW}
    s_cbranch_scc1 K1_END
    s_load_dwordx2 s[4:5], s[0:1], 0
    s_load_dwordx8 s[8:15], s[0:1], 32
    s_load_dwordx2 s[6:7], s[0:1], 80
    {"s_memrealtime s[36:37]" if STAMP else ""}
    v_lshrrev_b32 v1, 6, v0
    v_and_b32 v2, 63, v0
    v_readfirstlane_b32 s3, v1
    v_lshlrev_b32 v3, 4, v0
    v_and_b32 v5, 0x70, v0
    v_xor_b32 v5, v5, v3
    s_cmp_ge_u32 s3, 8
    s_cbranch_scc1 K1_PREP
    v_lshrrev_b32 v6, 2, v2
    v_and_b32 v7, 0x30, v3
    v_lshl_add_u32 v6, v6, 8, v7
    s_lshr_b32 s28, s3, 2
    s_and_b32 s29, s3, 3
    s_lshl_b32 s30, s28, 13
    s_lshl_b32 s31, s29, 6
    s_add_u32 s30, s30, s31
    v_add_u32 v6, s30, v6
    v_add_u32 v7, 3072, v6
    s_mul_i32 s32, s2, 5120
    s_lshl_b32 s33, s3, 10
    s_mov_b32 s18, {N * 128}
    s_mov_b32 s19, 0x20000
    s_add_u32 m0, s33, {XO}
    s_lshl_b32 s34, s29, 12
    s_lshl_b32 s35, s28, 11
    s_waitcnt lgkmcnt(0)
    s_mov_b32 s16, s4
    s_and_b32 s17, s5, 0xffff
    buffer_load_dwordx4 v5, s[16:19], s32 offen lds
    s_add_u32 m0, s34, s35
    v_and_b32 v10, 31, v2
    global_load_lds_dwordx4 v6, s[8:9]
    global_load_lds_dwordx4 v7, s[8:9] offset:1024
    ; fragment of W^T (rows = features, permuted): lane group G: k rows 8h+r, columns 16*(c&1) + 8*c16 + 4*(c>>1)
    v_lshrrev_b32 v13, 5, v2
    v_bfe_u32 v14, v2, 2, 2
    v_lshl_add_u32 v14, v13, 3, v14
    v_lshlrev_b32 v14, 6, v14
    v_and_b32 v15, 1, v2
    v_lshl_add_u32 v14, v15, 5, v14
    v_and_b32 v15, 16, v2
    v_add3_u32 v14, v14, v15, s34
    v_and_b32 v15, 2, v2
    v_lshl_add_u32 v14, v15, 2, v14
    ; x fragment addresses
    v_bfe_u32 v15, v2, 1, 3
    v_xor_b32 v15, v15, v13
    s_lshl_b32 s35, s28, 12
    v_lshl_add_u32 v3, v10, 7, s35
""")
    for q in range(4):
        A(f"v_xor_b32 v{6+q}, {2*q}, v15")
        A(f"v_lshl_add_u32 v{6+q}, v{6+q}, 4, v3")
    A(f"""
    s_mul_i32 s32, s2, 10240
    s_add_u32 s32, s32, {WS_P}
    s_add_u32 s20, s6, s32
    s_addc_u32 s21, s7, 0
    s_and_b32 s21, s21, 0xffff
    s_movk_i32 s22, 10240
    s_mov_b32 s23, 0x20000
    v_lshlrev_b32 v3, 1, v3
    v_lshl_add_u32 v3, v13, 5, v3
    s_mov_b32 s34, {f32(-LOG2E)}
    s_mov_b32 s35, {f32(-LOG2E)}
    s_waitcnt vmcnt(0)
    s_barrier
""")
    WF, XA, D0 = 16, 32, 48
    for q in range(4):
        A(f"ds_read_b128 {v(XA+4*q,4)}, v{6+q} offset:{XO}")
        for h2 in range(2):
            A(f"ds_read_b64_tr_b16 {v(WF+4*q+2*h2,2)}, v14 offset:{(16*q+4*h2)*64}")
    for q in range(4):
        A(f"s_waitcnt lgkmcnt({9 - 3*q})")
        A(f"v_mfma_f32_32x32x16_bf16 {v(D0,16)}, {v(WF+4*q,4)}, {v(XA+4*q,4)}, {'0' if q == 0 else v(D0,16)}")
    A("s_nop 11")
    for r in range(0, 16, 2):
        A(f"v_pk_mul_f32 {v(D0+r,2)}, {v(D0+r,2)}, s[34:35]")
    for r in range(8):
        A(f"v_cvt_pk_bf16_f32 v{WF+r}, v{D0+2*r}, v{D0+2*r+1}")
    A(f"""
    buffer_store_dwordx4 {v(WF,4)}, v3, s[20:23], s31 offen
    buffer_store_dwordx4 {v(WF+4,4)}, v3, s[20:23], s31 offen offset:16
""")
    if STAMP:
        A(f"""
    s_waitcnt vmcnt(0)
    s_memrealtime s[38:39]
    v_cmp_eq_u32 vcc, 0, v0
    s_and_saveexec_b64 s[26:27], vcc
    s_cbranch_execz K1_END
    s_lshl_b32 s3, s2, 4
    s_add_u32 s3, s3, {WS_STAMP + (1 << 18) + 4096}
    v_mov_b32 v2, s3
    s_waitcnt lgkmcnt(0)
    v_mov_b32 v4, s36
    v_mov_b32 v5, s38
    global_store_dwordx2 v2, v[4:5], s[6:7]
""")
    A(f"""
    s_endpgm
K1_PREP:
    s_lshl_b32 s28, s2, 1
    s_add_u32 s3, s3, s28
    s_sub_u32 s3, s3, 8
    s_cmp_ge_u32 s3, 36
    s_cbranch_scc1 K1_CODE
    s_waitcnt lgkmcnt(0)
    s_cmp_ge_u32 s3, 32
    s_cbranch_scc1 K1_WC
    v_lshrrev_b32 v4, 4, v2
    v_and_b32 v5, 15, v2
    s_cmp_ge_u32 s3, 16
    s_cbranch_scc1 K1_W2
    ; W1b: cb = t>>1, ks = t&1 : k = 64 + 32 ks + 8 (l/16) + e ; col = 16 cb + l%16
    s_and_b32 s24, s3, 1
    s_lshl_b32 s24, s24, 13
    s_lshr_b32 s25, s3, 1
    s_lshl_b32 s25, s25, 5
    s_add_u32 s24, s24, s25
    s_add_u32 s24, s24, 16384
    v_lshlrev_b32 v4, 11, v4
    v_lshl_add_u32 v4, v5, 1, v4
    v_add_u32 v4, s24, v4
""")
    for e in range(8):
        A(f"global_load_ushort v{8+e}, v4, s[8:9] offset:{e*256}")
    A(f"""
    s_branch K1_PACK
K1_W2:
    ; ob = (t>>2)&3, ks = t&3 : k = 32 ks + 8 (l/16) + e ; out = 16 ob + l%16
    s_and_b32 s24, s3, 3
    s_lshl_b32 s24, s24, 12
    s_bfe_u32 s25, s3, 0x20002
    s_lshl_b32 s25, s25, 5
    s_add_u32 s24, s24, s25
    v_lshlrev_b32 v4, 10, v4
    v_lshl_add_u32 v4, v5, 1, v4
    v_add_u32 v4, s24, v4
""")
    for e in range(8):
        A(f"global_load_ushort v{8+e}, v4, s[12:13] offset:{e*128}")
    A(f"""
K1_PACK:
    s_lshl_b32 s24, s3, 10
    s_add_u32 s24, s24, {WS_W1B}
    v_lshl_add_u32 v4, v2, 4, s24
    s_waitcnt vmcnt(0)
""")
    for e in range(4):
        A(f"v_lshl_or_b32 v{16+e}, v{9+2*e}, 16, v{8+2*e}")
    A(f"""
    global_store_dwordx4 v4, v[16:19], s[6:7]
    s_endpgm
K1_WC:
    s_sub_u32 s25, s3, 32
    s_lshl_b32 s24, s25, 6
    s_add_u32 s24, s24, {128 * 256}
    v_and_b32 v5, 31, v2
    v_lshl_add_u32 v4, v5, 1, s24
""")
    for e in range(4):
        A(f"global_load_ushort v{8+e}, v4, s[8:9] offset:{e*256}")
    A(f"""
    s_mov_b32 s26, {f32(-LOG2E)}
    s_lshl_b32 s24, s25, 9
    s_add_u32 s24, s24, {WS_WC}
    v_lshl_add_u32 v4, v2, 3, s24
    v_cmp_le_u32 vcc, 32, v2
    s_waitcnt vmcnt(0)
""")
    for e in range(4):
        A(f"v_lshlrev_b32 v{8+e}, 16, v{8+e}")
    for e in range(4):
        A(f"v_mul_f32 v{8+e}, s26, v{8+e}")
    for e in range(4):
        A(f"v_and_b32 v{12+e}, 0xffff0000, v{8+e}")
    for e in range(4):
        A(f"v_sub_f32 v{8+e}, v{8+e}, v{12+e}")
    for e in range(4):
        A(f"v_cndmask_b32 v{8+e}, v{12+e}, v{8+e}, vcc")
    A(f"""
    v_cvt_pk_bf16_f32 v16, v8, v9
    v_cvt_pk_bf16_f32 v17, v10, v11
    global_store_dwordx2 v4, v[16:17], s[6:7]
    s_endpgm
K1_CODE:
    s_cmp_ge_u32 s3, {36 + 64}
    s_cbranch_scc1 K1_END
    {"s_endpgm" if "nocode" in OPT else ""}
    s_getpc_b64 s[24:25]
K1_PC:
    s_add_u32 s24, s24, k2_kernel-K1_PC
    s_addc_u32 s25, s25, 0
    v_lshlrev_b32 v4, 7, v2
    v_min_u32 v4, K_HOT_END-k2_kernel, v4
    global_load_dword v5, v4, s[24:25]
    s_waitcnt vmcnt(0)
    s_endpgm
""")
    return 64, 40


def gen_k2(A):
    R = Regs(1)
    lane = R.a()
    t0, t1, t2, t3 = R.a(), R.a(), R.a(), R.a()
    guard, deg, j4, l16 = R.a(), R.a(), R.a(), R.a()
    la_w, la_e, le, tab, dq = R.a(), R.a(), R.a(), R.a(), R.a()
    cw0, ce0, grp, EB, rem = R.a(), R.a(), R.a(), R.a(), R.a()
    TA = [[R.a(), R.a()], [R.a(), R.a()]]
    OH = R.a(2, 2)
    lw = R.a(4, 2)
    qa, ha = R.a(2, 2), R.a(2, 2)
    b2r = R.a(2, 2)
    nn, dd, tt, rr = [R.a(2, 2) for _ in range(4)]
    acc = R.a(8, 2)
    A5 = R.a(4, 2)
    B5 = [R.a(4, 2) for _ in range(4)]
    D = [R.a(16, 2) for _ in range(2)]
    EX = R.a(16, 2)
    nvgpr = R.n
    assert nvgpr <= 128, nvgpr
    CW, RK, CA, EI = D[0], D[0] + 8, D[1], D[1] + 8
    C64 = EX
    QB, QA, QA2, QD = EX, EX + 8, acc, nn
    assert rr == nn + 6

    SP0, SP1, SE, SW, SO, SS, SD_, SXR = 28, 32, 36, 40, 44, 48, 52, 72
    MK = 56
    s_b = 76
    s_wave, s_o3, s_o2, s_o1, s_msk, s_ne, s_rem, s_x, s_slow, s_safe, s_chunk = range(78, 89)
    s_t, s_u = 89, 90
    sA, sB = 26, 27
    s_m0, s_chg, s_hi = 0, 3, 22
    s_oh = MK
    STR = [92, 4, 6, 8, 10, 12, 14, 94, 18, 20]

    def stamp(i):
        if DL[0] == i:
            A(f"""
K_DL:
            s_waitcnt lgkmcnt(0)
            s_memrealtime {s(STR[i],2)}
            s_waitcnt lgkmcnt(0)
            s_sub_u32 {s(STR[i])}, {s(STR[i])}, {s(s_x)}
            s_cmp_lt_u32 {s(STR[i])}, {DL[1]*100}
            s_cbranch_scc1 K_DL
""")
        if STAMP:
            A(f"s_waitcnt lgkmcnt(0)\n{TM} {s(STR[i],2)}\ns_waitcnt lgkmcnt(0)")

    def tab_load():
        return [f"v_lshrrev_b32 {v(EB)}, 2, v0", f"v_lshlrev_b32 {v(t0)}, 10, {v(EB)}",
                f"s_lshl_b32 {s(s_u)}, {s(s_b)}, 2", f"s_add_u32 {s(s_u)}, {s(s_u)}, {WS_TAB}"], \
               [f"buffer_load_dword {v(rem)}, {v(t0)}, {s(SW,4)}, {s(s_u)} offen"]

    def rec_pre():
        return [f"v_and_b32 {v(t1)}, 48, {v(l16)}", f"v_mul_u32_u24 {v(t0)}, {RECB}, {v(EB)}",
                f"v_add_u32 {v(t0)}, {v(t0)}, {v(t1)}", f"v_mul_u32_u24 {v(EB)}, {CH}, {v(EB)}"]

    def rec_loads(tag):
        A(f"""
        v_add_u32_sdwa {v(t0)}, {v(t0)}, {v(rem)} dst_sel:DWORD dst_unused:UNUSED_PAD src0_sel:DWORD src1_sel:WORD_0
        v_lshrrev_b32 {v(rem)}, 16, {v(rem)}
        buffer_load_dwordx4 {v(CW,4)}, {v(t0)}, {s(SW,4)}, 0 offen
        v_cmp_lt_u32 vcc, 64, {v(rem)}
        v_sub_u32 {v(rem)}, {v(rem)}, {v(t1)}
        s_cmp_lg_u64 vcc, 0
        s_cselect_b32 {s(s_hi)}, 1, 0
        s_cbranch_scc0 K_NOHI{tag}
        s_mov_b64 exec, vcc
        buffer_load_dwordx4 {v(CW+4,4)}, {v(t0)}, {s(SW,4)}, 0 offen offset:64
        s_mov_b64 exec, -1
K_NOHI{tag}:
""")
        for i in range(4):
            A(f"v_cmp_lt_i32 {s(MK+2*i,2)}, {4*i}, {v(rem)}")

    def prefill():
        A(f"""
        v_mov_b32 {v(D[1])}, {PADW}
        v_mov_b32 {v(D[1]+1)}, {PADW}
        v_mov_b64 {v(D[1]+2,2)}, {v(D[1],2)}
        v_mov_b32 {v(D[1]+4)}, {PADE}
        v_mov_b32 {v(D[1]+5)}, {PADE}
        v_mov_b64 {v(D[1]+6,2)}, {v(D[1]+4,2)}
        v_lshlrev_b32 {v(t2)}, 4, v0
        v_add_u32 {v(t2)}, {L_LA}, {v(t2)}
        v_mov_b32 {v(D[1]+8)}, 0
        v_lshlrev_b32 {v(t3)}, 2, {v(lane)}
        ds_write_b128 {v(t2)}, {v(D[1],4)}
        ds_write_b128 {v(t2)}, {v(D[1]+4,4)} offset:{NE*4}
        ds_write2st64_b32 {v(t3)}, {v(D[1]+8)}, {v(D[1]+8)} offset0:{L_CNT//256} offset1:{L_CNT//256 + 1}
""")

    def zero_hsum():
        A(f"""
        v_mov_b64 {v(D[1]+12,2)}, 0
        v_mov_b64 {v(D[1]+14,2)}, 0
        v_mov_b32 {v(guard)}, 0
        v_mov_b32 {v(deg)}, 0
        v_lshlrev_b32 {v(t2)}, 4, v0
        ds_write_b128 {v(t2)}, {v(D[1]+12,4)}
        ds_write_b128 {v(t2)}, {v(D[1]+12,4)} offset:16384
        ds_write_b128 {v(t2)}, {v(D[1]+12,4)} offset:24576
""")

    pre, ld = tab_load()
    A(f"""
.globl k2_kernel
.p2align 8
.type k2_kernel,@function
k2_kernel:
    s_cmp_ge_u32 s2, {NB}
    s_cbranch_scc1 K_END
    s_load_dwordx2 s[24:25], s[0:1], 80
    s_load_dwordx8 s[4:11], s[0:1], 0
    s_load_dwordx2 s[14:15], s[0:1], 40
    s_load_dwordx4 s[16:19], s[0:1], 56
    {TM + " " + s(STR[0],2) if STAMP or DL[0] >= 0 else ""}
    s_and_b32 {s(s_b)}, s2, 7
    s_lshl_b32 {s(s_b)}, {s(s_b)}, 5
    s_lshr_b32 {s(s_t)}, s2, 3
    s_or_b32 {s(s_b)}, {s(s_b)}, {s(s_t)}
    v_lshrrev_b32 {v(t1)}, 6, v0
    s_mov_b32 {s(SW+2)}, {WS_END}
    s_mov_b32 {s(SW+3)}, 0x20000
    v_readfirstlane_b32 {s(s_wave)}, {v(t1)}
""")
    A(pre)
    A(f"""
    v_and_b32 {v(lane)}, 63, v0
    v_lshlrev_b32 {v(l16)}, 4, {v(lane)}
    s_waitcnt lgkmcnt(0)
    s_mov_b32 {s(SW)}, s24
    s_and_b32 {s(SW+1)}, s25, 0xffff
""")
    A(ld)
    A(f"""
    {"s_mov_b32 " + s(s_x) + ", " + s(STR[0]) if STAMP or DL[0] >= 0 else ""}
    ; W1b fragments (cb = w&7), b1, own x rows -> pieces 0..5 of the P buffers
    s_and_b32 {s(s_u)}, {s(s_wave)}, 7
    s_lshl_b32 {s(s_t)}, {s(s_u)}, 11
    s_add_u32 {s(s_t)}, {s(s_t)}, {WS_W1B}
    buffer_load_dwordx4 {v(QB,4)}, {v(l16)}, {s(SW,4)}, {s(s_t)} offen
    buffer_load_dwordx4 {v(QB+4,4)}, {v(l16)}, {s(SW,4)}, {s(s_t)} offen offset:1024
    v_and_b32 {v(t1)}, 15, {v(lane)}
    s_lshl_b32 {s(s_t)}, {s(s_u)}, 5
    v_lshl_add_u32 {v(t2)}, {v(t1)}, 1, {s(s_t)}
    global_load_ushort {v(le)}, {v(t2)}, s[14:15]
    s_mov_b32 {s(SXR)}, s4
    s_and_b32 {s(SXR+1)}, s5, 0xffff
    s_mov_b32 {s(SXR+2)}, {N * 128}
    s_mov_b32 {s(SXR+3)}, 0x20000
    s_mul_i32 {s(s_t)}, {s(s_wave)}, {PCS}
    s_add_u32 m0, {s(s_t)}, {L_PB + 16}
    v_lshrrev_b32 {v(t2)}, 3, v0
    v_xor_b32 {v(t3)}, v0, {v(l16)}
    v_and_b32 {v(t3)}, 0x70, {v(t3)}
    v_lshl_add_u32 {v(t3)}, {v(t2)}, 15, {v(t3)}
    s_lshl_b32 {s(s_t)}, {s(s_b)}, 7
    buffer_load_dwordx4 {v(t3)}, {s(SXR,4)}, {s(s_t)} offen lds
    v_lshlrev_b32 {v(t3)}, 3, {v(lane)}
    s_mov_b32 {s(s_t)}, {WS_WC}
""")
    for n in range(4):
        A(f"buffer_load_dwordx2 {v(B5[n],2)}, {v(t3)}, {s(SW,4)}, {s(s_t)} offen offset:{n*512}")
    NAFT = 8
    zero_hsum()
    prefill()
    A(f"""
    v_mul_u32_u24 {v(t2)}, {PCS}, {v(lane)}
    v_add_u32 {v(t2)}, {L_PB}, {v(t2)}
    ds_write_b128 {v(t2)}, {v(D[1]+12,4)}
    ds_write_b128 {v(t2)}, {v(D[1]+12,4)} offset:{PCS}
""")
    A(rec_pre())
    A(f"s_waitcnt vmcnt({NAFT})")
    stamp(7)
    rec_loads("A")
    A(f"""
    s_add_u32 {s(SP0)}, s24, {WS_P - 3*PCS}
    s_addc_u32 {s(SP0+1)}, s25, 0
    s_and_b32 {s(SP0+1)}, {s(SP0+1)}, 0xffff
    s_or_b32 {s(SP0+1)}, {s(SP0+1)}, {4 << 16}
    s_mov_b32 {s(SP0+2)}, {N * 64}
    s_mov_b32 {s(SP0+3)}, 0x20000
    s_add_u32 {s(SP1)}, s24, {WS_P - 3*PCS + 128}
    s_addc_u32 {s(SP1+1)}, s25, 0
    s_and_b32 {s(SP1+1)}, {s(SP1+1)}, 0xffff
    s_or_b32 {s(SP1+1)}, {s(SP1+1)}, {4 << 16}
    s_mov_b32 {s(SP1+2)}, {N * 64}
    s_mov_b32 {s(SP1+3)}, 0x20000
    s_mov_b32 {s(SE)}, s6
    s_and_b32 {s(SE+1)}, s7, 0xffff
    s_or_b32 {s(SE+1)}, {s(SE+1)}, {8 << 16}
    s_mov_b32 {s(SE+2)}, {E}
    s_mov_b32 {s(SE+3)}, 0x20000
    s_mov_b32 {s(SO)}, s18
    s_and_b32 {s(SO+1)}, s19, 0xffff
    s_mov_b32 {s(SO+2)}, {N * 128}
    s_mov_b32 {s(SO+3)}, 0x20000
    s_mov_b32 {s(SS)}, s8
    s_and_b32 {s(SS+1)}, s9, 0xffff
    s_mov_b32 {s(SS+2)}, {E * 4}
    s_mov_b32 {s(SS+3)}, 0x20000
    s_mov_b32 {s(SD_)}, s10
    s_and_b32 {s(SD_+1)}, s11, 0xffff
    s_mov_b32 {s(SD_+2)}, {E * 4}
    s_mov_b32 {s(SD_+3)}, 0x20000
    s_movk_i32 {s(s_o3)}, {3*PCS}
    s_movk_i32 {s(s_o2)}, {2*PCS}
    s_movk_i32 {s(s_o1)}, {PCS}
    s_mov_b32 {s(s_msk)}, 0xfffc0
    s_mov_b32 {s(s_ne)}, {E}
    s_mov_b32 {s(s_safe)}, 0
    s_mov_b32 {s(s_slow)}, 0
    s_mul_i32 {s(s_m0)}, {s(s_wave)}, {PBW}
    s_add_u32 {s(s_m0)}, {s(s_m0)}, {L_PB + 16}
    ; x fragment address: row = 16 rb + i : PB+16 + (row>>3)*PCS + (row&7)*128 + (((4ks + kg) ^ ((i>>1)&7))*16)
    v_bfe_u32 {v(t0)}, {v(lane)}, 3, 1
    v_mul_u32_u24 {v(t0)}, {PCS}, {v(t0)}
    v_and_b32 {v(t1)}, 7, {v(lane)}
    v_lshl_add_u32 {v(t0)}, {v(t1)}, 7, {v(t0)}
    v_bfe_u32 {v(t1)}, {v(lane)}, 1, 3
    v_lshrrev_b32 {v(t2)}, 4, {v(lane)}
    v_xor_b32 {v(t1)}, {v(t1)}, {v(t2)}
    s_lshr_b32 {s(s_t)}, {s(s_wave)}, 3
    s_mul_i32 {s(sA)}, {s(s_t)}, {2*PCS}
    s_add_u32 {s(sA)}, {s(sA)}, {L_PB + 16}
    v_add_u32 {v(t0)}, {s(sA)}, {v(t0)}
    v_lshl_add_u32 {v(la_w)}, {v(t1)}, 4, {v(t0)}
    v_xor_b32 {v(t1)}, 4, {v(t1)}
    v_lshl_add_u32 {v(la_e)}, {v(t1)}, 4, {v(t0)}
    s_lshl_b32 {s(s_t)}, {s(s_t)}, 13
    s_lshl_b32 {s(s_u)}, {s(s_u)}, 6
    s_add_u32 {s(s_t)}, {s(s_t)}, {s(s_u)}
    v_and_b32 {v(t1)}, 15, {v(lane)}
    v_lshl_add_u32 {v(tab)}, {v(t1)}, 2, {s(s_t)}
    v_lshl_add_u32 {v(tab)}, {v(t2)}, 11, {v(tab)}
    s_waitcnt vmcnt(5) lgkmcnt(0)
    s_barrier
    ds_read_b128 {v(QA,4)}, {v(la_w)}
    ds_read_b128 {v(QA+4,4)}, {v(la_e)}
    ds_read_b128 {v(QA2,4)}, {v(la_w)} offset:{4*PCS}
    ds_read_b128 {v(QA2+4,4)}, {v(la_e)} offset:{4*PCS}
    s_mov_b32 m0, {s(s_m0)}
    v_and_b32 {v(t1)}, 31, {v(lane)}
    v_lshrrev_b32 {v(t2)}, 5, {v(lane)}
    v_lshlrev_b32 {v(j4)}, 2, {v(t1)}
    v_bfe_u32 {v(t3)}, {v(t1)}, 1, 1
    v_lshrrev_b32 {v(ce0)}, 3, {v(t1)}
    v_lshl_or_b32 {v(ce0)}, {v(ce0)}, 1, {v(t3)}
    v_lshlrev_b32 {v(ce0)}, 2, {v(ce0)}
    v_add_u32 {v(ce0)}, {L_LB}, {v(ce0)}
    v_and_b32 {v(grp)}, 1, {v(t1)}
    v_bfe_u32 {v(t3)}, {v(t1)}, 2, 1
    v_lshl_or_b32 {v(grp)}, {v(t3)}, 1, {v(grp)}
    s_waitcnt lgkmcnt(2)
    v_mfma_f32_16x16x32_bf16 {v(QD,4)}, {v(QA,4)}, {v(QB,4)}, 0
    v_mfma_f32_16x16x32_bf16 {v(QD,4)}, {v(QA+4,4)}, {v(QB+4,4)}, {v(QD,4)}
    s_waitcnt lgkmcnt(0)
    v_mfma_f32_16x16x32_bf16 {v(QD+4,4)}, {v(QA2,4)}, {v(QB,4)}, 0
    v_mfma_f32_16x16x32_bf16 {v(QD+4,4)}, {v(QA2+4,4)}, {v(QB+4,4)}, {v(QD+4,4)}
    v_lshlrev_b32 {v(t3)}, 1, {v(t2)}
    v_sub_u32 {v(t3)}, {v(grp)}, {v(t3)}
    v_mov_b32 {v(t0)}, 0x3f803f80
    v_cmp_eq_u32 vcc, 0, {v(t3)}
    v_cmp_eq_u32 {s(sA,2)}, 1, {v(t3)}
    v_and_b32 {v(cw0)}, 8, {v(lane)}
    v_lshlrev_b32 {v(cw0)}, 1, {v(cw0)}
    v_add_u32 {v(cw0)}, {L_LA}, {v(cw0)}
    v_cndmask_b32 {v(OH)}, 0, {v(t0)}, vcc
    v_cndmask_b32 {v(OH+1)}, 0, {v(t0)}, {s(sA,2)}
    s_mov_b32 {s(s_t)}, {f32(-LOG2E)}
    v_lshlrev_b32 {v(le)}, 16, {v(le)}
    v_mul_f32 {v(le)}, {s(s_t)}, {v(le)}
""")

    def qpart(base, off):
        for r in range(4):
            A(f"v_fma_f32 {v(base+r)}, {v(base+r)}, {s(s_t)}, {v(le)}")
        for r in range(4):
            A(f"v_and_b32 {v(QA+r)}, 0xffff0000, {v(base+r)}")
        for r in range(4):
            A(f"v_sub_f32 {v(base+r)}, {v(base+r)}, {v(QA+r)}")
        for r in range(4):
            A(f"v_cvt_pk_bf16_f32 {v(base+r)}, {v(QA+r)}, {v(base+r)}")
        for r in range(4):
            A(f"ds_write_b32 {v(tab)}, {v(base+r)} offset:{L_QT + off + r*512}")
    qpart(QD, 0)
    A(f"s_cmp_ge_u32 {s(s_wave)}, 8\ns_cbranch_scc1 K_QD\ns_mov_b32 exec_hi, 0")
    qpart(QD + 4, 32 * 512)
    A(f"""
    s_mov_b32 exec_hi, -1
K_QD:
    v_lshlrev_b32 {v(dq)}, 2, {v(lane)}
    v_xor_b32 {v(dq)}, {v(dq)}, {v(lane)}
    v_and_b32 {v(t3)}, 16, {v(dq)}
    v_lshlrev_b32 {v(dq)}, 2, {v(lane)}
    v_and_or_b32 {v(dq)}, {v(dq)}, 12, {v(t3)}
    v_bfe_u32 {v(t3)}, {v(lane)}, 3, 1
    v_lshlrev_b32 {v(t0)}, 9, {v(t2)}
    v_mad_u32_u24 {v(t0)}, {v(t3)}, 64, {v(t0)}
    v_lshl_add_u32 {v(t0)}, {v(t3)}, 8, {v(t0)}
    v_and_b32 {v(t3)}, 16, {v(lane)}
    v_lshl_add_u32 {v(t0)}, {v(t3)}, 1, {v(t0)}
    v_and_b32 {v(t3)}, 3, {v(lane)}
    v_lshl_add_u32 {v(t0)}, {v(t3)}, 3, {v(t0)}
    v_xor_b32 {v(t1)}, 64, {v(t0)}
    v_and_b32 {v(t3)}, 4, {v(lane)}
    v_cmp_ne_u32 vcc, 0, {v(t3)}
    v_add_u32 {v(t2)}, 128, {v(t0)}
    v_add_u32 {v(t3)}, 128, {v(t1)}
    v_cndmask_b32 {v(TA[0][0])}, -16, {v(t0)}, vcc
    v_cndmask_b32 {v(TA[1][0])}, -16, {v(t1)}, vcc
    v_mov_b32 {v(t0)}, 1024
    v_cndmask_b32 {v(TA[0][1])}, {v(t0)}, {v(t2)}, vcc
    v_cndmask_b32 {v(TA[1][1])}, {v(t0)}, {v(t3)}, vcc
""")
    for a in (TA[0][0], TA[0][1], TA[1][0], TA[1][1]):
        A(f"v_add_u32 {v(a)}, {s(s_m0)}, {v(a)}")

    def p1words(xs):
        for x in xs:
            A(f"v_lshlrev_b32_sdwa {v(CA+x)}, 2, {v(CW+x)} dst_sel:BYTE_0 dst_unused:UNUSED_PAD src0_sel:DWORD src1_sel:DWORD")
        for x in xs:
            A(f"s_mov_b64 exec, {s(MK+2*x,2)}")
            A(f"ds_add_rtn_u32 {v(RK+x)}, {v(CA+x)}, {v(t3)} offset:{L_CNT}")
        A("s_mov_b64 exec, -1")

    LO = [0, 1, 2, 3]
    HI = [4, 5, 6, 7]
    A(f"K_PASS1:\nv_mov_b32 {v(t3)}, 4\ns_waitcnt vmcnt(0)")
    stamp(1)
    p1words(LO)
    A(f"""
    s_cmp_lg_u32 {s(s_hi)}, 0
    s_cbranch_scc1 K_HI1
K_HB1:
""")
    for x in LO:
        A(f"v_lshrrev_b32 {v(EI+x)}, 20, {v(CW+x)}")
        A(f"v_add_u32 {v(EI+x)}, {v(EI+x)}, {v(EB)}")
    stamp(2)
    A(f"""
    v_lshlrev_b32 {v(t0)}, 2, {v(lane)}
    v_mov_b32 {v(t2)}, {L_FLAG}
    s_waitcnt lgkmcnt(0)
    s_barrier
    ds_read_b32 {v(t1)}, {v(t0)} offset:{L_CNT}
    ds_read_b32 {v(t2)}, {v(t2)}
    s_waitcnt lgkmcnt(1)
    v_add_u32 {v(t3)}, 31, {v(t1)}
    v_and_b32 {v(t3)}, -32, {v(t3)}
    v_mov_b32 {v(t0)}, {v(t3)}
    v_and_b32 {v(tab)}, 15, {v(lane)}
    v_lshlrev_b32 {v(tab)}, 5, {v(tab)}
""")
    for d in DPP_SCAN:
        A(f"v_add_u32_dpp {v(t0)}, {v(t0)}, {v(t0)} {d}\ns_nop 1")
    A(f"""
    v_readlane_b32 {s(sB)}, {v(t0)}, 63
    v_sub_u32 {v(t0)}, {v(t0)}, {v(t3)}
    v_add_u32 {v(t0)}, {L_LA}, {v(t0)}
""")
    for x in LO:
        A(f"ds_bpermute_b32 {v(CA+x)}, {v(CA+x)}, {v(t0)}")
    A(f"""
    s_waitcnt lgkmcnt(4)
    v_readfirstlane_b32 {s(sA)}, {v(t2)}
    v_lshrrev_b32 {v(t2)}, 4, {v(lane)}
    s_cmp_gt_u32 {s(sB)}, {CAPB}
    s_cselect_b32 {s(s_t)}, 1, 0
    s_or_b32 {s(sA)}, {s(sA)}, {s(s_t)}
    s_cbranch_scc1 K_GOSLOW
    v_add_u32 {v(deg)}, {v(deg)}, {v(t1)}
    s_add_u32 {s(sB)}, {s(sB)}, 127
    s_lshr_b32 {s(sB)}, {s(sB)}, 7
    s_add_u32 {s(s_rem)}, {s(sB)}, {NWV - 1}
    s_sub_u32 {s(s_rem)}, {s(s_rem)}, {s(s_wave)}
    s_lshr_b32 {s(s_rem)}, {s(s_rem)}, 4
    s_lshr_b32 {s(s_t)}, {s(sB)}, 4
    s_mul_i32 {s(s_t)}, {s(s_t)}, {s(s_wave)}
    s_and_b32 {s(sB)}, {s(sB)}, {NWV - 1}
    s_min_u32 {s(sB)}, {s(sB)}, {s(s_wave)}
    s_add_u32 {s(s_t)}, {s(s_t)}, {s(sB)}
    s_lshl_b32 {s(s_t)}, {s(s_t)}, 7
    s_lshl_b32 {s(s_u)}, {s(s_rem)}, 5
    s_waitcnt lgkmcnt(0)
""")
    for x in LO:
        A(f"v_add_u32 {v(CA+x)}, {v(CA+x)}, {v(RK+x)}")
    for x in LO:
        A(f"s_mov_b64 exec, {s(MK+2*x,2)}")
        A(f"ds_write2st64_b32 {v(CA+x)}, {v(CW+x)}, {v(EI+x)} offset0:0 offset1:{NE*4//256}")
    A(f"""
    s_mov_b64 exec, -1
    s_cmp_lg_u32 {s(s_hi)}, 0
    s_cbranch_scc1 K_HI2
K_HB2:
    v_mul_u32_u24 {v(t2)}, {s(s_u)}, {v(t2)}
    v_add3_u32 {v(la_w)}, {v(t2)}, {v(cw0)}, {s(s_t)}
    v_mul_u32_u24 {v(la_e)}, {s(s_u)}, {v(grp)}
    v_add3_u32 {v(la_e)}, {v(la_e)}, {v(ce0)}, {s(s_t)}
    v_add3_u32 {v(tab)}, {v(tab)}, {v(t2)}, {s(s_t)}
    s_waitcnt lgkmcnt(0)
    s_barrier
""")
    stamp(3)

    def dma(u):
        so = [s(s_o3), s(s_o2), s(s_o1), "0"]
        srd = SP0 if u == 0 else SP1
        return [f"buffer_load_dwordx4 {v(lw+q)}, {s(srd,4)}, {so[q]} idxen offset:{q*PCS} lds" for q in range(4)]

    def idx():
        return [f"v_and_or_b32 {v(lw+q)}, {v(lw+q)}, {s(s_msk)}, {v(dq)}" for q in range(4)]

    def eload():
        return f"buffer_load_dwordx2 {v(A5,2)}, {v(le)}, {s(SE,4)}, 0 idxen" + (" nt" if "ent" in OPT else "")

    def ohcmp():
        return f"v_cmp_gt_u32 vcc, {s(s_ne)}, {v(le)}"

    def ohsel():
        return [f"v_cndmask_b32 {v(A5+2)}, 0, {v(OH)}, vcc", f"v_cndmask_b32 {v(A5+3)}, 0, {v(OH+1)}, vcc"]

    def lists():
        return [f"ds_read_b128 {v(lw,4)}, {v(la_w)}", f"ds_read_b32 {v(le)}, {v(la_e)}"]

    def laup():
        return [f"v_add_u32 {v(x)}, 32, {v(x)}" for x in (la_w, la_e)]

    def flush():
        o = [f"v_cvt_f64_f32 {v(C64+2*i,2)}, {v(acc+i)}" for i in range(8)]
        o2 = [f"ds_add_f64 {v(ha + i%2)}, {v(C64+2*i,2)} offset:{(i//2)*256}" for i in range(8)]
        return o, o2

    def qaddr(fill):
        o = [f"v_mov_b32_dpp {v(qa)}, {v(tab)} row_newbcast:0 row_mask:0xf bank_mask:0xf",
             f"v_mov_b32_dpp {v(qa+1)}, {v(tab)} row_newbcast:0 row_mask:0xf bank_mask:0xf"]
        o += fill[:2]
        o += [f"v_permlane16_swap_b32 {v(qa)}, {v(qa+1)}"]
        o += fill[2:4]
        o += [f"v_add_u32 {v(qa)}, {v(qa)}, {v(j4)}", f"v_add_u32 {v(qa+1)}, {v(qa+1)}, {v(j4)}"]
        o += fill[4:]
        for n in range(4):
            for k in range(2):
                o.append(f"ds_read_b32 {v(B5[n]+2+k)}, {v(qa+k)} offset:{L_QT + n*128}")
        return o

    zacc = [f"v_mov_b64 {v(acc+2*n,2)}, 0" for n in range(4)]
    haup = [f"v_lshlrev_b32 {v(ha+k)}, 1, {v(qa+k)}" for k in range(2)]

    def hread():
        o = []
        for n in range(2):
            for m in range(8):
                o.append(f"ds_read_b64_tr_b16 {v(D[n]+2*m,2)}, {v(TA[n][m>>2])} offset:{(m&3)*PCS}")
        return o

    def mf(n):
        return f"v_mfma_f32_32x32x16_bf16 {v(D[n%2],16)}, {v(A5,4)}, {v(B5[n],4)}, {v(D[n%2],16)}"

    A(lists())
    A(f"""
    ds_read_b32 {v(tab)}, {v(tab)} offset:{L_LA}
    s_cmp_eq_u32 {s(s_rem)}, 0
    s_cbranch_scc1 K_DONE
    s_waitcnt lgkmcnt(2)
""")
    A(idx())
    A(dma(0))
    A("s_waitcnt lgkmcnt(0)")
    A(eload())
    A(ohcmp())
    A(f"""
    v_and_b32 {v(tab)}, 63, {v(tab)}
    v_lshlrev_b32 {v(tab)}, 9, {v(tab)}
""")
    A(ohsel())
    A(f"v_mov_b32 {v(t0)}, {v(tab)}")
    A(laup())
    A(f"v_mov_b32_dpp {v(t0)}, {v(tab)} row_shr:1 row_mask:0xf bank_mask:0xf")
    A(qaddr(zacc))
    A(haup)
    A(f"""
    v_cmp_ne_u32 vcc, {v(t0)}, {v(tab)}
    s_or_b32 {s(s_chg)}, vcc_lo, vcc_hi
    s_lshr_b32 {s(s_t)}, {s(s_chg)}, 16
    s_or_b32 {s(s_chg)}, {s(s_chg)}, {s(s_t)}
    s_setprio 3
""")
    stamp(4)
    A(f"""
    s_cmp_eq_u32 {s(s_safe)}, 0
    s_cbranch_scc0 K_LOOP_S
""")

    def compute(u, safe, mid, tail):
        o = []
        for bb in range(2):
            b = 2 * u + bb
            cur = D[bb]
            if not safe and bb:
                o += [f"v_rcp_f32 {v(rr)}, {v(dd)}", f"v_rcp_f32 {v(rr+1)}, {v(dd+1)}"]
            o += [f"v_exp_f32 {v(EX+i)}, {v(cur+i)}" for i in range(16)]
            if bb == 0:
                o += mid
            if not safe:
                if bb:
                    o.append(f"v_max3_f32 {v(guard)}, {v(guard)}, {v(dd)}, {v(dd+1)}")
                    o.append(f"v_pk_fma_f32 {v(acc+2*(b-1),2)}, {v(nn,2)}, {v(rr,2)}, {v(acc+2*(b-1),2)}")
                o.append(f"v_pk_add_f32 {v(dd,2)}, {v(EX,2)}, 1.0 op_sel_hi:[1,0]")
                n_ = v(cur, 2)
                for k in range(1, 8):
                    e_, z_ = v(EX + 2 * k, 2), v(cur + 2 * k, 2)
                    o.append(f"v_pk_fma_f32 {v(tt,2)}, {n_}, {e_}, {n_}")
                    o.append(f"v_pk_fma_f32 {v(nn,2)}, {z_}, {v(dd,2)}, {v(tt,2)}")
                    o.append(f"v_pk_fma_f32 {v(dd,2)}, {v(dd,2)}, {e_}, {v(dd,2)}")
                    n_ = v(nn, 2)
            else:
                for k in range(8):
                    o.append(f"v_pk_add_f32 {v(EX+2*k,2)}, {v(EX+2*k,2)}, 1.0 op_sel_hi:[1,0]")
                for i in range(16):
                    o.append(f"v_rcp_f32 {v(EX+i)}, {v(EX+i)}")
                for k in range(8):
                    o.append(f"v_pk_fma_f32 {v(acc+2*b,2)}, {v(cur+2*k,2)}, {v(EX+2*k,2)}, {v(acc+2*b,2)}")
        if not safe:
            o += [f"v_rcp_f32 {v(rr)}, {v(dd)}", f"v_rcp_f32 {v(rr+1)}, {v(dd+1)}",
                  f"v_max3_f32 {v(guard)}, {v(guard)}, {v(dd)}, {v(dd+1)}",
                  f"v_pk_fma_f32 {v(acc+4*u+2,2)}, {v(nn,2)}, {v(rr,2)}, {v(acc+4*u+2,2)}"]
        return o + tail

    def loop(safe):
        sf = "S" if safe else "F"
        rot = f"v_mov_b32_dpp {v(tab)}, {v(tab)} row_shl:1 row_mask:0xf bank_mask:0xf bound_ctrl:0"
        st = ["s_waitcnt vmcnt(1)"] + hread()
        st += [f"s_cmp_gt_u32 {s(s_rem)}, 3", f"s_cbranch_scc0 K_PRIO_{sf}", f"K_PB_{sf}:"]
        st += ["s_waitcnt vmcnt(0) lgkmcnt(8)", mf(0), "s_waitcnt lgkmcnt(0)", mf(1)] + dma(1) + lists()
        st += [f"s_lshr_b32 {s(s_chg)}, {s(s_chg)}, 1", f"s_sub_u32 {s(s_rem)}, {s(s_rem)}, 1", "s_nop 1"]
        st += compute(0, safe, [rot], ["s_waitcnt lgkmcnt(0)"] + idx() + [ohcmp()])
        st += ["s_waitcnt vmcnt(0)"] + hread()
        st += ["s_waitcnt lgkmcnt(8)", mf(2), "s_waitcnt lgkmcnt(0)", mf(3)] + dma(0) + [eload()]
        st += ohsel() + laup() + ["s_nop 0"]
        st += compute(1, safe, [], [])
        if "E" in ABL: st = [x for x in st if not x.startswith("buffer_load_dwordx2")]
        if "X" in ABL: st = [x if not x.endswith(" lds") else "s_nop 0" for x in st]
        if "A" in ABL: st = [x for x in st if not x.startswith("ds_read_b64_tr")]
        A(f".p2align 6\nK_LOOP_{sf}:")
        A(st)
        c, a = flush()
        A(f"""
        s_cmp_eq_u32 {s(s_rem)}, 0
        s_cbranch_scc1 K_LAST_{sf}
        s_bitcmp1_b32 {s(s_chg)}, 0
        {"s_cbranch_scc0" if "C" not in ABL else "s_branch"} K_LOOP_{sf}
""")
        A(qaddr(c) + a + zacc + haup)
        A(f"s_branch K_LOOP_{sf}")
        A(f"""
K_PRIO_{sf}:
        s_setprio 2
        s_cmp_eq_u32 {s(s_rem)}, 3
        s_cbranch_scc1 K_PB_{sf}
        s_setprio 1
        s_cmp_eq_u32 {s(s_rem)}, 2
        s_cbranch_scc1 K_PB_{sf}
        s_setprio 0
        s_branch K_PB_{sf}
K_LAST_{sf}:
""")
        A(c + a)
        if safe:
            A("s_branch K_DONE")
    loop(False)

    W2 = B5[0]
    A(f"""
K_DONE:
    s_setprio 0
    s_cmp_eq_u32 {s(s_slow)}, 0
    s_cbranch_scc0 K_NEXTCHUNK
K_FIN:
""")
    stamp(5)
    A(f"""
    ; W2 fragments (ob = w&3) and b2
    s_and_b32 {s(s_u)}, {s(s_wave)}, 3
    s_lshl_b32 {s(s_t)}, {s(s_u)}, 12
    s_add_u32 {s(s_t)}, {s(s_t)}, {WS_W2}
    s_lshl_b32 {s(s_u)}, {s(s_u)}, 5
    v_lshrrev_b32 {v(t1)}, 4, {v(lane)}
    v_lshl_add_u32 {v(la_w)}, {v(t1)}, 3, {s(s_u)}
""")
    for ks in range(4):
        A(f"buffer_load_dwordx4 {v(D[1]+4*ks,4)}, {v(l16)}, {s(SW,4)}, {s(s_t)} offen offset:{ks*1024}")
    A(f"""
    global_load_dwordx2 {v(b2r,2)}, {v(la_w)}, s[16:17]
    v_lshrrev_b32 {v(t0)}, 4, v0
    v_lshlrev_b32 {v(t2)}, 6, v0
    v_mul_u32_u24 {v(t3)}, {HB_STRIDE}, {v(t0)}
    v_and_b32 {v(t0)}, 0xf0, {v(l16)}
    v_add3_u32 {v(t3)}, {v(t3)}, {v(t0)}, {s(sA)}
    v_and_b32 {v(t0)}, 15, {v(lane)}
    s_and_b32 {s(s_t)}, {s(s_wave)}, 12
    s_lshl_b32 {s(s_t)}, {s(s_t)}, 2
    v_add_u32 {v(t0)}, {s(s_t)}, {v(t0)}
    v_mul_u32_u24 {v(la_e)}, {HB_STRIDE}, {v(t0)}
    v_lshl_add_u32 {v(la_e)}, {v(t1)}, 4, {v(la_e)}
    v_add_u32 {v(la_e)}, {L_HBHI}, {v(la_e)}
    v_lshlrev_b32 {v(le)}, 2, {v(t0)}
    ds_bpermute_b32 {v(le)}, {v(le)}, {v(deg)}
    v_lshl_add_u32 {v(la_w)}, {v(t0)}, 15, {v(la_w)}
    s_mov_b64 {s(sA,2)}, 0
    s_waitcnt lgkmcnt(0)
    s_barrier
""".replace(f"v_lshrrev_b32 {v(t0)}, 4, v0", f"s_mov_b32 {s(sA)}, {L_HBHI}\nv_lshrrev_b32 {v(t0)}, 4, v0"))
    stamp(6)
    A(f"s_cmp_ge_u32 {s(s_wave)}, 10\ns_cbranch_scc1 K_S1D")
    H = D[0]
    for i in range(4):
        A(f"ds_read_b128 {v(H+4*i,4)}, {v(t2)} offset:{16*i}")
    for i in range(8):
        if i % 2 == 0:
            A(f"s_waitcnt lgkmcnt({3 - i//2})")
        A(f"v_cvt_f32_f64 {v(EX+i)}, {v(H+2*i,2)}")
    for i in range(8):
        A(f"v_and_b32 {v(EX+8+i)}, 0xffff0000, {v(EX+i)}")
    for i in range(4):
        A(f"v_cvt_pk_bf16_f32 {v(H+i)}, {v(EX+8+2*i)}, {v(EX+9+2*i)}")
    A(f"ds_write_b128 {v(t3)}, {v(H,4)}")
    for i in range(8):
        A(f"v_sub_f32 {v(EX+8+i)}, {v(EX+i)}, {v(EX+8+i)}")
    for i in range(4):
        A(f"v_cvt_pk_bf16_f32 {v(H+4+i)}, {v(EX+8+2*i)}, {v(EX+9+2*i)}")
    A(f"ds_write_b128 {v(t3)}, {v(H+4,4)} offset:{HB_LO}")
    for i in range(0, 8, 2):
        A(f"v_cmp_u_f32 vcc, {v(EX+8+i)}, {v(EX+9+i)}")
        A(f"s_or_b64 {s(sA,2)}, {s(sA,2)}, vcc")
    A(f"""
K_S1D:
    v_cmp_lt_f32 vcc, {f32(2.0**100)}, {v(guard)}
    s_or_b64 vcc, vcc, {s(sA,2)}
    v_mov_b32 {v(t2)}, {L_FLAG + 4}
    s_cbranch_vccz K_NOFL
    ds_write_b32 {v(t2)}, {v(t2)}
K_NOFL:
    s_waitcnt lgkmcnt(0)
    s_barrier
    ds_read_b32 {v(t2)}, {v(t2)}
""")
    HF = [D[0], EX]
    for ks in range(4):
        A(f"ds_read_b128 {v(HF[0]+4*ks,4)}, {v(la_e)} offset:{ks*64}")
        A(f"ds_read_b128 {v(HF[1]+4*ks,4)}, {v(la_e)} offset:{ks*64 + HB_LO}")
    A(f"""
    v_cvt_f32_u32 {v(le)}, {v(le)}
    v_mul_f32 {v(le)}, {f32(0.25)}, {v(le)}
    s_lshl_b32 {s(s_t)}, {s(s_b)}, 7
    s_mov_b32 {s(s_u)}, {f32(-LN2)}
    s_waitcnt vmcnt(0) lgkmcnt(8)
    v_readfirstlane_b32 {s(sA)}, {v(t2)}
    v_lshlrev_b32 {v(acc)}, 16, {v(b2r)}
    v_and_b32 {v(acc+1)}, 0xffff0000, {v(b2r)}
    v_lshlrev_b32 {v(acc+2)}, 16, {v(b2r+1)}
    v_and_b32 {v(acc+3)}, 0xffff0000, {v(b2r+1)}
    s_cmp_lg_u32 {s(s_safe)}, 0
    s_cbranch_scc1 K_GEMM
    s_cmp_eq_u32 {s(sA)}, 0
    {"s_cbranch_scc0 K_RESTART" if ABL == [""] else ""}
K_GEMM:
    s_cmp_ge_u32 {s(s_wave)}, 12
    s_cbranch_scc1 K_END
""")
    O = [nn, tt]
    for ks in range(4):
        for hl in range(2):
            A(f"s_waitcnt lgkmcnt({7 - 2*ks - hl})")
            c = "0" if ks == 0 else v(O[hl], 4)
            A(f"v_mfma_f32_16x16x32_bf16 {v(O[hl],4)}, {v(D[1]+4*ks,4)}, {v(HF[hl]+4*ks,4)}, {c}")
    for i in range(4):
        A(f"v_mul_f32 {v(acc+i)}, {v(le)}, {v(acc+i)}")
    A("s_nop 3")
    for i in range(4):
        A(f"v_add_f32 {v(nn+i)}, {v(nn+i)}, {v(tt+i)}")
    for i in range(4):
        A(f"v_fma_f32 {v(nn+i)}, {v(nn+i)}, {s(s_u)}, {v(acc+i)}")
    A(f"""
    v_cvt_pk_bf16_f32 {v(acc)}, {v(nn)}, {v(nn+1)}
    v_cvt_pk_bf16_f32 {v(acc+1)}, {v(nn+2)}, {v(nn+3)}
    buffer_store_dwordx2 {v(acc,2)}, {v(la_w)}, {s(SO,4)}, {s(s_t)} offen
""")
    if DL[0] == 9:
        stamp(9)
    if STAMP:
        A("s_waitcnt vmcnt(0)")
        stamp(8)
        A(f"""
    v_cmp_eq_u32 vcc, 0, {v(lane)}
    s_and_saveexec_b64 {s(sA,2)}, vcc
    s_lshl_b32 {s(s_t)}, s2, 4
    s_add_u32 {s(s_t)}, {s(s_t)}, {s(s_wave)}
    s_lshl_b32 {s(s_t)}, {s(s_t)}, 6
    s_add_u32 {s(s_t)}, {s(s_t)}, {WS_STAMP}
    v_mov_b32 {v(t0)}, {s(s_t)}
""")
        for n_, i in enumerate([0, 7, 1, 2, 3, 4, 5, 6, 8]):
            A(f"v_mov_b32 {v(D[0]+n_)}, {s(STR[i]) if i else s(s_x)}")
        for i in range(3):
            A(f"global_store_dwordx4 {v(t0)}, {v(D[0]+4*i,4)}, s[24:25] offset:{16*i}")
    A(f"""
K_END:
    s_endpgm
""")

    A(f"""
K_HI1:
    v_subrev_u32 {v(t0)}, 64, {v(rem)}
""")
    for i in range(4):
        A(f"v_cmp_lt_i32 {s(MK+8+2*i,2)}, {4*i}, {v(t0)}")
    A(f"""
    v_cmp_lt_i32 vcc, 64, {v(t0)}
    s_cbranch_vccz K_HI1N
    v_mov_b32 {v(t0)}, {L_FLAG}
    ds_write_b32 {v(t0)}, {v(t3)}
K_HI1N:
""")
    p1words(HI)
    for x in HI:
        A(f"v_lshrrev_b32 {v(EI+x)}, 20, {v(CW+x)}")
        A(f"v_add_u32 {v(EI+x)}, {v(EI+x)}, {v(EB)}")
    A("s_branch K_HB1\nK_HI2:")
    for x in HI:
        A(f"ds_bpermute_b32 {v(CA+x)}, {v(CA+x)}, {v(t0)}")
    A("s_waitcnt lgkmcnt(0)")
    for x in HI:
        A(f"v_add_u32 {v(CA+x)}, {v(CA+x)}, {v(RK+x)}")
    for x in HI:
        A(f"s_mov_b64 exec, {s(MK+2*x,2)}")
        A(f"ds_write2st64_b32 {v(CA+x)}, {v(CW+x)}, {v(EI+x)} offset0:0 offset1:{NE*4//256}")
    A("s_mov_b64 exec, -1\ns_branch K_HB2\nK_HOT_END:")
    A(f"""
K_RESTART:
    s_mov_b32 {s(s_safe)}, 1
    s_mov_b32 {s(s_slow)}, 0
    s_waitcnt lgkmcnt(0)
    s_barrier
""")
    pre, ld = tab_load()
    A(pre + ld)
    zero_hsum()
    A(rec_pre())
    A("s_waitcnt vmcnt(0)")
    rec_loads("B")
    A("K_ROUND:")
    prefill()
    A(f"""
    s_waitcnt lgkmcnt(0)
    s_barrier
    s_branch K_PASS1
K_GOSLOW:
    s_mov_b32 {s(s_slow)}, 1
    s_mov_b32 {s(s_chunk)}, -1
K_NEXTCHUNK:
    s_add_u32 {s(s_chunk)}, {s(s_chunk)}, 1
    s_cmp_lt_u32 {s(s_chunk)}, {NB}
    s_cbranch_scc0 K_FIN
    s_waitcnt vmcnt(0) lgkmcnt(0)
    s_barrier
    s_mul_i32 {s(s_t)}, {s(s_chunk)}, {CH * 4}
    v_lshlrev_b32 {v(t0)}, 2, v0
""")
    for k in range(3):
        A(f"buffer_load_dword {v(RK+k)}, {v(t0)}, {s(SD_,4)}, {s(s_t)} offen")
        A(f"buffer_load_dword {v(RK+4+k)}, {v(t0)}, {s(SS,4)}, {s(s_t)} offen")
        A(f"s_add_u32 {s(s_t)}, {s(s_t)}, 4096")
    A(f"""
    s_mul_i32 {s(s_t)}, {s(s_chunk)}, {CH}
    s_movk_i32 {s(s_u)}, {CH}
    v_mov_b32 {v(EB)}, {s(s_t)}
    v_mov_b32 {v(CW+3)}, 0
    s_mov_b64 {s(MK+6,2)}, 0
    s_mov_b32 {s(s_hi)}, 0
    s_waitcnt vmcnt(0)
""")
    for k in range(3):
        A(f"""
        v_add_u32 {v(t1)}, {1024*k}, v0
        v_lshrrev_b32 {v(t2)}, 8, {v(RK+k)}
        v_lshl_or_b32 {v(t2)}, {v(RK+4+k)}, 6, {v(t2)}
        v_lshl_or_b32 {v(CW+k)}, {v(t1)}, 20, {v(t2)}
        v_and_b32 {v(RK+k)}, 255, {v(RK+k)}
        v_cmp_eq_u32 vcc, {s(s_b)}, {v(RK+k)}
        v_cmp_gt_u32 {s(sA,2)}, {s(s_u)}, {v(t1)}
        s_and_b64 {s(MK+2*k,2)}, vcc, {s(sA,2)}
""")
    A("s_branch K_ROUND")
    loop(True)
    return nvgpr, 96


def kd(name, vg, sg):
    acc = (vg + 3) // 4 * 4
    return f""".p2align 6
.amdhsa_kernel {name}
  .amdhsa_next_free_vgpr {vg}
  .amdhsa_next_free_sgpr {sg}
  .amdhsa_accum_offset {acc}
  .amdhsa_group_segment_fixed_size 0
  .amdhsa_kernarg_size 88
  .amdhsa_user_sgpr_count 2
  .amdhsa_user_sgpr_kernarg_segment_ptr 1
  .amdhsa_system_sgpr_workgroup_id_x 1
  .amdhsa_float_denorm_mode_32 3
.end_amdhsa_kernel
"""


def main():
    ref = open(f"cdna_kernels/{NAME}.s.ref").read().split("\n")
    head = [l for l in ref if l.startswith(";") and "@launch" not in l and "Override" not in l and "grid=ceil" not in l]
    A = Asm()
    v1, s1 = gen_k1(A)
    v2, s2 = gen_k2(A)
    out = "\n".join(head) + "\n"
    out += f"; @launch kernel=k1_kernel grid=({NB + NPW},1,1) block=(640,1,1) lds={K1_LDS}\n"
    out += f"; @launch kernel=k2_kernel grid=({NB},1,1) block=(1024,1,1) lds={L_END}\n"
    out += '.amdgcn_target "amdgcn-amd-amdhsa--gfx950"\n.text\n'
    out += A.text()
    out += '.section .rodata,"a"\n' + kd("k1_kernel", v1, s1) + kd("k2_kernel", v2, s2)
    path = sys.argv[1] if len(sys.argv) > 1 else f"cdna_kernels/{NAME}.s"
    open(path, "w").write(out)
    print("vgprs", v1, v2, "lds", L_END, "->", path)


if __name__ == "__main__":
    main()
```

```python
import sys, struct, os

NAME = "gather_scatter__edge_featured_mpnn_mpnn__graph"
N, E = 10000, 640000
NB, CH = 256, 2500
LOG2E = 1.4426950408889634
LN2 = 0.6931471805599453
STAMP = int(os.environ.get("STAMP", "0"))
TM = "s_memtime" if STAMP == 2 else "s_memrealtime"
DL = [int(x) for x in os.environ.get("DL", "-1:0").split(":")]
ABL = os.environ.get("ABL", "").split(",")
OPT = os.environ.get("OPT", "").split(",")
WS_STAMP = 24 << 20


def f32(x):
    return struct.unpack("<I", struct.pack("<f", x))[0]


RECB = 10240
WS_TAB = NB * RECB + 4096
WS_P = WS_TAB + NB * 1024
WS_W1B = WS_P + N * 256
WS_W2 = WS_W1B + 16384
WS_CB = WS_W2 + 16384
WS_WC = WS_CB + 4096
WS_B1 = WS_WC + 2048
WS_END = WS_B1 + 1024

NWV = 16
L_QT = 40 * 1024
L_CNT = L_QT + 40 * 512
L_FLAG = L_CNT + 256
L_LA = L_CNT + 512
NE = 4096
L_LB = L_LA + NE * 4
L_PB = L_LB + NE * 4
PCS = 1040
PBW = 4 * PCS
L_END = L_PB + NWV * PBW + 16
CAPB = (NE - 128) * 4
PADW = (16383 << 6)
PADE = 0x7FFFFFF
HB_STRIDE = 272
L_HBHI = L_LA
HB_LO = 16384


class Asm:
    def __init__(self):
        self.lines = []

    def __call__(self, s):
        if isinstance(s, list):
            s = "\n".join(s)
        for ln in s.split("\n"):
            ln = ln.strip()
            if ln:
                self.lines.append(("" if ln.endswith(":") or ln.startswith(".") else "    ") + ln)

    def text(self):
        return "\n".join(self.lines) + "\n"


class Regs:
    def __init__(self, first):
        self.n = first

    def a(self, cnt=1, align=1):
        self.n = (self.n + align - 1) // align * align
        r = self.n
        self.n += cnt
        return r


def v(r, n=1):
    return f"v{r}" if n == 1 else f"v[{r}:{r + n - 1}]"


def s(r, n=1):
    return f"s{r}" if n == 1 else f"s[{r}:{r + n - 1}]"


DPP_SCAN = ["row_shr:1 row_mask:0xf bank_mask:0xf bound_ctrl:0", "row_shr:2 row_mask:0xf bank_mask:0xf bound_ctrl:0",
            "row_shr:4 row_mask:0xf bank_mask:0xf bound_ctrl:0", "row_shr:8 row_mask:0xf bank_mask:0xf bound_ctrl:0",
            "row_bcast:15 row_mask:0xa bank_mask:0xf", "row_bcast:31 row_mask:0xc bank_mask:0xf"]
K1_CNT = 10240
K1_ST = K1_CNT + 2560
K1_LDS = 24576 + 64 * 272
ST1 = os.environ.get('ST1', '')
ST2 = os.environ.get('ST2', '')
NPW = 250


def lane_table():
    T = []
    for l in range(64):
        i, h = l & 31, l >> 5
        idx = 2 * (i >> 3) + ((i >> 1) & 1)
        grp = 2 * ((i >> 2) & 1) + (i & 1)
        par = (l >> 3) & 1
        ta = h * 512 + par * 320 + ((l >> 4) & 1) * 32 + (l & 3) * 8
        real = (l >> 2) & 1
        xa = L_PB + 16 + ((l >> 3) & 1) * PCS + (l & 7) * 128
        f = ((l >> 1) & 7) ^ (l >> 4)
        T.append([xa + f * 16, xa + (f ^ 4) * 16, (l & 15) * 4, L_QT + (l >> 4) * 2048 + (l & 15) * 4,
                  4 * i, L_LB + 4 * idx, grp, L_LA + (l & 8) * 2,
                  0x3f803f80 if grp == 2 * h else 0, 0x3f803f80 if grp == 2 * h + 1 else 0,
                  ((l & 7) ^ (4 * ((l >> 4) & 1))) * 8, (l & 15) * 32 + L_LA,
                  ta if real else -16, ta + 128 if real else 1024, ta ^ 64 if real else -16, (ta ^ 64) + 128 if real else 1024])
    return T


def gen_k1(A):
    A(f"""
.globl k1_kernel
.p2align 8
.type k1_kernel,@function
k1_kernel:
    s_cmp_ge_u32 s2, {NB}
    s_cbranch_scc1 K1_NODE
    s_load_dwordx4 s[4:7], s[0:1], 16
    s_load_dwordx2 s[8:9], s[0:1], 80
    {"s_memrealtime s[28:29]" if STAMP else ""}
    v_lshlrev_b32 v1, 4, v0
    s_mul_i32 s3, s2, {CH * 4}
    v_min_u32 v2, {CH * 4 - 16}, v1
    v_add_u32 v2, s3, v2
    v_lshlrev_b32 v3, 2, v0
    v_mov_b32 v4, 0
    ds_write_b32 v3, v4 offset:{K1_CNT}
    s_waitcnt lgkmcnt(0)
    global_load_dwordx4 v[8:11], v2, s[6:7]
    global_load_dwordx4 v[12:15], v2, s[4:5]
    s_barrier
    v_lshlrev_b32 v24, 22, v0
    v_add_u32 v25, {1 << 20}, v24
    v_add_u32 v26, {2 << 20}, v24
    v_add_u32 v27, {3 << 20}, v24
    v_mov_b32 v3, 4
    v_and_b32 v2, 0x3f0, v1
    s_mul_i32 s3, s2, {RECB}
    s_lshl_b32 s10, s2, 10
    s_add_u32 s10, s10, {WS_TAB}
    v_cmp_gt_u32 vcc, {CH // 4}, v0
    s_and_saveexec_b64 s[26:27], vcc
    s_mov_b64 s[24:25], exec
    s_waitcnt vmcnt(1)
    {"s_memrealtime s[30:31]" if STAMP and "k1b" not in OPT and "k1c" not in OPT else ""}
    {"s_waitcnt lgkmcnt(0)" if STAMP else ""}
""")
    for i in range(4):
        A(f"v_lshlrev_b32_sdwa v{16+i}, 2, v{8+i} dst_sel:DWORD dst_unused:UNUSED_PAD src0_sel:DWORD src1_sel:BYTE_0")
        A(f"ds_add_rtn_u32 v{20+i}, v{16+i}, v3 offset:{K1_CNT}")
    for i in range(4):
        A(f"v_lshrrev_b32 v{8+i}, 8, v{8+i}")
        A(f"v_or_b32 v{24+i}, v{24+i}, v{8+i}")
    A(f"""
    s_mov_b64 exec, s[26:27]
    s_waitcnt lgkmcnt(0)
    s_barrier
    {"s_memrealtime s[30:31]" if STAMP and "k1b" in OPT else ""}
    ds_read_b128 v[4:7], v2 offset:{K1_CNT}
    s_waitcnt vmcnt(0)
    {"s_memrealtime s[30:31]" if STAMP and "k1c" in OPT else ""}
""")
    for i in range(4):
        A(f"v_lshl_or_b32 v{24+i}, v{12+i}, 6, v{24+i}")
    A(f"""
    s_waitcnt lgkmcnt(0)
    v_add_u32 v9, v4, v5
    v_add_u32 v10, v9, v6
    v_add_u32 v11, v10, v7
    v_mov_b32 v28, v11
    v_add_u32 v29, s3, v1
    v_add_u32 v30, s10, v2
""")
    for d in DPP_SCAN:
        A(f"v_add_u32_dpp v28, v28, v28 {d}\ns_nop 1")
    A(f"""
    v_sub_u32 v12, v28, v11
    v_add_u32 v13, v12, v4
    v_add_u32 v14, v12, v9
    v_add_u32 v15, v12, v10
    ds_write_b128 v2, v[12:15] offset:{K1_ST}
    s_mov_b64 exec, s[24:25]
""")
    for i in range(4):
        A(f"ds_read_b32 v{16+i}, v{16+i} offset:{K1_ST}")
    for i in range(4):
        A(f"s_waitcnt lgkmcnt(3)")
        A(f"v_add_u32 v{16+i}, v{16+i}, v{20+i}")
        A(f"ds_write_b32 v{16+i}, v{24+i}")
    A(f"""
    s_mov_b64 exec, s[26:27]
    v_cmp_gt_u32 vcc, 64, v0
    s_cbranch_vccz K1_NOTAB
""")
    for i in range(4):
        A(f"v_lshl_or_b32 v{12+i}, v{4+i}, 16, v{12+i}")
    A(f"""
    global_store_dwordx4 v30, v[12:15], s[8:9] {ST1}
K1_NOTAB:
    s_waitcnt lgkmcnt(0)
    s_barrier
    {"s_memrealtime s[32:33]" if STAMP else ""}
    {"s_waitcnt lgkmcnt(0)" if STAMP else ""}
    ds_read_b128 v[4:7], v1
    s_waitcnt lgkmcnt(0)
    global_store_dwordx4 v29, v[4:7], s[8:9] {ST1}
""")
    if STAMP:
        A(f"""
    s_waitcnt vmcnt(0)
    s_memrealtime s[34:35]
    v_cmp_eq_u32 vcc, 0, v0
    s_and_saveexec_b64 s[26:27], vcc
    s_cbranch_execz K1_END
    s_lshl_b32 s3, s2, 4
    s_add_u32 s3, s3, {WS_STAMP + (1 << 18)}
    v_mov_b32 v2, s3
    s_waitcnt lgkmcnt(0)
    v_mov_b32 v4, s28
    v_mov_b32 v5, s30
    v_mov_b32 v6, s32
    v_mov_b32 v7, s34
    global_store_dwordx4 v2, v[4:7], s[8:9]
""")
    A(f"""
K1_END:
    s_endpgm
""")
    XO = 16384
    A(f"""
K1_NODE:
    {"s_endpgm" if "nonode" in OPT else ""}
    s_sub_u32 s2, s2, {NB}
    s_cmp_ge_u32 s2, {NPW}
    s_cbranch_scc1 K1_END
    s_load_dwordx2 s[4:5], s[0:1], 0
    s_load_dwordx8 s[8:15], s[0:1], 32
    s_load_dwordx2 s[6:7], s[0:1], 80
    {"s_memrealtime s[36:37]" if STAMP else ""}
    v_lshrrev_b32 v1, 6, v0
    v_and_b32 v2, 63, v0
    v_readfirstlane_b32 s3, v1
    v_lshlrev_b32 v3, 4, v0
    v_and_b32 v5, 0x70, v0
    v_xor_b32 v5, v5, v3
    s_cmp_ge_u32 s3, 8
    s_cbranch_scc1 K1_PREP
    v_lshrrev_b32 v6, 2, v2
    v_and_b32 v7, 0x30, v3
    v_lshl_add_u32 v6, v6, 8, v7
    s_lshr_b32 s28, s3, 2
    s_and_b32 s29, s3, 3
    s_lshl_b32 s30, s28, 13
    s_lshl_b32 s31, s29, 6
    s_add_u32 s30, s30, s31
    v_add_u32 v6, s30, v6
    v_add_u32 v7, 3072, v6
    s_mul_i32 s32, s2, 5120
    s_lshl_b32 s33, s3, 10
    s_mov_b32 s18, {N * 128}
    s_mov_b32 s19, 0x20000
    s_add_u32 m0, s33, {XO}
    s_lshl_b32 s34, s29, 12
    s_lshl_b32 s35, s28, 11
    s_waitcnt lgkmcnt(0)
    s_mov_b32 s16, s4
    s_and_b32 s17, s5, 0xffff
    buffer_load_dwordx4 v5, s[16:19], s32 offen lds
    s_add_u32 m0, s34, s35
    v_and_b32 v10, 31, v2
    global_load_lds_dwordx4 v6, s[8:9]
    global_load_lds_dwordx4 v7, s[8:9] offset:1024
    ; fragment of W^T (rows = features, permuted): lane group G: k rows 8h+r, columns 16*(c&1) + 8*c16 + 4*(c>>1)
    v_lshrrev_b32 v13, 5, v2
    v_bfe_u32 v14, v2, 2, 2
    v_lshl_add_u32 v14, v13, 3, v14
    v_lshlrev_b32 v14, 6, v14
    v_and_b32 v15, 1, v2
    v_lshl_add_u32 v14, v15, 5, v14
    v_and_b32 v15, 16, v2
    v_add3_u32 v14, v14, v15, s34
    v_and_b32 v15, 2, v2
    v_lshl_add_u32 v14, v15, 2, v14
    ; x fragment addresses
    v_bfe_u32 v15, v2, 1, 3
    v_xor_b32 v15, v15, v13
    s_lshl_b32 s35, s28, 12
    v_lshl_add_u32 v3, v10, 7, s35
""")
    for q in range(4):
        A(f"v_xor_b32 v{6+q}, {2*q}, v15")
        A(f"v_lshl_add_u32 v{6+q}, v{6+q}, 4, v3")
    A(f"""
    s_mul_i32 s32, s2, 5120
    s_add_u32 s32, s32, {WS_P}
    s_add_u32 s20, s6, s32
    s_addc_u32 s21, s7, 0
    s_and_b32 s21, s21, 0xffff
    s_mov_b32 s22, {N * 128 + 5120}
    s_mov_b32 s23, 0x20000
    v_lshlrev_b32 v3, 1, v3
    v_lshl_add_u32 v3, v13, 5, v3
    v_lshrrev_b32 v11, 8, v3
    v_lshl_add_u32 v11, v11, 4, v3
    v_add_u32 v11, s31, v11
    v_lshlrev_b32 v4, 4, v0
    v_and_b32 v12, 0x1f0, v0
    v_add_u32 v12, v12, v4
    v_and_b32 v5, 0x70, v4
    v_lshrrev_b32 v4, 4, v0
    v_lshl_add_u32 v4, v4, 7, v5
    v_bfe_u32 v5, v0, 3, 1
    v_mov_b32 v15, {N * 128}
    v_mad_u32_u24 v4, v5, v15, v4
    s_mov_b32 s34, {f32(-LOG2E)}
    s_mov_b32 s35, {f32(-LOG2E)}
    s_waitcnt vmcnt(0)
    s_barrier
""")
    WF, XA, D0 = 16, 32, 48
    for q in range(4):
        A(f"ds_read_b128 {v(XA+4*q,4)}, v{6+q} offset:{XO}")
        for h2 in range(2):
            A(f"ds_read_b64_tr_b16 {v(WF+4*q+2*h2,2)}, v14 offset:{(16*q+4*h2)*64}")
    for q in range(4):
        A(f"s_waitcnt lgkmcnt({9 - 3*q})")
        A(f"v_mfma_f32_32x32x16_bf16 {v(D0,16)}, {v(WF+4*q,4)}, {v(XA+4*q,4)}, {'0' if q == 0 else v(D0,16)}")
    A("s_nop 11")
    for r in range(0, 16, 2):
        A(f"v_pk_mul_f32 {v(D0+r,2)}, {v(D0+r,2)}, s[34:35]")
    for r in range(8):
        A(f"v_cvt_pk_bf16_f32 v{WF+r}, v{D0+2*r}, v{D0+2*r+1}")
    A(f"""
""")
    if "plds" in OPT:
        PO = 24576
        A(f"""
    ds_write_b128 v11, {v(WF,4)} offset:{PO}
    ds_write_b128 v11, {v(WF+4,4)} offset:{PO + 16}
    s_waitcnt lgkmcnt(0)
    s_barrier
    ds_read_b128 {v(XA,4)}, v12 offset:{PO}
    ds_read_b128 {v(XA+4,4)}, v12 offset:{PO + 32*272}
    s_movk_i32 s31, 4096
    s_waitcnt lgkmcnt(1)
    buffer_store_dwordx4 {v(XA,4)}, v4, s[20:23], 0 offen {ST2}
    s_cmp_ge_u32 s3, 2
    s_cbranch_scc1 K1_NEND
    s_waitcnt lgkmcnt(0)
    buffer_store_dwordx4 {v(XA+4,4)}, v4, s[20:23], s31 offen {ST2}
K1_NEND:
""")
    else:
        A(f"""
    buffer_store_dwordx4 {v(WF,4)}, v3, s[20:23], s31 offen {ST2}
    buffer_store_dwordx4 {v(WF+4,4)}, v3, s[20:23], s31 offen offset:16 {ST2}
""")
    if STAMP:
        A(f"""
    s_waitcnt vmcnt(0)
    s_memrealtime s[38:39]
    v_cmp_eq_u32 vcc, 0, v0
    s_and_saveexec_b64 s[26:27], vcc
    s_cbranch_execz K1_END
    s_lshl_b32 s3, s2, 4
    s_add_u32 s3, s3, {WS_STAMP + (1 << 18) + 4096}
    v_mov_b32 v2, s3
    s_waitcnt lgkmcnt(0)
    v_mov_b32 v4, s36
    v_mov_b32 v5, s38
    global_store_dwordx2 v2, v[4:5], s[6:7]
""")
    A(f"""
    s_endpgm
K1_PREP:
    ; task = 2 wg + (wave - 8) : 0..15 W1b image, 16..31 W2 image, 32..35 Wc image, later ones warm the caches with k2's code
    s_lshl_b32 s28, s2, 1
    s_add_u32 s3, s3, s28
    s_sub_u32 s3, s3, 8
    s_cmp_ge_u32 s3, 36
    s_cbranch_scc1 K1_CODE
    s_waitcnt lgkmcnt(0)
    s_cmp_ge_u32 s3, 32
    s_cbranch_scc1 K1_WC
    v_lshrrev_b32 v4, 4, v2
    v_and_b32 v5, 15, v2
    s_cmp_ge_u32 s3, 16
    s_cbranch_scc1 K1_W2
    ; W1b: cb = t>>1, ks = t&1 : k = 64 + 32 ks + 8 (l/16) + e ; col = 16 cb + l%16
    s_and_b32 s24, s3, 1
    s_lshl_b32 s24, s24, 13
    s_lshr_b32 s25, s3, 1
    s_lshl_b32 s25, s25, 5
    s_add_u32 s24, s24, s25
    s_add_u32 s24, s24, 16384
    v_lshlrev_b32 v4, 11, v4
    v_lshl_add_u32 v4, v5, 1, v4
    v_add_u32 v4, s24, v4
""")
    for e in range(8):
        A(f"global_load_ushort v{8+e}, v4, s[8:9] offset:{e*256}")
    A(f"""
    s_branch K1_PACK
K1_W2:
    ; ob = (t>>2)&3, ks = t&3 : k = 32 ks + 8 (l/16) + e ; out = 16 ob + l%16
    s_and_b32 s24, s3, 3
    s_lshl_b32 s24, s24, 12
    s_bfe_u32 s25, s3, 0x20002
    s_lshl_b32 s25, s25, 5
    s_add_u32 s24, s24, s25
    v_lshlrev_b32 v4, 10, v4
    v_lshl_add_u32 v4, v5, 1, v4
    v_add_u32 v4, s24, v4
""")
    for e in range(8):
        A(f"global_load_ushort v{8+e}, v4, s[12:13] offset:{e*128}")
    A(f"""
K1_PACK:
    s_lshl_b32 s24, s3, 10
    s_add_u32 s24, s24, {WS_W1B}
    v_lshl_add_u32 v4, v2, 4, s24
    s_waitcnt vmcnt(0)
""")
    for e in range(4):
        A(f"v_lshl_or_b32 v{16+e}, v{9+2*e}, 16, v{8+2*e}")
    A(f"""
    global_store_dwordx4 v4, v[16:19], s[6:7]
    s_endpgm
K1_WC:
    s_sub_u32 s25, s3, 32
    s_lshl_b32 s24, s25, 6
    s_add_u32 s24, s24, {128 * 256}
    v_and_b32 v5, 31, v2
    v_lshl_add_u32 v4, v5, 1, s24
""")
    for e in range(4):
        A(f"global_load_ushort v{8+e}, v4, s[8:9] offset:{e*256}")
    A(f"""
    s_mov_b32 s26, {f32(-LOG2E)}
    s_lshl_b32 s24, s25, 9
    s_add_u32 s24, s24, {WS_WC}
    v_lshl_add_u32 v4, v2, 3, s24
    v_cmp_le_u32 vcc, 32, v2
    s_waitcnt vmcnt(0)
""")
    for e in range(4):
        A(f"v_lshlrev_b32 v{8+e}, 16, v{8+e}")
    for e in range(4):
        A(f"v_mul_f32 v{8+e}, s26, v{8+e}")
    for e in range(4):
        A(f"v_and_b32 v{12+e}, 0xffff0000, v{8+e}")
    for e in range(4):
        A(f"v_sub_f32 v{8+e}, v{8+e}, v{12+e}")
    for e in range(4):
        A(f"v_cndmask_b32 v{8+e}, v{12+e}, v{8+e}, vcc")
    A(f"""
    v_cvt_pk_bf16_f32 v16, v8, v9
    v_cvt_pk_bf16_f32 v17, v10, v11
    global_store_dwordx2 v4, v[16:17], s[6:7]
    s_endpgm
K1_CODE:
    s_cmp_ge_u32 s3, 41
    s_cbranch_scc1 {"K1_PF" if "code" in OPT else "K1_END"}
    s_waitcnt lgkmcnt(0)
    s_cmp_eq_u32 s3, 40
    s_cbranch_scc1 K1_B1
    s_getpc_b64 s[24:25]
K1_PC:
    s_add_u32 s24, s24, K_TABLE-K1_PC
    s_addc_u32 s25, s25, 0
    s_sub_u32 s26, s3, 36
    s_lshl_b32 s26, s26, 10
    v_lshl_add_u32 v4, v2, 4, s26
    global_load_dwordx4 v[8:11], v4, s[24:25]
    v_add_u32 v4, {WS_CB}, v4
    s_waitcnt vmcnt(0)
    global_store_dwordx4 v4, v[8:11], s[6:7]
    s_endpgm
K1_B1:
    v_lshlrev_b32 v4, 2, v2
    global_load_dword v8, v4, s[10:11]
    v_lshlrev_b32 v4, 3, v2
    v_add_u32 v4, {WS_B1}, v4
    s_waitcnt vmcnt(0)
    v_and_b32 v9, 0xffff0000, v8
    v_lshlrev_b32 v8, 16, v8
    v_mul_f32 v8, {f32(-LOG2E)}, v8
    v_mul_f32 v9, {f32(-LOG2E)}, v9
    global_store_dwordx2 v4, v[8:9], s[6:7]
    s_endpgm
K1_PF:
    s_cmp_ge_u32 s3, {42 + 32}
    s_cbranch_scc1 K1_END
    s_getpc_b64 s[24:25]
K1_PC2:
    s_add_u32 s24, s24, k2_kernel-K1_PC2
    s_addc_u32 s25, s25, 0
    s_and_b32 s26, s3, 1
    s_lshl_b32 s26, s26, 12
    v_lshl_add_u32 v4, v2, 6, s26
    v_min_u32 v4, K_HOT_END-k2_kernel, v4
    global_load_dword v5, v4, s[24:25]
    s_waitcnt vmcnt(0)
    s_endpgm
.p2align 4
.type K_TABLE,@object
K_TABLE:
""")
    T = lane_table()
    for piece in range(4):
        for l in range(64):
            A(".long " + ", ".join(str(x & 0xffffffff) for x in T[l][4*piece:4*piece+4]))
    A(".size K_TABLE, 4096")
    return 64, 40


def gen_k2(A):
    R = Regs(1)
    lane = R.a()
    t0, t1, t2, t3 = R.a(), R.a(), R.a(), R.a()
    guard, deg, l16, EB, rem = R.a(), R.a(), R.a(), R.a(), R.a()
    LC = R.a(16, 2)
    la_w, la_e, le, tab = LC, LC + 1, LC + 2, LC + 3
    j4, ce0, grp, cw0 = LC + 4, LC + 5, LC + 6, LC + 7
    OH, dq, tb0 = LC + 8, LC + 10, LC + 11
    TA = [[LC + 12, LC + 13], [LC + 14, LC + 15]]
    lw = R.a(4, 2)
    qa, ha = R.a(2, 2), R.a(2, 2)
    b2r = R.a(2, 2)
    nn, dd, tt, rr = [R.a(2, 2) for _ in range(4)]
    acc = R.a(8, 2)
    A5 = R.a(4, 2)
    B5 = [R.a(4, 2) for _ in range(4)]
    D = [R.a(16, 2) for _ in range(2)]
    EX = R.a(16, 2)
    tl = R.a()
    jk = R.a(4, 2)
    nvgpr = R.n
    assert nvgpr <= 128, nvgpr
    CW, RK, CA, EI = D[0], D[0] + 8, D[1], D[1] + 8
    C64 = EX
    QB, QA, QA2, QD = EX, EX + 8, acc, nn
    assert rr == nn + 6

    SP0, SP1, SE, SW, SO, SS, SD_, SXR = 28, 32, 36, 40, 44, 48, 52, 72
    MK = 56
    s_b = 76
    s_wave, s_o3, s_o2, s_o1, s_msk, s_q, s_rem, s_x, s_slow, s_safe, s_chunk = range(78, 89)
    s_t, s_u = 89, 90
    sA, sB = 26, 27
    s_m0, s_chg, s_hi = 0, 3, 22
    s_oh = MK
    s_ne = SE + 2
    STR = [92, 4, 6, 96, 98, 12, 14, 100, 72, 20]

    def stamp(i):
        if DL[0] == i:
            A(f"""
K_DL:
            s_waitcnt lgkmcnt(0)
            s_memrealtime {s(STR[i],2)}
            s_waitcnt lgkmcnt(0)
            s_sub_u32 {s(STR[i])}, {s(STR[i])}, {s(s_x)}
            s_cmp_lt_u32 {s(STR[i])}, {DL[1]*100}
            s_cbranch_scc1 K_DL
""")
        if STAMP:
            A(f"s_waitcnt lgkmcnt(0)\n{TM} {s(STR[i],2)}\ns_waitcnt lgkmcnt(0)")

    def tab_load():
        return [f"v_lshrrev_b32 {v(EB)}, 2, v0", f"v_lshlrev_b32 {v(t0)}, 10, {v(EB)}",
                f"s_lshl_b32 {s(s_u)}, {s(s_b)}, 2", f"s_add_u32 {s(s_u)}, {s(s_u)}, {WS_TAB}"], \
               [f"buffer_load_dword {v(rem)}, {v(t0)}, {s(SW,4)}, {s(s_u)} offen"]

    def rec_pre():
        return [f"v_and_b32 {v(t1)}, 48, {v(l16)}", f"v_mul_u32_u24 {v(t0)}, {RECB}, {v(EB)}",
                f"v_add_u32 {v(t0)}, {v(t0)}, {v(t1)}", f"v_mul_u32_u24 {v(EB)}, {CH}, {v(EB)}"]

    def rec_loads(tag):
        A(f"""
        v_add_u32_sdwa {v(t0)}, {v(t0)}, {v(rem)} dst_sel:DWORD dst_unused:UNUSED_PAD src0_sel:DWORD src1_sel:WORD_0
        v_lshrrev_b32 {v(rem)}, 16, {v(rem)}
        {"v_lshrrev_b32 " + v(EB) + ", 2, " + v(t0) if "e2" in OPT else ""}
        {"v_min_u32 " + v(EB) + ", 639000, " + v(EB) if "e2" in OPT else ""}
        buffer_load_dwordx4 {v(CW,4)}, {v(t0)}, {s(SW,4)}, 0 offen
        v_cmp_lt_u32 vcc, 64, {v(rem)}
        v_sub_u32 {v(rem)}, {v(rem)}, {v(t1)}
        s_cmp_lg_u64 vcc, 0
        s_cselect_b32 {s(s_hi)}, 1, 0
        s_cbranch_scc0 K_NOHI{tag}
        s_mov_b64 exec, vcc
        buffer_load_dwordx4 {v(CW+4,4)}, {v(t0)}, {s(SW,4)}, 0 offen offset:64
        s_mov_b64 exec, -1
K_NOHI{tag}:
""")
        for i in range(4):
            A(f"v_cmp_lt_i32 {s(MK+2*i,2)}, {4*i}, {v(rem)}")

    def warm(opt, half, w0):
        if opt not in OPT:
            return []
        return [f"s_lshr_b32 {s(sA)}, s2, 3", f"s_mul_i32 {s(sA)}, {s(sA)}, 40000",
                f"s_mul_i32 {s(sB)}, {s(s_wave)}, 2560", f"s_add_u32 {s(sA)}, {s(sA)}, {s(sB)}",
                f"s_add_u32 {s(sA)}, {s(sA)}, {WS_P + (N*128 if half else 0)}", f"v_lshlrev_b32 {v(b2r+1)}, 6, {v(lane)}",
                "s_mov_b32 exec_hi, 0xff",
                f"buffer_load_dword {v(b2r)}, {v(b2r+1)}, {s(SW,4)}, {s(sA)} offen",
                "s_mov_b64 exec, -1"]

    def warmfull(opt):
        if opt not in OPT:
            return []
        o = [f"s_lshr_b32 {s(sA)}, s2, 3", f"s_mul_i32 {s(sA)}, {s(sA)}, 80000",
             f"s_mul_i32 {s(sB)}, {s(s_wave)}, 5120", f"s_add_u32 {s(sA)}, {s(sA)}, {s(sB)}",
             f"s_add_u32 {s(sA)}, {s(sA)}, {WS_P}", f"s_add_u32 {s(sB)}, {s(sA)}, 4096"]
        o += [f"buffer_load_dwordx4 {v(jk,4)}, {v(l16)}, {s(SW,4)}, {s(sA)} offen offset:{k*1024}" for k in range(4)]
        o += [f"buffer_load_dwordx4 {v(jk,4)}, {v(l16)}, {s(SW,4)}, {s(sB)} offen"]
        return o

    def prefill():
        A(f"""
        v_mov_b32 {v(D[1])}, {PADW}
        v_mov_b32 {v(D[1]+1)}, {PADW}
        v_mov_b64 {v(D[1]+2,2)}, {v(D[1],2)}
        v_mov_b32 {v(D[1]+4)}, {PADE}
        v_mov_b32 {v(D[1]+5)}, {PADE}
        v_mov_b64 {v(D[1]+6,2)}, {v(D[1]+4,2)}
        v_lshlrev_b32 {v(t2)}, 4, v0
        v_add_u32 {v(t2)}, {L_LA}, {v(t2)}
        v_mov_b32 {v(D[1]+8)}, 0
        v_lshlrev_b32 {v(t3)}, 2, {v(lane)}
        ds_write_b128 {v(t2)}, {v(D[1],4)}
        ds_write_b128 {v(t2)}, {v(D[1]+4,4)} offset:{NE*4}
        ds_write2st64_b32 {v(t3)}, {v(D[1]+8)}, {v(D[1]+8)} offset0:{L_CNT//256} offset1:{L_CNT//256 + 1}
""")

    def zero_hsum():
        A(f"""
        v_mov_b64 {v(D[1]+12,2)}, 0
        v_mov_b64 {v(D[1]+14,2)}, 0
        v_mov_b32 {v(guard)}, 0
        v_mov_b32 {v(deg)}, 0
        v_lshlrev_b32 {v(t2)}, 4, v0
        ds_write_b128 {v(t2)}, {v(D[1]+12,4)}
        ds_write_b128 {v(t2)}, {v(D[1]+12,4)} offset:16384
        v_lshlrev_b32 {v(t3)}, 3, v0
        ds_write_b64 {v(t3)}, {v(D[1]+12,2)} offset:32768
""")

    pre, ld = tab_load()
    CBL = L_PB + 16 + 5 * PCS
    A(f"""
.globl k2_kernel
.p2align 8
.type k2_kernel,@function
k2_kernel:
    s_cmp_ge_u32 s2, {NB}
    s_cbranch_scc1 K_END
    s_load_dwordx2 s[24:25], s[0:1], 80
    s_load_dwordx8 s[4:11], s[0:1], 0
    s_load_dwordx4 s[16:19], s[0:1], 56
    {TM + " " + s(STR[0],2) if STAMP or DL[0] >= 0 else ""}
    s_and_b32 {s(s_b)}, s2, 7
    s_lshl_b32 {s(s_b)}, {s(s_b)}, 5
    s_lshr_b32 {s(s_t)}, s2, 3
    s_or_b32 {s(s_b)}, {s(s_b)}, {s(s_t)}
    v_lshrrev_b32 {v(t1)}, 6, v0
    s_mov_b32 {s(SW+2)}, {WS_END}
    s_mov_b32 {s(SW+3)}, 0x20000
    v_readfirstlane_b32 {s(s_wave)}, {v(t1)}
""")
    A(pre)
    A(f"""
    v_and_b32 {v(lane)}, 63, v0
    v_lshlrev_b32 {v(l16)}, 4, {v(lane)}
    s_mul_i32 {s(s_t)}, {s(s_wave)}, {PCS}
    s_add_u32 m0, {s(s_t)}, {L_PB + 16}
    s_waitcnt lgkmcnt(0)
    s_mov_b32 {s(SW)}, s24
    s_and_b32 {s(SW+1)}, s25, 0xffff
""")
    A(ld)
    SPEC = int(os.environ.get("SPEC", "0"))
    if SPEC:
        A(f"""
        s_mul_i32 {s(s_t)}, {s(s_b)}, 625
        s_lshr_b32 {s(s_t)}, {s(s_t)}, 4
        s_and_b32 {s(s_t)}, {s(s_t)}, 0xfffc
        s_max_u32 {s(s_t)}, {s(s_t)}, {SPEC * 3 // 2}
        s_sub_u32 {s(s_t)}, {s(s_t)}, {SPEC * 3 // 2 - 20}
        v_mul_u32_u24 {v(t2)}, {RECB}, {v(EB)}
        v_and_b32 {v(t3)}, 3, v0
        v_mad_u32_u24 {v(t2)}, {v(t3)}, {s(s_u)}, {v(t2)}
        buffer_load_dword {v(b2r)}, {v(t2)}, {s(SW,4)}, {s(s_t)} offen
""".replace(f"v_mul_u32_u24 {v(t2)}", f"s_movk_i32 {s(s_u)}, {SPEC}\nv_mul_u32_u24 {v(t2)}", 1))
    A(f"""
    {"s_mov_b32 " + s(s_x) + ", " + s(STR[0]) if STAMP or DL[0] >= 0 else ""}
    s_cmp_ge_u32 {s(s_wave)}, 5
    s_cbranch_scc1 K_CBL
    s_mov_b32 {s(SXR)}, s4
    s_and_b32 {s(SXR+1)}, s5, 0xffff
    s_mov_b32 {s(SXR+2)}, {N * 128}
    s_mov_b32 {s(SXR+3)}, 0x20000
    v_lshrrev_b32 {v(t2)}, 3, v0
    v_xor_b32 {v(t3)}, v0, {v(l16)}
    v_and_b32 {v(t3)}, 0x70, {v(t3)}
    v_lshl_add_u32 {v(t3)}, {v(t2)}, 15, {v(t3)}
    s_lshl_b32 {s(s_t)}, {s(s_b)}, 7
    buffer_load_dwordx4 {v(t3)}, {s(SXR,4)}, {s(s_t)} offen lds
    s_branch K_CBD
K_CBL:
    s_lshl_b32 {s(s_t)}, {s(s_wave)}, 10
    s_add_u32 {s(s_t)}, {s(s_t)}, {WS_CB - 5 * 1024}
    buffer_load_dwordx4 {v(l16)}, {s(SW,4)}, {s(s_t)} offen lds
K_CBD:
    s_and_b32 {s(s_u)}, {s(s_wave)}, 7
    s_lshl_b32 {s(s_t)}, {s(s_u)}, 11
    s_add_u32 {s(s_t)}, {s(s_t)}, {WS_W1B}
    buffer_load_dwordx4 {v(QB,4)}, {v(l16)}, {s(SW,4)}, {s(s_t)} offen
    buffer_load_dwordx4 {v(QB+4,4)}, {v(l16)}, {s(SW,4)}, {s(s_t)} offen offset:1024
""")
    A(rec_pre())
    prefill()
    A(f"s_waitcnt vmcnt({3 + (SPEC > 0)})")
    stamp(7)
    rec_loads("A")
    zero_hsum()
    A(f"""
    s_cmp_lg_u32 {s(s_wave)}, 15
    s_cbranch_scc1 K_NOGAP
    v_mul_u32_u24 {v(t2)}, {PCS}, {v(lane)}
    v_add_u32 {v(t2)}, {L_PB}, {v(t2)}
    ds_write_b128 {v(t2)}, {v(D[1]+12,4)}
    ds_write_b128 {v(t2)}, {v(D[1]+12,4)} offset:{PCS}
K_NOGAP:
    v_add_u32 {v(t0)}, {CBL}, {v(l16)}
    v_lshrrev_b32 {v(t1)}, 1, {v(l16)}
    v_add_u32 {v(t1)}, {CBL + 4*PCS}, {v(t1)}
    s_lshr_b32 {s(s_t)}, {s(s_wave)}, 3
    s_mul_i32 {s(sA)}, {s(s_t)}, {2*PCS}
    s_lshl_b32 {s(s_t)}, {s(s_t)}, 13
    s_lshl_b32 {s(s_u)}, {s(s_u)}, 6
    s_add_u32 {s(s_t)}, {s(s_t)}, {s(s_u)}
    s_add_u32 {s(s_u)}, {s(s_u)}, {CBL + 6*PCS}
    s_waitcnt vmcnt(3) lgkmcnt(0)
    s_barrier
""")
    for k in range(4):
        A(f"ds_read_b128 {v(LC+4*k,4)}, {v(t0)} offset:{k*PCS}")
    for n in range(4):
        A(f"ds_read_b64 {v(B5[n],2)}, {v(t1)} offset:{(n//2)*PCS + (n%2)*512}")
    A(f"""
    s_add_u32 {s(SP0)}, s24, {WS_P - 3*PCS}
    s_addc_u32 {s(SP0+1)}, s25, {2 << 16}
    s_mov_b32 {s(SP0+2)}, {N * 64}
    s_mov_b32 {s(SP0+3)}, 0x20000
    s_add_u32 {s(SP1)}, s24, {WS_P - 3*PCS + N*128}
    s_addc_u32 {s(SP1+1)}, s25, {2 << 16}
    s_mov_b32 {s(SP1+2)}, {N * 64}
    s_mov_b32 {s(SP1+3)}, 0x20000
    s_waitcnt lgkmcnt(7)
    v_add_u32 {v(la_w)}, {s(sA)}, {v(la_w)}
    v_add_u32 {v(la_e)}, {s(sA)}, {v(la_e)}
    v_add_u32 {v(le)}, {s(s_u)}, {v(le)}
    ds_read_b128 {v(QA,4)}, {v(la_w)}
    ds_read_b128 {v(QA+4,4)}, {v(la_e)}
    ds_read_b32 {v(qa)}, {v(le)}
    ds_read_b128 {v(QA2,4)}, {v(la_w)} offset:{2*PCS}
    ds_read_b128 {v(QA2+4,4)}, {v(la_e)} offset:{2*PCS}
    v_add_u32 {v(ha)}, {s(s_t)}, {v(tab)}
    s_mov_b32 {s(SE)}, s6
    s_or_b32 {s(SE+1)}, s7, {8 << 16}
    s_mov_b32 {s(SE+2)}, {E}
    s_mov_b32 {s(SE+3)}, 0x20000
    s_movk_i32 {s(s_o3)}, {3*PCS}
    s_movk_i32 {s(s_o2)}, {2*PCS}
    s_movk_i32 {s(s_o1)}, {PCS}
    s_mov_b32 {s(s_msk)}, 0xfffc0
    s_mov_b32 {s(s_safe)}, 0
    s_mov_b32 {s(s_slow)}, 0
    s_mul_i32 {s(s_m0)}, {s(s_wave)}, {PBW}
    s_add_u32 {s(s_m0)}, {s(s_m0)}, {L_PB + 16}
    s_mov_b32 m0, {s(s_m0)}
    s_mov_b32 {s(s_q)}, 1
    s_waitcnt lgkmcnt(5)
""")
    for a in (TA[0][0], TA[0][1], TA[1][0], TA[1][1]):
        A(f"v_add_u32 {v(a)}, {s(s_m0)}, {v(a)}")

    def qpart(base, off):
        for r in range(4):
            A(f"v_fma_f32 {v(base+r)}, {v(base+r)}, {s(s_t)}, {v(qa)}")
        for r in range(4):
            A(f"v_and_b32 {v(QA+r)}, 0xffff0000, {v(base+r)}")
        for r in range(4):
            A(f"v_sub_f32 {v(base+r)}, {v(base+r)}, {v(QA+r)}")
        for r in range(4):
            A(f"v_cvt_pk_bf16_f32 {v(base+r)}, {v(QA+r)}, {v(base+r)}")
        for r in range(0, 4, 2):
            A(f"ds_write2st64_b32 {v(ha)}, {v(base+r)}, {v(base+r+1)} offset0:{(off + r*512)//256} offset1:{(off + r*512 + 512)//256}")

    def qcompute():
        A(f"""
        v_mfma_f32_16x16x32_bf16 {v(QD,4)}, {v(QA,4)}, {v(QB,4)}, 0
        v_mfma_f32_16x16x32_bf16 {v(QD,4)}, {v(QA+4,4)}, {v(QB+4,4)}, {v(QD,4)}
        v_mfma_f32_16x16x32_bf16 {v(QD+4,4)}, {v(QA2,4)}, {v(QB,4)}, 0
        v_mfma_f32_16x16x32_bf16 {v(QD+4,4)}, {v(QA2+4,4)}, {v(QB+4,4)}, {v(QD+4,4)}
        s_mov_b32 {s(s_t)}, {f32(-LOG2E)}
        s_mov_b32 {s(s_q)}, 0
        s_nop 3
""")
        qpart(QD, 0)
        A(f"s_cmp_lt_u32 {s(s_wave)}, 8\ns_cbranch_scc1 K_QD\ns_mov_b32 exec_hi, 0")
        qpart(QD + 4, 16 * 512)
        A("s_mov_b32 exec_hi, -1\nK_QD:\ns_waitcnt lgkmcnt(0)\ns_barrier")
    NWM = NWB = 0

    def p1words(xs):
        for x in xs:
            A(f"v_lshlrev_b32_sdwa {v(CA+x)}, 2, {v(CW+x)} dst_sel:BYTE_0 dst_unused:UNUSED_PAD src0_sel:DWORD src1_sel:DWORD")
        for x in xs:
            A(f"s_mov_b64 exec, {s(MK+2*x,2)}")
            A(f"ds_add_rtn_u32 {v(RK+x)}, {v(CA+x)}, {v(t3)} offset:{L_CNT}")
        A("s_mov_b64 exec, -1")

    LO = [0, 1, 2, 3]
    HI = [4, 5, 6, 7]
    A(warm("q1", 128, 0))
    A(f"s_waitcnt vmcnt({NWM + NWB})\nK_PASS1:\nv_mov_b32 {v(t3)}, 4")
    stamp(1)
    A(warm("p0", 0, 5) + warm("p1", 128, 5))
    p1words(LO)
    A(f"""
    s_cmp_lg_u32 {s(s_hi)}, 0
    s_cbranch_scc1 K_HI1
K_HB1:
""")
    for x in LO:
        if "e2" in OPT:
            A(f"v_add_u32 {v(EI+x)}, {x}, {v(EB)}")
            continue
        A(f"v_lshrrev_b32 {v(EI+x)}, 20, {v(CW+x)}")
        A(f"v_add_u32 {v(EI+x)}, {v(EI+x)}, {v(EB)}")
    stamp(2)
    A(f"""
    v_lshlrev_b32 {v(t0)}, 2, {v(lane)}
    v_mov_b32 {v(t2)}, {L_FLAG}
    s_waitcnt lgkmcnt(0)
    s_barrier
    ds_read_b32 {v(t1)}, {v(t0)} offset:{L_CNT}
    ds_read_b32 {v(t2)}, {v(t2)}
    s_waitcnt lgkmcnt(1)
    v_add_u32 {v(t3)}, 31, {v(t1)}
    v_and_b32 {v(t3)}, -32, {v(t3)}
    v_mov_b32 {v(t0)}, {v(t3)}
    s_nop 1
""")
    for d in DPP_SCAN:
        A(f"v_add_u32_dpp {v(t0)}, {v(t0)}, {v(t0)} {d}\ns_nop 1")
    A(f"""
    v_readlane_b32 {s(sB)}, {v(t0)}, 63
    v_sub_u32 {v(t0)}, {v(t0)}, {v(t3)}
    v_add_u32 {v(t0)}, {L_LA}, {v(t0)}
""")
    A(f"s_waitcnt lgkmcnt(0)\ns_cmp_eq_u32 {s(s_hi)}, 0\ns_cbranch_scc1 K_NOHB")
    for x in HI:
        A(f"ds_bpermute_b32 {v(CA+x)}, {v(CA+x)}, {v(t0)}")
    A("K_NOHB:")
    for x in LO:
        A(f"ds_bpermute_b32 {v(CA+x)}, {v(CA+x)}, {v(t0)}")
    A(f"""
    v_readfirstlane_b32 {s(sA)}, {v(t2)}
    v_lshrrev_b32 {v(t2)}, 4, {v(lane)}
    s_cmp_gt_u32 {s(sB)}, {CAPB}
    s_cselect_b32 {s(s_t)}, 1, 0
    s_or_b32 {s(sA)}, {s(sA)}, {s(s_t)}
    s_cbranch_scc1 K_GOSLOW
    v_add_u32 {v(deg)}, {v(deg)}, {v(t1)}
    s_add_u32 {s(sB)}, {s(sB)}, 127
    s_lshr_b32 {s(sB)}, {s(sB)}, 7
    s_add_u32 {s(s_rem)}, {s(sB)}, {NWV - 1}
    s_sub_u32 {s(s_rem)}, {s(s_rem)}, {s(s_wave)}
    s_lshr_b32 {s(s_rem)}, {s(s_rem)}, 4
    s_lshr_b32 {s(s_t)}, {s(sB)}, 4
    s_mul_i32 {s(s_t)}, {s(s_t)}, {s(s_wave)}
    s_and_b32 {s(sB)}, {s(sB)}, {NWV - 1}
    s_min_u32 {s(sB)}, {s(sB)}, {s(s_wave)}
    s_add_u32 {s(s_t)}, {s(s_t)}, {s(sB)}
    s_lshl_b32 {s(s_t)}, {s(s_t)}, 7
    s_lshl_b32 {s(s_u)}, {s(s_rem)}, 5
    s_waitcnt lgkmcnt(0)
""")
    for x in LO:
        A(f"v_add_u32 {v(CA+x)}, {v(CA+x)}, {v(RK+x)}")
    for x in LO:
        A(f"s_mov_b64 exec, {s(MK+2*x,2)}")
        A(f"ds_write2st64_b32 {v(CA+x)}, {v(CW+x)}, {v(EI+x)} offset0:0 offset1:{NE*4//256}")
    A(f"""
    s_mov_b64 exec, -1
    s_cmp_lg_u32 {s(s_hi)}, 0
    s_cbranch_scc1 K_HI2
K_HB2:
    v_mul_u32_u24 {v(t2)}, {s(s_u)}, {v(t2)}
    v_add3_u32 {v(la_w)}, {v(t2)}, {v(cw0)}, {s(s_t)}
    v_mul_u32_u24 {v(la_e)}, {s(s_u)}, {v(grp)}
    v_add3_u32 {v(la_e)}, {v(la_e)}, {v(ce0)}, {s(s_t)}
    v_add3_u32 {v(tab)}, {v(tb0)}, {v(t2)}, {s(s_t)}
    s_waitcnt lgkmcnt(0)
    s_barrier
""")
    stamp(3)
    if "tl" in OPT:
        A(f"v_mov_b32 {v(tl)}, 0\nv_writelane_b32 {v(tl)}, {s(STR[3])}, 0\ns_mov_b32 s91, 1")
    if "p3" in OPT:
        A("s_setprio 3")

    def dma(u):
        so = [s(s_o3), s(s_o2), s(s_o1), "0"]
        srd = SP0 if u == 0 else SP1
        return [f"buffer_load_dwordx4 {v(lw+q)}, {s(srd,4)}, {so[q]} idxen offset:{q*PCS} lds" for q in range(4)]

    def idx():
        return [f"v_and_or_b32 {v(lw+q)}, {v(lw+q)}, {s(s_msk)}, {v(dq)}" for q in range(4)]

    def eload():
        return f"buffer_load_dwordx2 {v(A5,2)}, {v(le)}, {s(SE,4)}, 0 idxen" + (" nt" if "ent" in OPT else "")

    def ohcmp():
        return f"v_cmp_gt_u32 vcc, {s(s_ne)}, {v(le)}"

    def ohsel():
        return [f"v_cndmask_b32 {v(A5+2)}, 0, {v(OH)}, vcc", f"v_cndmask_b32 {v(A5+3)}, 0, {v(OH+1)}, vcc"]

    def lists():
        return [f"ds_read_b128 {v(lw,4)}, {v(la_w)}", f"ds_read_b32 {v(le)}, {v(la_e)}"]

    def laup():
        return [f"v_add_u32 {v(x)}, 32, {v(x)}" for x in (la_w, la_e)]

    def flush():
        o = [f"v_cvt_f64_f32 {v(C64+2*i,2)}, {v(acc+i)}" for i in range(8)]
        o2 = [f"ds_add_f64 {v(ha + i%2)}, {v(C64+2*i,2)} offset:{(i//2)*256}" for i in range(8)]
        return o, o2

    def qaddr(fill):
        o = [f"v_mov_b32_dpp {v(qa)}, {v(tab)} row_newbcast:0 row_mask:0xf bank_mask:0xf",
             f"v_mov_b32_dpp {v(qa+1)}, {v(tab)} row_newbcast:0 row_mask:0xf bank_mask:0xf"]
        o += fill[:2]
        o += [f"v_permlane16_swap_b32 {v(qa)}, {v(qa+1)}"]
        o += fill[2:4]
        o += [f"v_add_u32 {v(qa)}, {v(qa)}, {v(j4)}", f"v_add_u32 {v(qa+1)}, {v(qa+1)}, {v(j4)}"]
        o += fill[4:]
        for n in range(4):
            for k in range(2):
                o.append(f"ds_read_b32 {v(B5[n]+2+k)}, {v(qa+k)} offset:{L_QT + n*128}")
        return o

    zacc = [f"v_mov_b64 {v(acc+2*n,2)}, 0" for n in range(4)]
    haup = [f"v_lshlrev_b32 {v(ha+k)}, 1, {v(qa+k)}" for k in range(2)]

    def hread():
        o = []
        for n in range(2):
            for m in range(8):
                o.append(f"ds_read_b64_tr_b16 {v(D[n]+2*m,2)}, {v(TA[n][m>>2])} offset:{(m&3)*PCS}")
        return o

    def mf(n):
        return f"v_mfma_f32_32x32x16_bf16 {v(D[n%2],16)}, {v(A5,4)}, {v(B5[n],4)}, {v(D[n%2],16)}"

    NEARLY = int(os.environ.get("NEARLY", "8"))
    A(lists())
    A(f"""
    ds_read_b32 {v(tab)}, {v(tab)}
    s_waitcnt lgkmcnt(2)
""")
    A(idx())
    A(f"""
    s_waitcnt lgkmcnt(0)
    s_cmp_ge_u32 {s(s_wave)}, {NEARLY}
    s_cbranch_scc1 K_LATE0
""")
    A(dma(0) + [eload()])
    A(f"""
K_LATE0:
    s_cmp_eq_u32 {s(s_q)}, 0
    s_cbranch_scc1 K_NOQ
""")
    qcompute()
    A(f"""
K_NOQ:
    s_cmp_lt_u32 {s(s_wave)}, {NEARLY}
    s_cbranch_scc1 K_LATE1
""")
    A(dma(0) + [eload()])
    A(f"""
K_LATE1:
    s_cmp_eq_u32 {s(s_rem)}, 0
    s_cbranch_scc1 K_DONE
""")
    A(ohcmp())
    A(f"""
    v_and_b32 {v(tab)}, 63, {v(tab)}
    v_lshlrev_b32 {v(tab)}, 9, {v(tab)}
""")
    A(ohsel())
    A(f"v_mov_b32 {v(t0)}, {v(tab)}")
    A(laup())
    A(f"v_mov_b32_dpp {v(t0)}, {v(tab)} row_shr:1 row_mask:0xf bank_mask:0xf")
    A(qaddr(zacc))
    A(haup)
    A(f"""
    v_cmp_ne_u32 vcc, {v(t0)}, {v(tab)}
    s_or_b32 {s(s_chg)}, vcc_lo, vcc_hi
    s_lshr_b32 {s(s_t)}, {s(s_chg)}, 16
    s_or_b32 {s(s_chg)}, {s(s_chg)}, {s(s_t)}
    s_setprio 3
    {"s_waitcnt vmcnt(0)" if "pw" in OPT else ""}
""")
    stamp(4)
    A(f"""
    s_cmp_eq_u32 {s(s_safe)}, 0
    s_cbranch_scc0 K_LOOP_S
""")

    def compute(u, safe, mid, tail):
        o = []
        for bb in range(2):
            b = 2 * u + bb
            cur = D[bb]
            if not safe and bb:
                o += [f"v_rcp_f32 {v(rr)}, {v(dd)}", f"v_rcp_f32 {v(rr+1)}, {v(dd+1)}"]
            o += [f"v_exp_f32 {v(EX+i)}, {v(cur+i)}" for i in range(16)]
            if bb == 0:
                o += mid
            if not safe:
                if bb:
                    o.append(f"v_max3_f32 {v(guard)}, {v(guard)}, {v(dd)}, {v(dd+1)}")
                    o.append(f"v_pk_fma_f32 {v(acc+2*(b-1),2)}, {v(nn,2)}, {v(rr,2)}, {v(acc+2*(b-1),2)}")
                o.append(f"v_pk_add_f32 {v(dd,2)}, {v(EX,2)}, 1.0 op_sel_hi:[1,0]")
                n_ = v(cur, 2)
                for k in range(1, 8):
                    e_, z_ = v(EX + 2 * k, 2), v(cur + 2 * k, 2)
                    o.append(f"v_pk_fma_f32 {v(tt,2)}, {n_}, {e_}, {n_}")
                    o.append(f"v_pk_fma_f32 {v(nn,2)}, {z_}, {v(dd,2)}, {v(tt,2)}")
                    o.append(f"v_pk_fma_f32 {v(dd,2)}, {v(dd,2)}, {e_}, {v(dd,2)}")
                    n_ = v(nn, 2)
            else:
                for k in range(8):
                    o.append(f"v_pk_add_f32 {v(EX+2*k,2)}, {v(EX+2*k,2)}, 1.0 op_sel_hi:[1,0]")
                for i in range(16):
                    o.append(f"v_rcp_f32 {v(EX+i)}, {v(EX+i)}")
                for k in range(8):
                    o.append(f"v_pk_fma_f32 {v(acc+2*b,2)}, {v(cur+2*k,2)}, {v(EX+2*k,2)}, {v(acc+2*b,2)}")
        if not safe:
            o += [f"v_rcp_f32 {v(rr)}, {v(dd)}", f"v_rcp_f32 {v(rr+1)}, {v(dd+1)}",
                  f"v_max3_f32 {v(guard)}, {v(guard)}, {v(dd)}, {v(dd+1)}",
                  f"v_pk_fma_f32 {v(acc+4*u+2,2)}, {v(nn,2)}, {v(rr,2)}, {v(acc+4*u+2,2)}"]
        if "tl" in OPT:
            o += [TM + " s[94:95]", "s_waitcnt lgkmcnt(0)", "s_mov_b32 m0, s91", f"v_writelane_b32 {v(tl)}, s94, m0",
                  f"s_mov_b32 m0, {s(s_m0)}", "s_add_u32 s91, s91, 1"]
        return o + tail

    def loop(safe):
        sf = "S" if safe else "F"
        rot = f"v_mov_b32_dpp {v(tab)}, {v(tab)} row_shl:1 row_mask:0xf bank_mask:0xf bound_ctrl:0"
        st = ["s_waitcnt vmcnt(1)"] + hread()
        st += [f"s_cmp_gt_u32 {s(s_rem)}, 3", f"s_cbranch_scc0 K_PRIO_{sf}", f"K_PB_{sf}:"]
        st += ["s_waitcnt vmcnt(0) lgkmcnt(8)", mf(0), "s_waitcnt lgkmcnt(0)", mf(1)] + dma(1) + lists()
        st += [f"s_lshr_b32 {s(s_chg)}, {s(s_chg)}, 1", f"s_sub_u32 {s(s_rem)}, {s(s_rem)}, 1", "s_nop 1"]
        st += compute(0, safe, [rot], ["s_waitcnt lgkmcnt(0)"] + idx() + [ohcmp()])
        st += ["s_waitcnt vmcnt(0)"] + hread()
        st += ["s_waitcnt lgkmcnt(8)", mf(2), "s_waitcnt lgkmcnt(0)", mf(3)] + dma(0) + [eload()]
        st += ohsel() + laup() + ["s_nop 0"]
        st += compute(1, safe, [], [])
        if "E" in ABL: st = [x for x in st if not x.startswith("buffer_load_dwordx2")]
        if "X" in ABL: st = [x if not x.endswith(" lds") else "s_nop 0" for x in st]
        if "A" in ABL: st = [x for x in st if not x.startswith("ds_read_b64_tr")]
        A(f".p2align 6\nK_LOOP_{sf}:")
        A(st)
        c, a = flush()
        A(f"""
        s_cmp_eq_u32 {s(s_rem)}, 0
        s_cbranch_scc1 K_LAST_{sf}
        s_bitcmp1_b32 {s(s_chg)}, 0
        {"s_cbranch_scc0" if "C" not in ABL else "s_branch"} K_LOOP_{sf}
""")
        A(qaddr(c) + a + zacc + haup)
        A(f"s_branch K_LOOP_{sf}")
        A(f"""
K_PRIO_{sf}:
        s_setprio 2
        s_cmp_eq_u32 {s(s_rem)}, 3
        s_cbranch_scc1 K_PB_{sf}
        s_setprio 1
        s_cmp_eq_u32 {s(s_rem)}, 2
        s_cbranch_scc1 K_PB_{sf}
        s_setprio 0
        s_branch K_PB_{sf}
K_LAST_{sf}:
""")
        A(c + a)
        if safe:
            A("s_branch K_DONE")
    loop(False)

    W2 = B5[0]
    A(f"""
K_DONE:
    s_setprio 0
    s_cmp_eq_u32 {s(s_slow)}, 0
    s_cbranch_scc0 K_NEXTCHUNK
K_FIN:
""")
    if "tl" in OPT:
        A(f"""
        s_lshl_b32 {s(s_t)}, s2, 12
        s_add_u32 {s(s_t)}, {s(s_t)}, {WS_STAMP + (1 << 20)}
        v_lshl_add_u32 {v(t0)}, v0, 2, {s(s_t)}
        global_store_dword {v(t0)}, {v(tl)}, s[24:25]
""")
    stamp(5)
    A(f"""
    ; W2 fragments (ob = w&3) and b2
    s_mov_b32 {s(SO)}, s18
    s_and_b32 {s(SO+1)}, s19, 0xffff
    s_mov_b32 {s(SO+2)}, {N * 128}
    s_mov_b32 {s(SO+3)}, 0x20000
    s_and_b32 {s(s_u)}, {s(s_wave)}, 3
    s_lshl_b32 {s(s_t)}, {s(s_u)}, 12
    s_add_u32 {s(s_t)}, {s(s_t)}, {WS_W2}
    s_lshl_b32 {s(s_u)}, {s(s_u)}, 5
    v_lshrrev_b32 {v(t1)}, 4, {v(lane)}
    v_lshl_add_u32 {v(la_w)}, {v(t1)}, 3, {s(s_u)}
""")
    for ks in range(4):
        A(f"buffer_load_dwordx4 {v(D[1]+4*ks,4)}, {v(l16)}, {s(SW,4)}, {s(s_t)} offen offset:{ks*1024}")
    A(f"""
    global_load_dwordx2 {v(b2r,2)}, {v(la_w)}, s[16:17]
    v_lshrrev_b32 {v(t0)}, 4, v0
    v_lshlrev_b32 {v(t2)}, 6, v0
    v_mul_u32_u24 {v(t3)}, {HB_STRIDE}, {v(t0)}
    v_and_b32 {v(t0)}, 0xf0, {v(l16)}
    v_add3_u32 {v(t3)}, {v(t3)}, {v(t0)}, {s(sA)}
    v_and_b32 {v(t0)}, 15, {v(lane)}
    s_and_b32 {s(s_t)}, {s(s_wave)}, 12
    s_lshl_b32 {s(s_t)}, {s(s_t)}, 2
    v_add_u32 {v(t0)}, {s(s_t)}, {v(t0)}
    v_mul_u32_u24 {v(la_e)}, {HB_STRIDE}, {v(t0)}
    v_lshl_add_u32 {v(la_e)}, {v(t1)}, 4, {v(la_e)}
    v_add_u32 {v(la_e)}, {L_HBHI}, {v(la_e)}
    v_lshlrev_b32 {v(le)}, 2, {v(t0)}
    ds_bpermute_b32 {v(le)}, {v(le)}, {v(deg)}
    v_lshl_add_u32 {v(la_w)}, {v(t0)}, 15, {v(la_w)}
    s_mov_b64 {s(sA,2)}, 0
    s_waitcnt lgkmcnt(0)
    s_barrier
""".replace(f"v_lshrrev_b32 {v(t0)}, 4, v0", f"s_mov_b32 {s(sA)}, {L_HBHI}\nv_lshrrev_b32 {v(t0)}, 4, v0"))
    stamp(6)
    A(f"s_cmp_ge_u32 {s(s_wave)}, 10\ns_cbranch_scc1 K_S1D")
    H = D[0]
    for i in range(4):
        A(f"ds_read_b128 {v(H+4*i,4)}, {v(t2)} offset:{16*i}")
    for i in range(8):
        if i % 2 == 0:
            A(f"s_waitcnt lgkmcnt({3 - i//2})")
        A(f"v_cvt_f32_f64 {v(EX+i)}, {v(H+2*i,2)}")
    for i in range(8):
        A(f"v_and_b32 {v(EX+8+i)}, 0xffff0000, {v(EX+i)}")
    for i in range(4):
        A(f"v_cvt_pk_bf16_f32 {v(H+i)}, {v(EX+8+2*i)}, {v(EX+9+2*i)}")
    A(f"ds_write_b128 {v(t3)}, {v(H,4)}")
    for i in range(8):
        A(f"v_sub_f32 {v(EX+8+i)}, {v(EX+i)}, {v(EX+8+i)}")
    for i in range(4):
        A(f"v_cvt_pk_bf16_f32 {v(H+4+i)}, {v(EX+8+2*i)}, {v(EX+9+2*i)}")
    A(f"ds_write_b128 {v(t3)}, {v(H+4,4)} offset:{HB_LO}")
    for i in range(0, 8, 2):
        A(f"v_cmp_u_f32 vcc, {v(EX+8+i)}, {v(EX+9+i)}")
        A(f"s_or_b64 {s(sA,2)}, {s(sA,2)}, vcc")
    A(f"""
K_S1D:
    v_cmp_lt_f32 vcc, {f32(2.0**100)}, {v(guard)}
    s_or_b64 vcc, vcc, {s(sA,2)}
    v_mov_b32 {v(t2)}, {L_FLAG + 4}
    s_cbranch_vccz K_NOFL
    ds_write_b32 {v(t2)}, {v(t2)}
K_NOFL:
    s_waitcnt lgkmcnt(0)
    s_barrier
    ds_read_b32 {v(t2)}, {v(t2)}
""")
    HF = [D[0], EX]
    for ks in range(4):
        A(f"ds_read_b128 {v(HF[0]+4*ks,4)}, {v(la_e)} offset:{ks*64}")
        A(f"ds_read_b128 {v(HF[1]+4*ks,4)}, {v(la_e)} offset:{ks*64 + HB_LO}")
    A(f"""
    v_cvt_f32_u32 {v(le)}, {v(le)}
    v_mul_f32 {v(le)}, {f32(0.25)}, {v(le)}
    s_lshl_b32 {s(s_t)}, {s(s_b)}, 7
    s_mov_b32 {s(s_u)}, {f32(-LN2)}
    s_waitcnt vmcnt(0) lgkmcnt(8)
    v_readfirstlane_b32 {s(sA)}, {v(t2)}
    v_lshlrev_b32 {v(acc)}, 16, {v(b2r)}
    v_and_b32 {v(acc+1)}, 0xffff0000, {v(b2r)}
    v_lshlrev_b32 {v(acc+2)}, 16, {v(b2r+1)}
    v_and_b32 {v(acc+3)}, 0xffff0000, {v(b2r+1)}
    s_cmp_lg_u32 {s(s_safe)}, 0
    s_cbranch_scc1 K_GEMM
    s_cmp_eq_u32 {s(sA)}, 0
    {"s_cbranch_scc0 K_RESTART" if ABL == [""] else ""}
K_GEMM:
    s_cmp_ge_u32 {s(s_wave)}, 12
    s_cbranch_scc1 K_END
""")
    O = [nn, tt]
    for ks in range(4):
        for hl in range(2):
            A(f"s_waitcnt lgkmcnt({7 - 2*ks - hl})")
            c = "0" if ks == 0 else v(O[hl], 4)
            A(f"v_mfma_f32_16x16x32_bf16 {v(O[hl],4)}, {v(D[1]+4*ks,4)}, {v(HF[hl]+4*ks,4)}, {c}")
    for i in range(4):
        A(f"v_mul_f32 {v(acc+i)}, {v(le)}, {v(acc+i)}")
    A("s_nop 3")
    for i in range(4):
        A(f"v_add_f32 {v(nn+i)}, {v(nn+i)}, {v(tt+i)}")
    for i in range(4):
        A(f"v_fma_f32 {v(nn+i)}, {v(nn+i)}, {s(s_u)}, {v(acc+i)}")
    A(f"""
    v_cvt_pk_bf16_f32 {v(acc)}, {v(nn)}, {v(nn+1)}
    v_cvt_pk_bf16_f32 {v(acc+1)}, {v(nn+2)}, {v(nn+3)}
    buffer_store_dwordx2 {v(acc,2)}, {v(la_w)}, {s(SO,4)}, {s(s_t)} offen
""")
    if DL[0] == 9:
        stamp(9)
    if STAMP:
        A("s_waitcnt vmcnt(0)")
        stamp(8)
        A(f"""
    v_cmp_eq_u32 vcc, 0, {v(lane)}
    s_and_saveexec_b64 {s(sA,2)}, vcc
    s_lshl_b32 {s(s_t)}, s2, 4
    s_add_u32 {s(s_t)}, {s(s_t)}, {s(s_wave)}
    s_lshl_b32 {s(s_t)}, {s(s_t)}, 6
    s_add_u32 {s(s_t)}, {s(s_t)}, {WS_STAMP}
    v_mov_b32 {v(t0)}, {s(s_t)}
""")
        for n_, i in enumerate([0, 7, 1, 2, 3, 4, 5, 6, 8]):
            A(f"v_mov_b32 {v(D[0]+n_)}, {s(STR[i]) if i else s(s_x)}")
        for i in range(3):
            A(f"global_store_dwordx4 {v(t0)}, {v(D[0]+4*i,4)}, s[24:25] offset:{16*i}")
    A(f"""
K_END:
    s_endpgm
""")

    A(f"""
K_HI1:
    v_subrev_u32 {v(t0)}, 64, {v(rem)}
""")
    for i in range(4):
        A(f"v_cmp_lt_i32 {s(MK+8+2*i,2)}, {4*i}, {v(t0)}")
    A(f"""
    v_cmp_lt_i32 vcc, 64, {v(t0)}
    s_cbranch_vccz K_HI1N
    v_mov_b32 {v(t0)}, {L_FLAG}
    ds_write_b32 {v(t0)}, {v(t3)}
K_HI1N:
""")
    p1words(HI)
    for x in HI:
        A(f"v_lshrrev_b32 {v(EI+x)}, 20, {v(CW+x)}")
        A(f"v_add_u32 {v(EI+x)}, {v(EI+x)}, {v(EB)}")
    A("s_branch K_HB1\nK_HI2:")
    for x in HI:
        A(f"v_add_u32 {v(CA+x)}, {v(CA+x)}, {v(RK+x)}")
    for x in HI:
        A(f"s_mov_b64 exec, {s(MK+2*x,2)}")
        A(f"ds_write2st64_b32 {v(CA+x)}, {v(CW+x)}, {v(EI+x)} offset0:0 offset1:{NE*4//256}")
    A("s_mov_b64 exec, -1\ns_branch K_HB2\nK_HOT_END:")
    A(f"""
K_RESTART:
    s_mov_b32 {s(s_safe)}, 1
    s_mov_b32 {s(s_slow)}, 0
    s_waitcnt lgkmcnt(0)
    s_barrier
""")
    pre, ld = tab_load()
    A(pre + ld)
    zero_hsum()
    A(rec_pre())
    A("s_waitcnt vmcnt(0)")
    rec_loads("B")
    A("K_ROUND:")
    prefill()
    A(f"""
    s_waitcnt vmcnt(0) lgkmcnt(0)
    s_barrier
    s_branch K_PASS1
K_GOSLOW:
    s_mov_b32 {s(SS)}, s8
    s_and_b32 {s(SS+1)}, s9, 0xffff
    s_mov_b32 {s(SS+2)}, {E * 4}
    s_mov_b32 {s(SS+3)}, 0x20000
    s_mov_b32 {s(SD_)}, s10
    s_and_b32 {s(SD_+1)}, s11, 0xffff
    s_mov_b32 {s(SD_+2)}, {E * 4}
    s_mov_b32 {s(SD_+3)}, 0x20000
    s_mov_b32 {s(s_slow)}, 1
    s_mov_b32 {s(s_chunk)}, -1
K_NEXTCHUNK:
    s_add_u32 {s(s_chunk)}, {s(s_chunk)}, 1
    s_cmp_lt_u32 {s(s_chunk)}, {NB}
    s_cbranch_scc0 K_FIN
    s_waitcnt vmcnt(0) lgkmcnt(0)
    s_barrier
    s_mul_i32 {s(s_t)}, {s(s_chunk)}, {CH * 4}
    v_lshlrev_b32 {v(t0)}, 2, v0
""")
    for k in range(3):
        A(f"buffer_load_dword {v(RK+k)}, {v(t0)}, {s(SD_,4)}, {s(s_t)} offen")
        A(f"buffer_load_dword {v(RK+4+k)}, {v(t0)}, {s(SS,4)}, {s(s_t)} offen")
        A(f"s_add_u32 {s(s_t)}, {s(s_t)}, 4096")
    A(f"""
    s_mul_i32 {s(s_t)}, {s(s_chunk)}, {CH}
    s_movk_i32 {s(s_u)}, {CH}
    v_mov_b32 {v(EB)}, {s(s_t)}
    v_mov_b32 {v(CW+3)}, 0
    s_mov_b64 {s(MK+6,2)}, 0
    s_mov_b32 {s(s_hi)}, 0
    s_waitcnt vmcnt(0)
""")
    for k in range(3):
        A(f"""
        v_add_u32 {v(t1)}, {1024*k}, v0
        v_lshrrev_b32 {v(t2)}, 8, {v(RK+k)}
        v_lshl_or_b32 {v(t2)}, {v(RK+4+k)}, 6, {v(t2)}
        v_lshl_or_b32 {v(CW+k)}, {v(t1)}, 20, {v(t2)}
        v_and_b32 {v(RK+k)}, 255, {v(RK+k)}
        v_cmp_eq_u32 vcc, {s(s_b)}, {v(RK+k)}
        v_cmp_gt_u32 {s(sA,2)}, {s(s_u)}, {v(t1)}
        s_and_b64 {s(MK+2*k,2)}, vcc, {s(sA,2)}
""")
    A("s_branch K_ROUND")
    loop(True)
    return nvgpr, (102 if STAMP or DL[0] >= 0 else 96)


def kd(name, vg, sg):
    acc = (vg + 3) // 4 * 4
    return f""".p2align 6
.amdhsa_kernel {name}
  .amdhsa_next_free_vgpr {vg}
  .amdhsa_next_free_sgpr {sg}
  .amdhsa_accum_offset {acc}
  .amdhsa_group_segment_fixed_size 0
  .amdhsa_kernarg_size 88
  .amdhsa_user_sgpr_count 2
  .amdhsa_user_sgpr_kernarg_segment_ptr 1
  .amdhsa_system_sgpr_workgroup_id_x 1
  .amdhsa_float_denorm_mode_32 3
.end_amdhsa_kernel
"""


def main():
    ref = open(f"cdna_kernels/{NAME}.s.ref").read().split("\n")
    head = [l for l in ref if l.startswith(";") and "@launch" not in l and "Override" not in l and "grid=ceil" not in l]
    A = Asm()
    v1, s1 = gen_k1(A)
    v2, s2 = gen_k2(A)
    out = "\n".join(head) + "\n"
    out += f"; @launch kernel=k1_kernel grid=({NB + NPW},1,1) block=(640,1,1) lds={K1_LDS}\n"
    out += f"; @launch kernel=k2_kernel grid=({NB},1,1) block=(1024,1,1) lds={L_END}\n"
    out += '.amdgcn_target "amdgcn-amd-amdhsa--gfx950"\n.text\n'
    out += A.text()
    out += '.section .rodata,"a"\n' + kd("k1_kernel", v1, s1) + kd("k2_kernel", v2, s2)
    path = sys.argv[1] if len(sys.argv) > 1 else f"cdna_kernels/{NAME}.s"
    open(path, "w").write(out)
    print("vgprs", v1, v2, "lds", L_END, "->", path)


if __name__ == "__main__":
    main()
```

```python
import sys, struct, os

NAME = "gather_scatter__edge_featured_mpnn_mpnn__graph"
N, E = 10000, 640000
NB, CH = 256, 2500
LOG2E = 1.4426950408889634
LN2 = 0.6931471805599453
STAMP = int(os.environ.get("STAMP", "0"))
TM = "s_memtime" if STAMP == 2 else "s_memrealtime"
DL = [int(x) for x in os.environ.get("DL", "-1:0").split(":")]
ABL = os.environ.get("ABL", "").split(",")
OPT = os.environ.get("OPT", "").split(",")
WS_STAMP = 24 << 20


def f32(x):
    return struct.unpack("<I", struct.pack("<f", x))[0]


RECB = 10240
WS_TAB = NB * RECB + 4096
WS_P = WS_TAB + NB * 1024
WS_W1B = WS_P + N * 256
WS_W2 = WS_W1B + 16384
WS_CB = WS_W2 + 16384
WS_WC = WS_CB + 4096
WS_B1 = WS_WC + 2048
WS_END = WS_B1 + 1024

NWV = 16
L_QT = 40 * 1024
L_CNT = L_QT + 40 * 512
L_FLAG = L_CNT + 256
L_LA = L_CNT + 512
NE = 4096
L_LB = L_LA + NE * 4
L_PB = L_LB + NE * 4
PCS = 1040
PBW = 4 * PCS
L_END = L_PB + NWV * PBW + 16
CAPB = (NE - 128) * 4
PADW = (16383 << 6)
PADE = 0x7FFFFFF
HB_STRIDE = 272
L_HBHI = L_LA
HB_LO = 16384


class Asm:
    def __init__(self):
        self.lines = []

    def __call__(self, s):
        if isinstance(s, list):
            s = "\n".join(s)
        for ln in s.split("\n"):
            ln = ln.strip()
            if ln:
                self.lines.append(("" if ln.endswith(":") or ln.startswith(".") else "    ") + ln)

    def text(self):
        return "\n".join(self.lines) + "\n"


class Regs:
    def __init__(self, first):
        self.n = first

    def a(self, cnt=1, align=1):
        self.n = (self.n + align - 1) // align * align
        r = self.n
        self.n += cnt
        return r


def v(r, n=1):
    return f"v{r}" if n == 1 else f"v[{r}:{r + n - 1}]"


def s(r, n=1):
    return f"s{r}" if n == 1 else f"s[{r}:{r + n - 1}]"


DPP_SCAN = ["row_shr:1 row_mask:0xf bank_mask:0xf bound_ctrl:0", "row_shr:2 row_mask:0xf bank_mask:0xf bound_ctrl:0",
            "row_shr:4 row_mask:0xf bank_mask:0xf bound_ctrl:0", "row_shr:8 row_mask:0xf bank_mask:0xf bound_ctrl:0",
            "row_bcast:15 row_mask:0xa bank_mask:0xf", "row_bcast:31 row_mask:0xc bank_mask:0xf"]
K1_CNT = 10240
K1_ST = K1_CNT + 2560
K1_LDS = 24576 + 64 * 272
ST1 = os.environ.get('ST1', '')
ST2 = os.environ.get('ST2', '')
NPW = 250


def lane_table():
    T = []
    for l in range(64):
        i, h = l & 31, l >> 5
        idx = 2 * (i >> 3) + ((i >> 1) & 1)
        grp = 2 * ((i >> 2) & 1) + (i & 1)
        par = (l >> 3) & 1
        ta = h * 512 + par * 320 + ((l >> 4) & 1) * 32 + (l & 3) * 8
        real = (l >> 2) & 1
        xa = L_PB + 16 + ((l >> 3) & 1) * PCS + (l & 7) * 128
        f = ((l >> 1) & 7) ^ (l >> 4)
        T.append([xa + f * 16, xa + (f ^ 4) * 16, (l & 15) * 4, L_QT + (l >> 4) * 2048 + (l & 15) * 4,
                  4 * i, L_LB + 4 * idx, grp, L_LA + (l & 8) * 2,
                  0x3f803f80 if grp == 2 * h else 0, 0x3f803f80 if grp == 2 * h + 1 else 0,
                  ((l & 7) ^ (4 * ((l >> 4) & 1))) * 8, (l & 15) * 32 + L_LA,
                  ta if real else -16, ta + 128 if real else 1024, ta ^ 64 if real else -16, (ta ^ 64) + 128 if real else 1024])
    return T


def gen_k1(A):
    A(f"""
.globl k1_kernel
.p2align 8
.type k1_kernel,@function
k1_kernel:
    s_cmp_ge_u32 s2, {NB}
    s_cbranch_scc1 K1_NODE
    s_load_dwordx4 s[4:7], s[0:1], 16
    s_load_dwordx2 s[8:9], s[0:1], 80
    {"s_memrealtime s[28:29]" if STAMP else ""}
    v_lshlrev_b32 v1, 4, v0
    s_mul_i32 s3, s2, {CH * 4}
    v_min_u32 v2, {CH * 4 - 16}, v1
    v_add_u32 v2, s3, v2
    v_lshlrev_b32 v3, 2, v0
    v_mov_b32 v4, 0
    ds_write_b32 v3, v4 offset:{K1_CNT}
    s_waitcnt lgkmcnt(0)
    global_load_dwordx4 v[8:11], v2, s[6:7]
    global_load_dwordx4 v[12:15], v2, s[4:5]
    s_barrier
    v_lshlrev_b32 v24, 22, v0
    v_add_u32 v25, {1 << 20}, v24
    v_add_u32 v26, {2 << 20}, v24
    v_add_u32 v27, {3 << 20}, v24
    v_mov_b32 v3, 4
    v_and_b32 v2, 0x3f0, v1
    s_mul_i32 s3, s2, {RECB}
    s_lshl_b32 s10, s2, 10
    s_add_u32 s10, s10, {WS_TAB}
    v_cmp_gt_u32 vcc, {CH // 4}, v0
    s_and_saveexec_b64 s[26:27], vcc
    s_mov_b64 s[24:25], exec
    s_waitcnt vmcnt(1)
    {"s_memrealtime s[30:31]" if STAMP and "k1b" not in OPT and "k1c" not in OPT else ""}
    {"s_waitcnt lgkmcnt(0)" if STAMP else ""}
""")
    for i in range(4):
        A(f"v_lshlrev_b32_sdwa v{16+i}, 2, v{8+i} dst_sel:DWORD dst_unused:UNUSED_PAD src0_sel:DWORD src1_sel:BYTE_0")
        A(f"ds_add_rtn_u32 v{20+i}, v{16+i}, v3 offset:{K1_CNT}")
    for i in range(4):
        A(f"v_lshrrev_b32 v{8+i}, 8, v{8+i}")
        A(f"v_or_b32 v{24+i}, v{24+i}, v{8+i}")
    A(f"""
    s_mov_b64 exec, s[26:27]
    s_waitcnt lgkmcnt(0)
    s_barrier
    {"s_memrealtime s[30:31]" if STAMP and "k1b" in OPT else ""}
    ds_read_b128 v[4:7], v2 offset:{K1_CNT}
    s_waitcnt vmcnt(0)
    {"s_memrealtime s[30:31]" if STAMP and "k1c" in OPT else ""}
""")
    for i in range(4):
        A(f"v_lshl_or_b32 v{24+i}, v{12+i}, 6, v{24+i}")
    A(f"""
    s_waitcnt lgkmcnt(0)
    v_add_u32 v9, v4, v5
    v_add_u32 v10, v9, v6
    v_add_u32 v11, v10, v7
    v_mov_b32 v28, v11
    v_add_u32 v29, s3, v1
    v_add_u32 v30, s10, v2
""")
    for d in DPP_SCAN:
        A(f"v_add_u32_dpp v28, v28, v28 {d}\ns_nop 1")
    A(f"""
    v_sub_u32 v12, v28, v11
    v_add_u32 v13, v12, v4
    v_add_u32 v14, v12, v9
    v_add_u32 v15, v12, v10
    ds_write_b128 v2, v[12:15] offset:{K1_ST}
    s_mov_b64 exec, s[24:25]
""")
    for i in range(4):
        A(f"ds_read_b32 v{16+i}, v{16+i} offset:{K1_ST}")
    for i in range(4):
        A(f"s_waitcnt lgkmcnt(3)")
        A(f"v_add_u32 v{16+i}, v{16+i}, v{20+i}")
        A(f"ds_write_b32 v{16+i}, v{24+i}")
    A(f"""
    s_mov_b64 exec, s[26:27]
    v_cmp_gt_u32 vcc, 64, v0
    s_cbranch_vccz K1_NOTAB
""")
    for i in range(4):
        A(f"v_lshl_or_b32 v{12+i}, v{4+i}, 16, v{12+i}")
    A(f"""
    global_store_dwordx4 v30, v[12:15], s[8:9] {ST1}
K1_NOTAB:
    s_waitcnt lgkmcnt(0)
    s_barrier
    {"s_memrealtime s[32:33]" if STAMP else ""}
    {"s_waitcnt lgkmcnt(0)" if STAMP else ""}
    ds_read_b128 v[4:7], v1
    s_waitcnt lgkmcnt(0)
    global_store_dwordx4 v29, v[4:7], s[8:9] {ST1}
""")
    if STAMP:
        A(f"""
    s_waitcnt vmcnt(0)
    s_memrealtime s[34:35]
    v_cmp_eq_u32 vcc, 0, v0
    s_and_saveexec_b64 s[26:27], vcc
    s_cbranch_execz K1_END
    s_lshl_b32 s3, s2, 4
    s_add_u32 s3, s3, {WS_STAMP + (1 << 18)}
    v_mov_b32 v2, s3
    s_waitcnt lgkmcnt(0)
    v_mov_b32 v4, s28
    v_mov_b32 v5, s30
    v_mov_b32 v6, s32
    v_mov_b32 v7, s34
    global_store_dwordx4 v2, v[4:7], s[8:9]
""")
    A(f"""
K1_END:
    s_endpgm
""")
    XO = 16384
    A(f"""
K1_NODE:
    {"s_endpgm" if "nonode" in OPT else ""}
    s_sub_u32 s2, s2, {NB}
    s_cmp_ge_u32 s2, {NPW}
    s_cbranch_scc1 K1_END
    s_load_dwordx2 s[4:5], s[0:1], 0
    s_load_dwordx8 s[8:15], s[0:1], 32
    s_load_dwordx2 s[6:7], s[0:1], 80
    {"s_memrealtime s[36:37]" if STAMP else ""}
    v_lshrrev_b32 v1, 6, v0
    v_and_b32 v2, 63, v0
    v_readfirstlane_b32 s3, v1
    v_lshlrev_b32 v3, 4, v0
    v_and_b32 v5, 0x70, v0
    v_xor_b32 v5, v5, v3
    s_cmp_ge_u32 s3, 8
    s_cbranch_scc1 K1_PREP
    v_lshrrev_b32 v6, 2, v2
    v_and_b32 v7, 0x30, v3
    v_lshl_add_u32 v6, v6, 8, v7
    s_lshr_b32 s28, s3, 2
    s_and_b32 s29, s3, 3
    s_lshl_b32 s30, s28, 13
    s_lshl_b32 s31, s29, 6
    s_add_u32 s30, s30, s31
    v_add_u32 v6, s30, v6
    v_add_u32 v7, 3072, v6
    s_mul_i32 s32, s2, 5120
    s_lshl_b32 s33, s3, 10
    s_mov_b32 s18, {N * 128}
    s_mov_b32 s19, 0x20000
    s_add_u32 m0, s33, {XO}
    s_lshl_b32 s34, s29, 12
    s_lshl_b32 s35, s28, 11
    s_waitcnt lgkmcnt(0)
    s_mov_b32 s16, s4
    s_and_b32 s17, s5, 0xffff
    buffer_load_dwordx4 v5, s[16:19], s32 offen lds
    s_add_u32 m0, s34, s35
    v_and_b32 v10, 31, v2
    global_load_lds_dwordx4 v6, s[8:9]
    global_load_lds_dwordx4 v7, s[8:9] offset:1024
    ; fragment of W^T (rows = features, permuted): lane group G: k rows 8h+r, columns 16*(c&1) + 8*c16 + 4*(c>>1)
    v_lshrrev_b32 v13, 5, v2
    v_bfe_u32 v14, v2, 2, 2
    v_lshl_add_u32 v14, v13, 3, v14
    v_lshlrev_b32 v14, 6, v14
    v_and_b32 v15, 1, v2
    v_lshl_add_u32 v14, v15, 5, v14
    v_and_b32 v15, 16, v2
    v_add3_u32 v14, v14, v15, s34
    v_and_b32 v15, 2, v2
    v_lshl_add_u32 v14, v15, 2, v14
    ; x fragment addresses
    v_bfe_u32 v15, v2, 1, 3
    v_xor_b32 v15, v15, v13
    s_lshl_b32 s35, s28, 12
    v_lshl_add_u32 v3, v10, 7, s35
""")
    for q in range(4):
        A(f"v_xor_b32 v{6+q}, {2*q}, v15")
        A(f"v_lshl_add_u32 v{6+q}, v{6+q}, 4, v3")
    A(f"""
    s_mul_i32 s32, s2, 5120
    s_add_u32 s32, s32, {WS_P}
    s_add_u32 s20, s6, s32
    s_addc_u32 s21, s7, 0
    s_and_b32 s21, s21, 0xffff
    s_mov_b32 s22, {N * 128 + 5120}
    s_mov_b32 s23, 0x20000
    v_lshlrev_b32 v3, 1, v3
    v_lshl_add_u32 v3, v13, 5, v3
    v_lshrrev_b32 v11, 8, v3
    v_lshl_add_u32 v11, v11, 4, v3
    v_add_u32 v11, s31, v11
    v_lshlrev_b32 v4, 4, v0
    v_and_b32 v12, 0x1f0, v0
    v_add_u32 v12, v12, v4
    v_and_b32 v5, 0x70, v4
    v_lshrrev_b32 v4, 4, v0
    v_lshl_add_u32 v4, v4, 7, v5
    v_bfe_u32 v5, v0, 3, 1
    v_mov_b32 v15, {N * 128}
    v_mad_u32_u24 v4, v5, v15, v4
    s_mov_b32 s34, {f32(-LOG2E)}
    s_mov_b32 s35, {f32(-LOG2E)}
    s_waitcnt vmcnt(0)
    s_barrier
""")
    WF, XA, D0 = 16, 32, 48
    for q in range(4):
        A(f"ds_read_b128 {v(XA+4*q,4)}, v{6+q} offset:{XO}")
        for h2 in range(2):
            A(f"ds_read_b64_tr_b16 {v(WF+4*q+2*h2,2)}, v14 offset:{(16*q+4*h2)*64}")
    for q in range(4):
        A(f"s_waitcnt lgkmcnt({9 - 3*q})")
        A(f"v_mfma_f32_32x32x16_bf16 {v(D0,16)}, {v(WF+4*q,4)}, {v(XA+4*q,4)}, {'0' if q == 0 else v(D0,16)}")
    A("s_nop 11")
    for r in range(0, 16, 2):
        A(f"v_pk_mul_f32 {v(D0+r,2)}, {v(D0+r,2)}, s[34:35]")
    for r in range(8):
        A(f"v_cvt_pk_bf16_f32 v{WF+r}, v{D0+2*r}, v{D0+2*r+1}")
    A(f"""
""")
    if "plds" in OPT:
        PO = 24576
        A(f"""
    ds_write_b128 v11, {v(WF,4)} offset:{PO}
    ds_write_b128 v11, {v(WF+4,4)} offset:{PO + 16}
    s_waitcnt lgkmcnt(0)
    s_barrier
    ds_read_b128 {v(XA,4)}, v12 offset:{PO}
    ds_read_b128 {v(XA+4,4)}, v12 offset:{PO + 32*272}
    s_movk_i32 s31, 4096
    s_waitcnt lgkmcnt(1)
    buffer_store_dwordx4 {v(XA,4)}, v4, s[20:23], 0 offen {ST2}
    s_cmp_ge_u32 s3, 2
    s_cbranch_scc1 K1_NEND
    s_waitcnt lgkmcnt(0)
    buffer_store_dwordx4 {v(XA+4,4)}, v4, s[20:23], s31 offen {ST2}
K1_NEND:
""")
    else:
        A(f"""
    buffer_store_dwordx4 {v(WF,4)}, v3, s[20:23], s31 offen {ST2}
    buffer_store_dwordx4 {v(WF+4,4)}, v3, s[20:23], s31 offen offset:16 {ST2}
""")
    if STAMP:
        A(f"""
    s_waitcnt vmcnt(0)
    s_memrealtime s[38:39]
    v_cmp_eq_u32 vcc, 0, v0
    s_and_saveexec_b64 s[26:27], vcc
    s_cbranch_execz K1_END
    s_lshl_b32 s3, s2, 4
    s_add_u32 s3, s3, {WS_STAMP + (1 << 18) + 4096}
    v_mov_b32 v2, s3
    s_waitcnt lgkmcnt(0)
    v_mov_b32 v4, s36
    v_mov_b32 v5, s38
    global_store_dwordx2 v2, v[4:5], s[6:7]
""")
    A(f"""
    s_endpgm
K1_PREP:
    ; task = 2 wg + (wave - 8) : 0..15 W1b image, 16..31 W2 image, 32..35 Wc image, later ones warm the caches with k2's code
    s_lshl_b32 s28, s2, 1
    s_add_u32 s3, s3, s28
    s_sub_u32 s3, s3, 8
    s_cmp_ge_u32 s3, 36
    s_cbranch_scc1 K1_CODE
    s_waitcnt lgkmcnt(0)
    s_cmp_ge_u32 s3, 32
    s_cbranch_scc1 K1_WC
    v_lshrrev_b32 v4, 4, v2
    v_and_b32 v5, 15, v2
    s_cmp_ge_u32 s3, 16
    s_cbranch_scc1 K1_W2
    ; W1b: cb = t>>1, ks = t&1 : k = 64 + 32 ks + 8 (l/16) + e ; col = 16 cb + l%16
    s_and_b32 s24, s3, 1
    s_lshl_b32 s24, s24, 13
    s_lshr_b32 s25, s3, 1
    s_lshl_b32 s25, s25, 5
    s_add_u32 s24, s24, s25
    s_add_u32 s24, s24, 16384
    v_lshlrev_b32 v4, 11, v4
    v_lshl_add_u32 v4, v5, 1, v4
    v_add_u32 v4, s24, v4
""")
    for e in range(8):
        A(f"global_load_ushort v{8+e}, v4, s[8:9] offset:{e*256}")
    A(f"""
    s_branch K1_PACK
K1_W2:
    ; ob = (t>>2)&3, ks = t&3 : k = 32 ks + 8 (l/16) + e ; out = 16 ob + l%16
    s_and_b32 s24, s3, 3
    s_lshl_b32 s24, s24, 12
    s_bfe_u32 s25, s3, 0x20002
    s_lshl_b32 s25, s25, 5
    s_add_u32 s24, s24, s25
    v_lshlrev_b32 v4, 10, v4
    v_lshl_add_u32 v4, v5, 1, v4
    v_add_u32 v4, s24, v4
""")
    for e in range(8):
        A(f"global_load_ushort v{8+e}, v4, s[12:13] offset:{e*128}")
    A(f"""
K1_PACK:
    s_lshl_b32 s24, s3, 10
    s_add_u32 s24, s24, {WS_W1B}
    v_lshl_add_u32 v4, v2, 4, s24
    s_waitcnt vmcnt(0)
""")
    for e in range(4):
        A(f"v_lshl_or_b32 v{16+e}, v{9+2*e}, 16, v{8+2*e}")
    A(f"""
    global_store_dwordx4 v4, v[16:19], s[6:7]
    s_endpgm
K1_WC:
    s_sub_u32 s25, s3, 32
    s_lshl_b32 s24, s25, 6
    s_add_u32 s24, s24, {128 * 256}
    v_and_b32 v5, 31, v2
    v_lshl_add_u32 v4, v5, 1, s24
""")
    for e in range(4):
        A(f"global_load_ushort v{8+e}, v4, s[8:9] offset:{e*256}")
    A(f"""
    s_mov_b32 s26, {f32(-LOG2E)}
    s_lshl_b32 s24, s25, 9
    s_add_u32 s24, s24, {WS_WC}
    v_lshl_add_u32 v4, v2, 3, s24
    v_cmp_le_u32 vcc, 32, v2
    s_waitcnt vmcnt(0)
""")
    for e in range(4):
        A(f"v_lshlrev_b32 v{8+e}, 16, v{8+e}")
    for e in range(4):
        A(f"v_mul_f32 v{8+e}, s26, v{8+e}")
    for e in range(4):
        A(f"v_and_b32 v{12+e}, 0xffff0000, v{8+e}")
    for e in range(4):
        A(f"v_sub_f32 v{8+e}, v{8+e}, v{12+e}")
    for e in range(4):
        A(f"v_cndmask_b32 v{8+e}, v{12+e}, v{8+e}, vcc")
    A(f"""
    v_cvt_pk_bf16_f32 v16, v8, v9
    v_cvt_pk_bf16_f32 v17, v10, v11
    global_store_dwordx2 v4, v[16:17], s[6:7]
    s_endpgm
K1_CODE:
    s_cmp_ge_u32 s3, 41
    s_cbranch_scc1 {"K1_PF" if "code" in OPT else "K1_END"}
    s_waitcnt lgkmcnt(0)
    s_cmp_eq_u32 s3, 40
    s_cbranch_scc1 K1_B1
    s_getpc_b64 s[24:25]
K1_PC:
    s_add_u32 s24, s24, K_TABLE-K1_PC
    s_addc_u32 s25, s25, 0
    s_sub_u32 s26, s3, 36
    s_lshl_b32 s26, s26, 10
    v_lshl_add_u32 v4, v2, 4, s26
    global_load_dwordx4 v[8:11], v4, s[24:25]
    v_add_u32 v4, {WS_CB}, v4
    s_waitcnt vmcnt(0)
    global_store_dwordx4 v4, v[8:11], s[6:7]
    s_endpgm
K1_B1:
    v_lshlrev_b32 v4, 2, v2
    global_load_dword v8, v4, s[10:11]
    v_lshlrev_b32 v4, 3, v2
    v_add_u32 v4, {WS_B1}, v4
    s_waitcnt vmcnt(0)
    v_and_b32 v9, 0xffff0000, v8
    v_lshlrev_b32 v8, 16, v8
    v_mul_f32 v8, {f32(-LOG2E)}, v8
    v_mul_f32 v9, {f32(-LOG2E)}, v9
    global_store_dwordx2 v4, v[8:9], s[6:7]
    s_endpgm
K1_PF:
    s_cmp_ge_u32 s3, {42 + 32}
    s_cbranch_scc1 K1_END
    s_getpc_b64 s[24:25]
K1_PC2:
    s_add_u32 s24, s24, k2_kernel-K1_PC2
    s_addc_u32 s25, s25, 0
    s_and_b32 s26, s3, 1
    s_lshl_b32 s26, s26, 12
    v_lshl_add_u32 v4, v2, 6, s26
    v_min_u32 v4, K_HOT_END-k2_kernel, v4
    global_load_dword v5, v4, s[24:25]
""")
    if "tlb" in OPT:
        A(f"""
    s_load_dwordx2 s[28:29], s[0:1], 8
    s_load_dwordx2 s[30:31], s[0:1], 64
    v_mul_u32_u24 v6, 80000, v2
    v_mul_u32_u24 v7, 20000, v2
    v_mov_b32 v8, 0
    s_waitcnt lgkmcnt(0)
    global_load_dword v9, v6, s[28:29]
    global_load_dword v10, v7, s[30:31]
    global_load_dword v11, v8, s[14:15]
""")
    A(f"""
    s_waitcnt vmcnt(0)
    s_endpgm
.p2align 4
.type K_TABLE,@object
K_TABLE:
""")
    T = lane_table()
    for piece in range(4):
        for l in range(64):
            A(".long " + ", ".join(str(x & 0xffffffff) for x in T[l][4*piece:4*piece+4]))
    A(".size K_TABLE, 4096")
    return 64, 40


def gen_k2(A):
    R = Regs(1)
    lane = R.a()
    t0, t1, t2, t3 = R.a(), R.a(), R.a(), R.a()
    guard, deg, l16, EB, rem = R.a(), R.a(), R.a(), R.a(), R.a()
    LC = R.a(16, 2)
    la_w, la_e, le, tab = LC, LC + 1, LC + 2, LC + 3
    j4, ce0, grp, cw0 = LC + 4, LC + 5, LC + 6, LC + 7
    OH, dq, tb0 = LC + 8, LC + 10, LC + 11
    TA = [[LC + 12, LC + 13], [LC + 14, LC + 15]]
    lw = R.a(4, 2)
    qa, ha = R.a(2, 2), R.a(2, 2)
    b2r = R.a(2, 2)
    nn, dd, tt, rr = [R.a(2, 2) for _ in range(4)]
    acc = R.a(8, 2)
    A5 = R.a(4, 2)
    B5 = [R.a(4, 2) for _ in range(4)]
    D = [R.a(16, 2) for _ in range(2)]
    EX = R.a(16, 2)
    tl = R.a()
    jk = R.a(4, 2)
    nvgpr = R.n
    assert nvgpr <= 128, nvgpr
    CW, RK, CA, EI = D[0], D[0] + 8, D[1], D[1] + 8
    C64 = EX
    QB, QA, QA2, QD = EX, EX + 8, acc, nn
    assert rr == nn + 6

    SP0, SP1, SE, SW, SO, SS, SD_, SXR = 28, 32, 36, 40, 44, 48, 52, 72
    MK = 56
    s_b = 76
    s_wave, s_o3, s_o2, s_o1, s_msk, s_q, s_rem, s_x, s_slow, s_safe, s_chunk = range(78, 89)
    s_t, s_u = 89, 90
    sA, sB = 26, 27
    s_m0, s_chg, s_hi = 0, 3, 22
    s_oh = MK
    s_ne = SE + 2
    STR = [92, 4, 6, 96, 98, 12, 14, 100, 72, 20]

    def stamp(i):
        if DL[0] == i:
            A(f"""
K_DL:
            s_waitcnt lgkmcnt(0)
            s_memrealtime {s(STR[i],2)}
            s_waitcnt lgkmcnt(0)
            s_sub_u32 {s(STR[i])}, {s(STR[i])}, {s(s_x)}
            s_cmp_lt_u32 {s(STR[i])}, {DL[1]*100}
            s_cbranch_scc1 K_DL
""")
        if STAMP:
            A(f"s_waitcnt lgkmcnt(0)\n{TM} {s(STR[i],2)}\ns_waitcnt lgkmcnt(0)")

    def tab_load():
        return [f"v_lshrrev_b32 {v(EB)}, 2, v0", f"v_lshlrev_b32 {v(t0)}, 10, {v(EB)}",
                f"s_lshl_b32 {s(s_u)}, {s(s_b)}, 2", f"s_add_u32 {s(s_u)}, {s(s_u)}, {WS_TAB}"], \
               [f"buffer_load_dword {v(rem)}, {v(t0)}, {s(SW,4)}, {s(s_u)} offen"]

    def rec_pre():
        return [f"v_and_b32 {v(t1)}, 48, {v(l16)}", f"v_mul_u32_u24 {v(t0)}, {RECB}, {v(EB)}",
                f"v_add_u32 {v(t0)}, {v(t0)}, {v(t1)}", f"v_mul_u32_u24 {v(EB)}, {CH}, {v(EB)}"]

    def rec_loads(tag):
        A(f"""
        v_add_u32_sdwa {v(t0)}, {v(t0)}, {v(rem)} dst_sel:DWORD dst_unused:UNUSED_PAD src0_sel:DWORD src1_sel:WORD_0
        v_lshrrev_b32 {v(rem)}, 16, {v(rem)}
        {"v_lshrrev_b32 " + v(EB) + ", 2, " + v(t0) if "e2" in OPT else ""}
        {"v_min_u32 " + v(EB) + ", 639000, " + v(EB) if "e2" in OPT else ""}
        buffer_load_dwordx4 {v(CW,4)}, {v(t0)}, {s(SW,4)}, 0 offen
        v_cmp_lt_u32 vcc, 64, {v(rem)}
        v_sub_u32 {v(rem)}, {v(rem)}, {v(t1)}
        s_cmp_lg_u64 vcc, 0
        s_cselect_b32 {s(s_hi)}, 1, 0
        s_cbranch_scc0 K_NOHI{tag}
        s_mov_b64 exec, vcc
        buffer_load_dwordx4 {v(CW+4,4)}, {v(t0)}, {s(SW,4)}, 0 offen offset:64
        s_mov_b64 exec, -1
K_NOHI{tag}:
""")
        for i in range(4):
            A(f"v_cmp_lt_i32 {s(MK+2*i,2)}, {4*i}, {v(rem)}")

    def warm(opt, half, w0):
        if opt not in OPT:
            return []
        return [f"s_lshr_b32 {s(sA)}, s2, 3", f"s_mul_i32 {s(sA)}, {s(sA)}, 40000",
                f"s_mul_i32 {s(sB)}, {s(s_wave)}, 2560", f"s_add_u32 {s(sA)}, {s(sA)}, {s(sB)}",
                f"s_add_u32 {s(sA)}, {s(sA)}, {WS_P + (N*128 if half else 0)}", f"v_lshlrev_b32 {v(b2r+1)}, 6, {v(lane)}",
                "s_mov_b32 exec_hi, 0xff",
                f"buffer_load_dword {v(b2r)}, {v(b2r+1)}, {s(SW,4)}, {s(sA)} offen",
                "s_mov_b64 exec, -1"]

    def warmfull(opt):
        if opt not in OPT:
            return []
        o = [f"s_lshr_b32 {s(sA)}, s2, 3", f"s_mul_i32 {s(sA)}, {s(sA)}, 80000",
             f"s_mul_i32 {s(sB)}, {s(s_wave)}, 5120", f"s_add_u32 {s(sA)}, {s(sA)}, {s(sB)}",
             f"s_add_u32 {s(sA)}, {s(sA)}, {WS_P}", f"s_add_u32 {s(sB)}, {s(sA)}, 4096"]
        o += [f"buffer_load_dwordx4 {v(jk,4)}, {v(l16)}, {s(SW,4)}, {s(sA)} offen offset:{k*1024}" for k in range(4)]
        o += [f"buffer_load_dwordx4 {v(jk,4)}, {v(l16)}, {s(SW,4)}, {s(sB)} offen"]
        return o

    def prefill():
        A(f"""
        v_mov_b32 {v(D[1])}, {PADW}
        v_mov_b32 {v(D[1]+1)}, {PADW}
        v_mov_b64 {v(D[1]+2,2)}, {v(D[1],2)}
        v_mov_b32 {v(D[1]+4)}, {PADE}
        v_mov_b32 {v(D[1]+5)}, {PADE}
        v_mov_b64 {v(D[1]+6,2)}, {v(D[1]+4,2)}
        v_lshlrev_b32 {v(t2)}, 4, v0
        v_add_u32 {v(t2)}, {L_LA}, {v(t2)}
        v_mov_b32 {v(D[1]+8)}, 0
        v_lshlrev_b32 {v(t3)}, 2, {v(lane)}
        ds_write_b128 {v(t2)}, {v(D[1],4)}
        ds_write_b128 {v(t2)}, {v(D[1]+4,4)} offset:{NE*4}
        ds_write2st64_b32 {v(t3)}, {v(D[1]+8)}, {v(D[1]+8)} offset0:{L_CNT//256} offset1:{L_CNT//256 + 1}
""")

    def zero_hsum():
        A(f"""
        v_mov_b64 {v(D[1]+12,2)}, 0
        v_mov_b64 {v(D[1]+14,2)}, 0
        v_mov_b32 {v(guard)}, 0
        v_mov_b32 {v(deg)}, 0
        v_lshlrev_b32 {v(t2)}, 4, v0
        ds_write_b128 {v(t2)}, {v(D[1]+12,4)}
        ds_write_b128 {v(t2)}, {v(D[1]+12,4)} offset:16384
        v_lshlrev_b32 {v(t3)}, 3, v0
        ds_write_b64 {v(t3)}, {v(D[1]+12,2)} offset:32768
""")

    pre, ld = tab_load()
    CBL = L_PB + 16 + 5 * PCS
    A(f"""
.globl k2_kernel
.p2align 8
.type k2_kernel,@function
k2_kernel:
    s_cmp_ge_u32 s2, {NB}
    s_cbranch_scc1 K_END
    s_load_dwordx2 s[24:25], s[0:1], 80
    s_load_dwordx8 s[4:11], s[0:1], 0
    s_load_dwordx4 s[16:19], s[0:1], 56
    {TM + " " + s(STR[0],2) if STAMP or DL[0] >= 0 else ""}
    s_and_b32 {s(s_b)}, s2, 7
    s_lshl_b32 {s(s_b)}, {s(s_b)}, 5
    s_lshr_b32 {s(s_t)}, s2, 3
    s_or_b32 {s(s_b)}, {s(s_b)}, {s(s_t)}
    v_lshrrev_b32 {v(t1)}, 6, v0
    s_mov_b32 {s(SW+2)}, {WS_END}
    s_mov_b32 {s(SW+3)}, 0x20000
    v_readfirstlane_b32 {s(s_wave)}, {v(t1)}
""")
    A(pre)
    A(f"""
    v_and_b32 {v(lane)}, 63, v0
    v_lshlrev_b32 {v(l16)}, 4, {v(lane)}
    s_mul_i32 {s(s_t)}, {s(s_wave)}, {PCS}
    s_add_u32 m0, {s(s_t)}, {L_PB + 16}
    s_waitcnt lgkmcnt(0)
    s_mov_b32 {s(SW)}, s24
    s_and_b32 {s(SW+1)}, s25, 0xffff
""")
    A(ld)
    SPEC = int(os.environ.get("SPEC", "0"))
    if SPEC:
        A(f"""
        s_mul_i32 {s(s_t)}, {s(s_b)}, 625
        s_lshr_b32 {s(s_t)}, {s(s_t)}, 4
        s_and_b32 {s(s_t)}, {s(s_t)}, 0xfffc
        s_max_u32 {s(s_t)}, {s(s_t)}, {SPEC * 3 // 2}
        s_sub_u32 {s(s_t)}, {s(s_t)}, {SPEC * 3 // 2 - 20}
        v_mul_u32_u24 {v(t2)}, {RECB}, {v(EB)}
        v_and_b32 {v(t3)}, 3, v0
        v_mad_u32_u24 {v(t2)}, {v(t3)}, {s(s_u)}, {v(t2)}
        buffer_load_dword {v(b2r)}, {v(t2)}, {s(SW,4)}, {s(s_t)} offen
""".replace(f"v_mul_u32_u24 {v(t2)}", f"s_movk_i32 {s(s_u)}, {SPEC}\nv_mul_u32_u24 {v(t2)}", 1))
    A(f"""
    {"s_mov_b32 " + s(s_x) + ", " + s(STR[0]) if STAMP or DL[0] >= 0 else ""}
    s_cmp_ge_u32 {s(s_wave)}, 5
    s_cbranch_scc1 K_CBL
    s_mov_b32 {s(SXR)}, s4
    s_and_b32 {s(SXR+1)}, s5, 0xffff
    s_mov_b32 {s(SXR+2)}, {N * 128}
    s_mov_b32 {s(SXR+3)}, 0x20000
    v_lshrrev_b32 {v(t2)}, 3, v0
    v_xor_b32 {v(t3)}, v0, {v(l16)}
    v_and_b32 {v(t3)}, 0x70, {v(t3)}
    v_lshl_add_u32 {v(t3)}, {v(t2)}, 15, {v(t3)}
    s_lshl_b32 {s(s_t)}, {s(s_b)}, 7
    buffer_load_dwordx4 {v(t3)}, {s(SXR,4)}, {s(s_t)} offen lds
    s_branch K_CBD
K_CBL:
    s_lshl_b32 {s(s_t)}, {s(s_wave)}, 10
    s_add_u32 {s(s_t)}, {s(s_t)}, {WS_CB - 5 * 1024}
    buffer_load_dwordx4 {v(l16)}, {s(SW,4)}, {s(s_t)} offen lds
K_CBD:
    s_and_b32 {s(s_u)}, {s(s_wave)}, 7
    s_lshl_b32 {s(s_t)}, {s(s_u)}, 11
    s_add_u32 {s(s_t)}, {s(s_t)}, {WS_W1B}
    buffer_load_dwordx4 {v(QB,4)}, {v(l16)}, {s(SW,4)}, {s(s_t)} offen
    buffer_load_dwordx4 {v(QB+4,4)}, {v(l16)}, {s(SW,4)}, {s(s_t)} offen offset:1024
""")
    A(rec_pre())
    prefill()
    A(f"s_waitcnt vmcnt({3 + (SPEC > 0)})")
    stamp(7)
    rec_loads("A")
    zero_hsum()
    A(f"""
    s_cmp_lg_u32 {s(s_wave)}, 15
    s_cbranch_scc1 K_NOGAP
""")
    if "tlb2" in OPT:
        A(f"""
    s_mov_b64 exec, 15
    v_mul_u32_u24 {v(t2)}, 1700000, {v(lane)}
    global_load_dword {v(jk)}, {v(t2)}, s[6:7]
    v_mul_u32_u24 {v(t2)}, 400000, {v(lane)}
    global_load_dword {v(jk)}, {v(t2)}, s[18:19]
    v_mov_b32 {v(t2)}, 0
    global_load_dword {v(jk)}, {v(t2)}, s[16:17]
    s_mov_b64 exec, -1
""")
    A(f"""
    v_mul_u32_u24 {v(t2)}, {PCS}, {v(lane)}
    v_add_u32 {v(t2)}, {L_PB}, {v(t2)}
    ds_write_b128 {v(t2)}, {v(D[1]+12,4)}
    ds_write_b128 {v(t2)}, {v(D[1]+12,4)} offset:{PCS}
K_NOGAP:
    v_add_u32 {v(t0)}, {CBL}, {v(l16)}
    v_lshrrev_b32 {v(t1)}, 1, {v(l16)}
    v_add_u32 {v(t1)}, {CBL + 4*PCS}, {v(t1)}
    s_lshr_b32 {s(s_t)}, {s(s_wave)}, 3
    s_mul_i32 {s(sA)}, {s(s_t)}, {2*PCS}
    s_lshl_b32 {s(s_t)}, {s(s_t)}, 13
    s_lshl_b32 {s(s_u)}, {s(s_u)}, 6
    s_add_u32 {s(s_t)}, {s(s_t)}, {s(s_u)}
    s_add_u32 {s(s_u)}, {s(s_u)}, {CBL + 6*PCS}
    s_waitcnt vmcnt(3) lgkmcnt(0)
    s_barrier
""")
    for k in range(4):
        A(f"ds_read_b128 {v(LC+4*k,4)}, {v(t0)} offset:{k*PCS}")
    for n in range(4):
        A(f"ds_read_b64 {v(B5[n],2)}, {v(t1)} offset:{(n//2)*PCS + (n%2)*512}")
    A(f"""
    s_add_u32 {s(SP0)}, s24, {WS_P - 3*PCS}
    s_addc_u32 {s(SP0+1)}, s25, {2 << 16}
    s_mov_b32 {s(SP0+2)}, {N * 64}
    s_mov_b32 {s(SP0+3)}, 0x20000
    s_add_u32 {s(SP1)}, s24, {WS_P - 3*PCS + N*128}
    s_addc_u32 {s(SP1+1)}, s25, {2 << 16}
    s_mov_b32 {s(SP1+2)}, {N * 64}
    s_mov_b32 {s(SP1+3)}, 0x20000
    s_waitcnt lgkmcnt(7)
    v_add_u32 {v(la_w)}, {s(sA)}, {v(la_w)}
    v_add_u32 {v(la_e)}, {s(sA)}, {v(la_e)}
    v_add_u32 {v(le)}, {s(s_u)}, {v(le)}
    ds_read_b128 {v(QA,4)}, {v(la_w)}
    ds_read_b128 {v(QA+4,4)}, {v(la_e)}
    ds_read_b32 {v(qa)}, {v(le)}
    ds_read_b128 {v(QA2,4)}, {v(la_w)} offset:{2*PCS}
    ds_read_b128 {v(QA2+4,4)}, {v(la_e)} offset:{2*PCS}
    v_add_u32 {v(ha)}, {s(s_t)}, {v(tab)}
    s_mov_b32 {s(SE)}, s6
    s_or_b32 {s(SE+1)}, s7, {8 << 16}
    s_mov_b32 {s(SE+2)}, {E}
    s_mov_b32 {s(SE+3)}, 0x20000
    s_movk_i32 {s(s_o3)}, {3*PCS}
    s_movk_i32 {s(s_o2)}, {2*PCS}
    s_movk_i32 {s(s_o1)}, {PCS}
    s_mov_b32 {s(s_msk)}, 0xfffc0
    s_mov_b32 {s(s_safe)}, 0
    s_mov_b32 {s(s_slow)}, 0
    s_mul_i32 {s(s_m0)}, {s(s_wave)}, {PBW}
    s_add_u32 {s(s_m0)}, {s(s_m0)}, {L_PB + 16}
    s_mov_b32 m0, {s(s_m0)}
    s_mov_b32 {s(s_q)}, 1
    s_waitcnt lgkmcnt(5)
""")
    for a in (TA[0][0], TA[0][1], TA[1][0], TA[1][1]):
        A(f"v_add_u32 {v(a)}, {s(s_m0)}, {v(a)}")

    def qpart(base, off):
        for r in range(4):
            A(f"v_fma_f32 {v(base+r)}, {v(base+r)}, {s(s_t)}, {v(qa)}")
        for r in range(4):
            A(f"v_and_b32 {v(QA+r)}, 0xffff0000, {v(base+r)}")
        for r in range(4):
            A(f"v_sub_f32 {v(base+r)}, {v(base+r)}, {v(QA+r)}")
        for r in range(4):
            A(f"v_cvt_pk_bf16_f32 {v(base+r)}, {v(QA+r)}, {v(base+r)}")
        for r in range(0, 4, 2):
            A(f"ds_write2st64_b32 {v(ha)}, {v(base+r)}, {v(base+r+1)} offset0:{(off + r*512)//256} offset1:{(off + r*512 + 512)//256}")

    def qcompute():
        A(f"""
        v_mfma_f32_16x16x32_bf16 {v(QD,4)}, {v(QA,4)}, {v(QB,4)}, 0
        v_mfma_f32_16x16x32_bf16 {v(QD,4)}, {v(QA+4,4)}, {v(QB+4,4)}, {v(QD,4)}
        v_mfma_f32_16x16x32_bf16 {v(QD+4,4)}, {v(QA2,4)}, {v(QB,4)}, 0
        v_mfma_f32_16x16x32_bf16 {v(QD+4,4)}, {v(QA2+4,4)}, {v(QB+4,4)}, {v(QD+4,4)}
        s_mov_b32 {s(s_t)}, {f32(-LOG2E)}
        s_mov_b32 {s(s_q)}, 0
        s_nop 3
""")
        qpart(QD, 0)
        A(f"s_cmp_lt_u32 {s(s_wave)}, 8\ns_cbranch_scc1 K_QD\ns_mov_b32 exec_hi, 0")
        qpart(QD + 4, 16 * 512)
        A("s_mov_b32 exec_hi, -1\nK_QD:\ns_waitcnt lgkmcnt(0)\ns_barrier")
    NWM = NWB = 0

    def p1words(xs):
        for x in xs:
            A(f"v_lshlrev_b32_sdwa {v(CA+x)}, 2, {v(CW+x)} dst_sel:BYTE_0 dst_unused:UNUSED_PAD src0_sel:DWORD src1_sel:DWORD")
        for x in xs:
            A(f"s_mov_b64 exec, {s(MK+2*x,2)}")
            A(f"ds_add_rtn_u32 {v(RK+x)}, {v(CA+x)}, {v(t3)} offset:{L_CNT}")
        A("s_mov_b64 exec, -1")

    LO = [0, 1, 2, 3]
    HI = [4, 5, 6, 7]
    A(warm("q1", 128, 0))
    A(f"s_waitcnt vmcnt({NWM + NWB})\nK_PASS1:\nv_mov_b32 {v(t3)}, 4")
    stamp(1)
    A(warm("p0", 0, 5) + warm("p1", 128, 5))
    p1words(LO)
    A(f"""
    s_cmp_lg_u32 {s(s_hi)}, 0
    s_cbranch_scc1 K_HI1
K_HB1:
""")
    for x in LO:
        if "e2" in OPT:
            A(f"v_add_u32 {v(EI+x)}, {x}, {v(EB)}")
            continue
        A(f"v_lshrrev_b32 {v(EI+x)}, 20, {v(CW+x)}")
        A(f"v_add_u32 {v(EI+x)}, {v(EI+x)}, {v(EB)}")
    stamp(2)
    A(f"""
    v_lshlrev_b32 {v(t0)}, 2, {v(lane)}
    v_mov_b32 {v(t2)}, {L_FLAG}
    s_waitcnt lgkmcnt(0)
    s_barrier
    ds_read_b32 {v(t1)}, {v(t0)} offset:{L_CNT}
    ds_read_b32 {v(t2)}, {v(t2)}
    s_waitcnt lgkmcnt(1)
    v_add_u32 {v(t3)}, 31, {v(t1)}
    v_and_b32 {v(t3)}, -32, {v(t3)}
    v_mov_b32 {v(t0)}, {v(t3)}
    s_nop 1
""")
    for d in DPP_SCAN:
        A(f"v_add_u32_dpp {v(t0)}, {v(t0)}, {v(t0)} {d}\ns_nop 1")
    A(f"""
    v_readlane_b32 {s(sB)}, {v(t0)}, 63
    v_sub_u32 {v(t0)}, {v(t0)}, {v(t3)}
    v_add_u32 {v(t0)}, {L_LA}, {v(t0)}
""")
    A(f"s_waitcnt lgkmcnt(0)\ns_cmp_eq_u32 {s(s_hi)}, 0\ns_cbranch_scc1 K_NOHB")
    for x in HI:
        A(f"ds_bpermute_b32 {v(CA+x)}, {v(CA+x)}, {v(t0)}")
    A("K_NOHB:")
    for x in LO:
        A(f"ds_bpermute_b32 {v(CA+x)}, {v(CA+x)}, {v(t0)}")
    A(f"""
    v_readfirstlane_b32 {s(sA)}, {v(t2)}
    v_lshrrev_b32 {v(t2)}, 4, {v(lane)}
    s_cmp_gt_u32 {s(sB)}, {CAPB}
    s_cselect_b32 {s(s_t)}, 1, 0
    s_or_b32 {s(sA)}, {s(sA)}, {s(s_t)}
    s_cbranch_scc1 K_GOSLOW
    v_add_u32 {v(deg)}, {v(deg)}, {v(t1)}
    s_add_u32 {s(sB)}, {s(sB)}, 127
    s_lshr_b32 {s(sB)}, {s(sB)}, 7
    s_add_u32 {s(s_rem)}, {s(sB)}, {NWV - 1}
    s_sub_u32 {s(s_rem)}, {s(s_rem)}, {s(s_wave)}
    s_lshr_b32 {s(s_rem)}, {s(s_rem)}, 4
    s_lshr_b32 {s(s_t)}, {s(sB)}, 4
    s_mul_i32 {s(s_t)}, {s(s_t)}, {s(s_wave)}
    s_and_b32 {s(sB)}, {s(sB)}, {NWV - 1}
    s_min_u32 {s(sB)}, {s(sB)}, {s(s_wave)}
    s_add_u32 {s(s_t)}, {s(s_t)}, {s(sB)}
    s_lshl_b32 {s(s_t)}, {s(s_t)}, 7
    s_lshl_b32 {s(s_u)}, {s(s_rem)}, 5
    s_waitcnt lgkmcnt(0)
""")
    for x in LO:
        A(f"v_add_u32 {v(CA+x)}, {v(CA+x)}, {v(RK+x)}")
    for x in LO:
        A(f"s_mov_b64 exec, {s(MK+2*x,2)}")
        A(f"ds_write2st64_b32 {v(CA+x)}, {v(CW+x)}, {v(EI+x)} offset0:0 offset1:{NE*4//256}")
    A(f"""
    s_mov_b64 exec, -1
    s_cmp_lg_u32 {s(s_hi)}, 0
    s_cbranch_scc1 K_HI2
K_HB2:
    v_mul_u32_u24 {v(t2)}, {s(s_u)}, {v(t2)}
    v_add3_u32 {v(la_w)}, {v(t2)}, {v(cw0)}, {s(s_t)}
    v_mul_u32_u24 {v(la_e)}, {s(s_u)}, {v(grp)}
    v_add3_u32 {v(la_e)}, {v(la_e)}, {v(ce0)}, {s(s_t)}
    v_add3_u32 {v(tab)}, {v(tb0)}, {v(t2)}, {s(s_t)}
    s_waitcnt lgkmcnt(0)
    s_barrier
""")
    stamp(3)
    if "tl" in OPT:
        A(f"v_mov_b32 {v(tl)}, 0\nv_writelane_b32 {v(tl)}, {s(STR[3])}, 0\ns_mov_b32 s91, 1")
    if "p3" in OPT:
        A("s_setprio 3")

    def dma(u):
        so = [s(s_o3), s(s_o2), s(s_o1), "0"]
        srd = SP0 if u == 0 else SP1
        return [f"buffer_load_dwordx4 {v(lw+q)}, {s(srd,4)}, {so[q]} idxen offset:{q*PCS} lds" for q in range(4)]

    def idx():
        return [f"v_and_or_b32 {v(lw+q)}, {v(lw+q)}, {s(s_msk)}, {v(dq)}" for q in range(4)]

    def eload():
        return f"buffer_load_dwordx2 {v(A5,2)}, {v(le)}, {s(SE,4)}, 0 idxen" + (" nt" if "ent" in OPT else "")

    def ohcmp():
        return f"v_cmp_gt_u32 vcc, {s(s_ne)}, {v(le)}"

    def ohsel():
        return [f"v_cndmask_b32 {v(A5+2)}, 0, {v(OH)}, vcc", f"v_cndmask_b32 {v(A5+3)}, 0, {v(OH+1)}, vcc"]

    def lists():
        return [f"ds_read_b128 {v(lw,4)}, {v(la_w)}", f"ds_read_b32 {v(le)}, {v(la_e)}"]

    def laup():
        return [f"v_add_u32 {v(x)}, 32, {v(x)}" for x in (la_w, la_e)]

    def flush():
        o = [f"v_cvt_f64_f32 {v(C64+2*i,2)}, {v(acc+i)}" for i in range(8)]
        o2 = [f"ds_add_f64 {v(ha + i%2)}, {v(C64+2*i,2)} offset:{(i//2)*256}" for i in range(8)]
        return o, o2

    def qaddr(fill):
        o = [f"v_mov_b32_dpp {v(qa)}, {v(tab)} row_newbcast:0 row_mask:0xf bank_mask:0xf",
             f"v_mov_b32_dpp {v(qa+1)}, {v(tab)} row_newbcast:0 row_mask:0xf bank_mask:0xf"]
        o += fill[:2]
        o += [f"v_permlane16_swap_b32 {v(qa)}, {v(qa+1)}"]
        o += fill[2:4]
        o += [f"v_add_u32 {v(qa)}, {v(qa)}, {v(j4)}", f"v_add_u32 {v(qa+1)}, {v(qa+1)}, {v(j4)}"]
        o += fill[4:]
        for n in range(4):
            for k in range(2):
                o.append(f"ds_read_b32 {v(B5[n]+2+k)}, {v(qa+k)} offset:{L_QT + n*128}")
        return o

    zacc = [f"v_mov_b64 {v(acc+2*n,2)}, 0" for n in range(4)]
    haup = [f"v_lshlrev_b32 {v(ha+k)}, 1, {v(qa+k)}" for k in range(2)]

    def hread():
        o = []
        for n in range(2):
            for m in range(8):
                o.append(f"ds_read_b64_tr_b16 {v(D[n]+2*m,2)}, {v(TA[n][m>>2])} offset:{(m&3)*PCS}")
        return o

    def mf(n):
        return f"v_mfma_f32_32x32x16_bf16 {v(D[n%2],16)}, {v(A5,4)}, {v(B5[n],4)}, {v(D[n%2],16)}"

    NEARLY = int(os.environ.get("NEARLY", "8"))
    A(lists())
    A(f"""
    ds_read_b32 {v(tab)}, {v(tab)}
    s_waitcnt lgkmcnt(2)
""")
    A(idx())
    A(f"""
    s_waitcnt lgkmcnt(0)
    s_cmp_ge_u32 {s(s_wave)}, {NEARLY}
    s_cbranch_scc1 K_LATE0
""")
    A(dma(0) + [eload()])
    A(f"""
K_LATE0:
    s_cmp_eq_u32 {s(s_q)}, 0
    s_cbranch_scc1 K_NOQ
""")
    qcompute()
    A(f"""
K_NOQ:
    s_cmp_lt_u32 {s(s_wave)}, {NEARLY}
    s_cbranch_scc1 K_LATE1
""")
    A(dma(0) + [eload()])
    A(f"""
K_LATE1:
    s_cmp_eq_u32 {s(s_rem)}, 0
    s_cbranch_scc1 K_DONE
""")
    A(ohcmp())
    A(f"""
    v_and_b32 {v(tab)}, 63, {v(tab)}
    v_lshlrev_b32 {v(tab)}, 9, {v(tab)}
""")
    A(ohsel())
    A(f"v_mov_b32 {v(t0)}, {v(tab)}")
    A(laup())
    A(f"v_mov_b32_dpp {v(t0)}, {v(tab)} row_shr:1 row_mask:0xf bank_mask:0xf")
    A(qaddr(zacc))
    A(haup)
    A(f"""
    v_cmp_ne_u32 vcc, {v(t0)}, {v(tab)}
    s_or_b32 {s(s_chg)}, vcc_lo, vcc_hi
    s_lshr_b32 {s(s_t)}, {s(s_chg)}, 16
    s_or_b32 {s(s_chg)}, {s(s_chg)}, {s(s_t)}
    s_setprio 3
    {"s_waitcnt vmcnt(0)" if "pw" in OPT else ""}
""")
    stamp(4)
    A(f"""
    s_cmp_eq_u32 {s(s_safe)}, 0
    s_cbranch_scc0 K_LOOP_S
""")

    def compute(u, safe, mid, tail):
        o = []
        for bb in range(2):
            b = 2 * u + bb
            cur = D[bb]
            if not safe and bb:
                o += [f"v_rcp_f32 {v(rr)}, {v(dd)}", f"v_rcp_f32 {v(rr+1)}, {v(dd+1)}"]
            o += [f"v_exp_f32 {v(EX+i)}, {v(cur+i)}" for i in range(16)]
            if bb == 0:
                o += mid
            if not safe:
                if bb:
                    o.append(f"v_max3_f32 {v(guard)}, {v(guard)}, {v(dd)}, {v(dd+1)}")
                    o.append(f"v_pk_fma_f32 {v(acc+2*(b-1),2)}, {v(nn,2)}, {v(rr,2)}, {v(acc+2*(b-1),2)}")
                o.append(f"v_pk_add_f32 {v(dd,2)}, {v(EX,2)}, 1.0 op_sel_hi:[1,0]")
                n_ = v(cur, 2)
                for k in range(1, 8):
                    e_, z_ = v(EX + 2 * k, 2), v(cur + 2 * k, 2)
                    o.append(f"v_pk_fma_f32 {v(tt,2)}, {n_}, {e_}, {n_}")
                    o.append(f"v_pk_fma_f32 {v(nn,2)}, {z_}, {v(dd,2)}, {v(tt,2)}")
                    o.append(f"v_pk_fma_f32 {v(dd,2)}, {v(dd,2)}, {e_}, {v(dd,2)}")
                    n_ = v(nn, 2)
            else:
                for k in range(8):
                    o.append(f"v_pk_add_f32 {v(EX+2*k,2)}, {v(EX+2*k,2)}, 1.0 op_sel_hi:[1,0]")
                for i in range(16):
                    o.append(f"v_rcp_f32 {v(EX+i)}, {v(EX+i)}")
                for k in range(8):
                    o.append(f"v_pk_fma_f32 {v(acc+2*b,2)}, {v(cur+2*k,2)}, {v(EX+2*k,2)}, {v(acc+2*b,2)}")
        if not safe:
            o += [f"v_rcp_f32 {v(rr)}, {v(dd)}", f"v_rcp_f32 {v(rr+1)}, {v(dd+1)}",
                  f"v_max3_f32 {v(guard)}, {v(guard)}, {v(dd)}, {v(dd+1)}",
                  f"v_pk_fma_f32 {v(acc+4*u+2,2)}, {v(nn,2)}, {v(rr,2)}, {v(acc+4*u+2,2)}"]
        if "tl" in OPT:
            o += [TM + " s[94:95]", "s_waitcnt lgkmcnt(0)", "s_mov_b32 m0, s91", f"v_writelane_b32 {v(tl)}, s94, m0",
                  f"s_mov_b32 m0, {s(s_m0)}", "s_add_u32 s91, s91, 1"]
        return o + tail

    def loop(safe):
        sf = "S" if safe else "F"
        rot = f"v_mov_b32_dpp {v(tab)}, {v(tab)} row_shl:1 row_mask:0xf bank_mask:0xf bound_ctrl:0"
        st = ["s_waitcnt vmcnt(1)"] + hread()
        st += [f"s_cmp_gt_u32 {s(s_rem)}, 3", f"s_cbranch_scc0 K_PRIO_{sf}", f"K_PB_{sf}:"]
        st += ["s_waitcnt vmcnt(0) lgkmcnt(8)", mf(0), "s_waitcnt lgkmcnt(0)", mf(1)] + dma(1) + lists()
        st += [f"s_lshr_b32 {s(s_chg)}, {s(s_chg)}, 1", f"s_sub_u32 {s(s_rem)}, {s(s_rem)}, 1", "s_nop 1"]
        st += compute(0, safe, [rot], ["s_waitcnt lgkmcnt(0)"] + idx() + [ohcmp()])
        st += ["s_waitcnt vmcnt(0)"] + hread()
        st += ["s_waitcnt lgkmcnt(8)", mf(2), "s_waitcnt lgkmcnt(0)", mf(3)] + dma(0) + [eload()]
        st += ohsel() + laup() + ["s_nop 0"]
        st += compute(1, safe, [], [])
        if "E" in ABL: st = [x for x in st if not x.startswith("buffer_load_dwordx2")]
        if "X" in ABL: st = [x if not x.endswith(" lds") else "s_nop 0" for x in st]
        if "A" in ABL: st = [x for x in st if not x.startswith("ds_read_b64_tr")]
        A(f".p2align 6\nK_LOOP_{sf}:")
        A(st)
        c, a = flush()
        A(f"""
        s_cmp_eq_u32 {s(s_rem)}, 0
        s_cbranch_scc1 K_LAST_{sf}
        s_bitcmp1_b32 {s(s_chg)}, 0
        {"s_cbranch_scc0" if "C" not in ABL else "s_branch"} K_LOOP_{sf}
""")
        A(qaddr(c) + a + zacc + haup)
        A(f"s_branch K_LOOP_{sf}")
        A(f"""
K_PRIO_{sf}:
        s_setprio 2
        s_cmp_eq_u32 {s(s_rem)}, 3
        s_cbranch_scc1 K_PB_{sf}
        s_setprio 1
        s_cmp_eq_u32 {s(s_rem)}, 2
        s_cbranch_scc1 K_PB_{sf}
        s_setprio 0
        s_branch K_PB_{sf}
K_LAST_{sf}:
""")
        A(c + a)
        if safe:
            A("s_branch K_DONE")
    loop(False)

    W2 = B5[0]
    A(f"""
K_DONE:
    s_setprio 0
    s_cmp_eq_u32 {s(s_slow)}, 0
    s_cbranch_scc0 K_NEXTCHUNK
K_FIN:
""")
    if "tl" in OPT:
        A(f"""
        s_lshl_b32 {s(s_t)}, s2, 12
        s_add_u32 {s(s_t)}, {s(s_t)}, {WS_STAMP + (1 << 20)}
        v_lshl_add_u32 {v(t0)}, v0, 2, {s(s_t)}
        global_store_dword {v(t0)}, {v(tl)}, s[24:25]
""")
    stamp(5)
    A(f"""
    ; W2 fragments (ob = w&3) and b2
    s_mov_b32 {s(SO)}, s18
    s_and_b32 {s(SO+1)}, s19, 0xffff
    s_mov_b32 {s(SO+2)}, {N * 128}
    s_mov_b32 {s(SO+3)}, 0x20000
    s_and_b32 {s(s_u)}, {s(s_wave)}, 3
    s_lshl_b32 {s(s_t)}, {s(s_u)}, 12
    s_add_u32 {s(s_t)}, {s(s_t)}, {WS_W2}
    s_lshl_b32 {s(s_u)}, {s(s_u)}, 5
    v_lshrrev_b32 {v(t1)}, 4, {v(lane)}
    v_lshl_add_u32 {v(la_w)}, {v(t1)}, 3, {s(s_u)}
""")
    for ks in range(4):
        A(f"buffer_load_dwordx4 {v(D[1]+4*ks,4)}, {v(l16)}, {s(SW,4)}, {s(s_t)} offen offset:{ks*1024}")
    A(f"""
    global_load_dwordx2 {v(b2r,2)}, {v(la_w)}, s[16:17]
    v_lshrrev_b32 {v(t0)}, 4, v0
    v_lshlrev_b32 {v(t2)}, 6, v0
    v_mul_u32_u24 {v(t3)}, {HB_STRIDE}, {v(t0)}
    v_and_b32 {v(t0)}, 0xf0, {v(l16)}
    v_add3_u32 {v(t3)}, {v(t3)}, {v(t0)}, {s(sA)}
    v_and_b32 {v(t0)}, 15, {v(lane)}
    s_and_b32 {s(s_t)}, {s(s_wave)}, 12
    s_lshl_b32 {s(s_t)}, {s(s_t)}, 2
    v_add_u32 {v(t0)}, {s(s_t)}, {v(t0)}
    v_mul_u32_u24 {v(la_e)}, {HB_STRIDE}, {v(t0)}
    v_lshl_add_u32 {v(la_e)}, {v(t1)}, 4, {v(la_e)}
    v_add_u32 {v(la_e)}, {L_HBHI}, {v(la_e)}
    v_lshlrev_b32 {v(le)}, 2, {v(t0)}
    ds_bpermute_b32 {v(le)}, {v(le)}, {v(deg)}
    v_lshl_add_u32 {v(la_w)}, {v(t0)}, 15, {v(la_w)}
    s_mov_b64 {s(sA,2)}, 0
    s_waitcnt lgkmcnt(0)
    s_barrier
""".replace(f"v_lshrrev_b32 {v(t0)}, 4, v0", f"s_mov_b32 {s(sA)}, {L_HBHI}\nv_lshrrev_b32 {v(t0)}, 4, v0"))
    stamp(6)
    A(f"s_cmp_ge_u32 {s(s_wave)}, 10\ns_cbranch_scc1 K_S1D")
    H = D[0]
    for i in range(4):
        A(f"ds_read_b128 {v(H+4*i,4)}, {v(t2)} offset:{16*i}")
    for i in range(8):
        if i % 2 == 0:
            A(f"s_waitcnt lgkmcnt({3 - i//2})")
        A(f"v_cvt_f32_f64 {v(EX+i)}, {v(H+2*i,2)}")
    for i in range(8):
        A(f"v_and_b32 {v(EX+8+i)}, 0xffff0000, {v(EX+i)}")
    for i in range(4):
        A(f"v_cvt_pk_bf16_f32 {v(H+i)}, {v(EX+8+2*i)}, {v(EX+9+2*i)}")
    A(f"ds_write_b128 {v(t3)}, {v(H,4)}")
    for i in range(8):
        A(f"v_sub_f32 {v(EX+8+i)}, {v(EX+i)}, {v(EX+8+i)}")
    for i in range(4):
        A(f"v_cvt_pk_bf16_f32 {v(H+4+i)}, {v(EX+8+2*i)}, {v(EX+9+2*i)}")
    A(f"ds_write_b128 {v(t3)}, {v(H+4,4)} offset:{HB_LO}")
    for i in range(0, 8, 2):
        A(f"v_cmp_u_f32 vcc, {v(EX+8+i)}, {v(EX+9+i)}")
        A(f"s_or_b64 {s(sA,2)}, {s(sA,2)}, vcc")
    A(f"""
K_S1D:
    v_cmp_lt_f32 vcc, {f32(2.0**100)}, {v(guard)}
    s_or_b64 vcc, vcc, {s(sA,2)}
    v_mov_b32 {v(t2)}, {L_FLAG + 4}
    s_cbranch_vccz K_NOFL
    ds_write_b32 {v(t2)}, {v(t2)}
K_NOFL:
    s_waitcnt lgkmcnt(0)
    s_barrier
    ds_read_b32 {v(t2)}, {v(t2)}
""")
    HF = [D[0], EX]
    for ks in range(4):
        A(f"ds_read_b128 {v(HF[0]+4*ks,4)}, {v(la_e)} offset:{ks*64}")
        A(f"ds_read_b128 {v(HF[1]+4*ks,4)}, {v(la_e)} offset:{ks*64 + HB_LO}")
    A(f"""
    v_cvt_f32_u32 {v(le)}, {v(le)}
    v_mul_f32 {v(le)}, {f32(0.25)}, {v(le)}
    s_lshl_b32 {s(s_t)}, {s(s_b)}, 7
    s_mov_b32 {s(s_u)}, {f32(-LN2)}
    s_waitcnt vmcnt(0) lgkmcnt(8)
    v_readfirstlane_b32 {s(sA)}, {v(t2)}
    v_lshlrev_b32 {v(acc)}, 16, {v(b2r)}
    v_and_b32 {v(acc+1)}, 0xffff0000, {v(b2r)}
    v_lshlrev_b32 {v(acc+2)}, 16, {v(b2r+1)}
    v_and_b32 {v(acc+3)}, 0xffff0000, {v(b2r+1)}
    s_cmp_lg_u32 {s(s_safe)}, 0
    s_cbranch_scc1 K_GEMM
    s_cmp_eq_u32 {s(sA)}, 0
    {"s_cbranch_scc0 K_RESTART" if ABL == [""] else ""}
K_GEMM:
    s_cmp_ge_u32 {s(s_wave)}, 12
    s_cbranch_scc1 K_END
""")
    O = [nn, tt]
    for ks in range(4):
        for hl in range(2):
            A(f"s_waitcnt lgkmcnt({7 - 2*ks - hl})")
            c = "0" if ks == 0 else v(O[hl], 4)
            A(f"v_mfma_f32_16x16x32_bf16 {v(O[hl],4)}, {v(D[1]+4*ks,4)}, {v(HF[hl]+4*ks,4)}, {c}")
    for i in range(4):
        A(f"v_mul_f32 {v(acc+i)}, {v(le)}, {v(acc+i)}")
    A("s_nop 3")
    for i in range(4):
        A(f"v_add_f32 {v(nn+i)}, {v(nn+i)}, {v(tt+i)}")
    for i in range(4):
        A(f"v_fma_f32 {v(nn+i)}, {v(nn+i)}, {s(s_u)}, {v(acc+i)}")
    A(f"""
    v_cvt_pk_bf16_f32 {v(acc)}, {v(nn)}, {v(nn+1)}
    v_cvt_pk_bf16_f32 {v(acc+1)}, {v(nn+2)}, {v(nn+3)}
    buffer_store_dwordx2 {v(acc,2)}, {v(la_w)}, {s(SO,4)}, {s(s_t)} offen {os.environ.get('ST3', '')}
""")
    if DL[0] == 9:
        stamp(9)
    if STAMP:
        A("s_waitcnt vmcnt(0)")
        stamp(8)
        A(f"""
    v_cmp_eq_u32 vcc, 0, {v(lane)}
    s_and_saveexec_b64 {s(sA,2)}, vcc
    s_lshl_b32 {s(s_t)}, s2, 4
    s_add_u32 {s(s_t)}, {s(s_t)}, {s(s_wave)}
    s_lshl_b32 {s(s_t)}, {s(s_t)}, 6
    s_add_u32 {s(s_t)}, {s(s_t)}, {WS_STAMP}
    v_mov_b32 {v(t0)}, {s(s_t)}
""")
        for n_, i in enumerate([0, 7, 1, 2, 3, 4, 5, 6, 8]):
            A(f"v_mov_b32 {v(D[0]+n_)}, {s(STR[i]) if i else s(s_x)}")
        for i in range(3):
            A(f"global_store_dwordx4 {v(t0)}, {v(D[0]+4*i,4)}, s[24:25] offset:{16*i}")
    A(f"""
K_END:
    s_endpgm
""")

    A(f"""
K_HI1:
    v_subrev_u32 {v(t0)}, 64, {v(rem)}
""")
    for i in range(4):
        A(f"v_cmp_lt_i32 {s(MK+8+2*i,2)}, {4*i}, {v(t0)}")
    A(f"""
    v_cmp_lt_i32 vcc, 64, {v(t0)}
    s_cbranch_vccz K_HI1N
    v_mov_b32 {v(t0)}, {L_FLAG}
    ds_write_b32 {v(t0)}, {v(t3)}
K_HI1N:
""")
    p1words(HI)
    for x in HI:
        A(f"v_lshrrev_b32 {v(EI+x)}, 20, {v(CW+x)}")
        A(f"v_add_u32 {v(EI+x)}, {v(EI+x)}, {v(EB)}")
    A("s_branch K_HB1\nK_HI2:")
    for x in HI:
        A(f"v_add_u32 {v(CA+x)}, {v(CA+x)}, {v(RK+x)}")
    for x in HI:
        A(f"s_mov_b64 exec, {s(MK+2*x,2)}")
        A(f"ds_write2st64_b32 {v(CA+x)}, {v(CW+x)}, {v(EI+x)} offset0:0 offset1:{NE*4//256}")
    A("s_mov_b64 exec, -1\ns_branch K_HB2\nK_HOT_END:")
    A(f"""
K_RESTART:
    s_mov_b32 {s(s_safe)}, 1
    s_mov_b32 {s(s_slow)}, 0
    s_waitcnt lgkmcnt(0)
    s_barrier
""")
    pre, ld = tab_load()
    A(pre + ld)
    zero_hsum()
    A(rec_pre())
    A("s_waitcnt vmcnt(0)")
    rec_loads("B")
    A("K_ROUND:")
    prefill()
    A(f"""
    s_waitcnt vmcnt(0) lgkmcnt(0)
    s_barrier
    s_branch K_PASS1
K_GOSLOW:
    s_mov_b32 {s(SS)}, s8
    s_and_b32 {s(SS+1)}, s9, 0xffff
    s_mov_b32 {s(SS+2)}, {E * 4}
    s_mov_b32 {s(SS+3)}, 0x20000
    s_mov_b32 {s(SD_)}, s10
    s_and_b32 {s(SD_+1)}, s11, 0xffff
    s_mov_b32 {s(SD_+2)}, {E * 4}
    s_mov_b32 {s(SD_+3)}, 0x20000
    s_mov_b32 {s(s_slow)}, 1
    s_mov_b32 {s(s_chunk)}, -1
K_NEXTCHUNK:
    s_add_u32 {s(s_chunk)}, {s(s_chunk)}, 1
    s_cmp_lt_u32 {s(s_chunk)}, {NB}
    s_cbranch_scc0 K_FIN
    s_waitcnt vmcnt(0) lgkmcnt(0)
    s_barrier
    s_mul_i32 {s(s_t)}, {s(s_chunk)}, {CH * 4}
    v_lshlrev_b32 {v(t0)}, 2, v0
""")
    for k in range(3):
        A(f"buffer_load_dword {v(RK+k)}, {v(t0)}, {s(SD_,4)}, {s(s_t)} offen")
        A(f"buffer_load_dword {v(RK+4+k)}, {v(t0)}, {s(SS,4)}, {s(s_t)} offen")
        A(f"s_add_u32 {s(s_t)}, {s(s_t)}, 4096")
    A(f"""
    s_mul_i32 {s(s_t)}, {s(s_chunk)}, {CH}
    s_movk_i32 {s(s_u)}, {CH}
    v_mov_b32 {v(EB)}, {s(s_t)}
    v_mov_b32 {v(CW+3)}, 0
    s_mov_b64 {s(MK+6,2)}, 0
    s_mov_b32 {s(s_hi)}, 0
    s_waitcnt vmcnt(0)
""")
    for k in range(3):
        A(f"""
        v_add_u32 {v(t1)}, {1024*k}, v0
        v_lshrrev_b32 {v(t2)}, 8, {v(RK+k)}
        v_lshl_or_b32 {v(t2)}, {v(RK+4+k)}, 6, {v(t2)}
        v_lshl_or_b32 {v(CW+k)}, {v(t1)}, 20, {v(t2)}
        v_and_b32 {v(RK+k)}, 255, {v(RK+k)}
        v_cmp_eq_u32 vcc, {s(s_b)}, {v(RK+k)}
        v_cmp_gt_u32 {s(sA,2)}, {s(s_u)}, {v(t1)}
        s_and_b64 {s(MK+2*k,2)}, vcc, {s(sA,2)}
""")
    A("s_branch K_ROUND")
    loop(True)
    return nvgpr, (102 if STAMP or DL[0] >= 0 else 96)


def kd(name, vg, sg):
    acc = (vg + 3) // 4 * 4
    return f""".p2align 6
.amdhsa_kernel {name}
  .amdhsa_next_free_vgpr {vg}
  .amdhsa_next_free_sgpr {sg}
  .amdhsa_accum_offset {acc}
  .amdhsa_group_segment_fixed_size 0
  .amdhsa_kernarg_size 88
  .amdhsa_user_sgpr_count 2
  .amdhsa_user_sgpr_kernarg_segment_ptr 1
  .amdhsa_system_sgpr_workgroup_id_x 1
  .amdhsa_float_denorm_mode_32 3
.end_amdhsa_kernel
"""


def main():
    ref = open(f"cdna_kernels/{NAME}.s.ref").read().split("\n")
    head = [l for l in ref if l.startswith(";") and "@launch" not in l and "Override" not in l and "grid=ceil" not in l]
    A = Asm()
    v1, s1 = gen_k1(A)
    v2, s2 = gen_k2(A)
    out = "\n".join(head) + "\n"
    out += f"; @launch kernel=k1_kernel grid=({NB + NPW},1,1) block=(640,1,1) lds={K1_LDS}\n"
    out += f"; @launch kernel=k2_kernel grid=({NB},1,1) block=(1024,1,1) lds={L_END}\n"
    out += '.amdgcn_target "amdgcn-amd-amdhsa--gfx950"\n.text\n'
    out += A.text()
    out += '.section .rodata,"a"\n' + kd("k1_kernel", v1, s1) + kd("k2_kernel", v2, s2)
    path = sys.argv[1] if len(sys.argv) > 1 else f"cdna_kernels/{NAME}.s"
    open(path, "w").write(out)
    print("vgprs", v1, v2, "lds", L_END, "->", path)


if __name__ == "__main__":
    main()
```

```python
import sys, struct, os

NAME = "gather_scatter__edge_featured_mpnn_mpnn__graph"
N, E = 10000, 640000
NB, CH = 256, 2500
LOG2E = 1.4426950408889634
LN2 = 0.6931471805599453
STAMP = int(os.environ.get("STAMP", "0"))
TM = "s_memtime" if STAMP == 2 else "s_memrealtime"
DL = [int(x) for x in os.environ.get("DL", "-1:0").split(":")]
ABL = os.environ.get("ABL", "").split(",")
OPT = os.environ.get("OPT", "").split(",")
WS_STAMP = 24 << 20


def f32(x):
    return struct.unpack("<I", struct.pack("<f", x))[0]


KERN = NAME + "_kernel"
RECB = 10240
WS_PF = NB * RECB + 4096
WS_TAB = WS_PF + NB * 64
WS_P = WS_TAB + NB * 4096
WS_END = WS_P + N * 256
WS_EPOCH = NB * RECB + 2048

NWV = 16
L_QT = 40 * 1024
L_CNT = L_QT + 40 * 512
L_FLAG = L_CNT + 256
L_LA = L_CNT + 512
NE = 4096
L_LB = L_LA + NE * 4
L_PB = L_LB + NE * 4
PCS = 1040
PBW = 4 * PCS
L_END = L_PB + NWV * PBW + 16
CAPB = (NE - 128) * 4
PADW = (16383 << 6)
PADE = 0x7FFFFFF
HB_STRIDE = 272
L_HBHI = L_LA
HB_LO = 16384
L_SA = L_PB + 16 + 9 * PCS
L_STG = L_SA
L_C1 = L_STG + 10240
L_S1 = L_C1 + 1024
L_K1 = L_S1 + 1024
L_WA = L_K1 + 1024
L_WB = L_WA + 16384
L_WC = L_WB + 16384
L_PO = L_QT
assert L_WC + 12 * 320 <= L_END and L_SA % 16 == 0
SC = "sc1"


class Asm:
    def __init__(self):
        self.lines = []

    def __call__(self, s):
        if isinstance(s, list):
            s = "\n".join(s)
        for ln in s.split("\n"):
            ln = ln.strip()
            if ln:
                self.lines.append(("" if ln.endswith(":") or ln.startswith(".") else "    ") + ln)

    def text(self):
        return "\n".join(self.lines) + "\n"


class Regs:
    def __init__(self, first):
        self.n = first

    def a(self, cnt=1, align=1):
        self.n = (self.n + align - 1) // align * align
        r = self.n
        self.n += cnt
        return r


def v(r, n=1):
    return f"v{r}" if n == 1 else f"v[{r}:{r + n - 1}]"


def s(r, n=1):
    return f"s{r}" if n == 1 else f"s[{r}:{r + n - 1}]"


DPP_SCAN = ["row_shr:1 row_mask:0xf bank_mask:0xf bound_ctrl:0", "row_shr:2 row_mask:0xf bank_mask:0xf bound_ctrl:0",
            "row_shr:4 row_mask:0xf bank_mask:0xf bound_ctrl:0", "row_shr:8 row_mask:0xf bank_mask:0xf bound_ctrl:0",
            "row_bcast:15 row_mask:0xa bank_mask:0xf", "row_bcast:31 row_mask:0xc bank_mask:0xf"]
K1_CNT = 10240
K1_ST = K1_CNT + 2560
K1_LDS = 24576 + 64 * 272
ST1 = os.environ.get('ST1', '')
ST2 = os.environ.get('ST2', '')
NPW = 250


def lane_table():
    T = []
    for l in range(64):
        i, h = l & 31, l >> 5
        idx = 2 * (i >> 3) + ((i >> 1) & 1)
        grp = 2 * ((i >> 2) & 1) + (i & 1)
        par = (l >> 3) & 1
        ta = h * 512 + par * 320 + ((l >> 4) & 1) * 32 + (l & 3) * 8
        real = (l >> 2) & 1
        xa = L_PB + 16 + ((l >> 3) & 1) * PCS + (l & 7) * 128
        f = ((l >> 1) & 7) ^ (l >> 4)
        T.append([xa + f * 16, xa + (f ^ 4) * 16, L_WB + (8 * (l >> 4) + ((l >> 2) & 3)) * 256 + (l & 3) * 8, L_QT + (l >> 4) * 2048 + (l & 15) * 4,
                  4 * i, L_LB + 4 * idx, grp, L_LA + (l & 8) * 2,
                  0x3f803f80 if grp == 2 * h else 0, 0x3f803f80 if grp == 2 * h + 1 else 0,
                  ((l & 7) ^ (4 * ((l >> 4) & 1))) * 8, (l & 15) * 32 + L_LA,
                  ta if real else -16, ta + 128 if real else 1024, ta ^ 64 if real else -16, (ta ^ 64) + 128 if real else 1024])
    return T


def gen_k2(A):
    R = Regs(1)
    lane = R.a()
    t0, t1, t2, t3 = R.a(), R.a(), R.a(), R.a()
    guard, deg, l16, EB = R.a(), R.a(), R.a(), R.a()
    rem = R.a(3, 2)
    LC = R.a(16, 2)
    la_w, la_e, le, tab = LC, LC + 1, LC + 2, LC + 3
    j4, ce0, grp, cw0 = LC + 4, LC + 5, LC + 6, LC + 7
    OH, dq, tb0 = LC + 8, LC + 10, LC + 11
    TA = [[LC + 12, LC + 13], [LC + 14, LC + 15]]
    lw = R.a(4, 2)
    qa, ha = R.a(2, 2), R.a(2, 2)
    b2r = R.a(2, 2)
    nn, dd, tt, rr = [R.a(2, 2) for _ in range(4)]
    acc = R.a(8, 2)
    A5 = R.a(4, 2)
    B5 = [R.a(4, 2) for _ in range(4)]
    D = [R.a(16, 2) for _ in range(2)]
    EX = R.a(16, 2)
    tl = R.a()
    tba, epv = R.a(), R.a()
    nvgpr = R.n
    assert nvgpr <= 128, nvgpr
    CW, RK, CA, EI = D[0], D[0] + 8, D[1], D[1] + 8
    C64 = EX
    QB, QA, QA2, QD = EX, EX + 8, acc, nn
    assert rr == nn + 6

    SP0, SP1, SE, SW, SO, SS, SD_, SXR = 28, 32, 36, 40, 44, 48, 52, 72
    MK = 56
    s_b = 76
    s_wave, s_o3, s_o2, s_o1, s_msk, s_x, s_rem, s_epx, s_slow, s_safe, s_chunk = range(78, 89)
    s_t, s_u = 89, 90
    sA, sB = 26, 27
    s_m0, s_chg, s_hi, s_tag, s_to, s_ep = 0, 3, 77, 91, 1, 85
    s_oh = MK
    s_ne = SE + 2
    STR = [92, 4, 6, 96, 98, 12, 14, 100, 72, 74, 94]

    def pstamp(i):
        return f"s_waitcnt lgkmcnt(0)\n{TM} {s(STR[i],2)}\ns_waitcnt lgkmcnt(0)" if "pa" in OPT else ""

    def stamp(i):
        if "pa" in OPT and i in (3, 4, 7):
            return
        if DL[0] == i:
            A(f"""
K_DL:
            s_waitcnt lgkmcnt(0)
            s_memrealtime {s(STR[i],2)}
            s_waitcnt lgkmcnt(0)
            s_sub_u32 {s(STR[i])}, {s(STR[i])}, {s(s_x)}
            s_cmp_lt_u32 {s(STR[i])}, {DL[1]*100}
            s_cbranch_scc1 K_DL
""")
        if STAMP:
            A(f"s_waitcnt lgkmcnt(0)\n{TM} {s(STR[i],2)}\ns_waitcnt lgkmcnt(0)")

    def tab_pre():
        return [f"v_lshrrev_b32 {v(EB)}, 2, v0", f"s_lshl_b32 {s(s_u)}, {s(s_b)}, 4", f"s_add_u32 {s(s_u)}, {s(s_u)}, {WS_TAB}",
                f"v_lshl_add_u32 {v(tba)}, {v(EB)}, 12, {s(s_u)}",
                f"v_and_b32 {v(t1)}, 48, {v(l16)}", f"v_mul_u32_u24 {v(t0)}, {RECB}, {v(EB)}",
                f"v_add_u32 {v(t0)}, {v(t0)}, {v(t1)}", f"v_mul_u32_u24 {v(EB)}, {CH}, {v(EB)}"]

    def poll(tag, issued=False):
        SL = int(os.environ.get("SLEEP", "0"))
        A(f"""
        {'' if issued is None else 's_branch K_POLL1' + tag}
K_POLL{tag}:
        {"s_mov_b64 exec, vcc" if "pm" in OPT else ""}
        {f"s_sleep {SL}" if SL else ""}
K_POLL1{tag}:
        buffer_load_dwordx3 {v(rem,3)}, {v(tba)}, {s(SW,4)}, 0 offen {SC}
        s_sub_u32 {s(s_to)}, {s(s_to)}, 1
        s_cbranch_scc1 K_END
K_POLL2{tag}:
        s_waitcnt vmcnt(0)
K_POLL3{tag}:
        v_cmp_ne_u32 vcc, {s(s_tag)}, {v(rem+1)}
        s_cbranch_vccnz K_POLL{tag}
        {"s_mov_b64 exec, -1" if "pm" in OPT else ""}
""")

    def rec_loads(tag):
        A(f"""
        v_add_u32_sdwa {v(t0)}, {v(t0)}, {v(rem)} dst_sel:DWORD dst_unused:UNUSED_PAD src0_sel:DWORD src1_sel:WORD_0
        v_lshrrev_b32 {v(rem)}, 16, {v(rem)}
        {"v_lshrrev_b32 " + v(EB) + ", 2, " + v(t0) if "e2" in OPT else ""}
        {"v_min_u32 " + v(EB) + ", 639000, " + v(EB) if "e2" in OPT else ""}
        buffer_load_dwordx4 {v(CW,4)}, {v(t0)}, {s(SW,4)}, 0 offen {SC}
        v_cmp_lt_u32 vcc, 64, {v(rem)}
        v_sub_u32 {v(rem)}, {v(rem)}, {v(t1)}
        s_cmp_lg_u64 vcc, 0
        s_cselect_b32 {s(s_hi)}, 1, 0
        s_cbranch_scc0 K_NOHI{tag}
        s_mov_b64 exec, vcc
        buffer_load_dwordx4 {v(CW+4,4)}, {v(t0)}, {s(SW,4)}, 0 offen offset:64 {SC}
        s_mov_b64 exec, -1
K_NOHI{tag}:
""")
        for i in range(4):
            A(f"v_cmp_lt_i32 {s(MK+2*i,2)}, {4*i}, {v(rem)}")

    def verify(tag):
        A(f"""
K_VER{tag}:
        s_waitcnt vmcnt(0)
K_VER1{tag}:
""")
        for i in range(4):
            A(f"v_cndmask_b32 {v(CA+i)}, 0, {v(CW+i)}, {s(MK+2*i,2)}")
        A(f"""
        v_add3_u32 {v(t2)}, {v(CA)}, {v(CA+1)}, {v(CA+2)}
        s_cmp_lg_u32 {s(s_hi)}, 0
        v_add_u32 {v(t2)}, {v(t2)}, {v(CA+3)}
        s_cbranch_scc1 K_VHI{tag}
K_VHB{tag}:
        s_nop 1
        v_add_u32_dpp {v(t2)}, {v(t2)}, {v(t2)} quad_perm:[1,0,3,2] row_mask:0xf bank_mask:0xf
        s_nop 1
        v_add_u32_dpp {v(t2)}, {v(t2)}, {v(t2)} quad_perm:[2,3,0,1] row_mask:0xf bank_mask:0xf
        v_cmp_ne_u32 vcc, {v(t2)}, {v(rem+2)}
        s_cbranch_vccnz K_VRE{tag}
K_VOK{tag}:
""")

    def verify_rare(tag):
        A(f"""
K_VHI{tag}:
        v_subrev_u32 {v(t3)}, 64, {v(rem)}
""")
        for i in range(4):
            A(f"v_cmp_lt_i32 {s(MK+8+2*i,2)}, {4*i}, {v(t3)}")
        A(f"v_cmp_lt_i32 vcc, 64, {v(t3)}\ns_cbranch_vccnz K_VOK{tag}")
        for i in range(4):
            A(f"v_cndmask_b32 {v(CA+i)}, 0, {v(CW+4+i)}, {s(MK+8+2*i,2)}")
        A(f"""
        v_add3_u32 {v(t2)}, {v(t2)}, {v(CA)}, {v(CA+1)}
        v_add3_u32 {v(t2)}, {v(t2)}, {v(CA+2)}, {v(CA+3)}
        s_branch K_VHB{tag}
K_VRE{tag}:
        s_sub_u32 {s(s_to)}, {s(s_to)}, 1
        s_cbranch_scc1 K_END
        buffer_load_dwordx4 {v(CW,4)}, {v(t0)}, {s(SW,4)}, 0 offen {SC}
        buffer_load_dwordx4 {v(CW+4,4)}, {v(t0)}, {s(SW,4)}, 0 offen offset:64 {SC}
        s_branch K_VER{tag}
""")

    def warm(opt, half, w0):
        if opt not in OPT:
            return []
        return [f"s_lshr_b32 {s(sA)}, s2, 3", f"s_mul_i32 {s(sA)}, {s(sA)}, 40000",
                f"s_mul_i32 {s(sB)}, {s(s_wave)}, 2560", f"s_add_u32 {s(sA)}, {s(sA)}, {s(sB)}",
                f"s_add_u32 {s(sA)}, {s(sA)}, {WS_P + (N*128 if half else 0)}", f"v_lshlrev_b32 {v(b2r+1)}, 6, {v(lane)}",
                "s_mov_b32 exec_hi, 0xff",
                f"buffer_load_dword {v(b2r)}, {v(b2r+1)}, {s(SW,4)}, {s(sA)} offen {SC}",
                "s_mov_b64 exec, -1"]

    def prefill():
        A(f"""
        v_mov_b32 {v(D[1])}, {PADW}
        v_mov_b32 {v(D[1]+1)}, {PADW}
        v_mov_b64 {v(D[1]+2,2)}, {v(D[1],2)}
        v_mov_b32 {v(D[1]+4)}, {PADE}
        v_mov_b32 {v(D[1]+5)}, {PADE}
        v_mov_b64 {v(D[1]+6,2)}, {v(D[1]+4,2)}
        v_lshlrev_b32 {v(t2)}, 4, v0
        v_add_u32 {v(t2)}, {L_LA}, {v(t2)}
        v_mov_b32 {v(D[1]+8)}, 0
        v_lshlrev_b32 {v(t3)}, 2, {v(lane)}
        ds_write_b128 {v(t2)}, {v(D[1],4)}
        ds_write_b128 {v(t2)}, {v(D[1]+4,4)} offset:{NE*4}
        ds_write2st64_b32 {v(t3)}, {v(D[1]+8)}, {v(D[1]+8)} offset0:{L_CNT//256} offset1:{L_CNT//256 + 1}
""")

    def zero_hsum():
        A(f"""
        v_mov_b64 {v(D[1]+12,2)}, 0
        v_mov_b64 {v(D[1]+14,2)}, 0
        v_mov_b32 {v(guard)}, 0
        v_mov_b32 {v(deg)}, 0
        v_lshlrev_b32 {v(t2)}, 4, v0
        ds_write_b128 {v(t2)}, {v(D[1]+12,4)}
        ds_write_b128 {v(t2)}, {v(D[1]+12,4)} offset:16384
        v_lshlrev_b32 {v(t3)}, 3, v0
        ds_write_b64 {v(t3)}, {v(D[1]+12,2)} offset:32768
""")

    CBL = L_PB + 16 + 5 * PCS
    U = B5[0]
    DS_, SR_, CB_, RK_, WW_ = U, U + 4, U + 8, U + 12, acc
    A(f"""
.globl {KERN}
.p2align 8
.type {KERN},@function
{KERN}:
    s_cmp_ge_u32 s2, {NB}
    s_cbranch_scc1 K_END
    s_load_dwordx16 s[4:19], s[0:1], 0
    s_load_dwordx4 s[20:23], s[0:1], 64
    s_load_dwordx2 s[24:25], s[0:1], 80
    s_getpc_b64 {s(sA,2)}
K_PC2:
    v_lshlrev_b32 {v(t1)}, {os.environ.get("CSH", "7")}, v0
    v_min_u32 {v(t1)}, K_HOT_END-K_PC2, {v(t1)}
    global_load_dword {v(b2r)}, {v(t1)}, {s(sA,2)}
    {TM + " " + s(STR[0],2) if STAMP or DL[0] >= 0 else ""}
    v_lshlrev_b32 {v(t0)}, 4, v0
    v_lshrrev_b32 {v(t1)}, 6, v0
    s_mul_i32 {s(s_o1)}, s2, {CH * 4}
    v_readfirstlane_b32 {s(s_wave)}, {v(t1)}
    v_min_u32 {v(t2)}, {CH * 4 - 16}, {v(t0)}
    v_add_u32 {v(rr)}, {s(s_o1)}, {v(t2)}
    s_mov_b32 {s(s_o2)}, {2 << 20}
    s_mov_b32 {s(s_o3)}, {4 << 20}
    s_and_b32 {s(s_b)}, s2, 7
    s_lshr_b32 {s(s_t)}, s2, 3
    s_lshl4_add_u32 {s(s_t)}, {s(s_b)}, {s(s_t)}
    s_lshl4_add_u32 {s(s_b)}, {s(s_b)}, {s(s_t)}
    v_xor_b32 {v(t1)}, v0, {v(t0)}
    v_and_b32 {v(t1)}, 0x70, {v(t1)}
    v_lshrrev_b32 {v(t3)}, 3, v0
    v_lshl_add_u32 {v(t1)}, {v(t3)}, 15, {v(t1)}
    s_lshl_b32 {s(s_t)}, {s(s_b)}, 7
    s_sub_u32 {s(s_t)}, {s(s_t)}, {80 << 15}
    v_add_u32 {v(t1)}, {s(s_t)}, {v(t1)}
    v_min_u32 {v(t1)}, {N * 128 - 16}, {v(t1)}
    s_mul_i32 {s(s_t)}, {s(s_wave)}, {PCS}
    s_add_u32 m0, {s(s_t)}, {L_PB + 16 - 10 * PCS}
    s_lshl_b32 {s(s_u)}, {s(s_wave)}, 10
    s_sub_u32 {s(s_t)}, {s(s_wave)}, 10
    s_waitcnt lgkmcnt(0)
""")
    if "s1" in OPT:
        slots = [(2, 0), (2, 1), (0, 0), (4, 0), (10, 0), (10, 1), (10, 2), (5, 0), (1, 0), (1, 1), (1, 2), (6, 0), (7, 0), (8, 0), (3, 0), (3, 1)]
        pt = sum(p << (4 * i) for i, (p, o) in enumerate(slots)); ot = sum(o << (2 * i) for i, (p, o) in enumerate(slots))
        A(f"""
        s_cselect_b32 {s(MK+8)}, 1, 0
        s_cmp_lg_u32 {s(s_wave)}, 15
        s_cbranch_scc1 K_NOS1
        s_bfe_u32 {s(MK)}, s2, 0x40003
        s_mov_b32 {s(MK+2)}, {pt & 0xffffffff}
        s_mov_b32 {s(MK+3)}, {pt >> 32}
        s_lshl_b32 {s(MK+1)}, {s(MK)}, 2
        s_lshr_b64 {s(MK+2,2)}, {s(MK+2,2)}, {s(MK+1)}
        s_and_b32 {s(MK+2)}, {s(MK+2)}, 15
        s_lshl_b32 {s(MK+2)}, {s(MK+2)}, 3
        s_load_dwordx2 {s(MK+4,2)}, s[0:1], {s(MK+2)}
        s_lshl_b32 {s(MK+1)}, {s(MK)}, 1
        s_lshr_b32 {s(MK+1)}, {ot}, {s(MK+1)}
        s_and_b32 {s(MK+1)}, {s(MK+1)}, 3
        s_lshl_b32 {s(MK+1)}, {s(MK+1)}, 21
        s_waitcnt lgkmcnt(0)
        s_load_dword {s(MK+6)}, {s(MK+4,2)}, {s(MK+1)}
K_NOS1:
        s_cmp_lg_u32 {s(MK+8)}, 0
""")
    if "st" in OPT:
        tg = [("s[8:9]", "s2x"), ("s[4:5]", 0), ("s[12:13]", 0), ("s[24:25]", 0), ("s[24:25]", 2 << 20), ("s[24:25]", 4 << 20),
              ("s[14:15]", 0), ("s[6:7]", 0), ("s[6:7]", 2 << 20), ("s[6:7]", 4 << 20), ("s[16:17]", 0), ("s[18:19]", 0)]
        for n_, (b_, o_) in enumerate(tg):
            if o_ == "s2x":
                A(f"s_load_dword {s(MK+n_)}, {b_}, {s(s_o1)}")
            elif o_ == 0:
                A(f"s_load_dword {s(MK+n_)}, {b_}, 0")
            else:
                A(f"s_load_dword {s(MK+n_)}, {b_}, {s(s_o2 if o_ == 2 << 20 else s_o3)}")
    A(f"""
    s_cbranch_scc0 K_XL
    global_load_dwordx4 {v(DS_,4)}, {v(rr)}, s[10:11]
K_XL:
    s_cmp_lt_u32 {s(s_t)}, 5
    s_cbranch_scc0 K_XM
    global_load_lds_dwordx4 {v(t1)}, s[4:5]
K_XM:
    s_add_u32 m0, {s(s_u)}, {L_WA}
    v_and_b32 {v(lane)}, 63, v0
    global_load_lds_dwordx4 {v(t0)}, s[12:13]
    v_lshlrev_b32 {v(l16)}, 4, {v(lane)}
K_XD:
    {pstamp(7)}
    {"s_mov_b32 " + s(s_x) + ", " + s(STR[0]) if STAMP or DL[0] >= 0 else ""}
""")
    zero_hsum()
    A(f"""
    v_add_u32 {v(tba)}, {L_C1}, {v(l16)}
    ds_write_b128 {v(tba)}, {v(D[1]+12,4)}
    ds_write_b128 {v(tba)}, {v(D[1]+12,4)} offset:2048
    v_mov_b32 {v(t1)}, {WS_EPOCH}
    global_load_dword {v(epv)}, {v(t1)}, s[24:25]
""")
    prefill()
    A(f"""
    s_mov_b32 {s(SW)}, s24
    s_and_b32 {s(SW+1)}, s25, 0xffff
    s_mov_b32 {s(SW+2)}, {WS_END}
    s_mov_b32 {s(SW+3)}, 0x20000
    s_add_u32 {s(SP0)}, s24, {WS_P - 3*PCS}
    s_addc_u32 {s(SP0+1)}, s25, {2 << 16}
    s_mov_b32 {s(SP0+2)}, {N * 64}
    s_mov_b32 {s(SP0+3)}, 0x20000
    s_add_u32 {s(SP1)}, s24, {WS_P - 3*PCS + N*128}
    s_addc_u32 {s(SP1+1)}, s25, {2 << 16}
    s_mov_b32 {s(SP1+2)}, {N * 64}
    s_mov_b32 {s(SP1+3)}, 0x20000
    s_mov_b32 {s(SE)}, s6
    s_or_b32 {s(SE+1)}, s7, {8 << 16}
    s_mov_b32 {s(SE+2)}, {E}
    s_mov_b32 {s(SE+3)}, 0x20000
    s_movk_i32 {s(s_o3)}, {3*PCS}
    s_movk_i32 {s(s_o2)}, {2*PCS}
    s_movk_i32 {s(s_o1)}, {PCS}
    s_mov_b32 {s(s_msk)}, 0xfffc0
    s_mov_b32 {s(s_safe)}, 0
    s_mov_b32 {s(s_slow)}, 0
    s_mul_i32 {s(s_m0)}, {s(s_wave)}, {PBW}
    s_add_u32 {s(s_m0)}, {s(s_m0)}, {L_PB + 16}
    s_mov_b32 m0, {s(s_m0)}
    s_cmp_ge_u32 {s(s_wave)}, 10
    s_cbranch_scc1 K_PROLE
    global_load_dwordx4 {v(SR_,4)}, {v(rr)}, s[8:9]
    v_lshlrev_b32 {v(WW_)}, 22, v0
    v_add_u32 {v(WW_+1)}, {1 << 20}, {v(WW_)}
    v_add_u32 {v(WW_+2)}, {2 << 20}, {v(WW_)}
    v_add_u32 {v(WW_+3)}, {3 << 20}, {v(WW_)}
    v_mov_b32 {v(t3)}, 4
    s_mov_b32 {s(s_t)}, {L_C1}
    v_cmp_gt_u32 vcc, {CH // 4}, v0
    s_waitcnt lgkmcnt(0)
    s_mov_b64 {s(MK,2)}, vcc
    {pstamp(3) if "pb" in OPT else ""}
    s_barrier
    {pstamp(3) if "pb" not in OPT else ""}
    s_mov_b64 exec, {s(MK,2)}
    s_waitcnt vmcnt(3)
    {pstamp(4)}
""")
    for i in range(4):
        A(f"v_and_b32 {v(CB_+i)}, 255, {v(DS_+i)}")
        A(f"v_lshl_add_u32 {v(CB_+i)}, {v(CB_+i)}, 2, {s(s_t)}")
        A(f"ds_add_rtn_u32 {v(RK_+i)}, {v(CB_+i)}, {v(t3)}")
    for i in range(4):
        A(f"v_lshrrev_b32 {v(DS_+i)}, 8, {v(DS_+i)}")
        A(f"v_or_b32 {v(WW_+i)}, {v(WW_+i)}, {v(DS_+i)}")
    C4, P4 = U + 16, U + 20
    A(f"""
    s_mov_b64 exec, -1
    s_waitcnt vmcnt(1) lgkmcnt(0)
    s_barrier
""")
    stamp(10)
    A(f"""
    ds_read_b128 {v(C4,4)}, {v(tba)}
    v_readfirstlane_b32 {s(s_tag)}, {v(epv)}
    s_nop 0
    ; tag = hash(epoch), different from the epoch
    s_mul_i32 {s(s_to)}, {s(s_tag)}, 0x9e3779b1
    s_add_u32 {s(s_to)}, {s(s_to)}, 0x7f4a7c15
    s_cmp_eq_u32 {s(s_to)}, {s(s_tag)}
    s_addc_u32 {s(s_tag)}, {s(s_to)}, 0
    s_mov_b32 {s(s_to)}, 0x40000
""")
    A(f"""
    s_waitcnt lgkmcnt(0)
    v_add_u32 {v(DS_+1)}, {v(C4)}, {v(C4+1)}
    v_add_u32 {v(DS_+2)}, {v(DS_+1)}, {v(C4+2)}
    v_add_u32 {v(DS_+3)}, {v(DS_+2)}, {v(C4+3)}
    v_mov_b32 {v(t1)}, {v(DS_+3)}
    v_add_u32 {v(t2)}, {L_STG}, {v(t0)}
    s_nop 0
""")
    for d in DPP_SCAN:
        A(f"v_add_u32_dpp {v(t1)}, {v(t1)}, {v(t1)} {d}\ns_nop 1")
    A(f"""
    v_sub_u32 {v(P4)}, {v(t1)}, {v(DS_+3)}
    v_add_u32 {v(P4+1)}, {v(P4)}, {v(C4)}
    v_add_u32 {v(P4+2)}, {v(P4)}, {v(DS_+1)}
    v_add_u32 {v(P4+3)}, {v(P4)}, {v(DS_+2)}
    ds_write_b128 {v(tba)}, {v(P4,4)} offset:1024
    s_mov_b64 exec, {s(MK,2)}
    s_mov_b32 {s(s_t)}, {L_STG}
""")
    for i in range(4):
        A(f"ds_read_b32 {v(DS_+i)}, {v(CB_+i)} offset:1024")
    A("s_waitcnt vmcnt(0)")
    for i in range(4):
        A(f"v_lshl_or_b32 {v(WW_+i)}, {v(SR_+i)}, 6, {v(WW_+i)}")
    for i in range(4):
        A(f"s_waitcnt lgkmcnt(3)")
        A(f"v_add3_u32 {v(DS_+i)}, {v(DS_+i)}, {v(RK_+i)}, {s(s_t)}")
        A(f"ds_write_b32 {v(DS_+i)}, {v(WW_+i)}")
    for i in range(4):
        A(f"ds_add_u32 {v(CB_+i)}, {v(WW_+i)} offset:2048")
    A(f"""
    s_mov_b64 exec, -1
    s_lshl_b32 {s(s_u)}, {s(s_wave)}, 10
    s_add_u32 m0, {s(s_u)}, {L_WB}
    v_add_u32 {v(t3)}, 16384, {v(t0)}
    global_load_lds_dwordx4 {v(t3)}, s[12:13]
    v_and_b32 {v(t1)}, 15, {v(lane)}
    s_and_b32 {s(s_u)}, {s(s_wave)}, 7
    s_lshl_b32 {s(s_u)}, {s(s_u)}, 5
    v_lshl_add_u32 {v(t1)}, {v(t1)}, 1, {s(s_u)}
    global_load_ushort {v(qa)}, {v(t1)}, s[14:15]
    s_mul_i32 {s(s_u)}, s2, {RECB}
    v_lshlrev_b32 {v(t1)}, 2, v0
    v_add_u32 {v(t1)}, {L_C1}, {v(t1)}
    s_lshl_b32 {s(sB)}, s2, 12
    s_add_u32 {s(sB)}, {s(sB)}, {WS_TAB}
    v_mov_b32 {v(C4+1)}, {s(s_tag)}
    v_mov_b32 {v(C4+3)}, {s(s_tag)}
    s_cmp_ge_u32 {s(s_wave)}, 4
    s_waitcnt lgkmcnt(0)
    s_barrier
    ds_read_b128 {v(DS_,4)}, {v(t2)}
    s_cbranch_scc1 K_NOTABR
    ds_read2st64_b32 {v(P4,2)}, {v(t1)} offset0:0 offset1:4
    ds_read_b32 {v(C4+2)}, {v(t1)} offset:2048
K_NOTABR:
    s_waitcnt lgkmcnt(0)
    buffer_store_dwordx4 {v(DS_,4)}, {v(t0)}, {s(SW,4)}, {s(s_u)} offen {SC}
    s_cbranch_scc1 K_AJOIN
    v_lshl_or_b32 {v(C4)}, {v(P4)}, 16, {v(P4+1)}
    buffer_store_dwordx4 {v(C4,4)}, {v(t0)}, {s(SW,4)}, {s(sB)} offen {SC}
    s_branch K_AJOIN
K_PROLE:
    s_cmp_lg_u32 {s(s_wave)}, 15
    s_cbranch_scc1 K_NOWCL
    v_add_u32 {v(t1)}, {128 * 256}, {v(l16)}
    global_load_dwordx4 {v(lw,4)}, {v(t1)}, s[12:13]
K_NOWCL:
    v_and_b32 {v(t1)}, 31, {v(lane)}
    v_lshrrev_b32 {v(t2)}, 5, {v(lane)}
    s_sub_u32 {s(s_u)}, {s(s_wave)}, 10
    s_lshl_b32 {s(s_t)}, {s(s_u)}, 6
    s_add_u32 {s(s_t)}, {s(s_t)}, {L_WA}
    v_bfe_u32 {v(nn)}, {v(lane)}, 2, 2
    v_lshl_add_u32 {v(nn)}, {v(t2)}, 3, {v(nn)}
    v_lshlrev_b32 {v(nn)}, 8, {v(nn)}
    v_and_b32 {v(t3)}, 1, {v(lane)}
    v_lshl_add_u32 {v(nn)}, {v(t3)}, 5, {v(nn)}
    v_and_b32 {v(t3)}, 16, {v(lane)}
    v_add3_u32 {v(nn)}, {v(nn)}, {v(t3)}, {s(s_t)}
    v_and_b32 {v(t3)}, 2, {v(lane)}
    v_lshl_add_u32 {v(nn)}, {v(t3)}, 2, {v(nn)}
    v_lshrrev_b32 {v(t3)}, 3, {v(t1)}
    v_lshlrev_b32 {v(nn+1)}, 7, {v(t1)}
    v_lshl_add_u32 {v(nn+1)}, {v(t3)}, 4, {v(nn+1)}
    v_add_u32 {v(nn+1)}, {L_PB + 16}, {v(nn+1)}
    v_bfe_u32 {v(t3)}, {v(lane)}, 1, 3
    v_xor_b32 {v(t3)}, {v(t3)}, {v(t2)}
""")
    for q in range(4):
        A(f"v_xor_b32 {v(acc+q)}, {2*q}, {v(t3)}")
        A(f"v_lshl_add_u32 {v(acc+q)}, {v(acc+q)}, 4, {v(nn+1)}")
    A(f"""
    v_mul_u32_u24 {v(nn+1)}, 272, {v(t1)}
    v_lshl_add_u32 {v(nn+1)}, {v(t2)}, 5, {v(nn+1)}
    s_lshl_b32 {s(s_t)}, {s(s_u)}, 6
    v_add_u32 {v(nn+1)}, {s(s_t)}, {v(nn+1)}
    v_subrev_u32 {v(t1)}, 640, v0
    v_lshrrev_b32 {v(t2)}, 4, {v(t1)}
    v_and_b32 {v(t3)}, 0xf0, {v(l16)}
    v_mul_u32_u24 {v(dd)}, 272, {v(t2)}
    v_add_u32 {v(dd)}, {v(dd)}, {v(t3)}
    v_and_b32 {v(t3)}, 0x70, {v(l16)}
    v_lshl_add_u32 {v(dd+1)}, {v(t2)}, 15, {v(t3)}
    s_lshl_b32 {s(s_t)}, {s(s_b)}, 7
    v_add_u32 {v(dd+1)}, {s(s_t)}, {v(dd+1)}
    v_add_u32 {v(tt)}, {24 << 15}, {v(dd+1)}
    v_bfe_u32 {v(t3)}, {v(lane)}, 3, 1
    v_mul_u32_u24 {v(t3)}, {N * 128}, {v(t3)}
    v_add_u32 {v(t3)}, {WS_P}, {v(t3)}
    v_cmp_gt_u32 vcc, {N * 128}, {v(tt)}
    v_add_u32 {v(dd+1)}, {v(dd+1)}, {v(t3)}
    v_add_u32 {v(tt)}, {v(tt)}, {v(t3)}
    s_mov_b32 {s(sA)}, {f32(-LOG2E)}
    s_mov_b32 {s(sB)}, {f32(-LOG2E)}
    s_waitcnt lgkmcnt(0)
    s_mov_b64 {s(MK,2)}, vcc
    s_barrier
    s_waitcnt vmcnt(0)
    s_barrier
    s_cmp_ge_u32 {s(s_wave)}, 14
    s_cbranch_scc1 K_PWC
""")
    WF, XA, XB2, D0 = U, U + 16, U + 32, U + 48
    for q in range(4):
        A(f"ds_read_b128 {v(XA+4*q,4)}, {v(acc+q)}")
        for h2 in range(2):
            A(f"ds_read_b64_tr_b16 {v(WF+4*q+2*h2,2)}, {v(nn)} offset:{(16*q+4*h2)*256}")
    for q in range(4):
        A(f"ds_read_b128 {v(XB2+4*q,4)}, {v(acc+q)} offset:{4*PCS}")
    for q in range(4):
        A(f"s_waitcnt lgkmcnt({13 - 3*q})")
        A(f"v_mfma_f32_32x32x16_bf16 {v(D0,16)}, {v(WF+4*q,4)}, {v(XA+4*q,4)}, {'0' if q == 0 else v(D0,16)}")
    for q in range(4):
        A(f"s_waitcnt lgkmcnt({3 - q})")
        A(f"v_mfma_f32_32x32x16_bf16 {v(XA,16)}, {v(WF+4*q,4)}, {v(XB2+4*q,4)}, {'0' if q == 0 else v(XA,16)}")
    A("s_nop 3")
    for r in range(16):
        A(f"v_mul_f32 {v(D0+r)}, {s(sA)}, {v(D0+r)}")
    for r in range(8):
        A(f"v_cvt_pk_bf16_f32 {v(D0+r)}, {v(D0+2*r)}, {v(D0+2*r+1)}")
    A(f"""
    ds_write_b128 {v(nn+1)}, {v(D0,4)} offset:{L_PO}
    ds_write_b128 {v(nn+1)}, {v(D0+4,4)} offset:{L_PO + 16}
""")
    for r in range(0, 16, 2):
        A(f"v_pk_mul_f32 {v(XA+r,2)}, {v(XA+r,2)}, {s(sA,2)}")
    for r in range(8):
        A(f"v_cvt_pk_bf16_f32 {v(XA+r)}, {v(XA+2*r)}, {v(XA+2*r+1)}")
    A(f"""
    ds_write_b128 {v(nn+1)}, {v(XA,4)} offset:{L_PO + 32*272}
    ds_write_b128 {v(nn+1)}, {v(XA+4,4)} offset:{L_PO + 32*272 + 16}
    s_branch K_PB3
K_PWC:
    s_getpc_b64 {s(MK+2,2)}
K_PC:
    s_add_u32 {s(MK+2)}, {s(MK+2)}, K_TABLE-K_PC
    s_addc_u32 {s(MK+3)}, {s(MK+3)}, 0
    s_and_b32 {s(s_t)}, {s(s_wave)}, 1
    s_mul_i32 {s(s_u)}, {s(s_t)}, {2*PCS}
    s_add_u32 m0, {s(s_u)}, {CBL}
    s_lshl_b32 {s(s_t)}, {s(s_t)}, 11
    v_add_u32 {v(t1)}, {s(s_t)}, {v(l16)}
    global_load_lds_dwordx4 {v(t1)}, {s(MK+2,2)}
    s_add_u32 m0, m0, {PCS - 1024}
    s_nop 0
    global_load_lds_dwordx4 {v(t1)}, {s(MK+2,2)} offset:1024
    s_cmp_eq_u32 {s(s_wave)}, 14
    s_cbranch_scc1 K_PB3
    v_lshrrev_b32 {v(t1)}, 4, {v(lane)}
    v_mul_u32_u24 {v(t1)}, 320, {v(t1)}
    v_and_b32 {v(t2)}, 0xf0, {v(l16)}
    v_add_u32 {v(t1)}, {v(t1)}, {v(t2)}
    v_add_u32 {v(t1)}, {L_WC}, {v(t1)}
""")
    for i in range(4):
        A(f"v_lshlrev_b32 {v(U+2*i)}, 16, {v(lw+i)}")
        A(f"v_and_b32 {v(U+2*i+1)}, 0xffff0000, {v(lw+i)}")
    for i in range(4):
        A(f"v_pk_mul_f32 {v(U+2*i,2)}, {v(U+2*i,2)}, {s(sA,2)}")
    for i in range(8):
        A(f"v_and_b32 {v(U+8+i)}, 0xffff0000, {v(U+i)}")
    for i in range(8):
        A(f"v_sub_f32 {v(U+i)}, {v(U+i)}, {v(U+8+i)}")
    for i in range(4):
        A(f"v_cvt_pk_bf16_f32 {v(U+16+i)}, {v(U+8+2*i)}, {v(U+9+2*i)}")
        A(f"v_cvt_pk_bf16_f32 {v(U+20+i)}, {v(U+2*i)}, {v(U+1+2*i)}")
    A(f"""
    ds_write_b128 {v(t1)}, {v(U+16,4)}
    ds_write_b128 {v(t1)}, {v(U+20,4)} offset:{8*320}
K_PB3:
    v_readfirstlane_b32 {s(s_tag)}, {v(epv)}
    s_nop 0
    ; tag = hash(epoch), different from the epoch
    s_mul_i32 {s(s_to)}, {s(s_tag)}, 0x9e3779b1
    s_add_u32 {s(s_to)}, {s(s_to)}, 0x7f4a7c15
    s_cmp_eq_u32 {s(s_to)}, {s(s_tag)}
    s_addc_u32 {s(s_tag)}, {s(s_to)}, 0
    s_mov_b32 {s(s_to)}, 0x40000
    s_lshl_b32 {s(s_u)}, {s(s_wave)}, 10
    s_add_u32 m0, {s(s_u)}, {L_WB}
    v_add_u32 {v(t3)}, 16384, {v(t0)}
    global_load_lds_dwordx4 {v(t3)}, s[12:13]
    v_and_b32 {v(t1)}, 15, {v(lane)}
    s_and_b32 {s(s_u)}, {s(s_wave)}, 7
    s_lshl_b32 {s(s_u)}, {s(s_u)}, 5
    v_lshl_add_u32 {v(t1)}, {v(t1)}, 1, {s(s_u)}
    global_load_ushort {v(qa)}, {v(t1)}, s[14:15]
    s_waitcnt lgkmcnt(0)
    s_barrier
    ds_read_b128 {v(U,4)}, {v(dd)} offset:{L_PO}
    ds_read_b128 {v(U+4,4)}, {v(dd)} offset:{L_PO + 24*272}
    s_waitcnt lgkmcnt(1)
    buffer_store_dwordx4 {v(U,4)}, {v(dd+1)}, {s(SW,4)}, 0 offen {SC}
    s_cmp_ge_u32 {s(s_wave)}, 14
    s_cbranch_scc1 K_AJOIN
    s_mov_b64 exec, {s(MK,2)}
    s_waitcnt lgkmcnt(0)
    buffer_store_dwordx4 {v(U+4,4)}, {v(tt)}, {s(SW,4)}, 0 offen {SC}
    s_mov_b64 exec, -1
K_AJOIN:
""")
    stamp(7)
    TR = D[0]
    A(tab_pre())
    A(f"""
    ; Wc fragment address: WC + (8h + r)*320 + c16*32 + c*8
    v_lshrrev_b32 {v(t2)}, 5, {v(lane)}
    v_bfe_u32 {v(t3)}, {v(lane)}, 2, 2
    v_lshl_add_u32 {v(t2)}, {v(t2)}, 3, {v(t3)}
    v_mul_u32_u24 {v(t2)}, 320, {v(t2)}
    v_and_b32 {v(t3)}, 16, {v(lane)}
    v_lshl_add_u32 {v(t2)}, {v(t3)}, 1, {v(t2)}
    v_and_b32 {v(t3)}, 3, {v(lane)}
    v_lshl_add_u32 {v(t2)}, {v(t3)}, 3, {v(t2)}
    v_add_u32 {v(t2)}, {L_WC}, {v(t2)}
    v_add_u32 {v(t3)}, {CBL}, {v(l16)}
    s_lshr_b32 {s(s_t)}, {s(s_wave)}, 3
    s_mul_i32 {s(sA)}, {s(s_t)}, {2*PCS}
    s_lshl_b32 {s(s_t)}, {s(s_t)}, 13
    s_and_b32 {s(s_u)}, {s(s_wave)}, 7
    s_lshl_b32 {s(sB)}, {s(s_u)}, 6
    s_add_u32 {s(s_t)}, {s(s_t)}, {s(sB)}
    s_lshl_b32 {s(s_u)}, {s(s_u)}, 5
    s_mov_b32 m0, {s(s_m0)}
    s_cmp_lt_u32 {s(s_wave)}, 4
    s_cbranch_scc1 K_J2
    s_sub_u32 {s(sB)}, {s(s_wave)}, 10
    s_cmp_lt_u32 {s(sB)}, 4
    s_cbranch_scc1 K_J2
    s_waitcnt vmcnt(1)
K_J2:
    s_waitcnt vmcnt(2) lgkmcnt(0)
    s_barrier
""")
    stamp(8)
    for k in range(4):
        A(f"ds_read_b128 {v(LC+4*k,4)}, {v(t3)} offset:{k*PCS}")
    A(f"""
    s_waitcnt lgkmcnt(3)
    v_add_u32 {v(la_w)}, {s(sA)}, {v(la_w)}
    v_add_u32 {v(la_e)}, {s(sA)}, {v(la_e)}
    v_add_u32 {v(le)}, {s(s_u)}, {v(le)}
    v_add_u32 {v(ha)}, {s(s_t)}, {v(tab)}
    ds_read_b128 {v(QA,4)}, {v(la_w)}
    ds_read_b128 {v(QA+4,4)}, {v(la_e)}
""")
    for ks in range(2):
        for h2 in range(2):
            A(f"ds_read_b64_tr_b16 {v(QB+4*ks+2*h2,2)}, {v(le)} offset:{(32*ks + 4*h2)*256}")
    A(f"""
    ds_read_b128 {v(QA2,4)}, {v(la_w)} offset:{4*PCS}
    ds_read_b128 {v(QA2+4,4)}, {v(la_e)} offset:{4*PCS}
""")
    for n in range(4):
        A(f"ds_read_b64_tr_b16 {v(B5[n],2)}, {v(t2)} offset:{64*n}")
    A("s_waitcnt lgkmcnt(12)")
    for a in (TA[0][0], TA[0][1], TA[1][0], TA[1][1]):
        A(f"v_add_u32 {v(a)}, {s(s_m0)}, {v(a)}")
    A(f"""
    s_mov_b32 {s(s_t)}, {f32(-LOG2E)}
    v_lshlrev_b32 {v(qa)}, 16, {v(qa)}
    v_mul_f32 {v(qa)}, {s(s_t)}, {v(qa)}
    s_waitcnt lgkmcnt(4)
    v_mfma_f32_16x16x32_bf16 {v(QD,4)}, {v(QA,4)}, {v(QB,4)}, 0
    v_mfma_f32_16x16x32_bf16 {v(QD,4)}, {v(QA+4,4)}, {v(QB+4,4)}, {v(QD,4)}
    v_mfma_f32_16x16x32_bf16 {v(QD+4,4)}, {v(QA2,4)}, {v(QB,4)}, 0
    v_mfma_f32_16x16x32_bf16 {v(QD+4,4)}, {v(QA2+4,4)}, {v(QB+4,4)}, {v(QD+4,4)}
""")

    def qpart(base, off):
        for r in range(4):
            A(f"v_fma_f32 {v(base+r)}, {v(base+r)}, {s(s_t)}, {v(qa)}")
        for r in range(4):
            A(f"v_and_b32 {v(QA+r)}, 0xffff0000, {v(base+r)}")
        for r in range(4):
            A(f"v_sub_f32 {v(base+r)}, {v(base+r)}, {v(QA+r)}")
        for r in range(4):
            A(f"v_cvt_pk_bf16_f32 {v(base+r)}, {v(QA+r)}, {v(base+r)}")
        for r in range(0, 4, 2):
            A(f"ds_write2st64_b32 {v(ha)}, {v(base+r)}, {v(base+r+1)} offset0:{(off + r*512)//256} offset1:{(off + r*512 + 512)//256}")
    A("s_nop 5")
    qpart(QD, 0)
    A(f"s_cmp_ge_u32 {s(s_wave)}, 8\ns_cbranch_scc1 K_QD\ns_mov_b32 exec_hi, 0")
    qpart(QD + 4, 32 * 512)
    A(f"""
    s_mov_b32 exec_hi, -1
K_QD:
    s_cmp_lt_u32 {s(s_wave)}, 10
    s_cbranch_scc1 K_POLL1A
    s_mov_b64 exec, 1
    v_mov_b32 {v(t2)}, {L_FLAG + 8}
    v_mov_b32 {v(t3)}, 1
    s_waitcnt vmcnt(0)
    ds_add_rtn_u32 {v(t2)}, {v(t2)}, {v(t3)}
    s_mov_b64 exec, -1
    buffer_load_dwordx3 {v(rem,3)}, {v(tba)}, {s(SW,4)}, 0 offen {SC}
    v_mov_b32 {v(t3)}, {s(s_tag)}
    v_lshlrev_b32 {v(b2r)}, 2, {v(lane)}
    s_lshl_b32 {s(sA)}, s2, 6
    s_add_u32 {s(sA)}, {s(sA)}, {WS_PF}
    s_waitcnt lgkmcnt(0)
    v_readfirstlane_b32 {s(s_u)}, {v(t2)}
    s_cmp_lg_u32 {s(s_u)}, 5
    s_cbranch_scc1 K_POLL2A
    s_mov_b64 exec, 0xffff
    buffer_store_dword {v(t3)}, {v(b2r)}, {s(SW,4)}, {s(sA)} offen {SC}
    s_mov_b64 exec, -1
    s_waitcnt vmcnt(1)
    s_branch K_POLL3A
""")
    poll("A", None)
    stamp(9)
    rec_loads("A")
    A(f"""
    v_and_b32 {v(tba)}, 0x3fc, v0
    v_lshlrev_b32 {v(tba)}, 4, {v(tba)}
    v_add_u32 {v(tba)}, {WS_PF}, {v(tba)}
""")
    verify("A")
    NWM = NWB = 0

    def p1words(xs):
        for x in xs:
            A(f"v_lshlrev_b32_sdwa {v(CA+x)}, 2, {v(CW+x)} dst_sel:BYTE_0 dst_unused:UNUSED_PAD src0_sel:DWORD src1_sel:DWORD")
        for x in xs:
            A(f"s_mov_b64 exec, {s(MK+2*x,2)}")
            A(f"ds_add_rtn_u32 {v(RK+x)}, {v(CA+x)}, {v(t3)} offset:{L_CNT}")
        A("s_mov_b64 exec, -1")

    LO = [0, 1, 2, 3]
    HI = [4, 5, 6, 7]
    A(warm("q1", 128, 0))
    A(f"K_PASS1:\nv_mov_b32 {v(t3)}, 4")
    stamp(1)
    A(warm("p0", 0, 5) + warm("p1", 128, 5))
    p1words(LO)
    A(f"""
    s_cmp_lg_u32 {s(s_hi)}, 0
    s_cbranch_scc1 K_HI1
K_HB1:
""")
    for x in LO:
        if "e2" in OPT:
            A(f"v_add_u32 {v(EI+x)}, {x}, {v(EB)}")
            continue
        A(f"v_lshrrev_b32 {v(EI+x)}, 20, {v(CW+x)}")
        A(f"v_add_u32 {v(EI+x)}, {v(EI+x)}, {v(EB)}")
    stamp(2)
    A(f"""
    v_lshlrev_b32 {v(t0)}, 2, {v(lane)}
    v_mov_b32 {v(t2)}, {L_FLAG}
    s_waitcnt lgkmcnt(0)
    s_barrier
    ds_read_b32 {v(t1)}, {v(t0)} offset:{L_CNT}
    ds_read_b32 {v(t2)}, {v(t2)}
""")
    if "nopf" not in OPT:
        A(f"buffer_load_dword {v(epv)}, {v(tba)}, {s(SW,4)}, 0 offen {SC}")
    else:
        A(f"v_mov_b32 {v(epv)}, {s(s_tag)}")
    A(warm("r0", 0, 0))
    A(f"""
    s_waitcnt lgkmcnt(1)
    v_add_u32 {v(t3)}, 31, {v(t1)}
    v_and_b32 {v(t3)}, -32, {v(t3)}
    v_mov_b32 {v(t0)}, {v(t3)}
    s_nop 1
""")
    for d in DPP_SCAN:
        A(f"v_add_u32_dpp {v(t0)}, {v(t0)}, {v(t0)} {d}\ns_nop 1")
    A(f"""
    v_readlane_b32 {s(sB)}, {v(t0)}, 63
    v_sub_u32 {v(t0)}, {v(t0)}, {v(t3)}
    v_add_u32 {v(t0)}, {L_LA}, {v(t0)}
""")
    A(f"s_waitcnt lgkmcnt(0)\ns_cmp_eq_u32 {s(s_hi)}, 0\ns_cbranch_scc1 K_NOHB")
    for x in HI:
        A(f"ds_bpermute_b32 {v(CA+x)}, {v(CA+x)}, {v(t0)}")
    A("K_NOHB:")
    for x in LO:
        A(f"ds_bpermute_b32 {v(CA+x)}, {v(CA+x)}, {v(t0)}")
    A(f"""
    v_readfirstlane_b32 {s(sA)}, {v(t2)}
    v_lshrrev_b32 {v(t2)}, 4, {v(lane)}
    s_cmp_gt_u32 {s(sB)}, {CAPB}
    s_cselect_b32 {s(s_t)}, 1, 0
    s_or_b32 {s(sA)}, {s(sA)}, {s(s_t)}
    s_cbranch_scc1 K_GOSLOW
    v_add_u32 {v(deg)}, {v(deg)}, {v(t1)}
    s_add_u32 {s(sB)}, {s(sB)}, 127
    s_lshr_b32 {s(sB)}, {s(sB)}, 7
    s_add_u32 {s(s_rem)}, {s(sB)}, {NWV - 1}
    s_sub_u32 {s(s_rem)}, {s(s_rem)}, {s(s_wave)}
    s_lshr_b32 {s(s_rem)}, {s(s_rem)}, 4
    s_lshr_b32 {s(s_t)}, {s(sB)}, 4
    s_mul_i32 {s(s_t)}, {s(s_t)}, {s(s_wave)}
    s_and_b32 {s(sB)}, {s(sB)}, {NWV - 1}
    s_min_u32 {s(sB)}, {s(sB)}, {s(s_wave)}
    s_add_u32 {s(s_t)}, {s(s_t)}, {s(sB)}
    s_lshl_b32 {s(s_t)}, {s(s_t)}, 7
    s_lshl_b32 {s(s_u)}, {s(s_rem)}, 5
    s_waitcnt lgkmcnt(0)
""")
    for x in LO:
        A(f"v_add_u32 {v(CA+x)}, {v(CA+x)}, {v(RK+x)}")
    for x in LO:
        A(f"s_mov_b64 exec, {s(MK+2*x,2)}")
        A(f"ds_write2st64_b32 {v(CA+x)}, {v(CW+x)}, {v(EI+x)} offset0:0 offset1:{NE*4//256}")
    A(f"""
    s_mov_b64 exec, -1
    s_cmp_lg_u32 {s(s_hi)}, 0
    s_cbranch_scc1 K_HI2
K_HB2:
    s_cmp_lg_u32 {s(s_wave)}, 15
    s_cbranch_scc1 K_NOGAP
    v_mul_u32_u24 {v(t3)}, {PCS}, {v(lane)}
    v_add_u32 {v(t3)}, {L_PB}, {v(t3)}
    v_mov_b64 {v(nn,2)}, 0
    v_mov_b64 {v(dd,2)}, 0
    ds_write_b128 {v(t3)}, {v(nn,4)}
    ds_write_b128 {v(t3)}, {v(nn,4)} offset:{PCS}
K_NOGAP:
    v_mul_u32_u24 {v(t2)}, {s(s_u)}, {v(t2)}
    v_add3_u32 {v(la_w)}, {v(t2)}, {v(cw0)}, {s(s_t)}
    v_mul_u32_u24 {v(la_e)}, {s(s_u)}, {v(grp)}
    v_add3_u32 {v(la_e)}, {v(la_e)}, {v(ce0)}, {s(s_t)}
    v_add3_u32 {v(tab)}, {v(tb0)}, {v(t2)}, {s(s_t)}
    s_waitcnt vmcnt({int("r0" in OPT)})
K_PFC:
    v_cmp_ne_u32 vcc, {s(s_tag)}, {v(epv)}
    s_cbranch_vccnz K_PFR
    s_waitcnt lgkmcnt(0)
    s_barrier
""")
    stamp(3)
    if "tl" in OPT:
        A(f"v_mov_b32 {v(tl)}, 0\nv_writelane_b32 {v(tl)}, {s(STR[3])}, 0\ns_mov_b32 s95, 1")
    if "p3" in OPT:
        A("s_setprio 3")

    def dma(u):
        so = [s(s_o3), s(s_o2), s(s_o1), "0"]
        srd = SP0 if u == 0 else SP1
        return [f"buffer_load_dwordx4 {v(lw+q)}, {s(srd,4)}, {so[q]} idxen offset:{q*PCS} {os.environ.get('PSC', 'sc1')} lds" for q in range(4)]

    def idx():
        return [f"v_and_or_b32 {v(lw+q)}, {v(lw+q)}, {s(s_msk)}, {v(dq)}" for q in range(4)]

    def eload():
        return f"buffer_load_dwordx2 {v(A5,2)}, {v(le)}, {s(SE,4)}, 0 idxen" + (" nt" if "ent" in OPT else "")

    def ohcmp():
        return f"v_cmp_gt_u32 vcc, {s(s_ne)}, {v(le)}"

    def ohsel():
        return [f"v_cndmask_b32 {v(A5+2)}, 0, {v(OH)}, vcc", f"v_cndmask_b32 {v(A5+3)}, 0, {v(OH+1)}, vcc"]

    def lists():
        return [f"ds_read_b128 {v(lw,4)}, {v(la_w)}", f"ds_read_b32 {v(le)}, {v(la_e)}"]

    def laup():
        return [f"v_add_u32 {v(x)}, 32, {v(x)}" for x in (la_w, la_e)]

    def flush():
        o = [f"v_cvt_f64_f32 {v(C64+2*i,2)}, {v(acc+i)}" for i in range(8)]
        o2 = [f"ds_add_f64 {v(ha + i%2)}, {v(C64+2*i,2)} offset:{(i//2)*256}" for i in range(8)]
        return o, o2

    def qaddr(fill):
        o = [f"v_mov_b32_dpp {v(qa)}, {v(tab)} row_newbcast:0 row_mask:0xf bank_mask:0xf",
             f"v_mov_b32_dpp {v(qa+1)}, {v(tab)} row_newbcast:0 row_mask:0xf bank_mask:0xf"]
        o += fill[:2]
        o += [f"v_permlane16_swap_b32 {v(qa)}, {v(qa+1)}"]
        o += fill[2:4]
        o += [f"v_add_u32 {v(qa)}, {v(qa)}, {v(j4)}", f"v_add_u32 {v(qa+1)}, {v(qa+1)}, {v(j4)}"]
        o += fill[4:]
        for n in range(4):
            for k in range(2):
                o.append(f"ds_read_b32 {v(B5[n]+2+k)}, {v(qa+k)} offset:{L_QT + n*128}")
        return o

    zacc = [f"v_mov_b64 {v(acc+2*n,2)}, 0" for n in range(4)]
    haup = [f"v_lshlrev_b32 {v(ha+k)}, 1, {v(qa+k)}" for k in range(2)]

    def hread():
        o = []
        for n in range(2):
            for m in range(8):
                o.append(f"ds_read_b64_tr_b16 {v(D[n]+2*m,2)}, {v(TA[n][m>>2])} offset:{(m&3)*PCS}")
        return o

    def mf(n):
        return f"v_mfma_f32_32x32x16_bf16 {v(D[n%2],16)}, {v(A5,4)}, {v(B5[n],4)}, {v(D[n%2],16)}"

    A(lists())
    A(f"""
    ds_read_b32 {v(tab)}, {v(tab)}
    s_cmp_eq_u32 {s(s_rem)}, 0
    s_cbranch_scc1 K_DONE
    s_waitcnt lgkmcnt(2)
""")
    A(idx())
    A(dma(0))
    A("s_waitcnt lgkmcnt(0)")
    A(eload())
    A(ohcmp())
    A(f"""
    v_and_b32 {v(tab)}, 63, {v(tab)}
    v_lshlrev_b32 {v(tab)}, 9, {v(tab)}
""")
    A(ohsel())
    A(f"v_mov_b32 {v(t0)}, {v(tab)}")
    A(laup())
    A(f"v_mov_b32_dpp {v(t0)}, {v(tab)} row_shr:1 row_mask:0xf bank_mask:0xf")
    A(qaddr(zacc))
    A(haup)
    A(f"""
    v_cmp_ne_u32 vcc, {v(t0)}, {v(tab)}
    s_or_b32 {s(s_chg)}, vcc_lo, vcc_hi
    s_lshr_b32 {s(s_t)}, {s(s_chg)}, 16
    s_or_b32 {s(s_chg)}, {s(s_chg)}, {s(s_t)}
    s_setprio 3
    {"s_waitcnt vmcnt(0)" if "pw" in OPT else ""}
""")
    stamp(4)
    A(f"""
    s_cmp_eq_u32 {s(s_safe)}, 0
    s_cbranch_scc0 K_LOOP_S
""")

    def compute(u, safe, mid, tail):
        o = []
        for bb in range(2):
            b = 2 * u + bb
            cur = D[bb]
            if not safe and bb:
                o += [f"v_rcp_f32 {v(rr)}, {v(dd)}", f"v_rcp_f32 {v(rr+1)}, {v(dd+1)}"]
            o += [f"v_exp_f32 {v(EX+i)}, {v(cur+i)}" for i in range(16)]
            if bb == 0:
                o += mid
            if not safe:
                if bb:
                    o.append(f"v_max3_f32 {v(guard)}, {v(guard)}, {v(dd)}, {v(dd+1)}")
                    o.append(f"v_pk_fma_f32 {v(acc+2*(b-1),2)}, {v(nn,2)}, {v(rr,2)}, {v(acc+2*(b-1),2)}")
                o.append(f"v_pk_add_f32 {v(dd,2)}, {v(EX,2)}, 1.0 op_sel_hi:[1,0]")
                n_ = v(cur, 2)
                for k in range(1, 8):
                    e_, z_ = v(EX + 2 * k, 2), v(cur + 2 * k, 2)
                    o.append(f"v_pk_fma_f32 {v(tt,2)}, {n_}, {e_}, {n_}")
                    o.append(f"v_pk_fma_f32 {v(nn,2)}, {z_}, {v(dd,2)}, {v(tt,2)}")
                    o.append(f"v_pk_fma_f32 {v(dd,2)}, {v(dd,2)}, {e_}, {v(dd,2)}")
                    n_ = v(nn, 2)
            else:
                for k in range(8):
                    o.append(f"v_pk_add_f32 {v(EX+2*k,2)}, {v(EX+2*k,2)}, 1.0 op_sel_hi:[1,0]")
                for i in range(16):
                    o.append(f"v_rcp_f32 {v(EX+i)}, {v(EX+i)}")
                for k in range(8):
                    o.append(f"v_pk_fma_f32 {v(acc+2*b,2)}, {v(cur+2*k,2)}, {v(EX+2*k,2)}, {v(acc+2*b,2)}")
        if not safe:
            o += [f"v_rcp_f32 {v(rr)}, {v(dd)}", f"v_rcp_f32 {v(rr+1)}, {v(dd+1)}",
                  f"v_max3_f32 {v(guard)}, {v(guard)}, {v(dd)}, {v(dd+1)}",
                  f"v_pk_fma_f32 {v(acc+4*u+2,2)}, {v(nn,2)}, {v(rr,2)}, {v(acc+4*u+2,2)}"]
        if "tl" in OPT:
            o += [TM + " s[98:99]", "s_waitcnt lgkmcnt(0)", "s_mov_b32 m0, s95", f"v_writelane_b32 {v(tl)}, s98, m0",
                  f"s_mov_b32 m0, {s(s_m0)}", "s_add_u32 s95, s95, 1"]
        return o + tail

    def loop(safe):
        sf = "S" if safe else "F"
        rot = f"v_mov_b32_dpp {v(tab)}, {v(tab)} row_shl:1 row_mask:0xf bank_mask:0xf bound_ctrl:0"
        st = ["s_waitcnt vmcnt(1)"] + hread()
        st += [f"s_cmp_gt_u32 {s(s_rem)}, 3", f"s_cbranch_scc0 K_PRIO_{sf}", f"K_PB_{sf}:"]
        st += ["s_waitcnt vmcnt(0) lgkmcnt(8)", mf(0), "s_waitcnt lgkmcnt(0)", mf(1)] + dma(1) + lists()
        st += [f"s_lshr_b32 {s(s_chg)}, {s(s_chg)}, 1", f"s_sub_u32 {s(s_rem)}, {s(s_rem)}, 1", "s_nop 1"]
        st += compute(0, safe, [rot], ["s_waitcnt lgkmcnt(0)"] + idx() + [ohcmp()])
        st += ["s_waitcnt vmcnt(0)"] + hread()
        st += ["s_waitcnt lgkmcnt(8)", mf(2), "s_waitcnt lgkmcnt(0)", mf(3)] + dma(0) + [eload()]
        st += ohsel() + laup() + ["s_nop 0"]
        st += compute(1, safe, [], [])
        if "E" in ABL: st = [x for x in st if not x.startswith("buffer_load_dwordx2")]
        if "X" in ABL: st = [x if not x.endswith(" lds") else "s_nop 0" for x in st]
        if "A" in ABL: st = [x for x in st if not x.startswith("ds_read_b64_tr")]
        A(f".p2align 6\nK_LOOP_{sf}:")
        A(st)
        c, a = flush()
        A(f"""
        s_cmp_eq_u32 {s(s_rem)}, 0
        s_cbranch_scc1 K_LAST_{sf}
        s_bitcmp1_b32 {s(s_chg)}, 0
        {"s_cbranch_scc0" if "C" not in ABL else "s_branch"} K_LOOP_{sf}
""")
        A(qaddr(c) + a + zacc + haup)
        A(f"s_branch K_LOOP_{sf}")
        A(f"""
K_PRIO_{sf}:
        s_setprio 2
        s_cmp_eq_u32 {s(s_rem)}, 3
        s_cbranch_scc1 K_PB_{sf}
        s_setprio 1
        s_cmp_eq_u32 {s(s_rem)}, 2
        s_cbranch_scc1 K_PB_{sf}
        s_setprio 0
        s_branch K_PB_{sf}
K_LAST_{sf}:
""")
        A(c + a)
        if safe:
            A("s_branch K_DONE")
    loop(False)

    W2 = B5[0]
    A(f"""
K_DONE:
    s_setprio 0
    s_cmp_eq_u32 {s(s_slow)}, 0
    s_cbranch_scc0 K_NEXTCHUNK
K_FIN:
""")
    if "tl" in OPT:
        A(f"""
        s_lshl_b32 {s(s_t)}, s2, 12
        s_add_u32 {s(s_t)}, {s(s_t)}, {WS_STAMP + (1 << 20)}
        v_lshl_add_u32 {v(t0)}, v0, 2, {s(s_t)}
        global_store_dword {v(t0)}, {v(tl)}, s[24:25]
""")
    stamp(5)
    A(f"""
    ; raw w2 rows 8w..8w+7 -> first piece of this wave's buffer ; b2
    s_mov_b32 {s(SO)}, s20
    s_and_b32 {s(SO+1)}, s21, 0xffff
    s_mov_b32 {s(SO+2)}, {N * 128}
    s_mov_b32 {s(SO+3)}, 0x20000
    v_lshlrev_b32 {v(t0)}, 4, v0
    global_load_lds_dwordx4 {v(t0)}, s[16:17]
    s_and_b32 {s(s_u)}, {s(s_wave)}, 3
    s_lshl_b32 {s(s_u)}, {s(s_u)}, 5
    v_lshrrev_b32 {v(t1)}, 4, {v(lane)}
    v_lshl_add_u32 {v(la_w)}, {v(t1)}, 3, {s(s_u)}
    ; W2 fragment address: PB+16 + G*PBW + r*128 + ob*32 + c*8 ; imm = ks*4*PBW + s*512
    v_mul_u32_u24 {v(qa)}, {PBW}, {v(t1)}
    v_bfe_u32 {v(t0)}, {v(lane)}, 2, 2
    v_lshl_add_u32 {v(qa)}, {v(t0)}, 7, {v(qa)}
    v_and_b32 {v(t0)}, 3, {v(lane)}
    v_lshl_add_u32 {v(qa)}, {v(t0)}, 3, {v(qa)}
    s_add_u32 {s(s_u)}, {s(s_u)}, {L_PB + 16}
    v_add_u32 {v(qa)}, {s(s_u)}, {v(qa)}
    ; every workgroup has read the epoch by now (its table row carried the tag): workgroup 0 moves it on
    s_or_b32 {s(s_t)}, s2, {s(s_wave)}
    s_cbranch_scc1 K_EPD
    v_mov_b32 {v(t0)}, {WS_EPOCH}
    v_mov_b32 {v(t2)}, {s(s_tag)}
    global_store_dword {v(t0)}, {v(t2)}, s[24:25]
K_EPD:
    global_load_dwordx2 {v(b2r,2)}, {v(la_w)}, s[18:19]
    v_lshrrev_b32 {v(t0)}, 4, v0
    v_lshlrev_b32 {v(t2)}, 6, v0
    v_mul_u32_u24 {v(t3)}, {HB_STRIDE}, {v(t0)}
    v_and_b32 {v(t0)}, 0xf0, {v(l16)}
    v_add3_u32 {v(t3)}, {v(t3)}, {v(t0)}, {s(sA)}
    v_and_b32 {v(t0)}, 15, {v(lane)}
    s_and_b32 {s(s_t)}, {s(s_wave)}, 12
    s_lshl_b32 {s(s_t)}, {s(s_t)}, 2
    v_add_u32 {v(t0)}, {s(s_t)}, {v(t0)}
    v_mul_u32_u24 {v(la_e)}, {HB_STRIDE}, {v(t0)}
    v_lshl_add_u32 {v(la_e)}, {v(t1)}, 4, {v(la_e)}
    v_add_u32 {v(la_e)}, {L_HBHI}, {v(la_e)}
    v_lshlrev_b32 {v(le)}, 2, {v(t0)}
    ds_bpermute_b32 {v(le)}, {v(le)}, {v(deg)}
    v_lshl_add_u32 {v(la_w)}, {v(t0)}, 15, {v(la_w)}
    s_mov_b64 {s(sA,2)}, 0
    s_waitcnt lgkmcnt(0)
    s_barrier
""".replace(f"v_lshrrev_b32 {v(t0)}, 4, v0", f"s_mov_b32 {s(sA)}, {L_HBHI}\nv_lshrrev_b32 {v(t0)}, 4, v0"))
    stamp(6)
    A(f"s_cmp_ge_u32 {s(s_wave)}, 10\ns_cbranch_scc1 K_S1D")
    H = D[0]
    for i in range(4):
        A(f"ds_read_b128 {v(H+4*i,4)}, {v(t2)} offset:{16*i}")
    for i in range(8):
        if i % 2 == 0:
            A(f"s_waitcnt lgkmcnt({3 - i//2})")
        A(f"v_cvt_f32_f64 {v(EX+i)}, {v(H+2*i,2)}")
    for i in range(8):
        A(f"v_and_b32 {v(EX+8+i)}, 0xffff0000, {v(EX+i)}")
    for i in range(4):
        A(f"v_cvt_pk_bf16_f32 {v(H+i)}, {v(EX+8+2*i)}, {v(EX+9+2*i)}")
    A(f"ds_write_b128 {v(t3)}, {v(H,4)}")
    for i in range(8):
        A(f"v_sub_f32 {v(EX+8+i)}, {v(EX+i)}, {v(EX+8+i)}")
    for i in range(4):
        A(f"v_cvt_pk_bf16_f32 {v(H+4+i)}, {v(EX+8+2*i)}, {v(EX+9+2*i)}")
    A(f"ds_write_b128 {v(t3)}, {v(H+4,4)} offset:{HB_LO}")
    for i in range(0, 8, 2):
        A(f"v_cmp_u_f32 vcc, {v(EX+8+i)}, {v(EX+9+i)}")
        A(f"s_or_b64 {s(sA,2)}, {s(sA,2)}, vcc")
    A(f"""
K_S1D:
    v_cmp_lt_f32 vcc, {f32(2.0**100)}, {v(guard)}
    s_or_b64 vcc, vcc, {s(sA,2)}
    v_mov_b32 {v(t2)}, {L_FLAG + 4}
    s_cbranch_vccz K_NOFL
    ds_write_b32 {v(t2)}, {v(t2)}
K_NOFL:
    s_waitcnt vmcnt(0) lgkmcnt(0)
    s_barrier
    ds_read_b32 {v(t2)}, {v(t2)}
""")
    for ks in range(4):
        for h2 in range(2):
            A(f"ds_read_b64_tr_b16 {v(D[1]+4*ks+2*h2,2)}, {v(qa)} offset:{ks*4*PBW + h2*512}")
    HF = [D[0], EX]
    for ks in range(4):
        A(f"ds_read_b128 {v(HF[0]+4*ks,4)}, {v(la_e)} offset:{ks*64}")
        A(f"ds_read_b128 {v(HF[1]+4*ks,4)}, {v(la_e)} offset:{ks*64 + HB_LO}")
    A(f"""
    v_cvt_f32_u32 {v(le)}, {v(le)}
    v_mul_f32 {v(le)}, {f32(0.25)}, {v(le)}
    s_lshl_b32 {s(s_t)}, {s(s_b)}, 7
    s_mov_b32 {s(s_u)}, {f32(-LN2)}
    s_waitcnt lgkmcnt(8)
    v_readfirstlane_b32 {s(sA)}, {v(t2)}
    v_lshlrev_b32 {v(acc)}, 16, {v(b2r)}
    v_and_b32 {v(acc+1)}, 0xffff0000, {v(b2r)}
    v_lshlrev_b32 {v(acc+2)}, 16, {v(b2r+1)}
    v_and_b32 {v(acc+3)}, 0xffff0000, {v(b2r+1)}
    s_cmp_lg_u32 {s(s_safe)}, 0
    s_cbranch_scc1 K_GEMM
    s_cmp_eq_u32 {s(sA)}, 0
    {"s_cbranch_scc0 K_RESTART" if ABL == [""] else ""}
K_GEMM:
    s_cmp_ge_u32 {s(s_wave)}, 12
    s_cbranch_scc1 K_END
""")
    O = [nn, tt]
    for ks in range(4):
        for hl in range(2):
            A(f"s_waitcnt lgkmcnt({7 - 2*ks - hl})")
            c = "0" if ks == 0 else v(O[hl], 4)
            A(f"v_mfma_f32_16x16x32_bf16 {v(O[hl],4)}, {v(D[1]+4*ks,4)}, {v(HF[hl]+4*ks,4)}, {c}")
    for i in range(4):
        A(f"v_mul_f32 {v(acc+i)}, {v(le)}, {v(acc+i)}")
    A("s_nop 3")
    for i in range(4):
        A(f"v_add_f32 {v(nn+i)}, {v(nn+i)}, {v(tt+i)}")
    for i in range(4):
        A(f"v_fma_f32 {v(nn+i)}, {v(nn+i)}, {s(s_u)}, {v(acc+i)}")
    A(f"""
    v_cvt_pk_bf16_f32 {v(acc)}, {v(nn)}, {v(nn+1)}
    v_cvt_pk_bf16_f32 {v(acc+1)}, {v(nn+2)}, {v(nn+3)}
    buffer_store_dwordx2 {v(acc,2)}, {v(la_w)}, {s(SO,4)}, {s(s_t)} offen {os.environ.get('ST3', '')}
""")
    if STAMP:
        A("s_waitcnt vmcnt(0)\n" + TM + " s[20:21]\ns_waitcnt lgkmcnt(0)")
        A(f"""
    v_cmp_eq_u32 vcc, 0, {v(lane)}
    s_and_saveexec_b64 {s(sA,2)}, vcc
    s_lshl_b32 {s(s_t)}, s2, 4
    s_add_u32 {s(s_t)}, {s(s_t)}, {s(s_wave)}
    s_lshl_b32 {s(s_t)}, {s(s_t)}, 6
    s_add_u32 {s(s_t)}, {s(s_t)}, {WS_STAMP}
    v_mov_b32 {v(t0)}, {s(s_t)}
""")
        for n_, i in enumerate([0, 10, 7, 8, 9, 1, 2, 3, 4, 5, 6]):
            A(f"v_mov_b32 {v(D[0]+n_)}, {s(STR[i]) if i else s(s_x)}")
        A(f"v_mov_b32 {v(D[0]+11)}, s20")
        for i in range(3):
            A(f"global_store_dwordx4 {v(t0)}, {v(D[0]+4*i,4)}, s[24:25] offset:{16*i}")
    A(f"""
K_END:
    s_endpgm
""")

    A(f"""
K_HI1:
    v_subrev_u32 {v(t0)}, 64, {v(rem)}
""")
    for i in range(4):
        A(f"v_cmp_lt_i32 {s(MK+8+2*i,2)}, {4*i}, {v(t0)}")
    A(f"""
    v_cmp_lt_i32 vcc, 64, {v(t0)}
    s_cbranch_vccz K_HI1N
    v_mov_b32 {v(t0)}, {L_FLAG}
    ds_write_b32 {v(t0)}, {v(t3)}
K_HI1N:
""")
    p1words(HI)
    for x in HI:
        A(f"v_lshrrev_b32 {v(EI+x)}, 20, {v(CW+x)}")
        A(f"v_add_u32 {v(EI+x)}, {v(EI+x)}, {v(EB)}")
    A("s_branch K_HB1\nK_HI2:")
    for x in HI:
        A(f"v_add_u32 {v(CA+x)}, {v(CA+x)}, {v(RK+x)}")
    for x in HI:
        A(f"s_mov_b64 exec, {s(MK+2*x,2)}")
        A(f"ds_write2st64_b32 {v(CA+x)}, {v(CW+x)}, {v(EI+x)} offset0:0 offset1:{NE*4//256}")
    A("s_mov_b64 exec, -1\ns_branch K_HB2")
    verify_rare("A")
    A(f"""
K_PFR:
    s_sub_u32 {s(s_to)}, {s(s_to)}, 1
    s_cbranch_scc1 K_END
    buffer_load_dword {v(epv)}, {v(tba)}, {s(SW,4)}, 0 offen {SC}
    s_waitcnt vmcnt(0)
    s_branch K_PFC
K_HOT_END:
""")
    A(f"""
K_RESTART:
    s_mov_b32 {s(s_safe)}, 1
    s_mov_b32 {s(s_slow)}, 0
    s_waitcnt lgkmcnt(0)
    s_barrier
""")
    zero_hsum()
    A(tab_pre())
    poll("B")
    rec_loads("B")
    A(f"""
    v_and_b32 {v(tba)}, 0x3fc, v0
    v_lshlrev_b32 {v(tba)}, 4, {v(tba)}
    v_add_u32 {v(tba)}, {WS_PF}, {v(tba)}
""")
    A("K_ROUND:")
    prefill()
    A(f"""
    s_waitcnt vmcnt(0) lgkmcnt(0)
    s_barrier
    s_branch K_PASS1
K_GOSLOW:
    s_mov_b32 {s(SS)}, s8
    s_and_b32 {s(SS+1)}, s9, 0xffff
    s_mov_b32 {s(SS+2)}, {E * 4}
    s_mov_b32 {s(SS+3)}, 0x20000
    s_mov_b32 {s(SD_)}, s10
    s_and_b32 {s(SD_+1)}, s11, 0xffff
    s_mov_b32 {s(SD_+2)}, {E * 4}
    s_mov_b32 {s(SD_+3)}, 0x20000
    s_mov_b32 {s(s_slow)}, 1
    s_mov_b32 {s(s_chunk)}, -1
K_NEXTCHUNK:
    s_add_u32 {s(s_chunk)}, {s(s_chunk)}, 1
    s_cmp_lt_u32 {s(s_chunk)}, {NB}
    s_cbranch_scc0 K_FIN
    s_waitcnt vmcnt(0) lgkmcnt(0)
    s_barrier
    s_mul_i32 {s(s_t)}, {s(s_chunk)}, {CH * 4}
    v_lshlrev_b32 {v(t0)}, 2, v0
""")
    for k in range(3):
        A(f"buffer_load_dword {v(RK+k)}, {v(t0)}, {s(SD_,4)}, {s(s_t)} offen")
        A(f"buffer_load_dword {v(RK+4+k)}, {v(t0)}, {s(SS,4)}, {s(s_t)} offen")
        A(f"s_add_u32 {s(s_t)}, {s(s_t)}, 4096")
    A(f"""
    s_mul_i32 {s(s_t)}, {s(s_chunk)}, {CH}
    s_movk_i32 {s(s_u)}, {CH}
    v_mov_b32 {v(EB)}, {s(s_t)}
    v_mov_b32 {v(CW+3)}, 0
    s_mov_b64 {s(MK+6,2)}, 0
    s_mov_b32 {s(s_hi)}, 0
    s_waitcnt vmcnt(0)
""")
    for k in range(3):
        A(f"""
        v_add_u32 {v(t1)}, {1024*k}, v0
        v_lshrrev_b32 {v(t2)}, 8, {v(RK+k)}
        v_lshl_or_b32 {v(t2)}, {v(RK+4+k)}, 6, {v(t2)}
        v_lshl_or_b32 {v(CW+k)}, {v(t1)}, 20, {v(t2)}
        v_and_b32 {v(RK+k)}, 255, {v(RK+k)}
        v_cmp_eq_u32 vcc, {s(s_b)}, {v(RK+k)}
        v_cmp_gt_u32 {s(sA,2)}, {s(s_u)}, {v(t1)}
        s_and_b64 {s(MK+2*k,2)}, vcc, {s(sA,2)}
""")
    A("s_branch K_ROUND")
    loop(True)
    A(".p2align 4\n.type K_TABLE,@object\nK_TABLE:")
    T = lane_table()
    for piece in range(4):
        for l in range(64):
            A(".long " + ", ".join(str(x & 0xffffffff) for x in T[l][4*piece:4*piece+4]))
    A(".size K_TABLE, 4096")
    return nvgpr, (102 if STAMP or DL[0] >= 0 else 96)


def kd(name, vg, sg):
    acc = (vg + 3) // 4 * 4
    return f""".p2align 6
.amdhsa_kernel {name}
  .amdhsa_next_free_vgpr {vg}
  .amdhsa_next_free_sgpr {sg}
  .amdhsa_accum_offset {acc}
  .amdhsa_group_segment_fixed_size 0
  .amdhsa_kernarg_size 88
  .amdhsa_user_sgpr_count 2
  .amdhsa_user_sgpr_kernarg_segment_ptr 1
  .amdhsa_system_sgpr_workgroup_id_x 1
  .amdhsa_float_denorm_mode_32 3
.end_amdhsa_kernel
"""


def main():
    ref = open(f"cdna_kernels/{NAME}.s.ref").read().split("\n")
    head = [l for l in ref if l.startswith(";") and "@launch" not in l and "Override" not in l and "grid=ceil" not in l]
    A = Asm()
    v2, s2 = gen_k2(A)
    out = "\n".join(head) + "\n"
    out += f"; @launch grid=({NB},1,1) block=(1024,1,1) lds={L_END}\n"
    out += '.amdgcn_target "amdgcn-amd-amdhsa--gfx950"\n.text\n'
    out += A.text()
    out += '.section .rodata,"a"\n' + kd(KERN, v2, s2)
    path = sys.argv[1] if len(sys.argv) > 1 else f"cdna_kernels/{NAME}.s"
    open(path, "w").write(out)
    print("vgprs", v2, "lds", L_END, "->", path)


if __name__ == "__main__":
    main()
```

```python
import sys, struct, os

NAME = "gather_scatter__edge_featured_mpnn_mpnn__graph"
N, E = 10000, 640000
NB, CH = 256, 2500
LOG2E = 1.4426950408889634
LN2 = 0.6931471805599453
STAMP = int(os.environ.get("STAMP", "0"))
TM = "s_memtime" if STAMP == 2 else "s_memrealtime"
DL = [int(x) for x in os.environ.get("DL", "-1:0").split(":")]
ABL = os.environ.get("ABL", "").split(",")
OPT = os.environ.get("OPT", "").split(",")
WS_STAMP = 24 << 20


def f32(x):
    return struct.unpack("<I", struct.pack("<f", x))[0]


KERN = NAME + "_kernel"
RECB = 10240
WS_PF = NB * RECB + 4096
WS_TAB = WS_PF + NB * 64
WS_P = WS_TAB + NB * 4096
WS_END = WS_P + N * 256
WS_EPOCH = NB * RECB + 2048

NWV = 16
L_QT = 40 * 1024
L_CNT = L_QT + 40 * 512
L_FLAG = L_CNT + 256
L_LA = L_CNT + 512
NE = 4096
L_LB = L_LA + NE * 4
L_PB = L_LB + NE * 4
PCS = 1040
PBW = 4 * PCS
L_END = L_PB + NWV * PBW + 16
CAPB = (NE - 128) * 4
PADW = (16383 << 6)
PADE = 0x7FFFFFF
HB_STRIDE = 272
L_HBHI = L_LA
HB_LO = 16384
L_SA = L_PB + 16 + 9 * PCS
L_STG = L_SA
L_C1 = L_STG + 10240
L_S1 = L_C1 + 1024
L_K1 = L_S1 + 1024
L_WA = L_K1 + 1024
L_WB = L_WA + 16384
L_WC = L_WB + 16384
L_PO = L_QT
assert L_WC + 12 * 320 <= L_END and L_SA % 16 == 0
SC = "sc1"


class Asm:
    def __init__(self):
        self.lines = []

    def __call__(self, s):
        if isinstance(s, list):
            s = "\n".join(s)
        for ln in s.split("\n"):
            ln = ln.strip()
            if ln:
                self.lines.append(("" if ln.endswith(":") or ln.startswith(".") else "    ") + ln)

    def text(self):
        return "\n".join(self.lines) + "\n"


class Regs:
    def __init__(self, first):
        self.n = first

    def a(self, cnt=1, align=1):
        self.n = (self.n + align - 1) // align * align
        r = self.n
        self.n += cnt
        return r


def v(r, n=1):
    return f"v{r}" if n == 1 else f"v[{r}:{r + n - 1}]"


def s(r, n=1):
    return f"s{r}" if n == 1 else f"s[{r}:{r + n - 1}]"


DPP_SCAN = ["row_shr:1 row_mask:0xf bank_mask:0xf bound_ctrl:0", "row_shr:2 row_mask:0xf bank_mask:0xf bound_ctrl:0",
            "row_shr:4 row_mask:0xf bank_mask:0xf bound_ctrl:0", "row_shr:8 row_mask:0xf bank_mask:0xf bound_ctrl:0",
            "row_bcast:15 row_mask:0xa bank_mask:0xf", "row_bcast:31 row_mask:0xc bank_mask:0xf"]
K1_CNT = 10240
K1_ST = K1_CNT + 2560
K1_LDS = 24576 + 64 * 272
ST1 = os.environ.get('ST1', '')
ST2 = os.environ.get('ST2', '')
NPW = 250


def lane_table():
    T = []
    for l in range(64):
        i, h = l & 31, l >> 5
        idx = 2 * (i >> 3) + ((i >> 1) & 1)
        grp = 2 * ((i >> 2) & 1) + (i & 1)
        par = (l >> 3) & 1
        ta = h * 512 + par * 320 + ((l >> 4) & 1) * 32 + (l & 3) * 8
        real = (l >> 2) & 1
        xa = L_PB + 16 + ((l >> 3) & 1) * PCS + (l & 7) * 128
        f = ((l >> 1) & 7) ^ (l >> 4)
        T.append([xa + f * 16, xa + (f ^ 4) * 16, L_WB + (8 * (l >> 4) + ((l >> 2) & 3)) * 256 + (l & 3) * 8, L_QT + (l >> 4) * 2048 + (l & 15) * 4,
                  4 * i, L_LB + 4 * idx, grp, L_LA + (l & 8) * 2,
                  0x3f803f80 if grp == 2 * h else 0, 0x3f803f80 if grp == 2 * h + 1 else 0,
                  ((l & 7) ^ (4 * ((l >> 4) & 1))) * 8, (l & 15) * 32 + L_LA,
                  ta if real else -16, ta + 128 if real else 1024, ta ^ 64 if real else -16, (ta ^ 64) + 128 if real else 1024])
    return T


def gen_k2(A):
    R = Regs(1)
    lane = R.a()
    t0, t1, t2, t3 = R.a(), R.a(), R.a(), R.a()
    guard, deg, l16, EB = R.a(), R.a(), R.a(), R.a()
    rem = R.a(3, 2)
    LC = R.a(16, 2)
    la_w, la_e, le, tab = LC, LC + 1, LC + 2, LC + 3
    j4, ce0, grp, cw0 = LC + 4, LC + 5, LC + 6, LC + 7
    OH, dq, tb0 = LC + 8, LC + 10, LC + 11
    TA = [[LC + 12, LC + 13], [LC + 14, LC + 15]]
    lw = R.a(4, 2)
    qa, ha = R.a(2, 2), R.a(2, 2)
    b2r = R.a(2, 2)
    nn, dd, tt, rr = [R.a(2, 2) for _ in range(4)]
    acc = R.a(8, 2)
    A5 = R.a(4, 2)
    B5 = [R.a(4, 2) for _ in range(4)]
    D = [R.a(16, 2) for _ in range(2)]
    EX = R.a(16, 2)
    tl = R.a()
    tba, epv, jnk = R.a(), R.a(), R.a()
    nvgpr = R.n
    assert nvgpr <= 128, nvgpr
    CW, RK, CA, EI = D[0], D[0] + 8, D[1], D[1] + 8
    C64 = EX
    QB, QA, QA2, QD = EX, EX + 8, acc, nn
    assert rr == nn + 6

    SP0, SP1, SE, SW, SO, SS, SD_, SXR = 28, 32, 36, 40, 44, 48, 52, 72
    MK = 56
    s_b = 76
    s_wave, s_o3, s_o2, s_o1, s_msk, s_x, s_rem, s_epx, s_slow, s_safe, s_chunk = range(78, 89)
    s_t, s_u = 89, 90
    sA, sB = 26, 27
    s_m0, s_chg, s_hi, s_tag, s_to, s_ep = 0, 3, 77, 91, 1, 85
    s_oh = MK
    s_ne = SE + 2
    STR = [92, 4, 6, 96, 98, 12, 14, 100, 72, 74, 94]

    def pstamp(i):
        return f"s_waitcnt lgkmcnt(0)\n{TM} {s(STR[i],2)}\ns_waitcnt lgkmcnt(0)" if "pa" in OPT else ""

    def zstamp(i):
        return f"s_waitcnt lgkmcnt(0)\n{TM} {s(STR[i],2)}\ns_waitcnt lgkmcnt(0)" if "pz" in OPT else ""

    def ystamp(i):
        return f"s_waitcnt lgkmcnt(0)\n{TM} {s(STR[i],2)}\ns_waitcnt lgkmcnt(0)" if "py" in OPT else ""

    def stamp(i):
        if "pa" in OPT and i in (3, 4, 7):
            return
        if "pz" in OPT and i in (10, 7, 8, 9, 1):
            return
        if "py" in OPT and i in (8, 9, 3, 4, 1, 2):
            return
        if DL[0] == i:
            A(f"""
K_DL:
            s_waitcnt lgkmcnt(0)
            s_memrealtime {s(STR[i],2)}
            s_waitcnt lgkmcnt(0)
            s_sub_u32 {s(STR[i])}, {s(STR[i])}, {s(s_x)}
            s_cmp_lt_u32 {s(STR[i])}, {DL[1]*100}
            s_cbranch_scc1 K_DL
""")
        if STAMP:
            A(f"s_waitcnt lgkmcnt(0)\n{TM} {s(STR[i],2)}\ns_waitcnt lgkmcnt(0)")

    def tab_pre():
        return [f"v_lshrrev_b32 {v(EB)}, 2, v0", f"s_lshl_b32 {s(s_u)}, {s(s_b)}, 4", f"s_add_u32 {s(s_u)}, {s(s_u)}, {WS_TAB}",
                f"v_lshl_add_u32 {v(tba)}, {v(EB)}, 12, {s(s_u)}",
                f"v_and_b32 {v(t1)}, 48, {v(l16)}", f"v_mul_u32_u24 {v(t0)}, {RECB}, {v(EB)}",
                f"v_add_u32 {v(t0)}, {v(t0)}, {v(t1)}", f"v_mul_u32_u24 {v(EB)}, {CH}, {v(EB)}"]

    def poll(tag, issued=False):
        SL = int(os.environ.get("SLEEP", "0"))
        A(f"""
        {'' if issued is None else 's_branch K_POLL1' + tag}
K_POLL{tag}:
        {"s_mov_b64 exec, vcc" if "pm" in OPT else ""}
        {f"s_sleep {SL}" if SL else ""}
K_POLL1{tag}:
        buffer_load_dwordx3 {v(rem,3)}, {v(tba)}, {s(SW,4)}, 0 offen {SC}
        s_sub_u32 {s(s_to)}, {s(s_to)}, 1
        s_cbranch_scc1 K_END
K_POLL2{tag}:
        s_waitcnt vmcnt(0)
K_POLL3{tag}:
        v_cmp_ne_u32 vcc, {s(s_tag)}, {v(rem+1)}
        s_cbranch_vccnz K_POLL{tag}
        {"s_mov_b64 exec, -1" if "pm" in OPT else ""}
""")

    def rec_loads(tag):
        A(f"""
        v_add_u32_sdwa {v(t0)}, {v(t0)}, {v(rem)} dst_sel:DWORD dst_unused:UNUSED_PAD src0_sel:DWORD src1_sel:WORD_0
        v_lshrrev_b32 {v(rem)}, 16, {v(rem)}
        {"v_lshrrev_b32 " + v(EB) + ", 2, " + v(t0) if "e2" in OPT else ""}
        {"v_min_u32 " + v(EB) + ", 639000, " + v(EB) if "e2" in OPT else ""}
        buffer_load_dwordx4 {v(CW,4)}, {v(t0)}, {s(SW,4)}, 0 offen {SC}
        v_cmp_lt_u32 vcc, 64, {v(rem)}
        v_sub_u32 {v(rem)}, {v(rem)}, {v(t1)}
        s_cmp_lg_u64 vcc, 0
        s_cselect_b32 {s(s_hi)}, 1, 0
        s_cbranch_scc0 K_NOHI{tag}
        s_mov_b64 exec, vcc
        buffer_load_dwordx4 {v(CW+4,4)}, {v(t0)}, {s(SW,4)}, 0 offen offset:64 {SC}
        s_mov_b64 exec, -1
K_NOHI{tag}:
""")
        for i in range(4):
            A(f"v_cmp_lt_i32 {s(MK+2*i,2)}, {4*i}, {v(rem)}")

    def verify(tag):
        A(f"""
K_VER{tag}:
        s_waitcnt vmcnt(0)
K_VER1{tag}:
""")
        for i in range(4):
            A(f"v_cndmask_b32 {v(CA+i)}, 0, {v(CW+i)}, {s(MK+2*i,2)}")
        A(f"""
        v_add3_u32 {v(t2)}, {v(CA)}, {v(CA+1)}, {v(CA+2)}
        s_cmp_lg_u32 {s(s_hi)}, 0
        v_add_u32 {v(t2)}, {v(t2)}, {v(CA+3)}
        s_cbranch_scc1 K_VHI{tag}
K_VHB{tag}:
        s_nop 1
        v_add_u32_dpp {v(t2)}, {v(t2)}, {v(t2)} quad_perm:[1,0,3,2] row_mask:0xf bank_mask:0xf
        s_nop 1
        v_add_u32_dpp {v(t2)}, {v(t2)}, {v(t2)} quad_perm:[2,3,0,1] row_mask:0xf bank_mask:0xf
        v_cmp_ne_u32 vcc, {v(t2)}, {v(rem+2)}
        s_cbranch_vccnz K_VRE{tag}
K_VOK{tag}:
""")

    def verify_rare(tag):
        A(f"""
K_VHI{tag}:
        v_subrev_u32 {v(t3)}, 64, {v(rem)}
""")
        for i in range(4):
            A(f"v_cmp_lt_i32 {s(MK+8+2*i,2)}, {4*i}, {v(t3)}")
        A(f"v_cmp_lt_i32 vcc, 64, {v(t3)}\ns_cbranch_vccnz K_VOK{tag}")
        for i in range(4):
            A(f"v_cndmask_b32 {v(CA+i)}, 0, {v(CW+4+i)}, {s(MK+8+2*i,2)}")
        A(f"""
        v_add3_u32 {v(t2)}, {v(t2)}, {v(CA)}, {v(CA+1)}
        v_add3_u32 {v(t2)}, {v(t2)}, {v(CA+2)}, {v(CA+3)}
        s_branch K_VHB{tag}
K_VRE{tag}:
        s_sub_u32 {s(s_to)}, {s(s_to)}, 1
        s_cbranch_scc1 K_END
        buffer_load_dwordx4 {v(CW,4)}, {v(t0)}, {s(SW,4)}, 0 offen {SC}
        buffer_load_dwordx4 {v(CW+4,4)}, {v(t0)}, {s(SW,4)}, 0 offen offset:64 {SC}
        s_branch K_VER{tag}
""")

    def warm(opt, half, w0):
        if opt not in OPT:
            return []
        return [f"s_lshr_b32 {s(sA)}, s2, 3", f"s_mul_i32 {s(sA)}, {s(sA)}, 40000",
                f"s_mul_i32 {s(sB)}, {s(s_wave)}, 2560", f"s_add_u32 {s(sA)}, {s(sA)}, {s(sB)}",
                f"s_add_u32 {s(sA)}, {s(sA)}, {WS_P + (N*128 if half else 0)}", f"v_lshlrev_b32 {v(nn)}, 6, {v(lane)}",
                "s_mov_b32 exec_hi, 0xff",
                f"buffer_load_dword {v(jnk)}, {v(nn)}, {s(SW,4)}, {s(sA)} offen {SC}",
                "s_mov_b64 exec, -1"]

    def prefill():
        A(f"""
        v_mov_b32 {v(D[1])}, {PADW}
        v_mov_b32 {v(D[1]+1)}, {PADW}
        v_mov_b64 {v(D[1]+2,2)}, {v(D[1],2)}
        v_mov_b32 {v(D[1]+4)}, {PADE}
        v_mov_b32 {v(D[1]+5)}, {PADE}
        v_mov_b64 {v(D[1]+6,2)}, {v(D[1]+4,2)}
        v_lshlrev_b32 {v(t2)}, 4, v0
        v_add_u32 {v(t2)}, {L_LA}, {v(t2)}
        v_mov_b32 {v(D[1]+8)}, 0
        v_lshlrev_b32 {v(t3)}, 2, {v(lane)}
        ds_write_b128 {v(t2)}, {v(D[1],4)}
        ds_write_b128 {v(t2)}, {v(D[1]+4,4)} offset:{NE*4}
        ds_write2st64_b32 {v(t3)}, {v(D[1]+8)}, {v(D[1]+8)} offset0:{L_CNT//256} offset1:{L_CNT//256 + 1}
""")

    def zero_hsum():
        A(f"""
        v_mov_b64 {v(D[1]+12,2)}, 0
        v_mov_b64 {v(D[1]+14,2)}, 0
        v_mov_b32 {v(guard)}, 0
        v_mov_b32 {v(deg)}, 0
        v_lshlrev_b32 {v(t2)}, 4, v0
        ds_write_b128 {v(t2)}, {v(D[1]+12,4)}
        ds_write_b128 {v(t2)}, {v(D[1]+12,4)} offset:16384
        v_lshlrev_b32 {v(t3)}, 3, v0
        ds_write_b64 {v(t3)}, {v(D[1]+12,2)} offset:32768
""")

    CBL = L_PB + 16 + 5 * PCS
    U = B5[0]
    DS_, SR_, CB_, RK_, WW_ = U, U + 4, U + 8, U + 12, acc
    A(f"""
.globl {KERN}
.p2align 8
.type {KERN},@function
{KERN}:
    s_cmp_ge_u32 s2, {NB}
    s_cbranch_scc1 K_END
    s_load_dwordx16 s[4:19], s[0:1], 0
    s_load_dwordx4 s[20:23], s[0:1], 64
    s_load_dwordx2 s[24:25], s[0:1], 80
    s_getpc_b64 {s(sA,2)}
K_PC2:
    v_lshlrev_b32 {v(t1)}, {os.environ.get("CSH", "7")}, v0
    v_min_u32 {v(t1)}, K_HOT_END-K_PC2, {v(t1)}
    global_load_dword {v(b2r)}, {v(t1)}, {s(sA,2)}
    {TM + " " + s(STR[0],2) if STAMP or DL[0] >= 0 else ""}
    v_lshlrev_b32 {v(t0)}, 4, v0
    v_lshrrev_b32 {v(t1)}, 6, v0
    s_mul_i32 {s(s_o1)}, s2, {CH * 4}
    v_readfirstlane_b32 {s(s_wave)}, {v(t1)}
    v_min_u32 {v(t2)}, {CH * 4 - 16}, {v(t0)}
    v_add_u32 {v(rr)}, {s(s_o1)}, {v(t2)}
    s_mov_b32 {s(s_o2)}, {2 << 20}
    s_mov_b32 {s(s_o3)}, {4 << 20}
    s_and_b32 {s(s_b)}, s2, 7
    s_lshr_b32 {s(s_t)}, s2, 3
    s_lshl4_add_u32 {s(s_t)}, {s(s_b)}, {s(s_t)}
    s_lshl4_add_u32 {s(s_b)}, {s(s_b)}, {s(s_t)}
    v_xor_b32 {v(t1)}, v0, {v(t0)}
    v_and_b32 {v(t1)}, 0x70, {v(t1)}
    v_lshrrev_b32 {v(t3)}, 3, v0
    v_lshl_add_u32 {v(t1)}, {v(t3)}, 15, {v(t1)}
    s_lshl_b32 {s(s_t)}, {s(s_b)}, 7
    s_sub_u32 {s(s_t)}, {s(s_t)}, {80 << 15}
    v_add_u32 {v(t1)}, {s(s_t)}, {v(t1)}
    v_min_u32 {v(t1)}, {N * 128 - 16}, {v(t1)}
    s_mul_i32 {s(s_t)}, {s(s_wave)}, {PCS}
    s_add_u32 m0, {s(s_t)}, {L_PB + 16 - 10 * PCS}
    s_lshl_b32 {s(s_u)}, {s(s_wave)}, 10
    s_sub_u32 {s(s_t)}, {s(s_wave)}, 10
    s_waitcnt lgkmcnt(0)
""")
    if "s1" in OPT:
        slots = [(2, 0), (2, 1), (0, 0), (4, 0), (10, 0), (10, 1), (10, 2), (5, 0), (1, 0), (1, 1), (1, 2), (6, 0), (7, 0), (8, 0), (3, 0), (3, 1)]
        pt = sum(p << (4 * i) for i, (p, o) in enumerate(slots)); ot = sum(o << (2 * i) for i, (p, o) in enumerate(slots))
        A(f"""
        s_cselect_b32 {s(MK+8)}, 1, 0
        s_cmp_lg_u32 {s(s_wave)}, 15
        s_cbranch_scc1 K_NOS1
        s_bfe_u32 {s(MK)}, s2, 0x40003
        s_mov_b32 {s(MK+2)}, {pt & 0xffffffff}
        s_mov_b32 {s(MK+3)}, {pt >> 32}
        s_lshl_b32 {s(MK+1)}, {s(MK)}, 2
        s_lshr_b64 {s(MK+2,2)}, {s(MK+2,2)}, {s(MK+1)}
        s_and_b32 {s(MK+2)}, {s(MK+2)}, 15
        s_lshl_b32 {s(MK+2)}, {s(MK+2)}, 3
        s_load_dwordx2 {s(MK+4,2)}, s[0:1], {s(MK+2)}
        s_lshl_b32 {s(MK+1)}, {s(MK)}, 1
        s_lshr_b32 {s(MK+1)}, {ot}, {s(MK+1)}
        s_and_b32 {s(MK+1)}, {s(MK+1)}, 3
        s_lshl_b32 {s(MK+1)}, {s(MK+1)}, 21
        s_waitcnt lgkmcnt(0)
        s_load_dword {s(MK+6)}, {s(MK+4,2)}, {s(MK+1)}
K_NOS1:
        s_cmp_lg_u32 {s(MK+8)}, 0
""")
    if "st" in OPT:
        tg = [("s[8:9]", "s2x"), ("s[4:5]", 0), ("s[12:13]", 0), ("s[24:25]", 0), ("s[24:25]", 2 << 20), ("s[24:25]", 4 << 20),
              ("s[14:15]", 0), ("s[6:7]", 0), ("s[6:7]", 2 << 20), ("s[6:7]", 4 << 20), ("s[16:17]", 0), ("s[18:19]", 0)]
        for n_, (b_, o_) in enumerate(tg):
            if o_ == "s2x":
                A(f"s_load_dword {s(MK+n_)}, {b_}, {s(s_o1)}")
            elif o_ == 0:
                A(f"s_load_dword {s(MK+n_)}, {b_}, 0")
            else:
                A(f"s_load_dword {s(MK+n_)}, {b_}, {s(s_o2 if o_ == 2 << 20 else s_o3)}")
    A(f"""
    s_cbranch_scc0 K_XL
    global_load_dwordx4 {v(DS_,4)}, {v(rr)}, s[10:11]
K_XL:
    s_cmp_lt_u32 {s(s_t)}, 5
    s_cbranch_scc0 K_XM
    global_load_lds_dwordx4 {v(t1)}, s[4:5]
K_XM:
    s_add_u32 m0, {s(s_u)}, {L_WA}
    v_and_b32 {v(lane)}, 63, v0
    global_load_lds_dwordx4 {v(t0)}, s[12:13]
    v_lshlrev_b32 {v(l16)}, 4, {v(lane)}
K_XD:
    {pstamp(7)}
    {"s_mov_b32 " + s(s_x) + ", " + s(STR[0]) if STAMP or DL[0] >= 0 else ""}
""")
    zero_hsum()
    A(f"""
    v_add_u32 {v(tba)}, {L_C1}, {v(l16)}
    ds_write_b128 {v(tba)}, {v(D[1]+12,4)}
    ds_write_b128 {v(tba)}, {v(D[1]+12,4)} offset:2048
    v_mov_b32 {v(t1)}, {WS_EPOCH}
    global_load_dword {v(epv)}, {v(t1)}, s[24:25]
""")
    prefill()
    A(f"""
    s_mov_b32 {s(SW)}, s24
    s_and_b32 {s(SW+1)}, s25, 0xffff
    s_mov_b32 {s(SW+2)}, {WS_END}
    s_mov_b32 {s(SW+3)}, 0x20000
    s_add_u32 {s(SP0)}, s24, {WS_P - 3*PCS}
    s_addc_u32 {s(SP0+1)}, s25, {2 << 16}
    s_mov_b32 {s(SP0+2)}, {N * 64}
    s_mov_b32 {s(SP0+3)}, 0x20000
    s_add_u32 {s(SP1)}, s24, {WS_P - 3*PCS + N*128}
    s_addc_u32 {s(SP1+1)}, s25, {2 << 16}
    s_mov_b32 {s(SP1+2)}, {N * 64}
    s_mov_b32 {s(SP1+3)}, 0x20000
    s_mov_b32 {s(SE)}, s6
    s_or_b32 {s(SE+1)}, s7, {8 << 16}
    s_mov_b32 {s(SE+2)}, {E}
    s_mov_b32 {s(SE+3)}, 0x20000
    s_movk_i32 {s(s_o3)}, {3*PCS}
    s_movk_i32 {s(s_o2)}, {2*PCS}
    s_movk_i32 {s(s_o1)}, {PCS}
    s_mov_b32 {s(s_msk)}, 0xfffc0
    s_mov_b32 {s(s_safe)}, 0
    s_mov_b32 {s(s_slow)}, 0
    s_mul_i32 {s(s_m0)}, {s(s_wave)}, {PBW}
    s_add_u32 {s(s_m0)}, {s(s_m0)}, {L_PB + 16}
    s_mov_b32 m0, {s(s_m0)}
    s_cmp_ge_u32 {s(s_wave)}, 10
    s_cbranch_scc1 K_PROLE
    global_load_dwordx4 {v(SR_,4)}, {v(rr)}, s[8:9]
    v_lshlrev_b32 {v(WW_)}, 22, v0
    v_add_u32 {v(WW_+1)}, {1 << 20}, {v(WW_)}
    v_add_u32 {v(WW_+2)}, {2 << 20}, {v(WW_)}
    v_add_u32 {v(WW_+3)}, {3 << 20}, {v(WW_)}
    v_mov_b32 {v(t3)}, 4
    s_mov_b32 {s(s_t)}, {L_C1}
    v_cmp_gt_u32 vcc, {CH // 4}, v0
    s_waitcnt lgkmcnt(0)
    s_mov_b64 {s(MK,2)}, vcc
    {pstamp(3) if "pb" in OPT else ""}
    s_barrier
    {pstamp(3) if "pb" not in OPT else ""}
    s_mov_b64 exec, {s(MK,2)}
    s_waitcnt vmcnt(3)
    {pstamp(4)}
""")
    for i in range(4):
        A(f"v_and_b32 {v(CB_+i)}, 255, {v(DS_+i)}")
        A(f"v_lshl_add_u32 {v(CB_+i)}, {v(CB_+i)}, 2, {s(s_t)}")
        A(f"ds_add_rtn_u32 {v(RK_+i)}, {v(CB_+i)}, {v(t3)}")
    for i in range(4):
        A(f"v_lshrrev_b32 {v(DS_+i)}, 8, {v(DS_+i)}")
        A(f"v_or_b32 {v(WW_+i)}, {v(WW_+i)}, {v(DS_+i)}")
    C4, P4 = U + 16, U + 20
    A(f"""
    s_mov_b64 exec, -1
    s_waitcnt vmcnt(1) lgkmcnt(0)
    s_barrier
""")
    stamp(10)
    A(f"""
    ds_read_b128 {v(C4,4)}, {v(tba)}
    v_readfirstlane_b32 {s(s_tag)}, {v(epv)}
    s_nop 0
    ; tag = hash(epoch), different from the epoch
    s_mul_i32 {s(s_to)}, {s(s_tag)}, 0x9e3779b1
    s_add_u32 {s(s_to)}, {s(s_to)}, 0x7f4a7c15
    s_cmp_eq_u32 {s(s_to)}, {s(s_tag)}
    s_addc_u32 {s(s_tag)}, {s(s_to)}, 0
    s_mov_b32 {s(s_to)}, 0x40000
""")
    A(f"""
    s_waitcnt lgkmcnt(0)
    v_add_u32 {v(DS_+1)}, {v(C4)}, {v(C4+1)}
    v_add_u32 {v(DS_+2)}, {v(DS_+1)}, {v(C4+2)}
    v_add_u32 {v(DS_+3)}, {v(DS_+2)}, {v(C4+3)}
    v_mov_b32 {v(t1)}, {v(DS_+3)}
    v_add_u32 {v(t2)}, {L_STG}, {v(t0)}
    s_nop 0
""")
    for d in DPP_SCAN:
        A(f"v_add_u32_dpp {v(t1)}, {v(t1)}, {v(t1)} {d}\ns_nop 1")
    A(f"""
    v_sub_u32 {v(P4)}, {v(t1)}, {v(DS_+3)}
    v_add_u32 {v(P4+1)}, {v(P4)}, {v(C4)}
    v_add_u32 {v(P4+2)}, {v(P4)}, {v(DS_+1)}
    v_add_u32 {v(P4+3)}, {v(P4)}, {v(DS_+2)}
    ds_write_b128 {v(tba)}, {v(P4,4)} offset:1024
    s_mov_b64 exec, {s(MK,2)}
    s_mov_b32 {s(s_t)}, {L_STG}
""")
    for i in range(4):
        A(f"ds_read_b32 {v(DS_+i)}, {v(CB_+i)} offset:1024")
    A(ystamp(8) + "\ns_waitcnt vmcnt(0)\n" + ystamp(9))
    for i in range(4):
        A(f"v_lshl_or_b32 {v(WW_+i)}, {v(SR_+i)}, 6, {v(WW_+i)}")
    for i in range(4):
        A(f"s_waitcnt lgkmcnt(3)")
        A(f"v_add3_u32 {v(DS_+i)}, {v(DS_+i)}, {v(RK_+i)}, {s(s_t)}")
        A(f"ds_write_b32 {v(DS_+i)}, {v(WW_+i)}")
    for i in range(4):
        A(f"ds_add_u32 {v(CB_+i)}, {v(WW_+i)} offset:2048")
    A(f"""
    s_mov_b64 exec, -1
    s_lshl_b32 {s(s_u)}, {s(s_wave)}, 10
    s_add_u32 m0, {s(s_u)}, {L_WB}
    v_add_u32 {v(t3)}, 16384, {v(t0)}
    global_load_lds_dwordx4 {v(t3)}, s[12:13]
    v_and_b32 {v(t1)}, 15, {v(lane)}
    s_and_b32 {s(s_u)}, {s(s_wave)}, 7
    s_lshl_b32 {s(s_u)}, {s(s_u)}, 5
    v_lshl_add_u32 {v(t1)}, {v(t1)}, 1, {s(s_u)}
    global_load_ushort {v(qa)}, {v(t1)}, s[14:15]
    v_lshrrev_b32 {v(t1)}, 1, v0
    v_and_b32 {v(t1)}, 0x78, {v(t1)}
    global_load_dwordx2 {v(b2r,2)}, {v(t1)}, s[18:19]
    s_mul_i32 {s(s_u)}, s2, {RECB}
    v_lshlrev_b32 {v(t1)}, 2, v0
    v_add_u32 {v(t1)}, {L_C1}, {v(t1)}
    s_lshl_b32 {s(sB)}, s2, 12
    s_add_u32 {s(sB)}, {s(sB)}, {WS_TAB}
    v_mov_b32 {v(C4+1)}, {s(s_tag)}
    v_mov_b32 {v(C4+3)}, {s(s_tag)}
    s_cmp_ge_u32 {s(s_wave)}, 4
    s_waitcnt lgkmcnt(0)
    {ystamp(3)}
    s_barrier
    {ystamp(4)}
    ds_read_b128 {v(DS_,4)}, {v(t2)}
    s_cbranch_scc1 K_NOTABR
    ds_read2st64_b32 {v(P4,2)}, {v(t1)} offset0:0 offset1:4
    ds_read_b32 {v(C4+2)}, {v(t1)} offset:2048
K_NOTABR:
    s_waitcnt lgkmcnt(0)
    buffer_store_dwordx4 {v(DS_,4)}, {v(t0)}, {s(SW,4)}, {s(s_u)} offen {SC}
    s_cbranch_scc1 K_AJOIN
    v_lshl_or_b32 {v(C4)}, {v(P4)}, 16, {v(P4+1)}
    buffer_store_dwordx4 {v(C4,4)}, {v(t0)}, {s(SW,4)}, {s(sB)} offen {SC}
    s_branch K_AJOIN
K_PROLE:
    ; ================= P role (waves 10..13 compute, 10..15 copy out) =================
    s_cmp_lg_u32 {s(s_wave)}, 15
    s_cbranch_scc1 K_NOWCL
    v_add_u32 {v(t1)}, {128 * 256}, {v(l16)}
    global_load_dwordx4 {v(lw,4)}, {v(t1)}, s[12:13]
K_NOWCL:
    v_and_b32 {v(t1)}, 31, {v(lane)}
    v_lshrrev_b32 {v(t2)}, 5, {v(lane)}
    s_sub_u32 {s(s_u)}, {s(s_wave)}, 10
    s_lshl_b32 {s(s_t)}, {s(s_u)}, 6
    s_add_u32 {s(s_t)}, {s(s_t)}, {L_WA}
    v_bfe_u32 {v(nn)}, {v(lane)}, 2, 2
    v_lshl_add_u32 {v(nn)}, {v(t2)}, 3, {v(nn)}
    v_lshlrev_b32 {v(nn)}, 8, {v(nn)}
    v_and_b32 {v(t3)}, 1, {v(lane)}
    v_lshl_add_u32 {v(nn)}, {v(t3)}, 5, {v(nn)}
    v_and_b32 {v(t3)}, 16, {v(lane)}
    v_add3_u32 {v(nn)}, {v(nn)}, {v(t3)}, {s(s_t)}
    v_and_b32 {v(t3)}, 2, {v(lane)}
    v_lshl_add_u32 {v(nn)}, {v(t3)}, 2, {v(nn)}
    v_lshrrev_b32 {v(t3)}, 3, {v(t1)}
    v_lshlrev_b32 {v(nn+1)}, 7, {v(t1)}
    v_lshl_add_u32 {v(nn+1)}, {v(t3)}, 4, {v(nn+1)}
    v_add_u32 {v(nn+1)}, {L_PB + 16}, {v(nn+1)}
    v_bfe_u32 {v(t3)}, {v(lane)}, 1, 3
    v_xor_b32 {v(t3)}, {v(t3)}, {v(t2)}
""")
    for q in range(4):
        A(f"v_xor_b32 {v(acc+q)}, {2*q}, {v(t3)}")
        A(f"v_lshl_add_u32 {v(acc+q)}, {v(acc+q)}, 4, {v(nn+1)}")
    A(f"""
    v_mul_u32_u24 {v(nn+1)}, 272, {v(t1)}
    v_lshl_add_u32 {v(nn+1)}, {v(t2)}, 5, {v(nn+1)}
    s_lshl_b32 {s(s_t)}, {s(s_u)}, 6
    v_add_u32 {v(nn+1)}, {s(s_t)}, {v(nn+1)}
    ; copy-out: u = tid - 640 (+384): row = u>>4, piece = u&15
    v_subrev_u32 {v(t1)}, 640, v0
    v_lshrrev_b32 {v(t2)}, 4, {v(t1)}
    v_and_b32 {v(t3)}, 0xf0, {v(l16)}
    v_mul_u32_u24 {v(dd)}, 272, {v(t2)}
    v_add_u32 {v(dd)}, {v(dd)}, {v(t3)}
    v_and_b32 {v(t3)}, 0x70, {v(l16)}
    v_lshl_add_u32 {v(dd+1)}, {v(t2)}, 15, {v(t3)}
    s_lshl_b32 {s(s_t)}, {s(s_b)}, 7
    v_add_u32 {v(dd+1)}, {s(s_t)}, {v(dd+1)}
    v_add_u32 {v(tt)}, {24 << 15}, {v(dd+1)}
    v_bfe_u32 {v(t3)}, {v(lane)}, 3, 1
    v_mul_u32_u24 {v(t3)}, {N * 128}, {v(t3)}
    v_add_u32 {v(t3)}, {WS_P}, {v(t3)}
    v_cmp_gt_u32 vcc, {N * 128}, {v(tt)}
    v_add_u32 {v(dd+1)}, {v(dd+1)}, {v(t3)}
    v_add_u32 {v(tt)}, {v(tt)}, {v(t3)}
    s_mov_b32 {s(sA)}, {f32(-LOG2E)}
    s_mov_b32 {s(sB)}, {f32(-LOG2E)}
    s_waitcnt lgkmcnt(0)
    s_mov_b64 {s(MK,2)}, vcc
    s_barrier
    s_waitcnt vmcnt(0)
    s_barrier
    s_cmp_ge_u32 {s(s_wave)}, 14
    s_cbranch_scc1 K_PWC
""")
    WF, XA, XB2, D0 = U, U + 16, U + 32, U + 48
    for q in range(4):
        A(f"ds_read_b128 {v(XA+4*q,4)}, {v(acc+q)}")
        for h2 in range(2):
            A(f"ds_read_b64_tr_b16 {v(WF+4*q+2*h2,2)}, {v(nn)} offset:{(16*q+4*h2)*256}")
    for q in range(4):
        A(f"ds_read_b128 {v(XB2+4*q,4)}, {v(acc+q)} offset:{4*PCS}")
    for q in range(4):
        A(f"s_waitcnt lgkmcnt({13 - 3*q})")
        A(f"v_mfma_f32_32x32x16_bf16 {v(D0,16)}, {v(WF+4*q,4)}, {v(XA+4*q,4)}, {'0' if q == 0 else v(D0,16)}")
    for q in range(4):
        A(f"s_waitcnt lgkmcnt({3 - q})")
        A(f"v_mfma_f32_32x32x16_bf16 {v(XA,16)}, {v(WF+4*q,4)}, {v(XB2+4*q,4)}, {'0' if q == 0 else v(XA,16)}")
    A("s_nop 3")
    for r in range(16):
        A(f"v_mul_f32 {v(D0+r)}, {s(sA)}, {v(D0+r)}")
    for r in range(8):
        A(f"v_cvt_pk_bf16_f32 {v(D0+r)}, {v(D0+2*r)}, {v(D0+2*r+1)}")
    A(f"""
    ds_write_b128 {v(nn+1)}, {v(D0,4)} offset:{L_PO}
    ds_write_b128 {v(nn+1)}, {v(D0+4,4)} offset:{L_PO + 16}
""")
    for r in range(0, 16, 2):
        A(f"v_pk_mul_f32 {v(XA+r,2)}, {v(XA+r,2)}, {s(sA,2)}")
    for r in range(8):
        A(f"v_cvt_pk_bf16_f32 {v(XA+r)}, {v(XA+2*r)}, {v(XA+2*r+1)}")
    A(f"""
    ds_write_b128 {v(nn+1)}, {v(XA,4)} offset:{L_PO + 32*272}
    ds_write_b128 {v(nn+1)}, {v(XA+4,4)} offset:{L_PO + 32*272 + 16}
    s_branch K_PB3
K_PWC:
    s_getpc_b64 {s(MK+2,2)}
K_PC:
    s_add_u32 {s(MK+2)}, {s(MK+2)}, K_TABLE-K_PC
    s_addc_u32 {s(MK+3)}, {s(MK+3)}, 0
    s_and_b32 {s(s_t)}, {s(s_wave)}, 1
    s_mul_i32 {s(s_u)}, {s(s_t)}, {2*PCS}
    s_add_u32 m0, {s(s_u)}, {CBL}
    s_lshl_b32 {s(s_t)}, {s(s_t)}, 11
    v_add_u32 {v(t1)}, {s(s_t)}, {v(l16)}
    global_load_lds_dwordx4 {v(t1)}, {s(MK+2,2)}
    s_add_u32 m0, m0, {PCS - 1024}
    s_nop 0
    global_load_lds_dwordx4 {v(t1)}, {s(MK+2,2)} offset:1024
    s_cmp_eq_u32 {s(s_wave)}, 14
    s_cbranch_scc1 K_EPF
    v_lshrrev_b32 {v(t1)}, 4, {v(lane)}
    v_mul_u32_u24 {v(t1)}, 320, {v(t1)}
    v_and_b32 {v(t2)}, 0xf0, {v(l16)}
    v_add_u32 {v(t1)}, {v(t1)}, {v(t2)}
    v_add_u32 {v(t1)}, {L_WC}, {v(t1)}
""")
    for i in range(4):
        A(f"v_lshlrev_b32 {v(U+2*i)}, 16, {v(lw+i)}")
        A(f"v_and_b32 {v(U+2*i+1)}, 0xffff0000, {v(lw+i)}")
    for i in range(4):
        A(f"v_pk_mul_f32 {v(U+2*i,2)}, {v(U+2*i,2)}, {s(sA,2)}")
    for i in range(8):
        A(f"v_and_b32 {v(U+8+i)}, 0xffff0000, {v(U+i)}")
    for i in range(8):
        A(f"v_sub_f32 {v(U+i)}, {v(U+i)}, {v(U+8+i)}")
    for i in range(4):
        A(f"v_cvt_pk_bf16_f32 {v(U+16+i)}, {v(U+8+2*i)}, {v(U+9+2*i)}")
        A(f"v_cvt_pk_bf16_f32 {v(U+20+i)}, {v(U+2*i)}, {v(U+1+2*i)}")
    A(f"""
    ds_write_b128 {v(t1)}, {v(U+16,4)}
    ds_write_b128 {v(t1)}, {v(U+20,4)} offset:{8*320}
    s_branch K_PB3
K_EPF:
""")
    EPF = int(os.environ.get("EPF", "0"))
    EPX = int(os.environ.get("EPX", "0"))
    if EPF:
        if EPX:
            A(f"s_lshr_b32 {s(s_t)}, s2, 3\ns_mul_i32 {s(s_t)}, {s(s_t)}, {EPF * 1024}")
        else:
            A(f"s_mul_i32 {s(s_t)}, s2, {CH}")
        A(f"v_add_u32 {v(t1)}, {s(s_t)}, {v(l16)}")
        for k in range(EPF):
            A(f"buffer_load_dword {v(jnk)}, {v(t1)}, {s(SE,4)}, 0 idxen\nv_add_u32 {v(t1)}, 1024, {v(t1)}")
    A(f"""
K_PB3:
    v_readfirstlane_b32 {s(s_tag)}, {v(epv)}
    s_nop 0
    ; tag = hash(epoch), different from the epoch
    s_mul_i32 {s(s_to)}, {s(s_tag)}, 0x9e3779b1
    s_add_u32 {s(s_to)}, {s(s_to)}, 0x7f4a7c15
    s_cmp_eq_u32 {s(s_to)}, {s(s_tag)}
    s_addc_u32 {s(s_tag)}, {s(s_to)}, 0
    s_mov_b32 {s(s_to)}, 0x40000
    s_lshl_b32 {s(s_u)}, {s(s_wave)}, 10
    s_add_u32 m0, {s(s_u)}, {L_WB}
    v_add_u32 {v(t3)}, 16384, {v(t0)}
    global_load_lds_dwordx4 {v(t3)}, s[12:13]
    v_and_b32 {v(t1)}, 15, {v(lane)}
    s_and_b32 {s(s_u)}, {s(s_wave)}, 7
    s_lshl_b32 {s(s_u)}, {s(s_u)}, 5
    v_lshl_add_u32 {v(t1)}, {v(t1)}, 1, {s(s_u)}
    global_load_ushort {v(qa)}, {v(t1)}, s[14:15]
    v_lshrrev_b32 {v(t1)}, 1, v0
    v_and_b32 {v(t1)}, 0x78, {v(t1)}
    global_load_dwordx2 {v(b2r,2)}, {v(t1)}, s[18:19]
    s_waitcnt lgkmcnt(0)
    {ystamp(3)}
    s_barrier
    ds_read_b128 {v(U,4)}, {v(dd)} offset:{L_PO}
    ds_read_b128 {v(U+4,4)}, {v(dd)} offset:{L_PO + 24*272}
    s_waitcnt lgkmcnt(1)
    buffer_store_dwordx4 {v(U,4)}, {v(dd+1)}, {s(SW,4)}, 0 offen {SC}
    s_cmp_ge_u32 {s(s_wave)}, 14
    s_cbranch_scc1 K_AJOIN
    s_mov_b64 exec, {s(MK,2)}
    s_waitcnt lgkmcnt(0)
    buffer_store_dwordx4 {v(U+4,4)}, {v(tt)}, {s(SW,4)}, 0 offen {SC}
    s_mov_b64 exec, -1
K_AJOIN:
""")
    stamp(7)
    TR = D[0]
    A(tab_pre())
    A(f"""
    ; Wc fragment address: WC + (8h + r)*320 + c16*32 + c*8
    v_lshrrev_b32 {v(t2)}, 5, {v(lane)}
    v_bfe_u32 {v(t3)}, {v(lane)}, 2, 2
    v_lshl_add_u32 {v(t2)}, {v(t2)}, 3, {v(t3)}
    v_mul_u32_u24 {v(t2)}, 320, {v(t2)}
    v_and_b32 {v(t3)}, 16, {v(lane)}
    v_lshl_add_u32 {v(t2)}, {v(t3)}, 1, {v(t2)}
    v_and_b32 {v(t3)}, 3, {v(lane)}
    v_lshl_add_u32 {v(t2)}, {v(t3)}, 3, {v(t2)}
    v_add_u32 {v(t2)}, {L_WC}, {v(t2)}
    v_add_u32 {v(t3)}, {CBL}, {v(l16)}
    s_lshr_b32 {s(s_t)}, {s(s_wave)}, 3
    s_mul_i32 {s(sA)}, {s(s_t)}, {2*PCS}
    s_lshl_b32 {s(s_t)}, {s(s_t)}, 13
    s_and_b32 {s(s_u)}, {s(s_wave)}, 7
    s_lshl_b32 {s(sB)}, {s(s_u)}, 6
    s_add_u32 {s(s_t)}, {s(s_t)}, {s(sB)}
    s_lshl_b32 {s(s_u)}, {s(s_u)}, 5
    s_mov_b32 m0, {s(s_m0)}
    s_cmp_lt_u32 {s(s_wave)}, 4
    s_cbranch_scc1 K_J2
    s_sub_u32 {s(sB)}, {s(s_wave)}, 10
    s_cmp_lt_u32 {s(sB)}, 4
    s_cbranch_scc1 K_J2
    s_waitcnt vmcnt(1)
K_J2:
    s_waitcnt vmcnt(2) lgkmcnt(0)
    s_barrier
""")
    stamp(8)
    for k in range(4):
        A(f"ds_read_b128 {v(LC+4*k,4)}, {v(t3)} offset:{k*PCS}")
    A(f"""
    s_waitcnt lgkmcnt(3)
    v_add_u32 {v(la_w)}, {s(sA)}, {v(la_w)}
    v_add_u32 {v(la_e)}, {s(sA)}, {v(la_e)}
    v_add_u32 {v(le)}, {s(s_u)}, {v(le)}
    v_add_u32 {v(ha)}, {s(s_t)}, {v(tab)}
    ds_read_b128 {v(QA,4)}, {v(la_w)}
    ds_read_b128 {v(QA+4,4)}, {v(la_e)}
""")
    for ks in range(2):
        for h2 in range(2):
            A(f"ds_read_b64_tr_b16 {v(QB+4*ks+2*h2,2)}, {v(le)} offset:{(32*ks + 4*h2)*256}")
    A(f"""
    ds_read_b128 {v(QA2,4)}, {v(la_w)} offset:{4*PCS}
    ds_read_b128 {v(QA2+4,4)}, {v(la_e)} offset:{4*PCS}
""")
    for n in range(4):
        A(f"ds_read_b64_tr_b16 {v(B5[n],2)}, {v(t2)} offset:{64*n}")
    A("s_waitcnt lgkmcnt(12)")
    for a in (TA[0][0], TA[0][1], TA[1][0], TA[1][1]):
        A(f"v_add_u32 {v(a)}, {s(s_m0)}, {v(a)}")
    A(f"""
    s_mov_b32 {s(s_t)}, {f32(-LOG2E)}
    v_lshlrev_b32 {v(qa)}, 16, {v(qa)}
    v_mul_f32 {v(qa)}, {s(s_t)}, {v(qa)}
    s_waitcnt lgkmcnt(4)
    v_mfma_f32_16x16x32_bf16 {v(QD,4)}, {v(QA,4)}, {v(QB,4)}, 0
    v_mfma_f32_16x16x32_bf16 {v(QD,4)}, {v(QA+4,4)}, {v(QB+4,4)}, {v(QD,4)}
    v_mfma_f32_16x16x32_bf16 {v(QD+4,4)}, {v(QA2,4)}, {v(QB,4)}, 0
    v_mfma_f32_16x16x32_bf16 {v(QD+4,4)}, {v(QA2+4,4)}, {v(QB+4,4)}, {v(QD+4,4)}
""")

    def qpart(base, off):
        for r in range(4):
            A(f"v_fma_f32 {v(base+r)}, {v(base+r)}, {s(s_t)}, {v(qa)}")
        for r in range(4):
            A(f"v_and_b32 {v(QA+r)}, 0xffff0000, {v(base+r)}")
        for r in range(4):
            A(f"v_sub_f32 {v(base+r)}, {v(base+r)}, {v(QA+r)}")
        for r in range(4):
            A(f"v_cvt_pk_bf16_f32 {v(base+r)}, {v(QA+r)}, {v(base+r)}")
        for r in range(0, 4, 2):
            A(f"ds_write2st64_b32 {v(ha)}, {v(base+r)}, {v(base+r+1)} offset0:{(off + r*512)//256} offset1:{(off + r*512 + 512)//256}")
    A("s_nop 5")
    qpart(QD, 0)
    A(f"s_cmp_ge_u32 {s(s_wave)}, 8\ns_cbranch_scc1 K_QD\ns_mov_b32 exec_hi, 0")
    qpart(QD + 4, 32 * 512)
    A(f"""
    s_mov_b32 exec_hi, -1
K_QD:
    s_cmp_lt_u32 {s(s_wave)}, 10
    s_cbranch_scc1 K_POLL1A
    s_mov_b64 exec, 1
    v_mov_b32 {v(t2)}, {L_FLAG + 8}
    v_mov_b32 {v(t3)}, 1
    s_waitcnt vmcnt(0)
    ds_add_rtn_u32 {v(t2)}, {v(t2)}, {v(t3)}
    s_mov_b64 exec, -1
    buffer_load_dwordx3 {v(rem,3)}, {v(tba)}, {s(SW,4)}, 0 offen {SC}
    v_mov_b32 {v(t3)}, {s(s_tag)}
    v_lshlrev_b32 {v(lw)}, 2, {v(lane)}
    s_lshl_b32 {s(sA)}, s2, 6
    s_add_u32 {s(sA)}, {s(sA)}, {WS_PF}
    s_waitcnt lgkmcnt(0)
    v_readfirstlane_b32 {s(s_u)}, {v(t2)}
    s_cmp_lg_u32 {s(s_u)}, 5
    s_cbranch_scc1 K_POLL2A
    s_mov_b64 exec, 0xffff
    buffer_store_dword {v(t3)}, {v(lw)}, {s(SW,4)}, {s(sA)} offen {SC}
    s_mov_b64 exec, -1
    s_waitcnt vmcnt(1)
    s_branch K_POLL3A
""")
    poll("A", None)
    stamp(9)
    rec_loads("A")
    A(f"""
    v_and_b32 {v(tba)}, 0x3fc, v0
    v_lshlrev_b32 {v(tba)}, 4, {v(tba)}
    v_add_u32 {v(tba)}, {WS_PF}, {v(tba)}
""")
    verify("A")
    NWM = NWB = 0

    def p1words(xs):
        for x in xs:
            A(f"v_lshlrev_b32_sdwa {v(CA+x)}, 2, {v(CW+x)} dst_sel:BYTE_0 dst_unused:UNUSED_PAD src0_sel:DWORD src1_sel:DWORD")
        for x in xs:
            A(f"s_mov_b64 exec, {s(MK+2*x,2)}")
            A(f"ds_add_rtn_u32 {v(RK+x)}, {v(CA+x)}, {v(t3)} offset:{L_CNT}")
        A("s_mov_b64 exec, -1")

    LO = [0, 1, 2, 3]
    HI = [4, 5, 6, 7]
    A(warm("q1", 128, 0))
    A(f"K_PASS1:\nv_mov_b32 {v(t3)}, 4")
    stamp(1)
    A(warm("p0", 0, 5) + warm("p1", 128, 5))
    p1words(LO)
    A(f"""
    s_cmp_lg_u32 {s(s_hi)}, 0
    s_cbranch_scc1 K_HI1
K_HB1:
""")
    for x in LO:
        if "e2" in OPT:
            A(f"v_add_u32 {v(EI+x)}, {x}, {v(EB)}")
            continue
        A(f"v_lshrrev_b32 {v(EI+x)}, 20, {v(CW+x)}")
        A(f"v_add_u32 {v(EI+x)}, {v(EI+x)}, {v(EB)}")
    stamp(2)
    A(f"""
    v_lshlrev_b32 {v(t0)}, 2, {v(lane)}
    v_mov_b32 {v(t2)}, {L_FLAG}
    s_waitcnt lgkmcnt(0)
    s_barrier
    {zstamp(10)}
    ds_read_b32 {v(t1)}, {v(t0)} offset:{L_CNT}
    ds_read_b32 {v(t2)}, {v(t2)}
""")
    if "nopf" not in OPT:
        A(f"buffer_load_dword {v(epv)}, {v(tba)}, {s(SW,4)}, 0 offen {SC}")
    else:
        A(f"v_mov_b32 {v(epv)}, {s(s_tag)}")
    A(warm("r0", 0, 0))
    A(f"""
    s_waitcnt lgkmcnt(1)
    v_add_u32 {v(t3)}, 31, {v(t1)}
    v_and_b32 {v(t3)}, -32, {v(t3)}
    v_mov_b32 {v(t0)}, {v(t3)}
    s_nop 1
""")
    for d in DPP_SCAN:
        A(f"v_add_u32_dpp {v(t0)}, {v(t0)}, {v(t0)} {d}\ns_nop 1")
    A(f"""
    v_readlane_b32 {s(sB)}, {v(t0)}, 63
    v_sub_u32 {v(t0)}, {v(t0)}, {v(t3)}
    v_add_u32 {v(t0)}, {L_LA}, {v(t0)}
""")
    A(f"s_waitcnt lgkmcnt(0)\ns_cmp_eq_u32 {s(s_hi)}, 0\ns_cbranch_scc1 K_NOHB")
    for x in HI:
        A(f"ds_bpermute_b32 {v(CA+x)}, {v(CA+x)}, {v(t0)}")
    A("K_NOHB:")
    for x in LO:
        A(f"ds_bpermute_b32 {v(CA+x)}, {v(CA+x)}, {v(t0)}")
    A(f"""
    v_readfirstlane_b32 {s(sA)}, {v(t2)}
    v_lshrrev_b32 {v(t2)}, 4, {v(lane)}
    s_cmp_gt_u32 {s(sB)}, {CAPB}
    s_cselect_b32 {s(s_t)}, 1, 0
    s_or_b32 {s(sA)}, {s(sA)}, {s(s_t)}
    s_cbranch_scc1 K_GOSLOW
    v_add_u32 {v(deg)}, {v(deg)}, {v(t1)}
    s_add_u32 {s(sB)}, {s(sB)}, 127
    s_lshr_b32 {s(sB)}, {s(sB)}, 7
    s_add_u32 {s(s_rem)}, {s(sB)}, {NWV - 1}
    s_sub_u32 {s(s_rem)}, {s(s_rem)}, {s(s_wave)}
    s_lshr_b32 {s(s_rem)}, {s(s_rem)}, 4
    s_lshr_b32 {s(s_t)}, {s(sB)}, 4
    s_mul_i32 {s(s_t)}, {s(s_t)}, {s(s_wave)}
    s_and_b32 {s(sB)}, {s(sB)}, {NWV - 1}
    s_min_u32 {s(sB)}, {s(sB)}, {s(s_wave)}
    s_add_u32 {s(s_t)}, {s(s_t)}, {s(sB)}
    s_lshl_b32 {s(s_t)}, {s(s_t)}, 7
    s_lshl_b32 {s(s_u)}, {s(s_rem)}, 5
    s_waitcnt lgkmcnt(0)
    {zstamp(7)}
""")
    for x in LO:
        A(f"v_add_u32 {v(CA+x)}, {v(CA+x)}, {v(RK+x)}")
    for x in LO:
        A(f"s_mov_b64 exec, {s(MK+2*x,2)}")
        A(f"ds_write2st64_b32 {v(CA+x)}, {v(CW+x)}, {v(EI+x)} offset0:0 offset1:{NE*4//256}")
    A(f"""
    s_mov_b64 exec, -1
    s_cmp_lg_u32 {s(s_hi)}, 0
    s_cbranch_scc1 K_HI2
K_HB2:
    s_cmp_lg_u32 {s(s_wave)}, 15
    s_cbranch_scc1 K_NOGAP
    v_mul_u32_u24 {v(t3)}, {PCS}, {v(lane)}
    v_add_u32 {v(t3)}, {L_PB}, {v(t3)}
    v_mov_b64 {v(nn,2)}, 0
    v_mov_b64 {v(dd,2)}, 0
    ds_write_b128 {v(t3)}, {v(nn,4)}
    ds_write_b128 {v(t3)}, {v(nn,4)} offset:{PCS}
K_NOGAP:
    v_mul_u32_u24 {v(t2)}, {s(s_u)}, {v(t2)}
    v_add3_u32 {v(la_w)}, {v(t2)}, {v(cw0)}, {s(s_t)}
    v_mul_u32_u24 {v(la_e)}, {s(s_u)}, {v(grp)}
    v_add3_u32 {v(la_e)}, {v(la_e)}, {v(ce0)}, {s(s_t)}
    v_add3_u32 {v(tab)}, {v(tb0)}, {v(t2)}, {s(s_t)}
    {zstamp(8)}
    s_waitcnt vmcnt({int("r0" in OPT)})
K_PFC:
    v_cmp_ne_u32 vcc, {s(s_tag)}, {v(epv)}
    s_cbranch_vccnz K_PFR
    {zstamp(9)}
""")
    WO = int(os.environ.get("WO", "0"))
    WN = int(os.environ.get("WN", "4"))
    if WO:
        A(f"""
        s_cmp_ge_u32 {s(s_wave)}, {WN}
        s_cbranch_scc1 K_NOWO
        s_lshr_b32 {s(sA)}, s2, 3
        s_mul_i32 {s(sA)}, {s(sA)}, {WO * WN * 8192}
        s_add_u32 {s(sA)}, {s(sA)}, {WS_P}
        v_lshlrev_b32 {v(nn)}, 7, v0
""")
        for k in range(WO):
            A(f"buffer_load_dword {v(jnk)}, {v(nn)}, {s(SW,4)}, {s(sA)} offen {SC}\ns_add_u32 {s(sA)}, {s(sA)}, {WN * 8192}")
        A("K_NOWO:")
    A(f"""
    s_waitcnt lgkmcnt(0)
    s_barrier
""")
    stamp(3)
    if "tl" in OPT:
        A(f"v_mov_b32 {v(tl)}, 0\nv_writelane_b32 {v(tl)}, {s(STR[3])}, 0\ns_mov_b32 s95, 1")
    if "p3" in OPT:
        A("s_setprio 3")

    def dma(u):
        so = [s(s_o3), s(s_o2), s(s_o1), "0"]
        srd = SP0 if u == 0 else SP1
        return [f"buffer_load_dwordx4 {v(lw+q)}, {s(srd,4)}, {so[q]} idxen offset:{q*PCS} {os.environ.get('PSC', 'sc1')} lds" for q in range(4)]

    def idx():
        return [f"v_and_or_b32 {v(lw+q)}, {v(lw+q)}, {s(s_msk)}, {v(dq)}" for q in range(4)]

    def eload():
        return f"buffer_load_dwordx2 {v(A5,2)}, {v(le)}, {s(SE,4)}, 0 idxen" + (" nt" if "ent" in OPT else "")

    def ohcmp():
        return f"v_cmp_gt_u32 vcc, {s(s_ne)}, {v(le)}"

    def ohsel():
        return [f"v_cndmask_b32 {v(A5+2)}, 0, {v(OH)}, vcc", f"v_cndmask_b32 {v(A5+3)}, 0, {v(OH+1)}, vcc"]

    def lists():
        return [f"ds_read_b128 {v(lw,4)}, {v(la_w)}", f"ds_read_b32 {v(le)}, {v(la_e)}"]

    def laup():
        return [f"v_add_u32 {v(x)}, 32, {v(x)}" for x in (la_w, la_e)]

    def flush():
        o = [f"v_cvt_f64_f32 {v(C64+2*i,2)}, {v(acc+i)}" for i in range(8)]
        o2 = [f"ds_add_f64 {v(ha + i%2)}, {v(C64+2*i,2)} offset:{(i//2)*256}" for i in range(8)]
        return o, o2

    def qaddr(fill):
        o = [f"v_mov_b32_dpp {v(qa)}, {v(tab)} row_newbcast:0 row_mask:0xf bank_mask:0xf",
             f"v_mov_b32_dpp {v(qa+1)}, {v(tab)} row_newbcast:0 row_mask:0xf bank_mask:0xf"]
        o += fill[:2]
        o += [f"v_permlane16_swap_b32 {v(qa)}, {v(qa+1)}"]
        o += fill[2:4]
        o += [f"v_add_u32 {v(qa)}, {v(qa)}, {v(j4)}", f"v_add_u32 {v(qa+1)}, {v(qa+1)}, {v(j4)}"]
        o += fill[4:]
        for n in range(4):
            for k in range(2):
                o.append(f"ds_read_b32 {v(B5[n]+2+k)}, {v(qa+k)} offset:{L_QT + n*128}")
        return o

    zacc = [f"v_mov_b64 {v(acc+2*n,2)}, 0" for n in range(4)]
    haup = [f"v_lshlrev_b32 {v(ha+k)}, 1, {v(qa+k)}" for k in range(2)]

    def hread():
        o = []
        for n in range(2):
            for m in range(8):
                o.append(f"ds_read_b64_tr_b16 {v(D[n]+2*m,2)}, {v(TA[n][m>>2])} offset:{(m&3)*PCS}")
        return o

    def mf(n):
        return f"v_mfma_f32_32x32x16_bf16 {v(D[n%2],16)}, {v(A5,4)}, {v(B5[n],4)}, {v(D[n%2],16)}"

    A(lists())
    A(f"""
    ds_read_b32 {v(tab)}, {v(tab)}
    s_and_b32 {s(s_u)}, {s(s_wave)}, 3
    s_lshl_b32 {s(s_u)}, {s(s_u)}, 5
    v_lshrrev_b32 {v(t1)}, 4, {v(lane)}
    v_lshl_add_u32 {v(rem+1)}, {v(t1)}, 3, {s(s_u)}
    s_or_b32 {s(s_t)}, s2, {s(s_wave)}
    s_cbranch_scc1 K_EPD
    v_mov_b32 {v(t0)}, {WS_EPOCH}
    v_mov_b32 {v(t2)}, {s(s_tag)}
    global_store_dword {v(t0)}, {v(t2)}, s[24:25]
K_EPD:
    s_waitcnt lgkmcnt(2)
""")
    A(idx())
    A(dma(0))
    A("s_waitcnt lgkmcnt(0)")
    A(eload())
    A(f"""
    ; ---- epilogue addresses (registers that the loop leaves alone)
    s_mov_b32 {s(s_epx)}, 0
    s_mov_b32 {s(SO)}, s20
    s_and_b32 {s(SO+1)}, s21, 0xffff
    s_mov_b32 {s(SO+2)}, {N * 128}
    s_mov_b32 {s(SO+3)}, 0x20000
    ; W2 fragment address: PB+16 + G*PBW + r*128 + ob*32 + c*8 ; imm = ks*4*PBW + s*512
    v_mul_u32_u24 {v(EB)}, {PBW}, {v(t1)}
    v_bfe_u32 {v(t0)}, {v(lane)}, 2, 2
    v_lshl_add_u32 {v(EB)}, {v(t0)}, 7, {v(EB)}
    v_and_b32 {v(t0)}, 3, {v(lane)}
    v_lshl_add_u32 {v(EB)}, {v(t0)}, 3, {v(EB)}
    s_add_u32 {s(s_u)}, {s(s_u)}, {L_PB + 16}
    v_add_u32 {v(EB)}, {s(s_u)}, {v(EB)}
    v_and_b32 {v(t0)}, 15, {v(lane)}
    s_and_b32 {s(s_t)}, {s(s_wave)}, 12
    s_lshl_b32 {s(s_t)}, {s(s_t)}, 2
    v_add_u32 {v(t0)}, {s(s_t)}, {v(t0)}
    v_mul_u32_u24 {v(rem)}, {HB_STRIDE}, {v(t0)}
    v_lshl_add_u32 {v(rem)}, {v(t1)}, 4, {v(rem)}
    v_add_u32 {v(rem)}, {L_HBHI}, {v(rem)}
    v_lshlrev_b32 {v(rem+2)}, 2, {v(t0)}
    ds_bpermute_b32 {v(rem+2)}, {v(rem+2)}, {v(deg)}
    v_lshl_add_u32 {v(rem+1)}, {v(t0)}, 15, {v(rem+1)}
    v_lshlrev_b32 {v(t2)}, 4, v0
    s_mul_i32 {s(sA)}, {s(s_wave)}, {HB_STRIDE}
    s_add_u32 {s(sA)}, {s(sA)}, {L_HBHI}
    v_lshl_add_u32 {v(t3)}, {v(lane)}, 2, {s(sA)}
    s_cmp_eq_u32 {s(s_rem)}, 0
    s_cbranch_scc1 K_DONE
""")
    A(ohcmp())
    A(f"""
    v_and_b32 {v(tab)}, 63, {v(tab)}
    v_lshlrev_b32 {v(tab)}, 9, {v(tab)}
""")
    A(ohsel())
    A(f"v_mov_b32 {v(t0)}, {v(tab)}")
    A(laup())
    A(f"v_mov_b32_dpp {v(t0)}, {v(tab)} row_shr:1 row_mask:0xf bank_mask:0xf")
    A(qaddr(zacc))
    A(haup)
    A(f"""
    v_cmp_ne_u32 vcc, {v(t0)}, {v(tab)}
    s_or_b32 {s(s_chg)}, vcc_lo, vcc_hi
    s_lshr_b32 {s(s_t)}, {s(s_chg)}, 16
    s_or_b32 {s(s_chg)}, {s(s_chg)}, {s(s_t)}
    s_setprio 3
    {"s_waitcnt vmcnt(0)" if "pw" in OPT else ""}
""")
    stamp(4)
    A(f"""
    s_cmp_eq_u32 {s(s_safe)}, 0
    s_cbranch_scc0 K_LOOP_S
""")

    def compute(u, safe, mid, tail):
        o = []
        for bb in range(2):
            b = 2 * u + bb
            cur = D[bb]
            if not safe and bb:
                o += [f"v_rcp_f32 {v(rr)}, {v(dd)}", f"v_rcp_f32 {v(rr+1)}, {v(dd+1)}"]
            o += [f"v_exp_f32 {v(EX+i)}, {v(cur+i)}" for i in range(16)]
            if bb == 0:
                o += mid
            if not safe:
                if bb:
                    o.append(f"v_max3_f32 {v(guard)}, {v(guard)}, {v(dd)}, {v(dd+1)}")
                    o.append(f"v_pk_fma_f32 {v(acc+2*(b-1),2)}, {v(nn,2)}, {v(rr,2)}, {v(acc+2*(b-1),2)}")
                o.append(f"v_pk_add_f32 {v(dd,2)}, {v(EX,2)}, 1.0 op_sel_hi:[1,0]")
                n_ = v(cur, 2)
                for k in range(1, 8):
                    e_, z_ = v(EX + 2 * k, 2), v(cur + 2 * k, 2)
                    o.append(f"v_pk_fma_f32 {v(tt,2)}, {n_}, {e_}, {n_}")
                    o.append(f"v_pk_fma_f32 {v(nn,2)}, {z_}, {v(dd,2)}, {v(tt,2)}")
                    o.append(f"v_pk_fma_f32 {v(dd,2)}, {v(dd,2)}, {e_}, {v(dd,2)}")
                    n_ = v(nn, 2)
            else:
                for k in range(8):
                    o.append(f"v_pk_add_f32 {v(EX+2*k,2)}, {v(EX+2*k,2)}, 1.0 op_sel_hi:[1,0]")
                for i in range(16):
                    o.append(f"v_rcp_f32 {v(EX+i)}, {v(EX+i)}")
                for k in range(8):
                    o.append(f"v_pk_fma_f32 {v(acc+2*b,2)}, {v(cur+2*k,2)}, {v(EX+2*k,2)}, {v(acc+2*b,2)}")
        if not safe:
            o += [f"v_rcp_f32 {v(rr)}, {v(dd)}", f"v_rcp_f32 {v(rr+1)}, {v(dd+1)}",
                  f"v_max3_f32 {v(guard)}, {v(guard)}, {v(dd)}, {v(dd+1)}",
                  f"v_pk_fma_f32 {v(acc+4*u+2,2)}, {v(nn,2)}, {v(rr,2)}, {v(acc+4*u+2,2)}"]
        if "tl" in OPT:
            o += [TM + " s[98:99]", "s_waitcnt lgkmcnt(0)", "s_mov_b32 m0, s95", f"v_writelane_b32 {v(tl)}, s98, m0",
                  f"s_mov_b32 m0, {s(s_m0)}", "s_add_u32 s95, s95, 1"]
        return o + tail

    PL = int(os.environ.get("PL", "3"))

    def loop(safe):
        sf = "S" if safe else "F"
        rot = f"v_mov_b32_dpp {v(tab)}, {v(tab)} row_shl:1 row_mask:0xf bank_mask:0xf bound_ctrl:0"
        st = ["s_waitcnt vmcnt(1)"] + hread()
        st += [f"s_cmp_gt_u32 {s(s_rem)}, {PL}", f"s_cbranch_scc0 K_PRIO_{sf}", f"K_PB_{sf}:"]
        st += ["s_waitcnt vmcnt(0) lgkmcnt(8)", mf(0), "s_waitcnt lgkmcnt(0)", mf(1)] + dma(1) + lists()
        st += [f"s_lshr_b32 {s(s_chg)}, {s(s_chg)}, 1", f"s_sub_u32 {s(s_rem)}, {s(s_rem)}, 1", "s_nop 1"]
        st += compute(0, safe, [rot], ["s_waitcnt lgkmcnt(0)"] + idx() + [ohcmp()])
        st += ["s_waitcnt vmcnt(0)"] + hread()
        if "tail" in OPT:
            st += [f"s_cmp_eq_u32 {s(s_rem)}, 0", "s_waitcnt lgkmcnt(8)", mf(2), "s_waitcnt lgkmcnt(0)", mf(3), f"s_cbranch_scc1 K_TL_{sf}"]
            st += dma(0) + [eload()] + ohsel() + laup() + [f"K_TB_{sf}:"]
        else:
            st += ["s_waitcnt lgkmcnt(8)", mf(2), "s_waitcnt lgkmcnt(0)", mf(3)] + dma(0) + [eload()]
            st += ohsel() + laup() + ["s_nop 0"]
        st += compute(1, safe, [], [])
        if "E" in ABL: st = [x for x in st if not x.startswith("buffer_load_dwordx2")]
        if "X" in ABL: st = [x if not x.endswith(" lds") else "s_nop 0" for x in st]
        if "A" in ABL: st = [x for x in st if not x.startswith("ds_read_b64_tr")]
        A(f".p2align 6\nK_LOOP_{sf}:")
        A(st)
        c, a = flush()
        A(f"""
        s_cmp_eq_u32 {s(s_rem)}, 0
        s_cbranch_scc1 K_LAST_{sf}
        s_bitcmp1_b32 {s(s_chg)}, 0
        {"s_cbranch_scc0" if "C" not in ABL else "s_branch"} K_LOOP_{sf}
""")
        A(qaddr(c) + a + zacc + haup)
        A(f"s_branch K_LOOP_{sf}")
        A(f"""
K_PRIO_{sf}:
""")
        if "tail" in OPT:
            A(f"""
        s_setprio 2
        s_cmp_gt_u32 {s(s_rem)}, 1
        s_cbranch_scc1 K_PB_{sf}
        s_setprio 1
        s_branch K_PB_{sf}
K_TL_{sf}:
        s_setprio 0
        global_load_lds_dwordx4 {v(t2)}, s[16:17]
        s_mov_b32 {s(s_epx)}, 1
        s_nop 5
        s_branch K_TB_{sf}
""")
        else:
            A(f"""
        s_setprio 2
        s_cmp_eq_u32 {s(s_rem)}, 3
        s_cbranch_scc1 K_PB_{sf}
        s_setprio 1
        s_cmp_eq_u32 {s(s_rem)}, 2
        s_cbranch_scc1 K_PB_{sf}
        s_setprio 0
        s_branch K_PB_{sf}
""")
        A(f"""
K_LAST_{sf}:
""")
        A(c + a)
        if safe:
            A("s_branch K_DONE")
    loop(False)

    W2 = B5[0]
    A(f"""
K_DONE:
    s_setprio 0
    s_cmp_eq_u32 {s(s_slow)}, 0
    s_cbranch_scc0 K_NEXTCHUNK
K_FIN:
""")
    if "tl" in OPT:
        A(f"""
        s_lshl_b32 {s(s_t)}, s2, 12
        s_add_u32 {s(s_t)}, {s(s_t)}, {WS_STAMP + (1 << 20)}
        v_lshl_add_u32 {v(t0)}, v0, 2, {s(s_t)}
        global_store_dword {v(t0)}, {v(tl)}, s[24:25]
""")
    stamp(5)
    A(f"""
    s_cmp_lg_u32 {s(s_epx)}, 0
    s_cbranch_scc1 K_W2D
    global_load_lds_dwordx4 {v(t2)}, s[16:17]
K_W2D:
    s_waitcnt lgkmcnt(0)
    s_barrier
""")
    stamp(6)
    H = D[0]
    for k in range(3):
        A(f"ds_read_b128 {v(H+4*k,4)}, {v(t2)} offset:{k*16384}")
    A(f"s_cmp_ge_u32 {s(s_wave)}, 8")
    A(f"v_add_u32 {v(ha)}, {16*HB_STRIDE}, {v(t3)}\nv_add_u32 {v(ha+1)}, {32*HB_STRIDE}, {v(t3)}")

    def s1(ks):
        for k in ks:
            A(f"s_waitcnt lgkmcnt({2 - k if k < 2 else 2})")
            A(f"v_cvt_f32_f64 {v(EX+2*k)}, {v(H+4*k,2)}")
            A(f"v_cvt_f32_f64 {v(EX+2*k+1)}, {v(H+4*k+2,2)}")
        for k in ks:
            A(f"v_and_b32 {v(EX+8+2*k)}, 0xffff0000, {v(EX+2*k)}")
            A(f"v_and_b32 {v(EX+9+2*k)}, 0xffff0000, {v(EX+2*k+1)}")
        for k in ks:
            A(f"v_pk_add_f32 {v(EX+2*k,2)}, {v(EX+2*k,2)}, {v(EX+8+2*k,2)} neg_lo:[0,1] neg_hi:[0,1]")
        for k in ks:
            A(f"v_cvt_pk_bf16_f32 {v(H+4*k)}, {v(EX+8+2*k)}, {v(EX+9+2*k)}")
            A(f"v_cvt_pk_bf16_f32 {v(H+4*k+1)}, {v(EX+2*k)}, {v(EX+2*k+1)}")
        for k in ks:
            A(f"ds_write2st64_b32 {v([t3, ha, ha+1][k])}, {v(H+4*k)}, {v(H+4*k+1)} offset0:0 offset1:{HB_LO//256}")
    s1([0, 1])
    A(f"v_add_f32 {v(EX)}, {v(EX)}, {v(EX+1)}\nv_add_f32 {v(EX+2)}, {v(EX+2)}, {v(EX+3)}")
    A(f"v_cmp_u_f32 {s(sA,2)}, {v(EX)}, {v(EX+2)}")
    A("s_cbranch_scc1 K_S1D")
    s1([2])
    A(f"v_cmp_u_f32 vcc, {v(EX+4)}, {v(EX+5)}\ns_or_b64 {s(sA,2)}, {s(sA,2)}, vcc")
    A(f"""
K_S1D:
    v_cmp_lt_f32 vcc, {f32(2.0**100)}, {v(guard)}
    s_or_b64 vcc, vcc, {s(sA,2)}
    v_mov_b32 {v(t2)}, {L_FLAG + 4}
    s_cbranch_vccz K_NOFL
    ds_write_b32 {v(t2)}, {v(t2)}
K_NOFL:
    s_waitcnt vmcnt(0) lgkmcnt(0)
    s_barrier
    ds_read_b32 {v(t2)}, {v(t2)}
    s_cmp_ge_u32 {s(s_wave)}, 12
    s_cbranch_scc1 K_IDLE
""")
    for ks in range(4):
        for h2 in range(2):
            A(f"ds_read_b64_tr_b16 {v(D[1]+4*ks+2*h2,2)}, {v(EB)} offset:{ks*4*PBW + h2*512}")
    HF = [D[0], EX]
    for ks in range(4):
        A(f"ds_read_b128 {v(HF[0]+4*ks,4)}, {v(rem)} offset:{ks*64}")
        A(f"ds_read_b128 {v(HF[1]+4*ks,4)}, {v(rem)} offset:{ks*64 + HB_LO}")
    A(f"""
    v_cvt_f32_u32 {v(le)}, {v(rem+2)}
    v_mul_f32 {v(le)}, {f32(0.25)}, {v(le)}
    s_lshl_b32 {s(s_t)}, {s(s_b)}, 7
    s_mov_b32 {s(s_u)}, {f32(-LN2)}
    s_waitcnt lgkmcnt(8)
    v_readfirstlane_b32 {s(sA)}, {v(t2)}
    v_lshlrev_b32 {v(acc)}, 16, {v(b2r)}
    v_and_b32 {v(acc+1)}, 0xffff0000, {v(b2r)}
    v_lshlrev_b32 {v(acc+2)}, 16, {v(b2r+1)}
    v_and_b32 {v(acc+3)}, 0xffff0000, {v(b2r+1)}
    s_cmp_lg_u32 {s(s_safe)}, 0
    s_cbranch_scc1 K_GEMM
    s_cmp_eq_u32 {s(sA)}, 0
    {"s_cbranch_scc0 K_RESTART" if ABL == [""] else ""}
K_GEMM:
""")
    O = [nn, tt]
    for ks in range(4):
        for hl in range(2):
            A(f"s_waitcnt lgkmcnt({7 - 2*ks - hl})")
            c = "0" if ks == 0 else v(O[hl], 4)
            A(f"v_mfma_f32_16x16x32_bf16 {v(O[hl],4)}, {v(D[1]+4*ks,4)}, {v(HF[hl]+4*ks,4)}, {c}")
    for i in range(4):
        A(f"v_mul_f32 {v(acc+i)}, {v(le)}, {v(acc+i)}")
    A("s_nop 3")
    for i in range(4):
        A(f"v_add_f32 {v(nn+i)}, {v(nn+i)}, {v(tt+i)}")
    for i in range(4):
        A(f"v_fma_f32 {v(nn+i)}, {v(nn+i)}, {s(s_u)}, {v(acc+i)}")
    A(f"""
    v_cvt_pk_bf16_f32 {v(acc)}, {v(nn)}, {v(nn+1)}
    v_cvt_pk_bf16_f32 {v(acc+1)}, {v(nn+2)}, {v(nn+3)}
    buffer_store_dwordx2 {v(acc,2)}, {v(rem+1)}, {s(SO,4)}, {s(s_t)} offen {os.environ.get('ST3', '')}
""")
    if STAMP:
        A("s_waitcnt vmcnt(0)\n" + TM + " s[20:21]\ns_waitcnt lgkmcnt(0)")
        A(f"""
    v_cmp_eq_u32 vcc, 0, {v(lane)}
    s_and_saveexec_b64 {s(sA,2)}, vcc
    s_lshl_b32 {s(s_t)}, s2, 4
    s_add_u32 {s(s_t)}, {s(s_t)}, {s(s_wave)}
    s_lshl_b32 {s(s_t)}, {s(s_t)}, 6
    s_add_u32 {s(s_t)}, {s(s_t)}, {WS_STAMP}
    v_mov_b32 {v(t0)}, {s(s_t)}
""")
        for n_, i in enumerate([0, 10, 7, 8, 9, 1, 2, 3, 4, 5, 6]):
            A(f"v_mov_b32 {v(D[0]+n_)}, {s(STR[i]) if i else s(s_x)}")
        A(f"v_mov_b32 {v(D[0]+11)}, s20")
        for i in range(3):
            A(f"global_store_dwordx4 {v(t0)}, {v(D[0]+4*i,4)}, s[24:25] offset:{16*i}")
    A(f"""
K_END:
    s_endpgm
K_IDLE:
    s_waitcnt lgkmcnt(0)
    v_readfirstlane_b32 {s(sA)}, {v(t2)}
    s_cmp_lg_u32 {s(s_safe)}, 0
    s_cbranch_scc1 K_END
    s_cmp_eq_u32 {s(sA)}, 0
    {"s_cbranch_scc0 K_RESTART" if ABL == [""] else ""}
    s_endpgm
""")

    A(f"""
K_HI1:
    v_subrev_u32 {v(t0)}, 64, {v(rem)}
""")
    for i in range(4):
        A(f"v_cmp_lt_i32 {s(MK+8+2*i,2)}, {4*i}, {v(t0)}")
    A(f"""
    v_cmp_lt_i32 vcc, 64, {v(t0)}
    s_cbranch_vccz K_HI1N
    v_mov_b32 {v(t0)}, {L_FLAG}
    ds_write_b32 {v(t0)}, {v(t3)}
K_HI1N:
""")
    p1words(HI)
    for x in HI:
        A(f"v_lshrrev_b32 {v(EI+x)}, 20, {v(CW+x)}")
        A(f"v_add_u32 {v(EI+x)}, {v(EI+x)}, {v(EB)}")
    A("s_branch K_HB1\nK_HI2:")
    for x in HI:
        A(f"v_add_u32 {v(CA+x)}, {v(CA+x)}, {v(RK+x)}")
    for x in HI:
        A(f"s_mov_b64 exec, {s(MK+2*x,2)}")
        A(f"ds_write2st64_b32 {v(CA+x)}, {v(CW+x)}, {v(EI+x)} offset0:0 offset1:{NE*4//256}")
    A("s_mov_b64 exec, -1\ns_branch K_HB2")
    verify_rare("A")
    A(f"""
K_PFR:
    s_sub_u32 {s(s_to)}, {s(s_to)}, 1
    s_cbranch_scc1 K_END
    buffer_load_dword {v(epv)}, {v(tba)}, {s(SW,4)}, 0 offen {SC}
    s_waitcnt vmcnt(0)
    s_branch K_PFC
K_HOT_END:
""")
    A(f"""
K_RESTART:
    s_mov_b32 {s(s_safe)}, 1
    s_mov_b32 {s(s_slow)}, 0
    s_waitcnt lgkmcnt(0)
    s_barrier
""")
    zero_hsum()
    A(tab_pre())
    poll("B")
    rec_loads("B")
    A(f"""
    v_and_b32 {v(tba)}, 0x3fc, v0
    v_lshlrev_b32 {v(tba)}, 4, {v(tba)}
    v_add_u32 {v(tba)}, {WS_PF}, {v(tba)}
""")
    A("K_ROUND:")
    prefill()
    A(f"""
    s_waitcnt vmcnt(0) lgkmcnt(0)
    s_barrier
    s_branch K_PASS1
K_GOSLOW:
    s_mov_b32 {s(SS)}, s8
    s_and_b32 {s(SS+1)}, s9, 0xffff
    s_mov_b32 {s(SS+2)}, {E * 4}
    s_mov_b32 {s(SS+3)}, 0x20000
    s_mov_b32 {s(SD_)}, s10
    s_and_b32 {s(SD_+1)}, s11, 0xffff
    s_mov_b32 {s(SD_+2)}, {E * 4}
    s_mov_b32 {s(SD_+3)}, 0x20000
    s_mov_b32 {s(s_slow)}, 1
    s_mov_b32 {s(s_chunk)}, -1
K_NEXTCHUNK:
    s_add_u32 {s(s_chunk)}, {s(s_chunk)}, 1
    s_cmp_lt_u32 {s(s_chunk)}, {NB}
    s_cbranch_scc0 K_FIN
    s_waitcnt vmcnt(0) lgkmcnt(0)
    s_barrier
    s_mul_i32 {s(s_t)}, {s(s_chunk)}, {CH * 4}
    v_lshlrev_b32 {v(t0)}, 2, v0
""")
    for k in range(3):
        A(f"buffer_load_dword {v(RK+k)}, {v(t0)}, {s(SD_,4)}, {s(s_t)} offen")
        A(f"buffer_load_dword {v(RK+4+k)}, {v(t0)}, {s(SS,4)}, {s(s_t)} offen")
        A(f"s_add_u32 {s(s_t)}, {s(s_t)}, 4096")
    A(f"""
    s_mul_i32 {s(s_t)}, {s(s_chunk)}, {CH}
    s_movk_i32 {s(s_u)}, {CH}
    v_mov_b32 {v(EB)}, {s(s_t)}
    v_mov_b32 {v(CW+3)}, 0
    s_mov_b64 {s(MK+6,2)}, 0
    s_mov_b32 {s(s_hi)}, 0
    s_waitcnt vmcnt(0)
""")
    for k in range(3):
        A(f"""
        v_add_u32 {v(t1)}, {1024*k}, v0
        v_lshrrev_b32 {v(t2)}, 8, {v(RK+k)}
        v_lshl_or_b32 {v(t2)}, {v(RK+4+k)}, 6, {v(t2)}
        v_lshl_or_b32 {v(CW+k)}, {v(t1)}, 20, {v(t2)}
        v_and_b32 {v(RK+k)}, 255, {v(RK+k)}
        v_cmp_eq_u32 vcc, {s(s_b)}, {v(RK+k)}
        v_cmp_gt_u32 {s(sA,2)}, {s(s_u)}, {v(t1)}
        s_and_b64 {s(MK+2*k,2)}, vcc, {s(sA,2)}
""")
    A("s_branch K_ROUND")
    loop(True)
    A(".p2align 4\n.type K_TABLE,@object\nK_TABLE:")
    T = lane_table()
    for piece in range(4):
        for l in range(64):
            A(".long " + ", ".join(str(x & 0xffffffff) for x in T[l][4*piece:4*piece+4]))
    A(".size K_TABLE, 4096")
    return nvgpr, (102 if STAMP or DL[0] >= 0 else 96)


def kd(name, vg, sg):
    acc = (vg + 3) // 4 * 4
    return f""".p2align 6
.amdhsa_kernel {name}
  .amdhsa_next_free_vgpr {vg}
  .amdhsa_next_free_sgpr {sg}
  .amdhsa_accum_offset {acc}
  .amdhsa_group_segment_fixed_size 0
  .amdhsa_kernarg_size 88
  .amdhsa_user_sgpr_count 2
  .amdhsa_user_sgpr_kernarg_segment_ptr 1
  .amdhsa_system_sgpr_workgroup_id_x 1
  .amdhsa_float_denorm_mode_32 3
.end_amdhsa_kernel
"""


def main():
    ref = open(f"cdna_kernels/{NAME}.s.ref").read().split("\n")
    head = [l for l in ref if l.startswith(";") and "@launch" not in l and "Override" not in l and "grid=ceil" not in l]
    A = Asm()
    v2, s2 = gen_k2(A)
    out = "\n".join(head) + "\n"
    out += f"; @launch grid=({NB},1,1) block=(1024,1,1) lds={L_END}\n"
    out += '.amdgcn_target "amdgcn-amd-amdhsa--gfx950"\n.text\n'
    out += A.text()
    out += '.section .rodata,"a"\n' + kd(KERN, v2, s2)
    path = sys.argv[1] if len(sys.argv) > 1 else f"cdna_kernels/{NAME}.s"
    open(path, "w").write(out)
    print("vgprs", v2, "lds", L_END, "->", path)


if __name__ == "__main__":
    main()
```

```python
import sys, struct, os

NAME = "gather_scatter__edge_featured_mpnn_mpnn__graph"
N, E = 10000, 640000
NB, CH = 256, 2500
LOG2E = 1.4426950408889634
LN2 = 0.6931471805599453
STAMP = int(os.environ.get("STAMP", "0"))
TM = "s_memtime" if STAMP == 2 else "s_memrealtime"
DL = [int(x) for x in os.environ.get("DL", "-1:0").split(":")]
ABL = os.environ.get("ABL", "").split(",")
OPT = os.environ.get("OPT", "").split(",")
WS_STAMP = 24 << 20


def f32(x):
    return struct.unpack("<I", struct.pack("<f", x))[0]


KERN = NAME + "_kernel"
RECB = 10240
WS_PF = NB * RECB + 4096
WS_TAB = WS_PF + NB * 64
WS_P = WS_TAB + NB * 4096
WS_END = WS_P + N * 256
WS_EPOCH = NB * RECB + 2048

NWV = 16
L_QT = 40 * 1024
L_CNT = L_QT + 40 * 512
L_FLAG = L_CNT + 256
L_LA = L_CNT + 512
NE = 4096
L_LB = L_LA + NE * 4
L_PB = L_LB + NE * 4
PCS = 1040
PBW = 4 * PCS
L_END = L_PB + NWV * PBW + 16
CAPB = (NE - 128) * 4
PADW = (16383 << 6)
PADE = 0x7FFFFFF
HB_STRIDE = 272
L_HBHI = L_LA
HB_LO = 16384
L_SA = L_PB + 16 + 9 * PCS
L_STG = L_SA
L_C1 = L_STG + 10240
L_S1 = L_C1 + 1024
L_K1 = L_S1 + 1024
L_WA = L_K1 + 1024
L_WB = L_WA + 16384
L_WC = L_WB + 16384
L_PO = L_QT
assert L_WC + 12 * 320 <= L_END and L_SA % 16 == 0
SC = "sc1"


class Asm:
    def __init__(self):
        self.lines = []

    def __call__(self, s):
        if isinstance(s, list):
            s = "\n".join(s)
        for ln in s.split("\n"):
            ln = ln.strip()
            if ln:
                self.lines.append(("" if ln.endswith(":") or ln.startswith(".") else "    ") + ln)

    def text(self):
        return "\n".join(self.lines) + "\n"


class Regs:
    def __init__(self, first):
        self.n = first

    def a(self, cnt=1, align=1):
        self.n = (self.n + align - 1) // align * align
        r = self.n
        self.n += cnt
        return r


def v(r, n=1):
    return f"v{r}" if n == 1 else f"v[{r}:{r + n - 1}]"


def s(r, n=1):
    return f"s{r}" if n == 1 else f"s[{r}:{r + n - 1}]"


DPP_SCAN = ["row_shr:1 row_mask:0xf bank_mask:0xf bound_ctrl:0", "row_shr:2 row_mask:0xf bank_mask:0xf bound_ctrl:0",
            "row_shr:4 row_mask:0xf bank_mask:0xf bound_ctrl:0", "row_shr:8 row_mask:0xf bank_mask:0xf bound_ctrl:0",
            "row_bcast:15 row_mask:0xa bank_mask:0xf", "row_bcast:31 row_mask:0xc bank_mask:0xf"]
K1_CNT = 10240
K1_ST = K1_CNT + 2560
K1_LDS = 24576 + 64 * 272
ST1 = os.environ.get('ST1', '')
ST2 = os.environ.get('ST2', '')
NPW = 250


def lane_table():
    T = []
    for l in range(64):
        i, h = l & 31, l >> 5
        idx = 2 * (i >> 3) + ((i >> 1) & 1)
        grp = 2 * ((i >> 2) & 1) + (i & 1)
        par = (l >> 3) & 1
        ta = h * 512 + par * 320 + ((l >> 4) & 1) * 32 + (l & 3) * 8
        real = (l >> 2) & 1
        xa = L_PB + 16 + ((l >> 3) & 1) * PCS + (l & 7) * 128
        f = ((l >> 1) & 7) ^ (l >> 4)
        T.append([xa + f * 16, xa + (f ^ 4) * 16, L_WB + (8 * (l >> 4) + ((l >> 2) & 3)) * 256 + (l & 3) * 8, L_QT + (l >> 4) * 2048 + (l & 15) * 4,
                  4 * i, L_LB + 4 * idx, grp, L_LA + (l & 8) * 2,
                  0x3f803f80 if grp == 2 * h else 0, 0x3f803f80 if grp == 2 * h + 1 else 0,
                  ((l & 7) ^ (4 * ((l >> 4) & 1))) * 8, (l & 15) * 32 + L_LA,
                  ta if real else -16, ta + 128 if real else 1024, ta ^ 64 if real else -16, (ta ^ 64) + 128 if real else 1024])
    return T


def gen_k2(A):
    R = Regs(1)
    lane = R.a()
    t0, t1, t2, t3 = R.a(), R.a(), R.a(), R.a()
    guard, deg, l16, EB = R.a(), R.a(), R.a(), R.a()
    rem = R.a(3, 2)
    LC = R.a(16, 2)
    la_w, la_e, le, tab = LC, LC + 1, LC + 2, LC + 3
    j4, ce0, grp, cw0 = LC + 4, LC + 5, LC + 6, LC + 7
    OH, dq, tb0 = LC + 8, LC + 10, LC + 11
    TA = [[LC + 12, LC + 13], [LC + 14, LC + 15]]
    lw = R.a(4, 2)
    qa, ha = R.a(2, 2), R.a(2, 2)
    b2r = R.a(2, 2)
    nn, dd, tt, rr = [R.a(2, 2) for _ in range(4)]
    acc = R.a(8, 2)
    A5 = R.a(4, 2)
    B5 = [R.a(4, 2) for _ in range(4)]
    D = [R.a(16, 2) for _ in range(2)]
    EX = R.a(16, 2)
    tl = R.a()
    tba, epv, jnk = R.a(), R.a(), R.a()
    nvgpr = R.n
    assert nvgpr <= 128, nvgpr
    CW, RK, CA, EI = D[0], D[0] + 8, D[1], D[1] + 8
    C64 = EX
    QB, QA, QA2, QD = EX, EX + 8, acc, nn
    assert rr == nn + 6

    SP0, SP1, SE, SW, SO, SS, SD_, SXR = 28, 32, 36, 40, 44, 48, 52, 72
    MK = 56
    s_b = 76
    s_wave, s_o3, s_o2, s_o1, s_msk, s_x, s_rem, s_epx, s_slow, s_safe, s_chunk = range(78, 89)
    s_t, s_u = 89, 90
    sA, sB = 26, 27
    s_m0, s_chg, s_hi, s_tag, s_to, s_ep = 0, 3, 77, 91, 1, 85
    s_oh = MK
    s_ne = SE + 2
    STR = [92, 4, 6, 96, 98, 12, 14, 100, 72, 74, 94]

    def pstamp(i):
        return f"s_waitcnt lgkmcnt(0)\n{TM} {s(STR[i],2)}\ns_waitcnt lgkmcnt(0)" if "pa" in OPT else ""

    def zstamp(i):
        return f"s_waitcnt lgkmcnt(0)\n{TM} {s(STR[i],2)}\ns_waitcnt lgkmcnt(0)" if "pz" in OPT else ""

    def ystamp(i):
        return f"s_waitcnt lgkmcnt(0)\n{TM} {s(STR[i],2)}\ns_waitcnt lgkmcnt(0)" if "py" in OPT else ""

    def stamp(i):
        if "pa" in OPT and i in (3, 4, 7):
            return
        if "pz" in OPT and i in (10, 7, 8, 9, 1):
            return
        if "py" in OPT and i in (8, 9, 3, 4, 1, 2):
            return
        if DL[0] == i:
            A(f"""
K_DL:
            s_waitcnt lgkmcnt(0)
            s_memrealtime {s(STR[i],2)}
            s_waitcnt lgkmcnt(0)
            s_sub_u32 {s(STR[i])}, {s(STR[i])}, {s(s_x)}
            s_cmp_lt_u32 {s(STR[i])}, {DL[1]*100}
            s_cbranch_scc1 K_DL
""")
        if STAMP:
            A(f"s_waitcnt lgkmcnt(0)\n{TM} {s(STR[i],2)}\ns_waitcnt lgkmcnt(0)")

    def tab_pre():
        return [f"v_lshrrev_b32 {v(EB)}, 2, v0", f"s_lshl_b32 {s(s_u)}, {s(s_b)}, 4", f"s_add_u32 {s(s_u)}, {s(s_u)}, {WS_TAB}",
                f"v_lshl_add_u32 {v(tba)}, {v(EB)}, 12, {s(s_u)}",
                f"v_and_b32 {v(t1)}, 48, {v(l16)}", f"v_mul_u32_u24 {v(t0)}, {RECB}, {v(EB)}",
                f"v_add_u32 {v(t0)}, {v(t0)}, {v(t1)}", f"v_mul_u32_u24 {v(EB)}, {CH}, {v(EB)}"]

    def poll(tag, issued=False):
        SL = int(os.environ.get("SLEEP", "0"))
        A(f"""
        {'' if issued is None else 's_branch K_POLL1' + tag}
K_POLL{tag}:
        {"s_mov_b64 exec, vcc" if "pm" in OPT else ""}
        {f"s_sleep {SL}" if SL else ""}
K_POLL1{tag}:
        buffer_load_dwordx3 {v(rem,3)}, {v(tba)}, {s(SW,4)}, 0 offen {SC}
        s_sub_u32 {s(s_to)}, {s(s_to)}, 1
        s_cbranch_scc1 K_END
K_POLL2{tag}:
        s_waitcnt vmcnt(0)
K_POLL3{tag}:
        v_cmp_ne_u32 vcc, {s(s_tag)}, {v(rem+1)}
        s_cbranch_vccnz K_POLL{tag}
        {"s_mov_b64 exec, -1" if "pm" in OPT else ""}
""")

    def rec_loads(tag):
        A(f"""
        v_add_u32_sdwa {v(t0)}, {v(t0)}, {v(rem)} dst_sel:DWORD dst_unused:UNUSED_PAD src0_sel:DWORD src1_sel:WORD_0
        v_lshrrev_b32 {v(rem)}, 16, {v(rem)}
        {"v_lshrrev_b32 " + v(EB) + ", 2, " + v(t0) if "e2" in OPT else ""}
        {"v_min_u32 " + v(EB) + ", 639000, " + v(EB) if "e2" in OPT else ""}
        buffer_load_dwordx4 {v(CW,4)}, {v(t0)}, {s(SW,4)}, 0 offen {SC}
        v_cmp_lt_u32 vcc, 64, {v(rem)}
        v_sub_u32 {v(rem)}, {v(rem)}, {v(t1)}
        s_cmp_lg_u64 vcc, 0
        s_cselect_b32 {s(s_hi)}, 1, 0
        s_cbranch_scc0 K_NOHI{tag}
        s_mov_b64 exec, vcc
        buffer_load_dwordx4 {v(CW+4,4)}, {v(t0)}, {s(SW,4)}, 0 offen offset:64 {SC}
        s_mov_b64 exec, -1
K_NOHI{tag}:
""")
        for i in range(4):
            A(f"v_cmp_lt_i32 {s(MK+2*i,2)}, {4*i}, {v(rem)}")

    def verify(tag):
        A(f"""
K_VER{tag}:
        s_waitcnt vmcnt(0)
K_VER1{tag}:
""")
        for i in range(4):
            A(f"v_cndmask_b32 {v(CA+i)}, 0, {v(CW+i)}, {s(MK+2*i,2)}")
        A(f"""
        v_add3_u32 {v(t2)}, {v(CA)}, {v(CA+1)}, {v(CA+2)}
        s_cmp_lg_u32 {s(s_hi)}, 0
        v_add_u32 {v(t2)}, {v(t2)}, {v(CA+3)}
        s_cbranch_scc1 K_VHI{tag}
K_VHB{tag}:
        s_nop 1
        v_add_u32_dpp {v(t2)}, {v(t2)}, {v(t2)} quad_perm:[1,0,3,2] row_mask:0xf bank_mask:0xf
        s_nop 1
        v_add_u32_dpp {v(t2)}, {v(t2)}, {v(t2)} quad_perm:[2,3,0,1] row_mask:0xf bank_mask:0xf
        v_cmp_ne_u32 vcc, {v(t2)}, {v(rem+2)}
        s_cbranch_vccnz K_VRE{tag}
K_VOK{tag}:
""")

    def verify_rare(tag):
        A(f"""
K_VHI{tag}:
        v_subrev_u32 {v(t3)}, 64, {v(rem)}
""")
        for i in range(4):
            A(f"v_cmp_lt_i32 {s(MK+8+2*i,2)}, {4*i}, {v(t3)}")
        A(f"v_cmp_lt_i32 vcc, 64, {v(t3)}\ns_cbranch_vccnz K_VOK{tag}")
        for i in range(4):
            A(f"v_cndmask_b32 {v(CA+i)}, 0, {v(CW+4+i)}, {s(MK+8+2*i,2)}")
        A(f"""
        v_add3_u32 {v(t2)}, {v(t2)}, {v(CA)}, {v(CA+1)}
        v_add3_u32 {v(t2)}, {v(t2)}, {v(CA+2)}, {v(CA+3)}
        s_branch K_VHB{tag}
K_VRE{tag}:
        s_sub_u32 {s(s_to)}, {s(s_to)}, 1
        s_cbranch_scc1 K_END
        buffer_load_dwordx4 {v(CW,4)}, {v(t0)}, {s(SW,4)}, 0 offen {SC}
        buffer_load_dwordx4 {v(CW+4,4)}, {v(t0)}, {s(SW,4)}, 0 offen offset:64 {SC}
        s_branch K_VER{tag}
""")

    def warm(opt, half, w0):
        if opt not in OPT:
            return []
        return [f"s_lshr_b32 {s(sA)}, s2, 3", f"s_mul_i32 {s(sA)}, {s(sA)}, 40000",
                f"s_mul_i32 {s(sB)}, {s(s_wave)}, 2560", f"s_add_u32 {s(sA)}, {s(sA)}, {s(sB)}",
                f"s_add_u32 {s(sA)}, {s(sA)}, {WS_P + (N*128 if half else 0)}", f"v_lshlrev_b32 {v(nn)}, 6, {v(lane)}",
                "s_mov_b32 exec_hi, 0xff",
                f"buffer_load_dword {v(jnk)}, {v(nn)}, {s(SW,4)}, {s(sA)} offen {SC}",
                "s_mov_b64 exec, -1"]

    def prefill():
        A(f"""
        v_mov_b32 {v(D[1])}, {PADW}
        v_mov_b32 {v(D[1]+1)}, {PADW}
        v_mov_b64 {v(D[1]+2,2)}, {v(D[1],2)}
        v_mov_b32 {v(D[1]+4)}, {PADE}
        v_mov_b32 {v(D[1]+5)}, {PADE}
        v_mov_b64 {v(D[1]+6,2)}, {v(D[1]+4,2)}
        v_lshlrev_b32 {v(t2)}, 4, v0
        v_add_u32 {v(t2)}, {L_LA}, {v(t2)}
        v_mov_b32 {v(D[1]+8)}, 0
        v_lshlrev_b32 {v(t3)}, 2, {v(lane)}
        ds_write_b128 {v(t2)}, {v(D[1],4)}
        ds_write_b128 {v(t2)}, {v(D[1]+4,4)} offset:{NE*4}
        ds_write2st64_b32 {v(t3)}, {v(D[1]+8)}, {v(D[1]+8)} offset0:{L_CNT//256} offset1:{L_CNT//256 + 1}
""")

    def zero_hsum():
        A(f"""
        v_mov_b64 {v(D[1]+12,2)}, 0
        v_mov_b64 {v(D[1]+14,2)}, 0
        v_mov_b32 {v(guard)}, 0
        v_mov_b32 {v(deg)}, 0
        v_lshlrev_b32 {v(t2)}, 4, v0
        ds_write_b128 {v(t2)}, {v(D[1]+12,4)}
        ds_write_b128 {v(t2)}, {v(D[1]+12,4)} offset:16384
        v_lshlrev_b32 {v(t3)}, 3, v0
        ds_write_b64 {v(t3)}, {v(D[1]+12,2)} offset:32768
""")

    CBL = L_PB + 16 + 5 * PCS
    U = B5[0]
    DS_, SR_, CB_, RK_, WW_ = U, U + 4, U + 8, U + 12, acc
    A(f"""
.globl {KERN}
.p2align 8
.type {KERN},@function
{KERN}:
    s_cmp_ge_u32 s2, {NB}
    s_cbranch_scc1 K_END
    s_load_dwordx16 s[4:19], s[0:1], 0
    s_load_dwordx4 s[20:23], s[0:1], 64
    s_load_dwordx2 s[24:25], s[0:1], 80
    s_getpc_b64 {s(sA,2)}
K_PC2:
    v_lshlrev_b32 {v(t1)}, {os.environ.get("CSH", "7")}, v0
    v_min_u32 {v(t1)}, K_HOT_END-K_PC2, {v(t1)}
    global_load_dword {v(b2r)}, {v(t1)}, {s(sA,2)}
    {TM + " " + s(STR[0],2) if STAMP or DL[0] >= 0 else ""}
    v_lshlrev_b32 {v(t0)}, 4, v0
    v_lshrrev_b32 {v(t1)}, 6, v0
    s_mul_i32 {s(s_o1)}, s2, {CH * 4}
    v_readfirstlane_b32 {s(s_wave)}, {v(t1)}
    v_min_u32 {v(t2)}, {CH * 4 - 16}, {v(t0)}
    v_add_u32 {v(rr)}, {s(s_o1)}, {v(t2)}
    s_mov_b32 {s(s_o2)}, {2 << 20}
    s_mov_b32 {s(s_o3)}, {4 << 20}
    s_and_b32 {s(s_b)}, s2, 7
    s_lshr_b32 {s(s_t)}, s2, 3
    s_lshl4_add_u32 {s(s_t)}, {s(s_b)}, {s(s_t)}
    s_lshl4_add_u32 {s(s_b)}, {s(s_b)}, {s(s_t)}
    v_xor_b32 {v(t1)}, v0, {v(t0)}
    v_and_b32 {v(t1)}, 0x70, {v(t1)}
    v_lshrrev_b32 {v(t3)}, 3, v0
    v_lshl_add_u32 {v(t1)}, {v(t3)}, 15, {v(t1)}
    s_lshl_b32 {s(s_t)}, {s(s_b)}, 7
    s_sub_u32 {s(s_t)}, {s(s_t)}, {80 << 15}
    v_add_u32 {v(t1)}, {s(s_t)}, {v(t1)}
    v_min_u32 {v(t1)}, {N * 128 - 16}, {v(t1)}
    s_mul_i32 {s(s_t)}, {s(s_wave)}, {PCS}
    s_add_u32 m0, {s(s_t)}, {L_PB + 16 - 10 * PCS}
    s_lshl_b32 {s(s_u)}, {s(s_wave)}, 10
    s_sub_u32 {s(s_t)}, {s(s_wave)}, 10
    s_waitcnt lgkmcnt(0)
""")
    if "s1" in OPT:
        slots = [(2, 0), (2, 1), (0, 0), (4, 0), (10, 0), (10, 1), (10, 2), (5, 0), (1, 0), (1, 1), (1, 2), (6, 0), (7, 0), (8, 0), (3, 0), (3, 1)]
        pt = sum(p << (4 * i) for i, (p, o) in enumerate(slots)); ot = sum(o << (2 * i) for i, (p, o) in enumerate(slots))
        A(f"""
        s_cselect_b32 {s(MK+8)}, 1, 0
        s_cmp_lg_u32 {s(s_wave)}, 15
        s_cbranch_scc1 K_NOS1
        s_bfe_u32 {s(MK)}, s2, 0x40003
        s_mov_b32 {s(MK+2)}, {pt & 0xffffffff}
        s_mov_b32 {s(MK+3)}, {pt >> 32}
        s_lshl_b32 {s(MK+1)}, {s(MK)}, 2
        s_lshr_b64 {s(MK+2,2)}, {s(MK+2,2)}, {s(MK+1)}
        s_and_b32 {s(MK+2)}, {s(MK+2)}, 15
        s_lshl_b32 {s(MK+2)}, {s(MK+2)}, 3
        s_load_dwordx2 {s(MK+4,2)}, s[0:1], {s(MK+2)}
        s_lshl_b32 {s(MK+1)}, {s(MK)}, 1
        s_lshr_b32 {s(MK+1)}, {ot}, {s(MK+1)}
        s_and_b32 {s(MK+1)}, {s(MK+1)}, 3
        s_lshl_b32 {s(MK+1)}, {s(MK+1)}, 21
        s_waitcnt lgkmcnt(0)
        s_load_dword {s(MK+6)}, {s(MK+4,2)}, {s(MK+1)}
K_NOS1:
        s_cmp_lg_u32 {s(MK+8)}, 0
""")
    if "st" in OPT:
        tg = [("s[8:9]", "s2x"), ("s[4:5]", 0), ("s[12:13]", 0), ("s[24:25]", 0), ("s[24:25]", 2 << 20), ("s[24:25]", 4 << 20),
              ("s[14:15]", 0), ("s[6:7]", 0), ("s[6:7]", 2 << 20), ("s[6:7]", 4 << 20), ("s[16:17]", 0), ("s[18:19]", 0)]
        for n_, (b_, o_) in enumerate(tg):
            if o_ == "s2x":
                A(f"s_load_dword {s(MK+n_)}, {b_}, {s(s_o1)}")
            elif o_ == 0:
                A(f"s_load_dword {s(MK+n_)}, {b_}, 0")
            else:
                A(f"s_load_dword {s(MK+n_)}, {b_}, {s(s_o2 if o_ == 2 << 20 else s_o3)}")
    A(f"""
    s_cbranch_scc0 K_XL
    global_load_dwordx4 {v(DS_,4)}, {v(rr)}, s[10:11]
K_XL:
    s_cmp_lt_u32 {s(s_t)}, 5
    s_cbranch_scc0 K_XM
    global_load_lds_dwordx4 {v(t1)}, s[4:5]
K_XM:
    s_add_u32 m0, {s(s_u)}, {L_WA}
    v_and_b32 {v(lane)}, 63, v0
    global_load_lds_dwordx4 {v(t0)}, s[12:13]
    v_lshlrev_b32 {v(l16)}, 4, {v(lane)}
K_XD:
    {pstamp(7)}
    {"s_mov_b32 " + s(s_x) + ", " + s(STR[0]) if STAMP or DL[0] >= 0 else ""}
""")
    zero_hsum()
    A(f"""
    v_add_u32 {v(tba)}, {L_C1}, {v(l16)}
    ds_write_b128 {v(tba)}, {v(D[1]+12,4)}
    ds_write_b128 {v(tba)}, {v(D[1]+12,4)} offset:2048
    v_mov_b32 {v(t1)}, {WS_EPOCH}
    global_load_dword {v(epv)}, {v(t1)}, s[24:25]
""")
    prefill()
    A(f"""
    s_mov_b32 {s(SW)}, s24
    s_and_b32 {s(SW+1)}, s25, 0xffff
    s_mov_b32 {s(SW+2)}, {WS_END}
    s_mov_b32 {s(SW+3)}, 0x20000
    s_add_u32 {s(SP0)}, s24, {WS_P - 3*PCS}
    s_addc_u32 {s(SP0+1)}, s25, {2 << 16}
    s_mov_b32 {s(SP0+2)}, {N * 64}
    s_mov_b32 {s(SP0+3)}, 0x20000
    s_add_u32 {s(SP1)}, s24, {WS_P - 3*PCS + N*128}
    s_addc_u32 {s(SP1+1)}, s25, {2 << 16}
    s_mov_b32 {s(SP1+2)}, {N * 64}
    s_mov_b32 {s(SP1+3)}, 0x20000
    s_mov_b32 {s(SE)}, s6
    s_or_b32 {s(SE+1)}, s7, {8 << 16}
    s_mov_b32 {s(SE+2)}, {E}
    s_mov_b32 {s(SE+3)}, 0x20000
    s_movk_i32 {s(s_o3)}, {3*PCS}
    s_movk_i32 {s(s_o2)}, {2*PCS}
    s_movk_i32 {s(s_o1)}, {PCS}
    s_mov_b32 {s(s_msk)}, 0xfffc0
    s_mov_b32 {s(s_safe)}, 0
    s_mov_b32 {s(s_slow)}, 0
    s_mul_i32 {s(s_m0)}, {s(s_wave)}, {PBW}
    s_add_u32 {s(s_m0)}, {s(s_m0)}, {L_PB + 16}
    s_mov_b32 m0, {s(s_m0)}
    s_cmp_ge_u32 {s(s_wave)}, 10
    s_cbranch_scc1 K_PROLE
    global_load_dwordx4 {v(SR_,4)}, {v(rr)}, s[8:9]
    v_lshlrev_b32 {v(WW_)}, 22, v0
    v_add_u32 {v(WW_+1)}, {1 << 20}, {v(WW_)}
    v_add_u32 {v(WW_+2)}, {2 << 20}, {v(WW_)}
    v_add_u32 {v(WW_+3)}, {3 << 20}, {v(WW_)}
    v_mov_b32 {v(t3)}, 4
    s_mov_b32 {s(s_t)}, {L_C1}
    v_cmp_gt_u32 vcc, {CH // 4}, v0
    s_waitcnt lgkmcnt(0)
    s_mov_b64 {s(MK,2)}, vcc
    {pstamp(3) if "pb" in OPT else ""}
    s_barrier
    {pstamp(3) if "pb" not in OPT else ""}
    s_mov_b64 exec, {s(MK,2)}
    s_waitcnt vmcnt(3)
    {pstamp(4)}
""")
    for i in range(4):
        A(f"v_and_b32 {v(CB_+i)}, 255, {v(DS_+i)}")
        A(f"v_lshl_add_u32 {v(CB_+i)}, {v(CB_+i)}, 2, {s(s_t)}")
        A(f"ds_add_rtn_u32 {v(RK_+i)}, {v(CB_+i)}, {v(t3)}")
    for i in range(4):
        A(f"v_lshrrev_b32 {v(DS_+i)}, 8, {v(DS_+i)}")
        A(f"v_or_b32 {v(WW_+i)}, {v(WW_+i)}, {v(DS_+i)}")
    C4, P4 = U + 16, U + 20
    A(f"""
    s_mov_b64 exec, -1
    s_waitcnt vmcnt(1) lgkmcnt(0)
    s_barrier
""")
    stamp(10)
    A(f"""
    ds_read_b128 {v(C4,4)}, {v(tba)}
    v_readfirstlane_b32 {s(s_tag)}, {v(epv)}
    s_nop 0
    ; tag = hash(epoch), different from the epoch
    s_mul_i32 {s(s_to)}, {s(s_tag)}, 0x9e3779b1
    s_add_u32 {s(s_to)}, {s(s_to)}, 0x7f4a7c15
    s_cmp_eq_u32 {s(s_to)}, {s(s_tag)}
    s_addc_u32 {s(s_tag)}, {s(s_to)}, 0
    s_mov_b32 {s(s_to)}, 0x40000
""")
    A(f"""
    s_waitcnt lgkmcnt(0)
    v_add_u32 {v(DS_+1)}, {v(C4)}, {v(C4+1)}
    v_add_u32 {v(DS_+2)}, {v(DS_+1)}, {v(C4+2)}
    v_add_u32 {v(DS_+3)}, {v(DS_+2)}, {v(C4+3)}
    v_mov_b32 {v(t1)}, {v(DS_+3)}
    v_add_u32 {v(t2)}, {L_STG}, {v(t0)}
    s_nop 0
""")
    for d in DPP_SCAN:
        A(f"v_add_u32_dpp {v(t1)}, {v(t1)}, {v(t1)} {d}\ns_nop 1")
    A(f"""
    v_sub_u32 {v(P4)}, {v(t1)}, {v(DS_+3)}
    v_add_u32 {v(P4+1)}, {v(P4)}, {v(C4)}
    v_add_u32 {v(P4+2)}, {v(P4)}, {v(DS_+1)}
    v_add_u32 {v(P4+3)}, {v(P4)}, {v(DS_+2)}
    ds_write_b128 {v(tba)}, {v(P4,4)} offset:1024
    s_mov_b64 exec, {s(MK,2)}
    s_mov_b32 {s(s_t)}, {L_STG}
""")
    for i in range(4):
        A(f"ds_read_b32 {v(DS_+i)}, {v(CB_+i)} offset:1024")
    A(ystamp(8) + "\ns_waitcnt vmcnt(0)\n" + ystamp(9))
    for i in range(4):
        A(f"v_lshl_or_b32 {v(WW_+i)}, {v(SR_+i)}, 6, {v(WW_+i)}")
    for i in range(4):
        A(f"s_waitcnt lgkmcnt(3)")
        A(f"v_add3_u32 {v(DS_+i)}, {v(DS_+i)}, {v(RK_+i)}, {s(s_t)}")
        A(f"ds_write_b32 {v(DS_+i)}, {v(WW_+i)}")
    for i in range(4):
        A(f"ds_add_u32 {v(CB_+i)}, {v(WW_+i)} offset:2048")
    A(f"""
    s_mov_b64 exec, -1
    s_lshl_b32 {s(s_u)}, {s(s_wave)}, 10
    s_add_u32 m0, {s(s_u)}, {L_WB}
    v_add_u32 {v(t3)}, 16384, {v(t0)}
    global_load_lds_dwordx4 {v(t3)}, s[12:13]
    v_and_b32 {v(t1)}, 15, {v(lane)}
    s_and_b32 {s(s_u)}, {s(s_wave)}, 7
    s_lshl_b32 {s(s_u)}, {s(s_u)}, 5
    v_lshl_add_u32 {v(t1)}, {v(t1)}, 1, {s(s_u)}
    global_load_ushort {v(qa)}, {v(t1)}, s[14:15]
    v_lshrrev_b32 {v(t1)}, 1, v0
    v_and_b32 {v(t1)}, 0x78, {v(t1)}
    global_load_dwordx2 {v(b2r,2)}, {v(t1)}, s[18:19]
    s_mul_i32 {s(s_u)}, s2, {RECB}
    v_lshlrev_b32 {v(t1)}, 2, v0
    v_add_u32 {v(t1)}, {L_C1}, {v(t1)}
    s_lshl_b32 {s(sB)}, s2, 12
    s_add_u32 {s(sB)}, {s(sB)}, {WS_TAB}
    v_mov_b32 {v(C4+1)}, {s(s_tag)}
    v_mov_b32 {v(C4+3)}, {s(s_tag)}
    s_cmp_ge_u32 {s(s_wave)}, 4
    s_waitcnt lgkmcnt(0)
    {ystamp(3)}
    s_barrier
    {ystamp(4)}
    ds_read_b128 {v(DS_,4)}, {v(t2)}
    s_cbranch_scc1 K_NOTABR
    ds_read2st64_b32 {v(P4,2)}, {v(t1)} offset0:0 offset1:4
    ds_read_b32 {v(C4+2)}, {v(t1)} offset:2048
K_NOTABR:
    s_waitcnt lgkmcnt(0)
    buffer_store_dwordx4 {v(DS_,4)}, {v(t0)}, {s(SW,4)}, {s(s_u)} offen {SC}
    s_cbranch_scc1 K_AJOIN
    v_lshl_or_b32 {v(C4)}, {v(P4)}, 16, {v(P4+1)}
    buffer_store_dwordx4 {v(C4,4)}, {v(t0)}, {s(SW,4)}, {s(sB)} offen {SC}
    s_branch K_AJOIN
K_PROLE:
    ; ================= P role (waves 10..13 compute, 10..15 copy out) =================
    s_cmp_lg_u32 {s(s_wave)}, 15
    s_cbranch_scc1 K_NOWCL
    v_add_u32 {v(t1)}, {128 * 256}, {v(l16)}
    global_load_dwordx4 {v(lw,4)}, {v(t1)}, s[12:13]
K_NOWCL:
    v_and_b32 {v(t1)}, 31, {v(lane)}
    v_lshrrev_b32 {v(t2)}, 5, {v(lane)}
    s_sub_u32 {s(s_u)}, {s(s_wave)}, 10
    s_lshl_b32 {s(s_t)}, {s(s_u)}, 6
    s_add_u32 {s(s_t)}, {s(s_t)}, {L_WA}
    v_bfe_u32 {v(nn)}, {v(lane)}, 2, 2
    v_lshl_add_u32 {v(nn)}, {v(t2)}, 3, {v(nn)}
    v_lshlrev_b32 {v(nn)}, 8, {v(nn)}
    v_and_b32 {v(t3)}, 1, {v(lane)}
    v_lshl_add_u32 {v(nn)}, {v(t3)}, 5, {v(nn)}
    v_and_b32 {v(t3)}, 16, {v(lane)}
    v_add3_u32 {v(nn)}, {v(nn)}, {v(t3)}, {s(s_t)}
    v_and_b32 {v(t3)}, 2, {v(lane)}
    v_lshl_add_u32 {v(nn)}, {v(t3)}, 2, {v(nn)}
    v_lshrrev_b32 {v(t3)}, 3, {v(t1)}
    v_lshlrev_b32 {v(nn+1)}, 7, {v(t1)}
    v_lshl_add_u32 {v(nn+1)}, {v(t3)}, 4, {v(nn+1)}
    v_add_u32 {v(nn+1)}, {L_PB + 16}, {v(nn+1)}
    v_bfe_u32 {v(t3)}, {v(lane)}, 1, 3
    v_xor_b32 {v(t3)}, {v(t3)}, {v(t2)}
""")
    for q in range(4):
        A(f"v_xor_b32 {v(acc+q)}, {2*q}, {v(t3)}")
        A(f"v_lshl_add_u32 {v(acc+q)}, {v(acc+q)}, 4, {v(nn+1)}")
    A(f"""
    v_mul_u32_u24 {v(nn+1)}, 272, {v(t1)}
    v_lshl_add_u32 {v(nn+1)}, {v(t2)}, 5, {v(nn+1)}
    s_lshl_b32 {s(s_t)}, {s(s_u)}, 6
    v_add_u32 {v(nn+1)}, {s(s_t)}, {v(nn+1)}
    ; copy-out: u = tid - 640 (+384): row = u>>4, piece = u&15
    v_subrev_u32 {v(t1)}, 640, v0
    v_lshrrev_b32 {v(t2)}, 4, {v(t1)}
    v_and_b32 {v(t3)}, 0xf0, {v(l16)}
    v_mul_u32_u24 {v(dd)}, 272, {v(t2)}
    v_add_u32 {v(dd)}, {v(dd)}, {v(t3)}
    v_and_b32 {v(t3)}, 0x70, {v(l16)}
    v_lshl_add_u32 {v(dd+1)}, {v(t2)}, 15, {v(t3)}
    s_lshl_b32 {s(s_t)}, {s(s_b)}, 7
    v_add_u32 {v(dd+1)}, {s(s_t)}, {v(dd+1)}
    v_add_u32 {v(tt)}, {24 << 15}, {v(dd+1)}
    v_bfe_u32 {v(t3)}, {v(lane)}, 3, 1
    v_mul_u32_u24 {v(t3)}, {N * 128}, {v(t3)}
    v_add_u32 {v(t3)}, {WS_P}, {v(t3)}
    v_cmp_gt_u32 vcc, {N * 128}, {v(tt)}
    v_add_u32 {v(dd+1)}, {v(dd+1)}, {v(t3)}
    v_add_u32 {v(tt)}, {v(tt)}, {v(t3)}
    s_mov_b32 {s(sA)}, {f32(-LOG2E)}
    s_mov_b32 {s(sB)}, {f32(-LOG2E)}
    s_waitcnt lgkmcnt(0)
    s_mov_b64 {s(MK,2)}, vcc
    s_barrier
    s_waitcnt vmcnt(0)
    s_barrier
    s_cmp_ge_u32 {s(s_wave)}, 14
    s_cbranch_scc1 K_PWC
""")
    WF, XA, XB2, D0 = U, U + 16, U + 32, U + 48
    for q in range(4):
        A(f"ds_read_b128 {v(XA+4*q,4)}, {v(acc+q)}")
        for h2 in range(2):
            A(f"ds_read_b64_tr_b16 {v(WF+4*q+2*h2,2)}, {v(nn)} offset:{(16*q+4*h2)*256}")
    for q in range(4):
        A(f"ds_read_b128 {v(XB2+4*q,4)}, {v(acc+q)} offset:{4*PCS}")
    for q in range(4):
        A(f"s_waitcnt lgkmcnt({13 - 3*q})")
        A(f"v_mfma_f32_32x32x16_bf16 {v(D0,16)}, {v(WF+4*q,4)}, {v(XA+4*q,4)}, {'0' if q == 0 else v(D0,16)}")
    for q in range(4):
        A(f"s_waitcnt lgkmcnt({3 - q})")
        A(f"v_mfma_f32_32x32x16_bf16 {v(XA,16)}, {v(WF+4*q,4)}, {v(XB2+4*q,4)}, {'0' if q == 0 else v(XA,16)}")
    A("s_nop 3")
    for r in range(16):
        A(f"v_mul_f32 {v(D0+r)}, {s(sA)}, {v(D0+r)}")
    for r in range(8):
        A(f"v_cvt_pk_bf16_f32 {v(D0+r)}, {v(D0+2*r)}, {v(D0+2*r+1)}")
    A(f"""
    ds_write_b128 {v(nn+1)}, {v(D0,4)} offset:{L_PO}
    ds_write_b128 {v(nn+1)}, {v(D0+4,4)} offset:{L_PO + 16}
""")
    for r in range(0, 16, 2):
        A(f"v_pk_mul_f32 {v(XA+r,2)}, {v(XA+r,2)}, {s(sA,2)}")
    for r in range(8):
        A(f"v_cvt_pk_bf16_f32 {v(XA+r)}, {v(XA+2*r)}, {v(XA+2*r+1)}")
    A(f"""
    ds_write_b128 {v(nn+1)}, {v(XA,4)} offset:{L_PO + 32*272}
    ds_write_b128 {v(nn+1)}, {v(XA+4,4)} offset:{L_PO + 32*272 + 16}
    s_branch K_PB3
K_PWC:
    s_getpc_b64 {s(MK+2,2)}
K_PC:
    s_add_u32 {s(MK+2)}, {s(MK+2)}, K_TABLE-K_PC
    s_addc_u32 {s(MK+3)}, {s(MK+3)}, 0
    s_and_b32 {s(s_t)}, {s(s_wave)}, 1
    s_mul_i32 {s(s_u)}, {s(s_t)}, {2*PCS}
    s_add_u32 m0, {s(s_u)}, {CBL}
    s_lshl_b32 {s(s_t)}, {s(s_t)}, 11
    v_add_u32 {v(t1)}, {s(s_t)}, {v(l16)}
    global_load_lds_dwordx4 {v(t1)}, {s(MK+2,2)}
    s_add_u32 m0, m0, {PCS - 1024}
    s_nop 0
    global_load_lds_dwordx4 {v(t1)}, {s(MK+2,2)} offset:1024
    s_cmp_eq_u32 {s(s_wave)}, 14
    s_cbranch_scc1 K_EPF
    v_lshrrev_b32 {v(t1)}, 4, {v(lane)}
    v_mul_u32_u24 {v(t1)}, 320, {v(t1)}
    v_and_b32 {v(t2)}, 0xf0, {v(l16)}
    v_add_u32 {v(t1)}, {v(t1)}, {v(t2)}
    v_add_u32 {v(t1)}, {L_WC}, {v(t1)}
""")
    for i in range(4):
        A(f"v_lshlrev_b32 {v(U+2*i)}, 16, {v(lw+i)}")
        A(f"v_and_b32 {v(U+2*i+1)}, 0xffff0000, {v(lw+i)}")
    for i in range(4):
        A(f"v_pk_mul_f32 {v(U+2*i,2)}, {v(U+2*i,2)}, {s(sA,2)}")
    for i in range(8):
        A(f"v_and_b32 {v(U+8+i)}, 0xffff0000, {v(U+i)}")
    for i in range(8):
        A(f"v_sub_f32 {v(U+i)}, {v(U+i)}, {v(U+8+i)}")
    for i in range(4):
        A(f"v_cvt_pk_bf16_f32 {v(U+16+i)}, {v(U+8+2*i)}, {v(U+9+2*i)}")
        A(f"v_cvt_pk_bf16_f32 {v(U+20+i)}, {v(U+2*i)}, {v(U+1+2*i)}")
    A(f"""
    ds_write_b128 {v(t1)}, {v(U+16,4)}
    ds_write_b128 {v(t1)}, {v(U+20,4)} offset:{8*320}
    s_branch K_PB3
K_EPF:
""")
    EPF = int(os.environ.get("EPF", "0"))
    EPX = int(os.environ.get("EPX", "0"))
    if EPF:
        if EPX:
            A(f"s_lshr_b32 {s(s_t)}, s2, 3\ns_mul_i32 {s(s_t)}, {s(s_t)}, {EPF * 1024}")
        else:
            A(f"s_mul_i32 {s(s_t)}, s2, {CH}")
        A(f"v_add_u32 {v(t1)}, {s(s_t)}, {v(l16)}")
        for k in range(EPF):
            A(f"buffer_load_dword {v(jnk)}, {v(t1)}, {s(SE,4)}, 0 idxen\nv_add_u32 {v(t1)}, 1024, {v(t1)}")
    A(f"""
K_PB3:
    v_readfirstlane_b32 {s(s_tag)}, {v(epv)}
    s_nop 0
    ; tag = hash(epoch), different from the epoch
    s_mul_i32 {s(s_to)}, {s(s_tag)}, 0x9e3779b1
    s_add_u32 {s(s_to)}, {s(s_to)}, 0x7f4a7c15
    s_cmp_eq_u32 {s(s_to)}, {s(s_tag)}
    s_addc_u32 {s(s_tag)}, {s(s_to)}, 0
    s_mov_b32 {s(s_to)}, 0x40000
    s_lshl_b32 {s(s_u)}, {s(s_wave)}, 10
    s_add_u32 m0, {s(s_u)}, {L_WB}
    v_add_u32 {v(t3)}, 16384, {v(t0)}
    global_load_lds_dwordx4 {v(t3)}, s[12:13]
    v_and_b32 {v(t1)}, 15, {v(lane)}
    s_and_b32 {s(s_u)}, {s(s_wave)}, 7
    s_lshl_b32 {s(s_u)}, {s(s_u)}, 5
    v_lshl_add_u32 {v(t1)}, {v(t1)}, 1, {s(s_u)}
    global_load_ushort {v(qa)}, {v(t1)}, s[14:15]
    v_lshrrev_b32 {v(t1)}, 1, v0
    v_and_b32 {v(t1)}, 0x78, {v(t1)}
    global_load_dwordx2 {v(b2r,2)}, {v(t1)}, s[18:19]
    s_waitcnt lgkmcnt(0)
    {ystamp(3)}
    s_barrier
    ds_read_b128 {v(U,4)}, {v(dd)} offset:{L_PO}
    ds_read_b128 {v(U+4,4)}, {v(dd)} offset:{L_PO + 24*272}
    s_waitcnt lgkmcnt(1)
    buffer_store_dwordx4 {v(U,4)}, {v(dd+1)}, {s(SW,4)}, 0 offen {SC}
    s_cmp_ge_u32 {s(s_wave)}, 14
    s_cbranch_scc1 K_AJOIN
    s_mov_b64 exec, {s(MK,2)}
    s_waitcnt lgkmcnt(0)
    buffer_store_dwordx4 {v(U+4,4)}, {v(tt)}, {s(SW,4)}, 0 offen {SC}
    s_mov_b64 exec, -1
K_AJOIN:
""")
    stamp(7)
    TR = D[0]
    A(tab_pre())
    A(f"""
    ; Wc fragment address: WC + (8h + r)*320 + c16*32 + c*8
    v_lshrrev_b32 {v(t2)}, 5, {v(lane)}
    v_bfe_u32 {v(t3)}, {v(lane)}, 2, 2
    v_lshl_add_u32 {v(t2)}, {v(t2)}, 3, {v(t3)}
    v_mul_u32_u24 {v(t2)}, 320, {v(t2)}
    v_and_b32 {v(t3)}, 16, {v(lane)}
    v_lshl_add_u32 {v(t2)}, {v(t3)}, 1, {v(t2)}
    v_and_b32 {v(t3)}, 3, {v(lane)}
    v_lshl_add_u32 {v(t2)}, {v(t3)}, 3, {v(t2)}
    v_add_u32 {v(t2)}, {L_WC}, {v(t2)}
    v_add_u32 {v(t3)}, {CBL}, {v(l16)}
    s_lshr_b32 {s(s_t)}, {s(s_wave)}, 3
    s_mul_i32 {s(sA)}, {s(s_t)}, {2*PCS}
    s_lshl_b32 {s(s_t)}, {s(s_t)}, 13
    s_and_b32 {s(s_u)}, {s(s_wave)}, 7
    s_lshl_b32 {s(sB)}, {s(s_u)}, 6
    s_add_u32 {s(s_t)}, {s(s_t)}, {s(sB)}
    s_lshl_b32 {s(s_u)}, {s(s_u)}, 5
    s_mov_b32 m0, {s(s_m0)}
    s_cmp_lt_u32 {s(s_wave)}, 4
    s_cbranch_scc1 K_J2
    s_sub_u32 {s(sB)}, {s(s_wave)}, 10
    s_cmp_lt_u32 {s(sB)}, 4
    s_cbranch_scc1 K_J2
    s_waitcnt vmcnt(1)
K_J2:
    s_waitcnt vmcnt(2) lgkmcnt(0)
    s_barrier
""")
    stamp(8)
    for k in range(4):
        A(f"ds_read_b128 {v(LC+4*k,4)}, {v(t3)} offset:{k*PCS}")
    A(f"""
    s_waitcnt lgkmcnt(3)
    v_add_u32 {v(la_w)}, {s(sA)}, {v(la_w)}
    v_add_u32 {v(la_e)}, {s(sA)}, {v(la_e)}
    v_add_u32 {v(le)}, {s(s_u)}, {v(le)}
    v_add_u32 {v(ha)}, {s(s_t)}, {v(tab)}
    ds_read_b128 {v(QA,4)}, {v(la_w)}
    ds_read_b128 {v(QA+4,4)}, {v(la_e)}
""")
    for ks in range(2):
        for h2 in range(2):
            A(f"ds_read_b64_tr_b16 {v(QB+4*ks+2*h2,2)}, {v(le)} offset:{(32*ks + 4*h2)*256}")
    A(f"""
    ds_read_b128 {v(QA2,4)}, {v(la_w)} offset:{4*PCS}
    ds_read_b128 {v(QA2+4,4)}, {v(la_e)} offset:{4*PCS}
""")
    for n in range(4):
        A(f"ds_read_b64_tr_b16 {v(B5[n],2)}, {v(t2)} offset:{64*n}")
    A("s_waitcnt lgkmcnt(12)")
    for a in (TA[0][0], TA[0][1], TA[1][0], TA[1][1]):
        A(f"v_add_u32 {v(a)}, {s(s_m0)}, {v(a)}")
    A(f"""
    s_mov_b32 {s(s_t)}, {f32(-LOG2E)}
    v_lshlrev_b32 {v(qa)}, 16, {v(qa)}
    v_mul_f32 {v(qa)}, {s(s_t)}, {v(qa)}
    s_waitcnt lgkmcnt(4)
    v_mfma_f32_16x16x32_bf16 {v(QD,4)}, {v(QA,4)}, {v(QB,4)}, 0
    v_mfma_f32_16x16x32_bf16 {v(QD,4)}, {v(QA+4,4)}, {v(QB+4,4)}, {v(QD,4)}
    v_mfma_f32_16x16x32_bf16 {v(QD+4,4)}, {v(QA2,4)}, {v(QB,4)}, 0
    v_mfma_f32_16x16x32_bf16 {v(QD+4,4)}, {v(QA2+4,4)}, {v(QB+4,4)}, {v(QD+4,4)}
""")

    def qpart(base, off):
        for r in range(4):
            A(f"v_fma_f32 {v(base+r)}, {v(base+r)}, {s(s_t)}, {v(qa)}")
        for r in range(4):
            A(f"v_and_b32 {v(QA+r)}, 0xffff0000, {v(base+r)}")
        for r in range(4):
            A(f"v_sub_f32 {v(base+r)}, {v(base+r)}, {v(QA+r)}")
        for r in range(4):
            A(f"v_cvt_pk_bf16_f32 {v(base+r)}, {v(QA+r)}, {v(base+r)}")
        for r in range(0, 4, 2):
            A(f"ds_write2st64_b32 {v(ha)}, {v(base+r)}, {v(base+r+1)} offset0:{(off + r*512)//256} offset1:{(off + r*512 + 512)//256}")
    def pfnew():
        poll("A")
        stamp(9)
        rec_loads("A")
        A(f"""
    v_and_b32 {v(tba)}, {"0xff" if "pf4" in OPT else "0x3fc"}, v0
    v_lshlrev_b32 {v(tba)}, {6 if "pf4" in OPT else 4}, {v(tba)}
    v_add_u32 {v(tba)}, {WS_PF}, {v(tba)}
    s_cmp_lt_u32 {s(s_wave)}, 10
    s_cbranch_scc1 K_VERA
    ; this wave's P stores are complete (the poll waited for them): the last of the six waves publishes the flag
    s_mov_b64 exec, 1
    v_mov_b32 {v(t2)}, {L_FLAG + 8}
    v_mov_b32 {v(t3)}, 1
    ds_add_rtn_u32 {v(t2)}, {v(t2)}, {v(t3)}
    s_mov_b64 exec, -1
    v_mov_b32 {v(t3)}, {s(s_tag)}
    v_lshlrev_b32 {v(lw)}, 2, {v(lane)}
    s_lshl_b32 {s(sA)}, s2, 6
    s_add_u32 {s(sA)}, {s(sA)}, {WS_PF}
    s_waitcnt lgkmcnt(0)
    v_readfirstlane_b32 {s(s_u)}, {v(t2)}
    s_cmp_lg_u32 {s(s_u)}, 5
    s_cbranch_scc1 K_VERA
    s_mov_b64 exec, 0xffff
    buffer_store_dword {v(t3)}, {v(lw)}, {s(SW,4)}, {s(sA)} offen {SC}
    s_mov_b64 exec, -1
    s_waitcnt vmcnt(1)
    s_branch K_VER1A
""")

    A("s_nop 5")
    qpart(QD, 0)
    A(f"s_cmp_ge_u32 {s(s_wave)}, 8\ns_cbranch_scc1 K_QD\ns_mov_b32 exec_hi, 0")
    qpart(QD + 4, 32 * 512)
    A(f"""
    s_mov_b32 exec_hi, -1
""")
    if os.environ.get("PFV", "0") == "1":
        A("K_QD:")
        pfnew()
    else:
        A(f"""
K_QD:
    s_cmp_lt_u32 {s(s_wave)}, 10
    s_cbranch_scc1 K_POLL1A
    s_mov_b64 exec, 1
    v_mov_b32 {v(t2)}, {L_FLAG + 8}
    v_mov_b32 {v(t3)}, 1
    s_waitcnt vmcnt(0)
    ds_add_rtn_u32 {v(t2)}, {v(t2)}, {v(t3)}
    s_mov_b64 exec, -1
    buffer_load_dwordx3 {v(rem,3)}, {v(tba)}, {s(SW,4)}, 0 offen {SC}
    v_mov_b32 {v(t3)}, {s(s_tag)}
    v_lshlrev_b32 {v(lw)}, 2, {v(lane)}
    s_lshl_b32 {s(sA)}, s2, 6
    s_add_u32 {s(sA)}, {s(sA)}, {WS_PF}
    s_waitcnt lgkmcnt(0)
    v_readfirstlane_b32 {s(s_u)}, {v(t2)}
    s_cmp_lg_u32 {s(s_u)}, 5
    s_cbranch_scc1 K_POLL2A
    s_mov_b64 exec, 0xffff
    buffer_store_dword {v(t3)}, {v(lw)}, {s(SW,4)}, {s(sA)} offen {SC}
    s_mov_b64 exec, -1
    s_waitcnt vmcnt(1)
    s_branch K_POLL3A
""")
        poll("A", None)
        stamp(9)
        rec_loads("A")
        A(f"""
    v_and_b32 {v(tba)}, {"0xff" if "pf4" in OPT else "0x3fc"}, v0
    v_lshlrev_b32 {v(tba)}, {6 if "pf4" in OPT else 4}, {v(tba)}
    v_add_u32 {v(tba)}, {WS_PF}, {v(tba)}
""")
    verify("A")
    EV = int(os.environ.get("EV", "0"))
    EO = int(os.environ.get("EO", "0"))
    if EV:
        A(f"""
        s_cmp_lt_u32 {s(s_wave)}, 4
        s_cbranch_scc1 K_NOEV
        s_mul_i32 {s(s_t)}, s2, {CH}
        s_mul_i32 {s(s_u)}, {s(s_wave)}, {EV * 16}
        s_add_u32 {s(s_t)}, {s(s_t)}, {s(s_u)}
        s_add_u32 {s(s_t)}, {s(s_t)}, {(EO * 16 - 4 * EV * 16) & 0xffffffff}
        v_add_u32 {v(t2)}, {s(s_t)}, {v(l16)}
        s_mov_b64 exec, {(1 << EV) - 1}
        buffer_load_dword {v(jnk)}, {v(t2)}, {s(SE,4)}, 0 idxen
        s_mov_b64 exec, -1
K_NOEV:
""")
    NWM = NWB = 0

    def p1words(xs):
        for x in xs:
            A(f"v_lshlrev_b32_sdwa {v(CA+x)}, 2, {v(CW+x)} dst_sel:BYTE_0 dst_unused:UNUSED_PAD src0_sel:DWORD src1_sel:DWORD")
        for x in xs:
            A(f"s_mov_b64 exec, {s(MK+2*x,2)}")
            A(f"ds_add_rtn_u32 {v(RK+x)}, {v(CA+x)}, {v(t3)} offset:{L_CNT}")
        A("s_mov_b64 exec, -1")

    LO = [0, 1, 2, 3]
    HI = [4, 5, 6, 7]
    A(warm("q1", 128, 0))
    A(f"K_PASS1:\nv_mov_b32 {v(t3)}, 4")
    stamp(1)
    A(warm("p0", 0, 5) + warm("p1", 128, 5))
    p1words(LO)
    A(f"""
    s_cmp_lg_u32 {s(s_hi)}, 0
    s_cbranch_scc1 K_HI1
K_HB1:
""")
    for x in LO:
        if "e2" in OPT:
            A(f"v_add_u32 {v(EI+x)}, {x}, {v(EB)}")
            continue
        A(f"v_lshrrev_b32 {v(EI+x)}, 20, {v(CW+x)}")
        A(f"v_add_u32 {v(EI+x)}, {v(EI+x)}, {v(EB)}")
    stamp(2)
    A(f"""
    v_lshlrev_b32 {v(t0)}, 2, {v(lane)}
    v_mov_b32 {v(t2)}, {L_FLAG}
    s_waitcnt lgkmcnt(0)
    s_barrier
    {zstamp(10)}
    ds_read_b32 {v(t1)}, {v(t0)} offset:{L_CNT}
    ds_read_b32 {v(t2)}, {v(t2)}
""")
    if "pfl" in OPT:
        pass
    elif "pf4" in OPT:
        A(f"s_cmp_ge_u32 {s(s_wave)}, 4\ns_cbranch_scc1 K_NPFL\nbuffer_load_dword {v(epv)}, {v(tba)}, {s(SW,4)}, 0 offen {SC}\nK_NPFL:")
    elif "nopf" not in OPT:
        A(f"buffer_load_dword {v(epv)}, {v(tba)}, {s(SW,4)}, 0 offen {SC}")
    else:
        A(f"v_mov_b32 {v(epv)}, {s(s_tag)}")
    A(warm("r0", 0, 0))
    A(f"""
    s_waitcnt lgkmcnt(1)
    v_add_u32 {v(t3)}, 31, {v(t1)}
    v_and_b32 {v(t3)}, -32, {v(t3)}
    v_mov_b32 {v(t0)}, {v(t3)}
    s_nop 1
""")
    for d in DPP_SCAN:
        A(f"v_add_u32_dpp {v(t0)}, {v(t0)}, {v(t0)} {d}\ns_nop 1")
    A(f"""
    v_readlane_b32 {s(sB)}, {v(t0)}, 63
    v_sub_u32 {v(t0)}, {v(t0)}, {v(t3)}
    v_add_u32 {v(t0)}, {L_LA}, {v(t0)}
""")
    A(f"s_waitcnt lgkmcnt(0)\ns_cmp_eq_u32 {s(s_hi)}, 0\ns_cbranch_scc1 K_NOHB")
    for x in HI:
        A(f"ds_bpermute_b32 {v(CA+x)}, {v(CA+x)}, {v(t0)}")
    A("K_NOHB:")
    for x in LO:
        A(f"ds_bpermute_b32 {v(CA+x)}, {v(CA+x)}, {v(t0)}")
    A(f"""
    {f"buffer_load_dword {v(epv)}, {v(tba)}, {s(SW,4)}, 0 offen {SC}" if "pfl" in OPT else ""}
    v_readfirstlane_b32 {s(sA)}, {v(t2)}
    v_lshrrev_b32 {v(t2)}, 4, {v(lane)}
    s_cmp_gt_u32 {s(sB)}, {CAPB}
    s_cselect_b32 {s(s_t)}, 1, 0
    s_or_b32 {s(sA)}, {s(sA)}, {s(s_t)}
    s_cbranch_scc1 K_GOSLOW
    v_add_u32 {v(deg)}, {v(deg)}, {v(t1)}
    s_add_u32 {s(sB)}, {s(sB)}, 127
    s_lshr_b32 {s(sB)}, {s(sB)}, 7
    s_add_u32 {s(s_rem)}, {s(sB)}, {NWV - 1}
    s_sub_u32 {s(s_rem)}, {s(s_rem)}, {s(s_wave)}
    s_lshr_b32 {s(s_rem)}, {s(s_rem)}, 4
    s_lshr_b32 {s(s_t)}, {s(sB)}, 4
    s_mul_i32 {s(s_t)}, {s(s_t)}, {s(s_wave)}
    s_and_b32 {s(sB)}, {s(sB)}, {NWV - 1}
    s_min_u32 {s(sB)}, {s(sB)}, {s(s_wave)}
    s_add_u32 {s(s_t)}, {s(s_t)}, {s(sB)}
    s_lshl_b32 {s(s_t)}, {s(s_t)}, 7
    s_lshl_b32 {s(s_u)}, {s(s_rem)}, 5
    s_waitcnt lgkmcnt(0)
    {zstamp(7)}
""")
    for x in LO:
        A(f"v_add_u32 {v(CA+x)}, {v(CA+x)}, {v(RK+x)}")
    for x in LO:
        A(f"s_mov_b64 exec, {s(MK+2*x,2)}")
        A(f"ds_write2st64_b32 {v(CA+x)}, {v(CW+x)}, {v(EI+x)} offset0:0 offset1:{NE*4//256}")
    A(f"""
    s_mov_b64 exec, -1
    s_cmp_lg_u32 {s(s_hi)}, 0
    s_cbranch_scc1 K_HI2
K_HB2:
    s_cmp_lg_u32 {s(s_wave)}, 15
    s_cbranch_scc1 K_NOGAP
    v_mul_u32_u24 {v(t3)}, {PCS}, {v(lane)}
    v_add_u32 {v(t3)}, {L_PB}, {v(t3)}
    v_mov_b64 {v(nn,2)}, 0
    v_mov_b64 {v(dd,2)}, 0
    ds_write_b128 {v(t3)}, {v(nn,4)}
    ds_write_b128 {v(t3)}, {v(nn,4)} offset:{PCS}
K_NOGAP:
    v_mul_u32_u24 {v(t2)}, {s(s_u)}, {v(t2)}
    v_add3_u32 {v(la_w)}, {v(t2)}, {v(cw0)}, {s(s_t)}
    v_mul_u32_u24 {v(la_e)}, {s(s_u)}, {v(grp)}
    v_add3_u32 {v(la_e)}, {v(la_e)}, {v(ce0)}, {s(s_t)}
    v_add3_u32 {v(tab)}, {v(tb0)}, {v(t2)}, {s(s_t)}
    {zstamp(8)}
    {f"s_cmp_ge_u32 {s(s_wave)}, 4" if "pf4" in OPT else ""}
    {"s_cbranch_scc1 K_PFD" if "pf4" in OPT else ""}
    s_waitcnt vmcnt({int("r0" in OPT)})
K_PFC:
    v_cmp_ne_u32 vcc, {s(s_tag)}, {v(epv)}
    s_cbranch_vccnz K_PFR
    {zstamp(9)}
""")
    WO = int(os.environ.get("WO", "0"))
    WN = int(os.environ.get("WN", "4"))
    if WO:
        A(f"""
        s_cmp_ge_u32 {s(s_wave)}, {WN}
        s_cbranch_scc1 K_NOWO
        s_lshr_b32 {s(sA)}, s2, 3
        s_mul_i32 {s(sA)}, {s(sA)}, {WO * WN * 8192}
        s_add_u32 {s(sA)}, {s(sA)}, {WS_P}
        v_lshlrev_b32 {v(nn)}, 7, v0
""")
        for k in range(WO):
            A(f"buffer_load_dword {v(jnk)}, {v(nn)}, {s(SW,4)}, {s(sA)} offen {SC}\ns_add_u32 {s(sA)}, {s(sA)}, {WN * 8192}")
        A("K_NOWO:")
    A(f"""
K_PFD:
    s_waitcnt lgkmcnt(0)
    s_barrier
""")
    stamp(3)
    if "tl" in OPT:
        A(f"v_mov_b32 {v(tl)}, 0\nv_writelane_b32 {v(tl)}, {s(STR[3])}, 0\ns_mov_b32 s95, 1")
    if "p3" in OPT:
        A("s_setprio 3")

    def dma(u):
        so = [s(s_o3), s(s_o2), s(s_o1), "0"]
        srd = SP0 if u == 0 else SP1
        return [f"buffer_load_dwordx4 {v(lw+q)}, {s(srd,4)}, {so[q]} idxen offset:{q*PCS} {os.environ.get('PSC', 'sc1')} lds" for q in range(4)]

    def idx():
        return [f"v_and_or_b32 {v(lw+q)}, {v(lw+q)}, {s(s_msk)}, {v(dq)}" for q in range(4)]

    def eload():
        return f"buffer_load_dwordx2 {v(A5,2)}, {v(le)}, {s(SE,4)}, 0 idxen" + (" nt" if "ent" in OPT else "")

    def ohcmp():
        return f"v_cmp_gt_u32 vcc, {s(s_ne)}, {v(le)}"

    def ohsel():
        return [f"v_cndmask_b32 {v(A5+2)}, 0, {v(OH)}, vcc", f"v_cndmask_b32 {v(A5+3)}, 0, {v(OH+1)}, vcc"]

    def lists():
        return [f"ds_read_b128 {v(lw,4)}, {v(la_w)}", f"ds_read_b32 {v(le)}, {v(la_e)}"]

    def laup():
        return [f"v_add_u32 {v(x)}, 32, {v(x)}" for x in (la_w, la_e)]

    def flush():
        o = [f"v_cvt_f64_f32 {v(C64+2*i,2)}, {v(acc+i)}" for i in range(8)]
        o2 = [f"ds_add_f64 {v(ha + i%2)}, {v(C64+2*i,2)} offset:{(i//2)*256}" for i in range(8)]
        return o, o2

    def qaddr(fill):
        o = [f"v_mov_b32_dpp {v(qa)}, {v(tab)} row_newbcast:0 row_mask:0xf bank_mask:0xf",
             f"v_mov_b32_dpp {v(qa+1)}, {v(tab)} row_newbcast:0 row_mask:0xf bank_mask:0xf"]
        o += fill[:2]
        o += [f"v_permlane16_swap_b32 {v(qa)}, {v(qa+1)}"]
        o += fill[2:4]
        o += [f"v_add_u32 {v(qa)}, {v(qa)}, {v(j4)}", f"v_add_u32 {v(qa+1)}, {v(qa+1)}, {v(j4)}"]
        o += fill[4:]
        for n in range(4):
            for k in range(2):
                o.append(f"ds_read_b32 {v(B5[n]+2+k)}, {v(qa+k)} offset:{L_QT + n*128}")
        return o

    zacc = [f"v_mov_b64 {v(acc+2*n,2)}, 0" for n in range(4)]
    haup = [f"v_lshlrev_b32 {v(ha+k)}, 1, {v(qa+k)}" for k in range(2)]

    def hread():
        o = []
        for n in range(2):
            for m in range(8):
                o.append(f"ds_read_b64_tr_b16 {v(D[n]+2*m,2)}, {v(TA[n][m>>2])} offset:{(m&3)*PCS}")
        return o

    def mf(n):
        return f"v_mfma_f32_32x32x16_bf16 {v(D[n%2],16)}, {v(A5,4)}, {v(B5[n],4)}, {v(D[n%2],16)}"

    if "ef" in OPT:
        A(lists()[::-1])
        A(f"ds_read_b32 {v(tab)}, {v(tab)}\ns_waitcnt lgkmcnt(2)")
        A(eload())
        A("s_waitcnt lgkmcnt(1)")
        A(idx())
        A(dma(0))
    else:
        A(lists())
        A(f"ds_read_b32 {v(tab)}, {v(tab)}\ns_waitcnt lgkmcnt(2)")
        A(idx())
        A(dma(0))
        A("s_waitcnt lgkmcnt(1)")
        A(eload())
    A(f"""
    s_and_b32 {s(s_u)}, {s(s_wave)}, 3
    s_lshl_b32 {s(s_u)}, {s(s_u)}, 5
    v_lshrrev_b32 {v(t1)}, 4, {v(lane)}
    v_lshl_add_u32 {v(rem+1)}, {v(t1)}, 3, {s(s_u)}
    s_xor_b32 {s(s_t)}, {s(s_wave)}, 15
    s_or_b32 {s(s_t)}, s2, {s(s_t)}
    s_cbranch_scc1 K_EPD
    v_mov_b32 {v(t0)}, {WS_EPOCH}
    v_mov_b32 {v(t2)}, {s(s_tag)}
    global_store_dword {v(t0)}, {v(t2)}, s[24:25]
K_EPD:
    s_waitcnt lgkmcnt(0)
""")
    A(f"""
    ; ---- epilogue addresses (registers that the loop leaves alone)
    s_mov_b32 {s(s_epx)}, 0
    s_mov_b32 {s(SO)}, s20
    s_and_b32 {s(SO+1)}, s21, 0xffff
    s_mov_b32 {s(SO+2)}, {N * 128}
    s_mov_b32 {s(SO+3)}, 0x20000
    ; W2 fragment address: PB+16 + G*PBW + r*128 + ob*32 + c*8 ; imm = ks*4*PBW + s*512
    v_mul_u32_u24 {v(EB)}, {PBW}, {v(t1)}
    v_bfe_u32 {v(t0)}, {v(lane)}, 2, 2
    v_lshl_add_u32 {v(EB)}, {v(t0)}, 7, {v(EB)}
    v_and_b32 {v(t0)}, 3, {v(lane)}
    v_lshl_add_u32 {v(EB)}, {v(t0)}, 3, {v(EB)}
    s_add_u32 {s(s_u)}, {s(s_u)}, {L_PB + 16}
    v_add_u32 {v(EB)}, {s(s_u)}, {v(EB)}
    v_and_b32 {v(t0)}, 15, {v(lane)}
    s_and_b32 {s(s_t)}, {s(s_wave)}, 12
    s_lshl_b32 {s(s_t)}, {s(s_t)}, 2
    v_add_u32 {v(t0)}, {s(s_t)}, {v(t0)}
    v_mul_u32_u24 {v(rem)}, {HB_STRIDE}, {v(t0)}
    v_lshl_add_u32 {v(rem)}, {v(t1)}, 4, {v(rem)}
    v_add_u32 {v(rem)}, {L_HBHI}, {v(rem)}
    v_lshlrev_b32 {v(rem+2)}, 2, {v(t0)}
    ds_bpermute_b32 {v(rem+2)}, {v(rem+2)}, {v(deg)}
    v_lshl_add_u32 {v(rem+1)}, {v(t0)}, 15, {v(rem+1)}
    v_lshlrev_b32 {v(t2)}, 4, v0
    s_mul_i32 {s(sA)}, {s(s_wave)}, {HB_STRIDE}
    s_add_u32 {s(sA)}, {s(sA)}, {L_HBHI}
    v_lshl_add_u32 {v(t3)}, {v(lane)}, 2, {s(sA)}
    s_cmp_eq_u32 {s(s_rem)}, 0
    s_cbranch_scc1 K_DONE
""")
    A(ohcmp())
    A(f"""
    v_and_b32 {v(tab)}, 63, {v(tab)}
    v_lshlrev_b32 {v(tab)}, 9, {v(tab)}
""")
    A(ohsel())
    A(f"v_mov_b32 {v(t0)}, {v(tab)}")
    A(laup())
    A(f"v_mov_b32_dpp {v(t0)}, {v(tab)} row_shr:1 row_mask:0xf bank_mask:0xf")
    A(qaddr(zacc))
    A(haup)
    A(f"""
    v_cmp_ne_u32 vcc, {v(t0)}, {v(tab)}
    s_or_b32 {s(s_chg)}, vcc_lo, vcc_hi
    s_lshr_b32 {s(s_t)}, {s(s_chg)}, 16
    s_or_b32 {s(s_chg)}, {s(s_chg)}, {s(s_t)}
    s_setprio 3
    {"s_waitcnt vmcnt(0)" if "pw" in OPT or "ef" in OPT else ""}
""")
    stamp(4)
    A(f"""
    s_cmp_eq_u32 {s(s_safe)}, 0
    s_cbranch_scc0 K_LOOP_S
""")

    def compute(u, safe, mid, tail):
        o = []
        for bb in range(2):
            b = 2 * u + bb
            cur = D[bb]
            if not safe and bb:
                o += [f"v_rcp_f32 {v(rr)}, {v(dd)}", f"v_rcp_f32 {v(rr+1)}, {v(dd+1)}"]
            ex = [f"v_exp_f32 {v(EX+i)}, {v(cur+i)}" for i in range(16)]
            if bb == 0 and u == 0 and "ms" in OPT:
                ex = ex[:2] + [mf(1)] + ex[2:]
            o += ex
            if bb == 0:
                o += mid
            if not safe:
                if bb:
                    o.append(f"v_max3_f32 {v(guard)}, {v(guard)}, {v(dd)}, {v(dd+1)}")
                    o.append(f"v_pk_fma_f32 {v(acc+2*(b-1),2)}, {v(nn,2)}, {v(rr,2)}, {v(acc+2*(b-1),2)}")
                o.append(f"v_pk_add_f32 {v(dd,2)}, {v(EX,2)}, 1.0 op_sel_hi:[1,0]")
                n_ = v(cur, 2)
                for k in range(1, 8):
                    e_, z_ = v(EX + 2 * k, 2), v(cur + 2 * k, 2)
                    o.append(f"v_pk_fma_f32 {v(tt,2)}, {n_}, {e_}, {n_}")
                    o.append(f"v_pk_fma_f32 {v(nn,2)}, {z_}, {v(dd,2)}, {v(tt,2)}")
                    o.append(f"v_pk_fma_f32 {v(dd,2)}, {v(dd,2)}, {e_}, {v(dd,2)}")
                    n_ = v(nn, 2)
            else:
                for k in range(8):
                    o.append(f"v_pk_add_f32 {v(EX+2*k,2)}, {v(EX+2*k,2)}, 1.0 op_sel_hi:[1,0]")
                for i in range(16):
                    o.append(f"v_rcp_f32 {v(EX+i)}, {v(EX+i)}")
                for k in range(8):
                    o.append(f"v_pk_fma_f32 {v(acc+2*b,2)}, {v(cur+2*k,2)}, {v(EX+2*k,2)}, {v(acc+2*b,2)}")
        if not safe:
            o += [f"v_rcp_f32 {v(rr)}, {v(dd)}", f"v_rcp_f32 {v(rr+1)}, {v(dd+1)}",
                  f"v_max3_f32 {v(guard)}, {v(guard)}, {v(dd)}, {v(dd+1)}",
                  f"v_pk_fma_f32 {v(acc+4*u+2,2)}, {v(nn,2)}, {v(rr,2)}, {v(acc+4*u+2,2)}"]
        if "tl" in OPT:
            o += [TM + " s[98:99]", "s_waitcnt lgkmcnt(0)", "s_mov_b32 m0, s95", f"v_writelane_b32 {v(tl)}, s98, m0",
                  f"s_mov_b32 m0, {s(s_m0)}", "s_add_u32 s95, s95, 1"]
        return o + tail

    PL = int(os.environ.get("PL", "3"))

    def loop(safe):
        sf = "S" if safe else "F"
        rot = f"v_mov_b32_dpp {v(tab)}, {v(tab)} row_shl:1 row_mask:0xf bank_mask:0xf bound_ctrl:0"
        st = ["s_waitcnt vmcnt(1)"] + hread()
        st += [f"s_cmp_gt_u32 {s(s_rem)}, {PL}", f"s_cbranch_scc0 K_PRIO_{sf}", f"K_PB_{sf}:"]
        st += ["s_waitcnt vmcnt(0) lgkmcnt(8)", mf(0), "s_waitcnt lgkmcnt(0)", (mf(1) if "ms" not in OPT else "s_nop 0")] + dma(1) + lists()
        st += [f"s_lshr_b32 {s(s_chg)}, {s(s_chg)}, 1", f"s_sub_u32 {s(s_rem)}, {s(s_rem)}, 1", "s_nop 1"]
        st += compute(0, safe, [rot], ["s_waitcnt lgkmcnt(0)"] + idx() + [ohcmp()])
        st += ["s_waitcnt vmcnt(0)"] + hread()
        if "tail" in OPT:
            st += [f"s_cmp_eq_u32 {s(s_rem)}, 0", "s_waitcnt lgkmcnt(8)", mf(2), "s_waitcnt lgkmcnt(0)", mf(3), f"s_cbranch_scc1 K_TL_{sf}"]
            st += dma(0) + [eload()] + ohsel() + laup() + [f"K_TB_{sf}:"]
        else:
            st += ["s_waitcnt lgkmcnt(8)", mf(2), "s_waitcnt lgkmcnt(0)", mf(3)] + dma(0) + [eload()]
            st += ohsel() + laup() + ["s_nop 0"]
        st += compute(1, safe, [], [])
        if "E" in ABL: st = [x for x in st if not x.startswith("buffer_load_dwordx2")]
        if "X" in ABL: st = [x if not x.endswith(" lds") else "s_nop 0" for x in st]
        if "A" in ABL: st = [x for x in st if not x.startswith("ds_read_b64_tr")]
        A(f".p2align 6\nK_LOOP_{sf}:")
        A(st)
        c, a = flush()
        A(f"""
        s_cmp_eq_u32 {s(s_rem)}, 0
        s_cbranch_scc1 K_LAST_{sf}
        s_bitcmp1_b32 {s(s_chg)}, 0
        {"s_cbranch_scc0" if "C" not in ABL else "s_branch"} K_LOOP_{sf}
""")
        A(qaddr(c) + a + zacc + haup)
        A(f"s_branch K_LOOP_{sf}")
        A(f"""
K_PRIO_{sf}:
""")
        if "tail" in OPT:
            A(f"""
        s_setprio 2
        s_cmp_gt_u32 {s(s_rem)}, 1
        s_cbranch_scc1 K_PB_{sf}
        s_setprio 1
        s_branch K_PB_{sf}
K_TL_{sf}:
        s_setprio 0
        global_load_lds_dwordx4 {v(t2)}, s[16:17]
        s_mov_b32 {s(s_epx)}, 1
        s_nop 5
        s_branch K_TB_{sf}
""")
        else:
            A(f"""
        s_setprio 2
        s_cmp_eq_u32 {s(s_rem)}, 3
        s_cbranch_scc1 K_PB_{sf}
        s_setprio 1
        s_cmp_eq_u32 {s(s_rem)}, 2
        s_cbranch_scc1 K_PB_{sf}
        s_setprio 0
        s_branch K_PB_{sf}
""")
        A(f"""
K_LAST_{sf}:
""")
        A(c + a)
        if safe:
            A("s_branch K_DONE")
    loop(False)

    W2 = B5[0]
    A(f"""
K_DONE:
    s_setprio 0
    s_cmp_eq_u32 {s(s_slow)}, 0
    s_cbranch_scc0 K_NEXTCHUNK
K_FIN:
""")
    if "tl" in OPT:
        A(f"""
        s_lshl_b32 {s(s_t)}, s2, 12
        s_add_u32 {s(s_t)}, {s(s_t)}, {WS_STAMP + (1 << 20)}
        v_lshl_add_u32 {v(t0)}, v0, 2, {s(s_t)}
        global_store_dword {v(t0)}, {v(tl)}, s[24:25]
""")
    stamp(5)
    A(f"""
    s_cmp_lg_u32 {s(s_epx)}, 0
    s_cbranch_scc1 K_W2D
    global_load_lds_dwordx4 {v(t2)}, s[16:17]
K_W2D:
    s_waitcnt lgkmcnt(0)
    s_barrier
""")
    stamp(6)
    H = D[0]
    for k in range(3):
        A(f"ds_read_b128 {v(H+4*k,4)}, {v(t2)} offset:{k*16384}")
    A(f"s_cmp_ge_u32 {s(s_wave)}, 8")
    A(f"v_add_u32 {v(ha)}, {16*HB_STRIDE}, {v(t3)}\nv_add_u32 {v(ha+1)}, {32*HB_STRIDE}, {v(t3)}")

    def s1(ks):
        for k in ks:
            A(f"s_waitcnt lgkmcnt({2 - k if k < 2 else 2})")
            A(f"v_cvt_f32_f64 {v(EX+2*k)}, {v(H+4*k,2)}")
            A(f"v_cvt_f32_f64 {v(EX+2*k+1)}, {v(H+4*k+2,2)}")
        for k in ks:
            A(f"v_and_b32 {v(EX+8+2*k)}, 0xffff0000, {v(EX+2*k)}")
            A(f"v_and_b32 {v(EX+9+2*k)}, 0xffff0000, {v(EX+2*k+1)}")
        for k in ks:
            A(f"v_pk_add_f32 {v(EX+2*k,2)}, {v(EX+2*k,2)}, {v(EX+8+2*k,2)} neg_lo:[0,1] neg_hi:[0,1]")
        for k in ks:
            A(f"v_cvt_pk_bf16_f32 {v(H+4*k)}, {v(EX+8+2*k)}, {v(EX+9+2*k)}")
            A(f"v_cvt_pk_bf16_f32 {v(H+4*k+1)}, {v(EX+2*k)}, {v(EX+2*k+1)}")
        for k in ks:
            A(f"ds_write2st64_b32 {v([t3, ha, ha+1][k])}, {v(H+4*k)}, {v(H+4*k+1)} offset0:0 offset1:{HB_LO//256}")
    s1([0, 1])
    A(f"v_add_f32 {v(EX)}, {v(EX)}, {v(EX+1)}\nv_add_f32 {v(EX+2)}, {v(EX+2)}, {v(EX+3)}")
    A(f"v_cmp_u_f32 {s(sA,2)}, {v(EX)}, {v(EX+2)}")
    A("s_cbranch_scc1 K_S1D")
    s1([2])
    A(f"v_cmp_u_f32 vcc, {v(EX+4)}, {v(EX+5)}\ns_or_b64 {s(sA,2)}, {s(sA,2)}, vcc")
    A(f"""
K_S1D:
    v_cmp_lt_f32 vcc, {f32(2.0**100)}, {v(guard)}
    s_or_b64 vcc, vcc, {s(sA,2)}
    v_mov_b32 {v(t2)}, {L_FLAG + 4}
    s_cbranch_vccz K_NOFL
    ds_write_b32 {v(t2)}, {v(t2)}
K_NOFL:
    s_waitcnt vmcnt(0) lgkmcnt(0)
    s_barrier
    ds_read_b32 {v(t2)}, {v(t2)}
    s_cmp_ge_u32 {s(s_wave)}, 12
    s_cbranch_scc1 K_IDLE
""")
    for ks in range(4):
        for h2 in range(2):
            A(f"ds_read_b64_tr_b16 {v(D[1]+4*ks+2*h2,2)}, {v(EB)} offset:{ks*4*PBW + h2*512}")
    HF = [D[0], EX]
    for ks in range(4):
        A(f"ds_read_b128 {v(HF[0]+4*ks,4)}, {v(rem)} offset:{ks*64}")
        A(f"ds_read_b128 {v(HF[1]+4*ks,4)}, {v(rem)} offset:{ks*64 + HB_LO}")
    A(f"""
    v_cvt_f32_u32 {v(le)}, {v(rem+2)}
    v_mul_f32 {v(le)}, {f32(0.25)}, {v(le)}
    s_lshl_b32 {s(s_t)}, {s(s_b)}, 7
    s_mov_b32 {s(s_u)}, {f32(-LN2)}
    s_waitcnt lgkmcnt(8)
    v_readfirstlane_b32 {s(sA)}, {v(t2)}
    v_lshlrev_b32 {v(acc)}, 16, {v(b2r)}
    v_and_b32 {v(acc+1)}, 0xffff0000, {v(b2r)}
    v_lshlrev_b32 {v(acc+2)}, 16, {v(b2r+1)}
    v_and_b32 {v(acc+3)}, 0xffff0000, {v(b2r+1)}
    s_cmp_lg_u32 {s(s_safe)}, 0
    s_cbranch_scc1 K_GEMM
    s_cmp_eq_u32 {s(sA)}, 0
    {"s_cbranch_scc0 K_RESTART" if ABL == [""] else ""}
K_GEMM:
""")
    O = [nn, tt]
    for ks in range(4):
        for hl in range(2):
            A(f"s_waitcnt lgkmcnt({7 - 2*ks - hl})")
            c = "0" if ks == 0 else v(O[hl], 4)
            A(f"v_mfma_f32_16x16x32_bf16 {v(O[hl],4)}, {v(D[1]+4*ks,4)}, {v(HF[hl]+4*ks,4)}, {c}")
    for i in range(4):
        A(f"v_mul_f32 {v(acc+i)}, {v(le)}, {v(acc+i)}")
    A("s_nop 3")
    for i in range(4):
        A(f"v_add_f32 {v(nn+i)}, {v(nn+i)}, {v(tt+i)}")
    for i in range(4):
        A(f"v_fma_f32 {v(nn+i)}, {v(nn+i)}, {s(s_u)}, {v(acc+i)}")
    A(f"""
    v_cvt_pk_bf16_f32 {v(acc)}, {v(nn)}, {v(nn+1)}
    v_cvt_pk_bf16_f32 {v(acc+1)}, {v(nn+2)}, {v(nn+3)}
    buffer_store_dwordx2 {v(acc,2)}, {v(rem+1)}, {s(SO,4)}, {s(s_t)} offen {os.environ.get('ST3', '')}
""")
    if STAMP:
        A("s_waitcnt vmcnt(0)\n" + TM + " s[20:21]\ns_waitcnt lgkmcnt(0)")
        A(f"""
    v_cmp_eq_u32 vcc, 0, {v(lane)}
    s_and_saveexec_b64 {s(sA,2)}, vcc
    s_lshl_b32 {s(s_t)}, s2, 4
    s_add_u32 {s(s_t)}, {s(s_t)}, {s(s_wave)}
    s_lshl_b32 {s(s_t)}, {s(s_t)}, 6
    s_add_u32 {s(s_t)}, {s(s_t)}, {WS_STAMP}
    v_mov_b32 {v(t0)}, {s(s_t)}
""")
        for n_, i in enumerate([0, 10, 7, 8, 9, 1, 2, 3, 4, 5, 6]):
            A(f"v_mov_b32 {v(D[0]+n_)}, {s(STR[i]) if i else s(s_x)}")
        A(f"v_mov_b32 {v(D[0]+11)}, s20")
        for i in range(3):
            A(f"global_store_dwordx4 {v(t0)}, {v(D[0]+4*i,4)}, s[24:25] offset:{16*i}")
    A(f"""
K_END:
    s_endpgm
K_IDLE:
    s_waitcnt lgkmcnt(0)
    v_readfirstlane_b32 {s(sA)}, {v(t2)}
    s_cmp_lg_u32 {s(s_safe)}, 0
    s_cbranch_scc1 K_END
    s_cmp_eq_u32 {s(sA)}, 0
    {"s_cbranch_scc0 K_RESTART" if ABL == [""] else ""}
    s_endpgm
""")

    A(f"""
K_HI1:
    v_subrev_u32 {v(t0)}, 64, {v(rem)}
""")
    for i in range(4):
        A(f"v_cmp_lt_i32 {s(MK+8+2*i,2)}, {4*i}, {v(t0)}")
    A(f"""
    v_cmp_lt_i32 vcc, 64, {v(t0)}
    s_cbranch_vccz K_HI1N
    v_mov_b32 {v(t0)}, {L_FLAG}
    ds_write_b32 {v(t0)}, {v(t3)}
K_HI1N:
""")
    p1words(HI)
    for x in HI:
        A(f"v_lshrrev_b32 {v(EI+x)}, 20, {v(CW+x)}")
        A(f"v_add_u32 {v(EI+x)}, {v(EI+x)}, {v(EB)}")
    A("s_branch K_HB1\nK_HI2:")
    for x in HI:
        A(f"v_add_u32 {v(CA+x)}, {v(CA+x)}, {v(RK+x)}")
    for x in HI:
        A(f"s_mov_b64 exec, {s(MK+2*x,2)}")
        A(f"ds_write2st64_b32 {v(CA+x)}, {v(CW+x)}, {v(EI+x)} offset0:0 offset1:{NE*4//256}")
    A("s_mov_b64 exec, -1\ns_branch K_HB2")
    verify_rare("A")
    A(f"""
K_PFR:
    s_sub_u32 {s(s_to)}, {s(s_to)}, 1
    s_cbranch_scc1 K_END
    buffer_load_dword {v(epv)}, {v(tba)}, {s(SW,4)}, 0 offen {SC}
    s_waitcnt vmcnt(0)
    s_branch K_PFC
K_HOT_END:
""")
    A(f"""
K_RESTART:
    s_mov_b32 {s(s_safe)}, 1
    s_mov_b32 {s(s_slow)}, 0
    s_waitcnt lgkmcnt(0)
    s_barrier
""")
    zero_hsum()
    A(tab_pre())
    poll("B")
    rec_loads("B")
    A(f"""
    v_and_b32 {v(tba)}, {"0xff" if "pf4" in OPT else "0x3fc"}, v0
    v_lshlrev_b32 {v(tba)}, {6 if "pf4" in OPT else 4}, {v(tba)}
    v_add_u32 {v(tba)}, {WS_PF}, {v(tba)}
""")
    A("K_ROUND:")
    prefill()
    A(f"""
    s_waitcnt vmcnt(0) lgkmcnt(0)
    s_barrier
    s_branch K_PASS1
K_GOSLOW:
    s_mov_b32 {s(SS)}, s8
    s_and_b32 {s(SS+1)}, s9, 0xffff
    s_mov_b32 {s(SS+2)}, {E * 4}
    s_mov_b32 {s(SS+3)}, 0x20000
    s_mov_b32 {s(SD_)}, s10
    s_and_b32 {s(SD_+1)}, s11, 0xffff
    s_mov_b32 {s(SD_+2)}, {E * 4}
    s_mov_b32 {s(SD_+3)}, 0x20000
    s_mov_b32 {s(s_slow)}, 1
    s_mov_b32 {s(s_chunk)}, -1
K_NEXTCHUNK:
    s_add_u32 {s(s_chunk)}, {s(s_chunk)}, 1
    s_cmp_lt_u32 {s(s_chunk)}, {NB}
    s_cbranch_scc0 K_FIN
    s_waitcnt vmcnt(0) lgkmcnt(0)
    s_barrier
    s_mul_i32 {s(s_t)}, {s(s_chunk)}, {CH * 4}
    v_lshlrev_b32 {v(t0)}, 2, v0
""")
    for k in range(3):
        A(f"buffer_load_dword {v(RK+k)}, {v(t0)}, {s(SD_,4)}, {s(s_t)} offen")
        A(f"buffer_load_dword {v(RK+4+k)}, {v(t0)}, {s(SS,4)}, {s(s_t)} offen")
        A(f"s_add_u32 {s(s_t)}, {s(s_t)}, 4096")
    A(f"""
    s_mul_i32 {s(s_t)}, {s(s_chunk)}, {CH}
    s_movk_i32 {s(s_u)}, {CH}
    v_mov_b32 {v(EB)}, {s(s_t)}
    v_mov_b32 {v(CW+3)}, 0
    s_mov_b64 {s(MK+6,2)}, 0
    s_mov_b32 {s(s_hi)}, 0
    s_waitcnt vmcnt(0)
""")
    for k in range(3):
        A(f"""
        v_add_u32 {v(t1)}, {1024*k}, v0
        v_lshrrev_b32 {v(t2)}, 8, {v(RK+k)}
        v_lshl_or_b32 {v(t2)}, {v(RK+4+k)}, 6, {v(t2)}
        v_lshl_or_b32 {v(CW+k)}, {v(t1)}, 20, {v(t2)}
        v_and_b32 {v(RK+k)}, 255, {v(RK+k)}
        v_cmp_eq_u32 vcc, {s(s_b)}, {v(RK+k)}
        v_cmp_gt_u32 {s(sA,2)}, {s(s_u)}, {v(t1)}
        s_and_b64 {s(MK+2*k,2)}, vcc, {s(sA,2)}
""")
    A("s_branch K_ROUND")
    loop(True)
    A(".p2align 4\n.type K_TABLE,@object\nK_TABLE:")
    T = lane_table()
    for piece in range(4):
        for l in range(64):
            A(".long " + ", ".join(str(x & 0xffffffff) for x in T[l][4*piece:4*piece+4]))
    A(".size K_TABLE, 4096")
    return nvgpr, (102 if STAMP or DL[0] >= 0 else 96)


def kd(name, vg, sg):
    acc = (vg + 3) // 4 * 4
    return f""".p2align 6
.amdhsa_kernel {name}
  .amdhsa_next_free_vgpr {vg}
  .amdhsa_next_free_sgpr {sg}
  .amdhsa_accum_offset {acc}
  .amdhsa_group_segment_fixed_size 0
  .amdhsa_kernarg_size 88
  .amdhsa_user_sgpr_count 2
  .amdhsa_user_sgpr_kernarg_segment_ptr 1
  .amdhsa_system_sgpr_workgroup_id_x 1
  .amdhsa_float_denorm_mode_32 3
.end_amdhsa_kernel
"""


def main():
    ref = open(f"cdna_kernels/{NAME}.s.ref").read().split("\n")
    head = [l for l in ref if l.startswith(";") and "@launch" not in l and "Override" not in l and "grid=ceil" not in l]
    A = Asm()
    v2, s2 = gen_k2(A)
    out = "\n".join(head) + "\n"
    out += f"; @launch grid=({NB},1,1) block=(1024,1,1) lds={L_END}\n"
    out += '.amdgcn_target "amdgcn-amd-amdhsa--gfx950"\n.text\n'
    out += A.text()
    out += '.section .rodata,"a"\n' + kd(KERN, v2, s2)
    path = sys.argv[1] if len(sys.argv) > 1 else f"cdna_kernels/{NAME}.s"
    open(path, "w").write(out)
    print("vgprs", v2, "lds", L_END, "->", path)


if __name__ == "__main__":
    main()
```

```python
import sys, struct, os

NAME = "gather_scatter__edge_featured_mpnn_mpnn__graph"
N, E = 10000, 640000
NB, CH = 256, 2500
LOG2E = 1.4426950408889634
LN2 = 0.6931471805599453
STAMP = int(os.environ.get("STAMP", "0"))
TM = "s_memtime" if STAMP == 2 else "s_memrealtime"
DL = [int(x) for x in os.environ.get("DL", "-1:0").split(":")]
ABL = os.environ.get("ABL", "").split(",")
OPT = os.environ.get("OPT", "").split(",")
WS_STAMP = 24 << 20


def f32(x):
    return struct.unpack("<I", struct.pack("<f", x))[0]


KERN = NAME + "_kernel"
RECB = 10240
WS_PF = NB * RECB + 4096
WS_TAB = WS_PF + NB * 64
WS_P = WS_TAB + NB * 4096
WS_END = WS_P + N * 256
WS_EPOCH = NB * RECB + 2048

NWV = 16
L_QT = 40 * 1024
L_CNT = L_QT + 40 * 512
L_FLAG = L_CNT + 256
L_LA = L_CNT + 512
NE = 4096
L_LB = L_LA + NE * 4
L_PB = L_LB + NE * 4
PCS = 1040
PBW = 4 * PCS
L_END = L_PB + NWV * PBW + 16
CAPB = (NE - 128) * 4
PADW = (16383 << 6)
PADE = 0x7FFFFFF
HB_STRIDE = 272
L_HBHI = L_LA
HB_LO = 16384
L_SA = L_PB + 16 + 9 * PCS
L_STG = L_SA
L_C1 = L_STG + 10240
L_S1 = L_C1 + 1024
L_K1 = L_S1 + 1024
L_WA = L_K1 + 1024
L_WB = L_WA + 16384
L_WC = L_WB + 16384
L_PO = L_QT
assert L_WC + 12 * 320 <= L_END and L_SA % 16 == 0
SC = "sc1"


class Asm:
    def __init__(self):
        self.lines = []

    def __call__(self, s):
        if isinstance(s, list):
            s = "\n".join(s)
        for ln in s.split("\n"):
            ln = ln.strip()
            if ln:
                self.lines.append(("" if ln.endswith(":") or ln.startswith(".") else "    ") + ln)

    def text(self):
        return "\n".join(self.lines) + "\n"


class Regs:
    def __init__(self, first):
        self.n = first

    def a(self, cnt=1, align=1):
        self.n = (self.n + align - 1) // align * align
        r = self.n
        self.n += cnt
        return r


def v(r, n=1):
    return f"v{r}" if n == 1 else f"v[{r}:{r + n - 1}]"


def s(r, n=1):
    return f"s{r}" if n == 1 else f"s[{r}:{r + n - 1}]"


DPP_SCAN = ["row_shr:1 row_mask:0xf bank_mask:0xf bound_ctrl:0", "row_shr:2 row_mask:0xf bank_mask:0xf bound_ctrl:0",
            "row_shr:4 row_mask:0xf bank_mask:0xf bound_ctrl:0", "row_shr:8 row_mask:0xf bank_mask:0xf bound_ctrl:0",
            "row_bcast:15 row_mask:0xa bank_mask:0xf", "row_bcast:31 row_mask:0xc bank_mask:0xf"]
K1_CNT = 10240
K1_ST = K1_CNT + 2560
K1_LDS = 24576 + 64 * 272
ST1 = os.environ.get('ST1', '')
ST2 = os.environ.get('ST2', '')
NPW = 250


def lane_table():
    T = []
    for l in range(64):
        i, h = l & 31, l >> 5
        idx = 2 * (i >> 3) + ((i >> 1) & 1)
        grp = 2 * ((i >> 2) & 1) + (i & 1)
        par = (l >> 3) & 1
        ta = h * 512 + par * 320 + ((l >> 4) & 1) * 32 + (l & 3) * 8
        real = (l >> 2) & 1
        xa = L_PB + 16 + ((l >> 3) & 1) * PCS + (l & 7) * 128
        f = ((l >> 1) & 7) ^ (l >> 4)
        T.append([xa + f * 16, xa + (f ^ 4) * 16, L_WB + (8 * (l >> 4) + ((l >> 2) & 3)) * 256 + (l & 3) * 8, L_QT + (l >> 4) * 2048 + (l & 15) * 4,
                  4 * i, L_LB + 4 * idx, grp, L_LA + (l & 8) * 2,
                  0x3f803f80 if grp == 2 * h else 0, 0x3f803f80 if grp == 2 * h + 1 else 0,
                  ((l & 7) ^ (4 * ((l >> 4) & 1))) * 8, (l & 15) * 32 + L_LA,
                  ta if real else -16, ta + 128 if real else 1024, ta ^ 64 if real else -16, (ta ^ 64) + 128 if real else 1024])
    return T


def gen_k2(A):
    R = Regs(1)
    lane = R.a()
    t0, t1, t2, t3 = R.a(), R.a(), R.a(), R.a()
    guard, deg, l16, EB = R.a(), R.a(), R.a(), R.a()
    rem = R.a(3, 2)
    LC = R.a(16, 2)
    la_w, la_e, le, tab = LC, LC + 1, LC + 2, LC + 3
    j4, ce0, grp, cw0 = LC + 4, LC + 5, LC + 6, LC + 7
    OH, dq, tb0 = LC + 8, LC + 10, LC + 11
    TA = [[LC + 12, LC + 13], [LC + 14, LC + 15]]
    lw = R.a(4, 2)
    qa, ha = R.a(2, 2), R.a(2, 2)
    b2r = R.a(2, 2)
    nn, dd, tt, rr = [R.a(2, 2) for _ in range(4)]
    acc = R.a(8, 2)
    A5 = R.a(4, 2)
    B5 = [R.a(4, 2) for _ in range(4)]
    D = [R.a(16, 2) for _ in range(2)]
    EX = R.a(16, 2)
    d2 = R.a(2, 2)
    tl = d2
    tba, epv = R.a(), R.a()
    jnk = rem + 3
    nvgpr = R.n
    assert nvgpr <= 128, nvgpr
    assert t0 % 2 == 0 and LC == rem + 4
    CW, RK, CA, EI = D[0], D[0] + 8, D[1], D[1] + 8
    C64 = EX
    QB, QA, QA2, QD = EX, EX + 8, acc, nn
    assert rr == nn + 6

    rb, lam = A5, A5 + 1
    SP0, SP1, SE, SW, SO, SS, SD_, SXR = 28, 32, 36, 40, 44, 48, 52, 72
    MK = 56
    s_b = 76
    s_wave, s_o3, s_o2, s_o1, s_msk, s_x, s_rem, s_epx, s_slow, s_safe, s_chunk = range(78, 89)
    s_t, s_u = 89, 90
    sA, sB = 26, 27
    s_m0, s_chg, s_hi, s_tag, s_to, s_ep = 0, 3, 77, 91, 1, 85
    s_oh = MK
    s_ne = SE + 2
    STR = [92, 4, 6, 96, 98, 12, 14, 100, 72, 74, 94]

    def pstamp(i):
        return f"s_waitcnt lgkmcnt(0)\n{TM} {s(STR[i],2)}\ns_waitcnt lgkmcnt(0)" if "pa" in OPT else ""

    def zstamp(i):
        return f"s_waitcnt lgkmcnt(0)\n{TM} {s(STR[i],2)}\ns_waitcnt lgkmcnt(0)" if "pz" in OPT else ""

    def ystamp(i):
        return f"s_waitcnt lgkmcnt(0)\n{TM} {s(STR[i],2)}\ns_waitcnt lgkmcnt(0)" if "py" in OPT else ""

    def stamp(i):
        if "pa" in OPT and i in (3, 4, 7):
            return
        if "pz" in OPT and i in (10, 7, 8, 9, 1):
            return
        if "py" in OPT and i in (8, 9, 3, 4, 1, 2):
            return
        if DL[0] == i:
            A(f"""
K_DL:
            s_waitcnt lgkmcnt(0)
            s_memrealtime {s(STR[i],2)}
            s_waitcnt lgkmcnt(0)
            s_sub_u32 {s(STR[i])}, {s(STR[i])}, {s(s_x)}
            s_cmp_lt_u32 {s(STR[i])}, {DL[1]*100}
            s_cbranch_scc1 K_DL
""")
        if STAMP:
            A(f"s_waitcnt lgkmcnt(0)\n{TM} {s(STR[i],2)}\ns_waitcnt lgkmcnt(0)")

    def tab_pre():
        return [f"v_lshrrev_b32 {v(EB)}, 2, v0", f"s_lshl_b32 {s(s_u)}, {s(s_b)}, 4", f"s_add_u32 {s(s_u)}, {s(s_u)}, {WS_TAB}",
                f"v_lshl_add_u32 {v(tba)}, {v(EB)}, 12, {s(s_u)}",
                f"v_and_b32 {v(lam)}, 48, {v(l16)}", f"v_mul_u32_u24 {v(rb)}, {RECB}, {v(EB)}",
                f"v_add_u32 {v(rb)}, {v(rb)}, {v(lam)}", f"v_mul_u32_u24 {v(EB)}, {CH}, {v(EB)}"]

    def poll(tag, issued=False):
        SL = int(os.environ.get("SLEEP", "0"))
        A(f"""
        {'' if issued is None else 's_branch K_POLL1' + tag}
K_POLL{tag}:
        {"s_mov_b64 exec, vcc" if "pm" in OPT else ""}
        {f"s_sleep {SL}" if SL else ""}
K_POLL1{tag}:
        buffer_load_dwordx3 {v(rem,3)}, {v(tba)}, {s(SW,4)}, 0 offen {SC}
        s_sub_u32 {s(s_to)}, {s(s_to)}, 1
        s_cbranch_scc1 K_END
K_POLL2{tag}:
        s_waitcnt vmcnt(0)
K_POLL3{tag}:
        v_cmp_ne_u32 vcc, {s(s_tag)}, {v(rem+1)}
        s_cbranch_vccnz K_POLL{tag}
        {"s_mov_b64 exec, -1" if "pm" in OPT else ""}
""")

    def rec_loads(tag):
        A(f"""
        v_add_u32_sdwa {v(rb)}, {v(rb)}, {v(rem)} dst_sel:DWORD dst_unused:UNUSED_PAD src0_sel:DWORD src1_sel:WORD_0
        v_lshrrev_b32 {v(rem)}, 16, {v(rem)}
        {"v_lshrrev_b32 " + v(EB) + ", 2, " + v(t0) if "e2" in OPT else ""}
        {"v_min_u32 " + v(EB) + ", 639000, " + v(EB) if "e2" in OPT else ""}
        buffer_load_dwordx4 {v(CW,4)}, {v(rb)}, {s(SW,4)}, 0 offen {SC}
        v_cmp_lt_u32 vcc, 64, {v(rem)}
        v_sub_u32 {v(rem)}, {v(rem)}, {v(lam)}
        s_cmp_lg_u64 vcc, 0
        s_cselect_b32 {s(s_hi)}, 1, 0
        s_cbranch_scc0 K_NOHI{tag}
        s_mov_b64 exec, vcc
        buffer_load_dwordx4 {v(CW+4,4)}, {v(rb)}, {s(SW,4)}, 0 offen offset:64 {SC}
        s_mov_b64 exec, -1
K_NOHI{tag}:
""")
        for i in range(4):
            A(f"v_cmp_lt_i32 {s(MK+2*i,2)}, {4*i}, {v(rem)}")

    def verify(tag):
        A(f"""
K_VER{tag}:
        s_waitcnt vmcnt(0)
K_VER1{tag}:
""")
        for i in range(4):
            A(f"v_cndmask_b32 {v(CA+i)}, 0, {v(CW+i)}, {s(MK+2*i,2)}")
        A(f"""
        v_add3_u32 {v(t2)}, {v(CA)}, {v(CA+1)}, {v(CA+2)}
        s_cmp_lg_u32 {s(s_hi)}, 0
        v_add_u32 {v(t2)}, {v(t2)}, {v(CA+3)}
        s_cbranch_scc1 K_VHI{tag}
K_VHB{tag}:
        s_nop 1
        v_add_u32_dpp {v(t2)}, {v(t2)}, {v(t2)} quad_perm:[1,0,3,2] row_mask:0xf bank_mask:0xf
        s_nop 1
        v_add_u32_dpp {v(t2)}, {v(t2)}, {v(t2)} quad_perm:[2,3,0,1] row_mask:0xf bank_mask:0xf
        v_cmp_ne_u32 vcc, {v(t2)}, {v(rem+2)}
        s_cbranch_vccnz K_VRE{tag}
K_VOK{tag}:
""")
        if "mx" in OPT:
            A([f"v_subrev_u32 {v(CW+i)}, {s(s_tag)}, {v(CW+i)}" for i in range(4)])

    def verify_rare(tag):
        A(f"""
K_VHI{tag}:
        v_subrev_u32 {v(t3)}, 64, {v(rem)}
""")
        for i in range(4):
            A(f"v_cmp_lt_i32 {s(MK+8+2*i,2)}, {4*i}, {v(t3)}")
        A(f"v_cmp_lt_i32 vcc, 64, {v(t3)}\ns_cbranch_vccnz K_VOK{tag}")
        for i in range(4):
            A(f"v_cndmask_b32 {v(CA+i)}, 0, {v(CW+4+i)}, {s(MK+8+2*i,2)}")
        A(f"""
        v_add3_u32 {v(t2)}, {v(t2)}, {v(CA)}, {v(CA+1)}
        v_add3_u32 {v(t2)}, {v(t2)}, {v(CA+2)}, {v(CA+3)}
        s_branch K_VHB{tag}
K_VRE{tag}:
        s_sub_u32 {s(s_to)}, {s(s_to)}, 1
        s_cbranch_scc1 K_END
        buffer_load_dwordx4 {v(CW,4)}, {v(rb)}, {s(SW,4)}, 0 offen {SC}
        buffer_load_dwordx4 {v(CW+4,4)}, {v(rb)}, {s(SW,4)}, 0 offen offset:64 {SC}
        s_branch K_VER{tag}
""")

    def warm(opt, half, w0):
        if opt not in OPT:
            return []
        return [f"s_lshr_b32 {s(sA)}, s2, 3", f"s_mul_i32 {s(sA)}, {s(sA)}, 40000",
                f"s_mul_i32 {s(sB)}, {s(s_wave)}, 2560", f"s_add_u32 {s(sA)}, {s(sA)}, {s(sB)}",
                f"s_add_u32 {s(sA)}, {s(sA)}, {WS_P + (N*128 if half else 0)}", f"v_lshlrev_b32 {v(nn)}, 6, {v(lane)}",
                "s_mov_b32 exec_hi, 0xff",
                f"buffer_load_dword {v(jnk)}, {v(nn)}, {s(SW,4)}, {s(sA)} offen {SC}",
                "s_mov_b64 exec, -1"]

    def prefill():
        A(f"""
        v_mov_b32 {v(D[1])}, {PADW}
        v_mov_b32 {v(D[1]+1)}, {PADW}
        v_mov_b64 {v(D[1]+2,2)}, {v(D[1],2)}
        v_mov_b32 {v(D[1]+4)}, {PADE}
        v_mov_b32 {v(D[1]+5)}, {PADE}
        v_mov_b64 {v(D[1]+6,2)}, {v(D[1]+4,2)}
        v_lshlrev_b32 {v(t2)}, 4, v0
        v_add_u32 {v(t2)}, {L_LA}, {v(t2)}
        v_mov_b32 {v(D[1]+8)}, 0
        v_lshlrev_b32 {v(t3)}, 2, {v(lane)}
        ds_write_b128 {v(t2)}, {v(D[1],4)}
        ds_write_b128 {v(t2)}, {v(D[1]+4,4)} offset:{NE*4}
        ds_write2st64_b32 {v(t3)}, {v(D[1]+8)}, {v(D[1]+8)} offset0:{L_CNT//256} offset1:{L_CNT//256 + 1}
""")

    def zero_hsum():
        A(f"""
        v_mov_b64 {v(D[1]+12,2)}, 0
        v_mov_b64 {v(D[1]+14,2)}, 0
        v_mov_b32 {v(guard)}, 0
        v_mov_b32 {v(deg)}, 0
        v_lshlrev_b32 {v(t2)}, 4, v0
        ds_write_b128 {v(t2)}, {v(D[1]+12,4)}
        ds_write_b128 {v(t2)}, {v(D[1]+12,4)} offset:16384
        v_lshlrev_b32 {v(t3)}, 3, v0
        ds_write_b64 {v(t3)}, {v(D[1]+12,2)} offset:32768
""")

    CBL = L_PB + 16 + 5 * PCS
    U = B5[0]
    DS_, SR_, CB_, RK_, WW_ = U, U + 4, U + 8, U + 12, acc
    h_w1b, h_b1, h_b2, h_cnt, h_stg, h_tr = LC, LC + 1, LC + 2, LC + 3, LC + 4, LC + 5
    h_wc, h_cbl = A5 + 2, A5 + 3
    j_x, j_q, j_w, j_rec, j_tab = 48, 49, 50, 51, 52
    A(f"""
.globl {KERN}
.p2align 8
.type {KERN},@function
{KERN}:
    ; the first wave pulls the kernel's own code towards the caches
    s_getpc_b64 {s(sA,2)}
K_PC2:
    v_lshlrev_b32 {v(t1)}, {os.environ.get("CSH", "7")}, v0
    v_cmp_gt_u32 vcc, K_HOT_END-K_PC2, {v(t1)}
    s_and_b64 exec, exec, vcc
    s_cbranch_execz K_NOCP
    global_load_dword {v(jnk)}, {v(t1)}, {s(sA,2)}
K_NOCP:
    s_mov_b64 exec, -1
    s_cmp_ge_u32 s2, {NB}
    s_cbranch_scc1 K_END
    s_load_dwordx16 s[4:19], s[0:1], 0
    s_load_dwordx4 s[20:23], s[0:1], 64
    s_load_dwordx2 s[24:25], s[0:1], 80
    {TM + " " + s(STR[0],2) if STAMP or DL[0] >= 0 else ""}
    v_lshlrev_b32 {v(t0)}, 4, v0
    v_lshrrev_b32 {v(t1)}, 6, v0
    s_mul_i32 {s(s_o1)}, s2, {CH * 4}
    v_readfirstlane_b32 {s(s_wave)}, {v(t1)}
    v_min_u32 {v(t2)}, {CH * 4 - 16}, {v(t0)}
    v_add_u32 {v(rr)}, {s(s_o1)}, {v(t2)}
    s_and_b32 {s(s_b)}, s2, 7
    s_lshr_b32 {s(s_t)}, s2, 3
    s_lshl4_add_u32 {s(s_t)}, {s(s_b)}, {s(s_t)}
    s_lshl4_add_u32 {s(s_b)}, {s(s_b)}, {s(s_t)}
    ; own x row (tid-640)>>3, swizzled 16-B slot
    v_xor_b32 {v(t1)}, v0, {v(t0)}
    v_and_b32 {v(t1)}, 0x70, {v(t1)}
    v_lshrrev_b32 {v(t3)}, 3, v0
    v_lshl_add_u32 {v(t1)}, {v(t3)}, 15, {v(t1)}
    s_lshl_b32 {s(s_t)}, {s(s_b)}, 7
    s_sub_u32 {s(s_t)}, {s(s_t)}, {80 << 15}
    v_add_u32 {v(t1)}, {s(s_t)}, {v(t1)}
    v_min_u32 {v(t1)}, {N * 128 - 16}, {v(t1)}
    {f"v_and_b32 {v(t3)}, 0x30, v0" if "sw" in OPT else ""}
    {f"v_lshlrev_b32 {v(t3)}, 2, {v(t3)}" if "sw" in OPT else ""}
    {f"v_xor_b32 {v(t3)}, {v(t3)}, {v(t0)}" if "sw" in OPT else ""}
    s_mul_i32 {s(s_t)}, {s(s_wave)}, {PCS}
    s_add_u32 m0, {s(s_t)}, {L_PB + 16 - 10 * PCS}
    s_lshl_b32 {s(s_u)}, {s(s_wave)}, 10
    s_sub_u32 {s(s_t)}, {s(s_wave)}, 10
    s_waitcnt lgkmcnt(0)
""")
    if "s1" in OPT:
        slots = [(2, 0), (2, 1), (0, 0), (4, 0), (10, 0), (10, 1), (10, 2), (5, 0), (1, 0), (1, 1), (1, 2), (6, 0), (7, 0), (8, 0), (3, 0), (3, 1)]
        pt = sum(p << (4 * i) for i, (p, o) in enumerate(slots)); ot = sum(o << (2 * i) for i, (p, o) in enumerate(slots))
        A(f"""
        s_cselect_b32 {s(MK+8)}, 1, 0
        s_cmp_lg_u32 {s(s_wave)}, 15
        s_cbranch_scc1 K_NOS1
        s_bfe_u32 {s(MK)}, s2, 0x40003
        s_mov_b32 {s(MK+2)}, {pt & 0xffffffff}
        s_mov_b32 {s(MK+3)}, {pt >> 32}
        s_lshl_b32 {s(MK+1)}, {s(MK)}, 2
        s_lshr_b64 {s(MK+2,2)}, {s(MK+2,2)}, {s(MK+1)}
        s_and_b32 {s(MK+2)}, {s(MK+2)}, 15
        s_lshl_b32 {s(MK+2)}, {s(MK+2)}, 3
        s_load_dwordx2 {s(MK+4,2)}, s[0:1], {s(MK+2)}
        s_lshl_b32 {s(MK+1)}, {s(MK)}, 1
        s_lshr_b32 {s(MK+1)}, {ot}, {s(MK+1)}
        s_and_b32 {s(MK+1)}, {s(MK+1)}, 3
        s_lshl_b32 {s(MK+1)}, {s(MK+1)}, 21
        s_waitcnt lgkmcnt(0)
        s_load_dword {s(MK+6)}, {s(MK+4,2)}, {s(MK+1)}
K_NOS1:
        s_cmp_lg_u32 {s(MK+8)}, 0
""")
    if "st" in OPT:
        tg = [("s[8:9]", "s2x"), ("s[4:5]", 0), ("s[12:13]", 0), ("s[24:25]", 0), ("s[24:25]", 2 << 20), ("s[24:25]", 4 << 20),
              ("s[14:15]", 0), ("s[6:7]", 0), ("s[6:7]", 2 << 20), ("s[6:7]", 4 << 20), ("s[16:17]", 0), ("s[18:19]", 0)]
        for n_, (b_, o_) in enumerate(tg):
            if o_ == "s2x":
                A(f"s_load_dword {s(MK+n_)}, {b_}, {s(s_o1)}")
            elif o_ == 0:
                A(f"s_load_dword {s(MK+n_)}, {b_}, 0")
            else:
                A(f"s_load_dword {s(MK+n_)}, {b_}, {s(s_o2 if o_ == 2 << 20 else s_o3)}")
    A(f"""
    s_cbranch_scc0 K_XL
    global_load_dwordx4 {v(DS_,4)}, {v(rr)}, s[10:11]
K_XL:
    s_cmp_lt_u32 {s(s_t)}, 5
    s_cbranch_scc0 K_XM
    global_load_lds_dwordx4 {v(t1)}, s[4:5]
K_XM:
    s_add_u32 m0, {s(s_u)}, {L_WA}
    v_and_b32 {v(lane)}, 63, v0
    global_load_lds_dwordx4 {v(t3 if "sw" in OPT else t0)}, s[12:13]
    v_lshlrev_b32 {v(l16)}, 4, {v(lane)}
K_XD:
    {pstamp(7)}
    {"s_mov_b32 " + s(s_x) + ", " + s(STR[0]) if STAMP or DL[0] >= 0 else ""}
""")
    A(f"""
    v_mov_b64 {v(dd,2)}, 0
    v_mov_b64 {v(tt,2)}, 0
    v_add_u32 {v(h_cnt)}, {L_C1}, {v(l16)}
    ds_write_b128 {v(h_cnt)}, {v(dd,4)}
    ds_write_b128 {v(h_cnt)}, {v(dd,4)} offset:2048
    s_cmp_ge_u32 {s(s_wave)}, 10
    s_cbranch_scc1 K_NOSRC
    global_load_dwordx4 {v(SR_,4)}, {v(rr)}, s[8:9]
K_NOSRC:
    s_cmp_lg_u32 {s(s_wave)}, 15
    s_cbranch_scc1 K_NOWCL
    v_add_u32 {v(t1)}, {128 * 256}, {v(l16)}
    global_load_dwordx4 {v(lw,4)}, {v(t1)}, s[12:13]
K_NOWCL:
    v_mov_b32 {v(t1)}, {WS_EPOCH}
    global_load_dword {v(epv)}, {v(t1)}, s[24:25]
""")
    IP = int(os.environ.get("IP", "0"))
    if IP & 1:
        zero_hsum()
    if IP & 2:
        prefill()
    A(f"""
    s_mov_b32 {s(SW)}, s24
    s_and_b32 {s(SW+1)}, s25, 0xffff
    s_mov_b32 {s(SW+2)}, {WS_END}
    s_mov_b32 {s(SW+3)}, 0x20000
    s_mov_b32 {s(SE)}, s6
    s_or_b32 {s(SE+1)}, s7, {8 << 16}
    s_mov_b32 {s(SE+2)}, {E}
    s_mov_b32 {s(SE+3)}, 0x20000
    s_lshl_b32 {s(s_u)}, {s(s_wave)}, 10
    s_add_u32 m0, {s(s_u)}, {L_WB}
    v_add_u32 {v(h_w1b)}, 16384, {v(t0)}
    v_and_b32 {v(t1)}, 15, {v(lane)}
    s_and_b32 {s(s_u)}, {s(s_wave)}, 7
    s_lshl_b32 {s(j_w)}, {s(s_u)}, 5
    v_lshl_add_u32 {v(h_b1)}, {v(t1)}, 1, {s(j_w)}
    v_lshrrev_b32 {v(t1)}, 1, v0
    v_and_b32 {v(h_b2)}, 0x78, {v(t1)}
    s_cmp_ge_u32 {s(s_wave)}, 10
    s_cbranch_scc1 K_PROLE
    v_add_u32 {v(h_stg)}, {L_STG}, {v(t0)}
    v_lshlrev_b32 {v(h_tr)}, 2, v0
    v_add_u32 {v(h_tr)}, {L_C1}, {v(h_tr)}
    s_mul_i32 {s(j_rec)}, s2, {RECB}
    s_lshl_b32 {s(j_tab)}, s2, 12
    s_add_u32 {s(j_tab)}, {s(j_tab)}, {WS_TAB}
    v_lshlrev_b32 {v(WW_)}, 22, v0
    v_add_u32 {v(WW_+1)}, {1 << 20}, {v(WW_)}
    v_add_u32 {v(WW_+2)}, {2 << 20}, {v(WW_)}
    v_add_u32 {v(WW_+3)}, {3 << 20}, {v(WW_)}
    v_mov_b32 {v(t3)}, 4
    s_mov_b32 {s(s_t)}, {L_C1}
    v_cmp_gt_u32 vcc, {CH // 4}, v0
    s_waitcnt lgkmcnt(0)
    s_mov_b64 {s(MK,2)}, vcc
    {pstamp(3) if "pb" in OPT else ""}
    s_barrier
    {pstamp(3) if "pb" not in OPT else ""}
    s_mov_b64 exec, {s(MK,2)}
    s_waitcnt vmcnt(3)
    {pstamp(4)}
""")
    for i in range(4):
        A(f"v_and_b32 {v(CB_+i)}, 255, {v(DS_+i)}")
        A(f"v_lshl_add_u32 {v(CB_+i)}, {v(CB_+i)}, 2, {s(s_t)}")
        A(f"ds_add_rtn_u32 {v(RK_+i)}, {v(CB_+i)}, {v(t3)}")
    for i in range(4):
        A(f"v_lshrrev_b32 {v(DS_+i)}, 8, {v(DS_+i)}")
        A(f"v_or_b32 {v(WW_+i)}, {v(WW_+i)}, {v(DS_+i)}")
    C4, P4 = U + 16, U + 20
    A(f"""
    s_mov_b64 exec, -1
    s_waitcnt vmcnt(2) lgkmcnt(0)
    s_barrier
""")
    stamp(10)
    A(f"""
    ds_read_b128 {v(C4,4)}, {v(h_cnt)}
""")
    A(f"""
    s_waitcnt lgkmcnt(0)
    v_add_u32 {v(DS_+1)}, {v(C4)}, {v(C4+1)}
    v_add_u32 {v(DS_+2)}, {v(DS_+1)}, {v(C4+2)}
    v_add_u32 {v(DS_+3)}, {v(DS_+2)}, {v(C4+3)}
    v_mov_b32 {v(t1)}, {v(DS_+3)}
    s_nop 1
""")
    for d in DPP_SCAN:
        A(f"v_add_u32_dpp {v(t1)}, {v(t1)}, {v(t1)} {d}\ns_nop 1")
    A(f"""
    v_sub_u32 {v(P4)}, {v(t1)}, {v(DS_+3)}
    v_add_u32 {v(P4+1)}, {v(P4)}, {v(C4)}
    v_add_u32 {v(P4+2)}, {v(P4)}, {v(DS_+1)}
    v_add_u32 {v(P4+3)}, {v(P4)}, {v(DS_+2)}
    ds_write_b128 {v(h_cnt)}, {v(P4,4)} offset:1024
    s_mov_b64 exec, {s(MK,2)}
    s_mov_b32 {s(s_t)}, {L_STG}
""")
    for i in range(4):
        A(f"ds_read_b32 {v(DS_+i)}, {v(CB_+i)} offset:1024")
    A(ystamp(8) + "\ns_waitcnt vmcnt(0)\n" + ystamp(9))
    A(f"v_readfirstlane_b32 {s(s_tag)}, {v(epv)}")
    for i in range(4):
        A(f"v_lshl_add_u32 {v(WW_+i)}, {v(SR_+i)}, 6, {v(WW_+i)}")
    A(f"""
    s_mul_i32 {s(s_to)}, {s(s_tag)}, 0x9e3779b1
    s_add_u32 {s(s_to)}, {s(s_to)}, 0x7f4a7c15
    s_cmp_eq_u32 {s(s_to)}, {s(s_tag)}
    s_addc_u32 {s(s_tag)}, {s(s_to)}, 0
    s_mov_b32 {s(s_to)}, 0x40000
""")
    if "mx" in OPT:
        A([f"v_add_u32 {v(WW_+i)}, {s(s_tag)}, {v(WW_+i)}" for i in range(4)])
    for i in range(4):
        A(f"s_waitcnt lgkmcnt(3)")
        A(f"v_add3_u32 {v(DS_+i)}, {v(DS_+i)}, {v(RK_+i)}, {s(s_t)}")
        A(f"ds_write_b32 {v(DS_+i)}, {v(WW_+i)}")
    for i in range(4):
        A(f"ds_add_u32 {v(CB_+i)}, {v(WW_+i)} offset:2048")
    A(f"""
    s_mov_b64 exec, -1
    global_load_lds_dwordx4 {v(h_w1b)}, s[12:13]
    global_load_ushort {v(qa)}, {v(h_b1)}, s[14:15]
    global_load_dwordx2 {v(b2r,2)}, {v(h_b2)}, s[18:19]
    v_mov_b32 {v(C4+1)}, {s(s_tag)}
    v_mov_b32 {v(C4+3)}, {s(s_tag)}
    s_cmp_ge_u32 {s(s_wave)}, 4
    s_waitcnt lgkmcnt(0)
    {ystamp(3)}
    s_barrier
    {ystamp(4)}
    ds_read_b128 {v(DS_,4)}, {v(h_stg)}
    s_cbranch_scc1 K_NOTABR
    ds_read2st64_b32 {v(P4,2)}, {v(h_tr)} offset0:0 offset1:4
    ds_read_b32 {v(C4+2)}, {v(h_tr)} offset:2048
K_NOTABR:
    s_waitcnt lgkmcnt(0)
    buffer_store_dwordx4 {v(DS_,4)}, {v(t0)}, {s(SW,4)}, {s(j_rec)} offen {SC}
    s_cbranch_scc1 K_AJOIN
    v_lshl_or_b32 {v(C4)}, {v(P4)}, 16, {v(P4+1)}
    buffer_store_dwordx4 {v(C4,4)}, {v(t0)}, {s(SW,4)}, {s(j_tab)} offen {SC}
    s_branch K_AJOIN
K_PROLE:
    ; ================= P role (waves 10..13 compute, 10..15 copy out) =================
    s_waitcnt lgkmcnt(0)
    s_barrier
    v_and_b32 {v(t1)}, 31, {v(lane)}
    v_lshrrev_b32 {v(t2)}, 5, {v(lane)}
    s_sub_u32 {s(s_u)}, {s(s_wave)}, 10
    s_lshl_b32 {s(s_t)}, {s(s_u)}, 6
    s_add_u32 {s(s_t)}, {s(s_t)}, {L_WA}
    v_bfe_u32 {v(nn)}, {v(lane)}, 2, 2
    {f"v_xor_b32 {v(rr)}, {s(s_u)}, {v(nn)}" if "sw" in OPT else ""}
    {f"s_mov_b32 {s(s_t)}, {L_WA}" if "sw" in OPT else ""}
    v_lshl_add_u32 {v(nn)}, {v(t2)}, 3, {v(nn)}
    v_lshlrev_b32 {v(nn)}, 8, {v(nn)}
    v_and_b32 {v(t3)}, 1, {v(lane)}
    v_lshl_add_u32 {v(nn)}, {v(t3)}, 5, {v(nn)}
    v_and_b32 {v(t3)}, 16, {v(lane)}
    v_add3_u32 {v(nn)}, {v(nn)}, {v(t3)}, {s(s_t)}
    v_and_b32 {v(t3)}, 2, {v(lane)}
    v_lshl_add_u32 {v(nn)}, {v(t3)}, 2, {v(nn)}
    {f"v_lshl_add_u32 {v(nn)}, {v(rr)}, 6, {v(nn)}" if "sw" in OPT else ""}
    v_lshrrev_b32 {v(t3)}, 3, {v(t1)}
    v_lshlrev_b32 {v(nn+1)}, 7, {v(t1)}
    v_lshl_add_u32 {v(nn+1)}, {v(t3)}, 4, {v(nn+1)}
    v_add_u32 {v(nn+1)}, {L_PB + 16}, {v(nn+1)}
    v_bfe_u32 {v(t3)}, {v(lane)}, 1, 3
    v_xor_b32 {v(t3)}, {v(t3)}, {v(t2)}
""")
    for q in range(4):
        A(f"v_xor_b32 {v(acc+q)}, {2*q}, {v(t3)}")
        A(f"v_lshl_add_u32 {v(acc+q)}, {v(acc+q)}, 4, {v(nn+1)}")
    A(f"""
    v_mul_u32_u24 {v(nn+1)}, 272, {v(t1)}
    v_lshl_add_u32 {v(nn+1)}, {v(t2)}, 5, {v(nn+1)}
    s_lshl_b32 {s(s_t)}, {s(s_u)}, 6
    v_add_u32 {v(nn+1)}, {s(s_t)}, {v(nn+1)}
    ; copy-out: u = tid - 640 (+384): row = u>>4, piece = u&15
    v_subrev_u32 {v(t1)}, 640, v0
    v_lshrrev_b32 {v(t2)}, 4, {v(t1)}
    v_and_b32 {v(t3)}, 0xf0, {v(l16)}
    v_mul_u32_u24 {v(dd)}, 272, {v(t2)}
    v_add_u32 {v(dd)}, {v(dd)}, {v(t3)}
    v_and_b32 {v(t3)}, 0x70, {v(l16)}
    v_lshl_add_u32 {v(dd+1)}, {v(t2)}, 15, {v(t3)}
    s_lshl_b32 {s(s_t)}, {s(s_b)}, 7
    v_add_u32 {v(dd+1)}, {s(s_t)}, {v(dd+1)}
    v_add_u32 {v(tt)}, {24 << 15}, {v(dd+1)}
    v_bfe_u32 {v(t3)}, {v(lane)}, 3, 1
    v_mul_u32_u24 {v(t3)}, {N * 128}, {v(t3)}
    v_add_u32 {v(t3)}, {WS_P}, {v(t3)}
    v_cmp_gt_u32 vcc, {N * 128}, {v(tt)}
    v_add_u32 {v(dd+1)}, {v(dd+1)}, {v(t3)}
    v_add_u32 {v(tt)}, {v(tt)}, {v(t3)}
    s_mov_b32 {s(sA)}, {f32(-LOG2E)}
    s_mov_b32 {s(sB)}, {f32(-LOG2E)}
    s_mov_b64 {s(MK,2)}, vcc
    {"s_setprio 2" if "pp" in OPT else ""}
    s_waitcnt vmcnt(1)
    s_barrier
    global_load_lds_dwordx4 {v(h_w1b)}, s[12:13]
    global_load_ushort {v(qa)}, {v(h_b1)}, s[14:15]
    global_load_dwordx2 {v(b2r,2)}, {v(h_b2)}, s[18:19]
    s_cmp_ge_u32 {s(s_wave)}, 14
    s_cbranch_scc1 K_PWC
""")
    WF, XA, XB2, D0 = U, U + 16, U + 32, U + 48
    for q in range(4):
        A(f"ds_read_b128 {v(XA+4*q,4)}, {v(acc+q)}")
        for h2 in range(2):
            A(f"ds_read_b64_tr_b16 {v(WF+4*q+2*h2,2)}, {v(nn)} offset:{(16*q+4*h2)*256}")
    for q in range(4):
        A(f"ds_read_b128 {v(XB2+4*q,4)}, {v(acc+q)} offset:{4*PCS}")
    for q in range(4):
        A(f"s_waitcnt lgkmcnt({13 - 3*q})")
        A(f"v_mfma_f32_32x32x16_bf16 {v(D0,16)}, {v(WF+4*q,4)}, {v(XA+4*q,4)}, {'0' if q == 0 else v(D0,16)}")
    for q in range(4):
        A(f"s_waitcnt lgkmcnt({3 - q})")
        A(f"v_mfma_f32_32x32x16_bf16 {v(XA,16)}, {v(WF+4*q,4)}, {v(XB2+4*q,4)}, {'0' if q == 0 else v(XA,16)}")
    A("s_nop 3")
    for r in range(16):
        A(f"v_mul_f32 {v(D0+r)}, {s(sA)}, {v(D0+r)}")
    for r in range(8):
        A(f"v_cvt_pk_bf16_f32 {v(D0+r)}, {v(D0+2*r)}, {v(D0+2*r+1)}")
    A(f"""
    ds_write_b128 {v(nn+1)}, {v(D0,4)} offset:{L_PO}
    ds_write_b128 {v(nn+1)}, {v(D0+4,4)} offset:{L_PO + 16}
""")
    for r in range(0, 16, 2):
        A(f"v_pk_mul_f32 {v(XA+r,2)}, {v(XA+r,2)}, {s(sA,2)}")
    for r in range(8):
        A(f"v_cvt_pk_bf16_f32 {v(XA+r)}, {v(XA+2*r)}, {v(XA+2*r+1)}")
    A(f"""
    ds_write_b128 {v(nn+1)}, {v(XA,4)} offset:{L_PO + 32*272}
    ds_write_b128 {v(nn+1)}, {v(XA+4,4)} offset:{L_PO + 32*272 + 16}
    s_branch K_PB3
K_PWC:
    s_getpc_b64 {s(MK+2,2)}
K_PC:
    s_add_u32 {s(MK+2)}, {s(MK+2)}, K_TABLE-K_PC
    s_addc_u32 {s(MK+3)}, {s(MK+3)}, 0
    s_and_b32 {s(s_t)}, {s(s_wave)}, 1
    s_mul_i32 {s(s_u)}, {s(s_t)}, {2*PCS}
    s_add_u32 m0, {s(s_u)}, {CBL}
    s_lshl_b32 {s(s_t)}, {s(s_t)}, 11
    v_add_u32 {v(t1)}, {s(s_t)}, {v(l16)}
    global_load_lds_dwordx4 {v(t1)}, {s(MK+2,2)}
    s_add_u32 m0, m0, {PCS - 1024}
    s_nop 0
    global_load_lds_dwordx4 {v(t1)}, {s(MK+2,2)} offset:1024
    s_cmp_eq_u32 {s(s_wave)}, 14
    s_cbranch_scc1 K_EPF
    v_lshrrev_b32 {v(t1)}, 4, {v(lane)}
    v_mul_u32_u24 {v(t1)}, 320, {v(t1)}
    v_and_b32 {v(t2)}, 0xf0, {v(l16)}
    v_add_u32 {v(t1)}, {v(t1)}, {v(t2)}
    v_add_u32 {v(t1)}, {L_WC}, {v(t1)}
""")
    for i in range(4):
        A(f"v_lshlrev_b32 {v(U+2*i)}, 16, {v(lw+i)}")
        A(f"v_and_b32 {v(U+2*i+1)}, 0xffff0000, {v(lw+i)}")
    for i in range(4):
        A(f"v_pk_mul_f32 {v(U+2*i,2)}, {v(U+2*i,2)}, {s(sA,2)}")
    for i in range(8):
        A(f"v_and_b32 {v(U+8+i)}, 0xffff0000, {v(U+i)}")
    for i in range(8):
        A(f"v_sub_f32 {v(U+i)}, {v(U+i)}, {v(U+8+i)}")
    for i in range(4):
        A(f"v_cvt_pk_bf16_f32 {v(U+16+i)}, {v(U+8+2*i)}, {v(U+9+2*i)}")
        A(f"v_cvt_pk_bf16_f32 {v(U+20+i)}, {v(U+2*i)}, {v(U+1+2*i)}")
    A(f"""
    ds_write_b128 {v(t1)}, {v(U+16,4)}
    ds_write_b128 {v(t1)}, {v(U+20,4)} offset:{8*320}
    s_branch K_PB3
K_EPF:
""")
    EPF = int(os.environ.get("EPF", "0"))
    EPX = int(os.environ.get("EPX", "0"))
    if EPF:
        if EPX:
            A(f"s_lshr_b32 {s(s_t)}, s2, 3\ns_mul_i32 {s(s_t)}, {s(s_t)}, {EPF * 1024}")
        else:
            A(f"s_mul_i32 {s(s_t)}, s2, {CH}")
        A(f"v_add_u32 {v(t1)}, {s(s_t)}, {v(l16)}")
        for k in range(EPF):
            A(f"buffer_load_dword {v(jnk)}, {v(t1)}, {s(SE,4)}, 0 idxen\nv_add_u32 {v(t1)}, 1024, {v(t1)}")
    A(f"""
K_PB3:
    s_waitcnt lgkmcnt(0)
    {ystamp(3)}
    s_barrier
""")
    pst = f"""
    buffer_store_dwordx4 {v(D[0],4)}, {v(dd+1)}, {s(SW,4)}, 0 offen {SC}
    s_cmp_ge_u32 {s(s_wave)}, 14
    s_cbranch_scc1 K_PSD
    s_mov_b64 exec, {s(MK,2)}
    s_waitcnt lgkmcnt(0)
    buffer_store_dwordx4 {v(D[0]+4,4)}, {v(tt)}, {s(SW,4)}, 0 offen {SC}
    s_mov_b64 exec, -1
K_PSD:
"""
    A(f"""
    ds_read_b128 {v(D[0],4)}, {v(dd)} offset:{L_PO}
    ds_read_b128 {v(D[0]+4,4)}, {v(dd)} offset:{L_PO + 24*272}
    s_waitcnt lgkmcnt(1)
""")
    if "pd" not in OPT:
        A(pst)
    else:
        A("s_waitcnt vmcnt(0)")
    A(f"""
K_AJOIN:
""")
    stamp(7)
    TR = D[0]
    if not IP & 1:
        zero_hsum()
    if not IP & 2:
        prefill()
    A(tab_pre())
    A(f"""
    s_add_u32 {s(SP0)}, s24, {WS_P - 3*PCS}
    s_addc_u32 {s(SP0+1)}, s25, {2 << 16}
    s_mov_b32 {s(SP0+2)}, {N * 64}
    s_mov_b32 {s(SP0+3)}, 0x20000
    s_add_u32 {s(SP1)}, s24, {WS_P - 3*PCS + N*128}
    s_addc_u32 {s(SP1+1)}, s25, {2 << 16}
    s_mov_b32 {s(SP1+2)}, {N * 64}
    s_mov_b32 {s(SP1+3)}, 0x20000
    s_movk_i32 {s(s_o3)}, {3*PCS}
    s_movk_i32 {s(s_o2)}, {2*PCS}
    s_movk_i32 {s(s_o1)}, {PCS}
    s_mov_b32 {s(s_msk)}, 0xfffc0
    s_mov_b32 {s(s_safe)}, 0
    s_mov_b32 {s(s_slow)}, 0
    s_mul_i32 {s(s_m0)}, {s(s_wave)}, {PBW}
    s_add_u32 {s(s_m0)}, {s(s_m0)}, {L_PB + 16}
    v_lshrrev_b32 {v(t2)}, 5, {v(lane)}
    v_bfe_u32 {v(t3)}, {v(lane)}, 2, 2
    v_lshl_add_u32 {v(t2)}, {v(t2)}, 3, {v(t3)}
    v_mul_u32_u24 {v(t2)}, 320, {v(t2)}
    v_and_b32 {v(t3)}, 16, {v(lane)}
    v_lshl_add_u32 {v(t2)}, {v(t3)}, 1, {v(t2)}
    v_and_b32 {v(t3)}, 3, {v(lane)}
    v_lshl_add_u32 {v(t2)}, {v(t3)}, 3, {v(t2)}
    v_add_u32 {v(h_wc)}, {L_WC}, {v(t2)}
    v_add_u32 {v(h_cbl)}, {CBL}, {v(l16)}
    s_lshr_b32 {s(s_t)}, {s(s_wave)}, 3
    s_mul_i32 {s(j_x)}, {s(s_t)}, {2*PCS}
    s_lshl_b32 {s(s_t)}, {s(s_t)}, 13
    s_lshl_b32 {s(s_u)}, {s(j_w)}, 1
    s_add_u32 {s(j_q)}, {s(s_t)}, {s(s_u)}
""")
    A(f"""
    {"s_setprio 0" if "pp" in OPT and "pq" not in OPT else ""}
    s_mov_b32 m0, {s(s_m0)}
    s_cmp_lt_u32 {s(s_wave)}, 4
    s_cbranch_scc1 K_J2
    s_sub_u32 {s(sB)}, {s(s_wave)}, 10
    s_cmp_lt_u32 {s(sB)}, 4
    s_cbranch_scc1 K_J2
    s_waitcnt vmcnt(1)
K_J2:
    s_waitcnt vmcnt(2) lgkmcnt(0)
    s_barrier
""")
    stamp(8)
    A(f"""
    s_cmp_lt_u32 {s(s_wave)}, 10
    s_cbranch_scc1 K_TAGD
    v_readfirstlane_b32 {s(s_tag)}, {v(epv)}
    s_nop 0
    s_mul_i32 {s(s_to)}, {s(s_tag)}, 0x9e3779b1
    s_add_u32 {s(s_to)}, {s(s_to)}, 0x7f4a7c15
    s_cmp_eq_u32 {s(s_to)}, {s(s_tag)}
    s_addc_u32 {s(s_tag)}, {s(s_to)}, 0
    s_mov_b32 {s(s_to)}, 0x40000
K_TAGD:
""")
    if "pd" in OPT:
        A(f"s_cmp_lt_u32 {s(s_wave)}, 10\ns_cbranch_scc1 K_PSD\n" + pst)
    for k in range(4):
        A(f"ds_read_b128 {v(LC+4*k,4)}, {v(h_cbl)} offset:{k*PCS}")
    A(f"""
    s_waitcnt lgkmcnt(3)
    v_add_u32 {v(la_w)}, {s(j_x)}, {v(la_w)}
    v_add_u32 {v(la_e)}, {s(j_x)}, {v(la_e)}
    v_add_u32 {v(le)}, {s(j_w)}, {v(le)}
    v_add_u32 {v(ha)}, {s(j_q)}, {v(tab)}
    ds_read_b128 {v(QA,4)}, {v(la_w)}
    ds_read_b128 {v(QA+4,4)}, {v(la_e)}
""")
    for ks in range(2):
        for h2 in range(2):
            A(f"ds_read_b64_tr_b16 {v(QB+4*ks+2*h2,2)}, {v(le)} offset:{(32*ks + 4*h2)*256}")
    A(f"""
    ds_read_b128 {v(QA2,4)}, {v(la_w)} offset:{4*PCS}
    ds_read_b128 {v(QA2+4,4)}, {v(la_e)} offset:{4*PCS}
""")
    for n in range(4):
        A(f"ds_read_b64_tr_b16 {v(B5[n],2)}, {v(h_wc)} offset:{64*n}")
    A("s_waitcnt lgkmcnt(12)")
    for a in (TA[0][0], TA[0][1], TA[1][0], TA[1][1]):
        A(f"v_add_u32 {v(a)}, {s(s_m0)}, {v(a)}")
    A(f"""
    s_mov_b32 {s(s_t)}, {f32(-LOG2E)}
    v_lshlrev_b32 {v(qa)}, 16, {v(qa)}
    v_mul_f32 {v(qa)}, {s(s_t)}, {v(qa)}
    s_waitcnt lgkmcnt(4)
    v_mfma_f32_16x16x32_bf16 {v(QD,4)}, {v(QA,4)}, {v(QB,4)}, 0
    v_mfma_f32_16x16x32_bf16 {v(QD,4)}, {v(QA+4,4)}, {v(QB+4,4)}, {v(QD,4)}
    v_mfma_f32_16x16x32_bf16 {v(QD+4,4)}, {v(QA2,4)}, {v(QB,4)}, 0
    v_mfma_f32_16x16x32_bf16 {v(QD+4,4)}, {v(QA2+4,4)}, {v(QB+4,4)}, {v(QD+4,4)}
""")

    def qpart(base, off):
        for r in range(4):
            A(f"v_fma_f32 {v(base+r)}, {v(base+r)}, {s(s_t)}, {v(qa)}")
        for r in range(4):
            A(f"v_and_b32 {v(QA+r)}, 0xffff0000, {v(base+r)}")
        for r in range(4):
            A(f"v_sub_f32 {v(base+r)}, {v(base+r)}, {v(QA+r)}")
        for r in range(4):
            A(f"v_cvt_pk_bf16_f32 {v(base+r)}, {v(QA+r)}, {v(base+r)}")
        for r in range(0, 4, 2):
            A(f"ds_write2st64_b32 {v(ha)}, {v(base+r)}, {v(base+r+1)} offset0:{(off + r*512)//256} offset1:{(off + r*512 + 512)//256}")
    def pfnew():
        poll("A")
        stamp(9)
        rec_loads("A")
        A(f"""
    v_and_b32 {v(tba)}, {"0xff" if "pf4" in OPT else "0x3fc"}, v0
    v_lshlrev_b32 {v(tba)}, {6 if "pf4" in OPT else 4}, {v(tba)}
    v_add_u32 {v(tba)}, {WS_PF}, {v(tba)}
    s_cmp_lt_u32 {s(s_wave)}, 10
    s_cbranch_scc1 K_VERA
    ; this wave's P stores are complete (the poll waited for them): the last of the six waves publishes the flag
    s_mov_b64 exec, 1
    v_mov_b32 {v(t2)}, {L_FLAG + 8}
    v_mov_b32 {v(t3)}, 1
    ds_add_rtn_u32 {v(t2)}, {v(t2)}, {v(t3)}
    s_mov_b64 exec, -1
    v_mov_b32 {v(t3)}, {s(s_tag)}
    v_lshlrev_b32 {v(lw)}, 2, {v(lane)}
    s_lshl_b32 {s(sA)}, s2, 6
    s_add_u32 {s(sA)}, {s(sA)}, {WS_PF}
    s_waitcnt lgkmcnt(0)
    v_readfirstlane_b32 {s(s_u)}, {v(t2)}
    s_cmp_lg_u32 {s(s_u)}, 5
    s_cbranch_scc1 K_VERA
    s_mov_b64 exec, 0xffff
    buffer_store_dword {v(t3)}, {v(lw)}, {s(SW,4)}, {s(sA)} offen {SC}
    s_mov_b64 exec, -1
    s_waitcnt vmcnt(1)
    s_branch K_VER1A
""")

    A("s_nop 5")
    qpart(QD, 0)
    A(f"s_cmp_ge_u32 {s(s_wave)}, 8\ns_cbranch_scc1 K_QD\ns_mov_b32 exec_hi, 0")
    qpart(QD + 4, 32 * 512)
    A(f"""
    s_mov_b32 exec_hi, -1
""")
    if os.environ.get("PFV", "0") == "1":
        A("K_QD:")
        pfnew()
    else:
        A(f"""
K_QD:
    s_cmp_lt_u32 {s(s_wave)}, 10
    s_cbranch_scc1 K_POLL1A
    s_mov_b64 exec, 1
    v_mov_b32 {v(t2)}, {L_FLAG + 8}
    v_mov_b32 {v(t3)}, 1
    s_waitcnt vmcnt(0)
    ds_add_rtn_u32 {v(t2)}, {v(t2)}, {v(t3)}
    s_mov_b64 exec, -1
    buffer_load_dwordx3 {v(rem,3)}, {v(tba)}, {s(SW,4)}, 0 offen {SC}
    v_mov_b32 {v(t3)}, {s(s_tag)}
    v_lshlrev_b32 {v(lw)}, 2, {v(lane)}
    s_lshl_b32 {s(sA)}, s2, 6
    s_add_u32 {s(sA)}, {s(sA)}, {WS_PF}
    s_waitcnt lgkmcnt(0)
    v_readfirstlane_b32 {s(s_u)}, {v(t2)}
    s_cmp_lg_u32 {s(s_u)}, 5
    s_cbranch_scc1 K_POLL2A
    s_mov_b64 exec, 0xffff
    buffer_store_dword {v(t3)}, {v(lw)}, {s(SW,4)}, {s(sA)} offen {SC}
    s_mov_b64 exec, -1
    s_waitcnt vmcnt(1)
    s_branch K_POLL3A
""")
        poll("A", None)
        stamp(9)
        rec_loads("A")
        A(f"""
    v_and_b32 {v(tba)}, {"0xff" if "pf4" in OPT else "0x3fc"}, v0
    v_lshlrev_b32 {v(tba)}, {6 if "pf4" in OPT else 4}, {v(tba)}
    v_add_u32 {v(tba)}, {WS_PF}, {v(tba)}
""")
    verify("A")
    PV = int(os.environ.get("PV", "0"))
    if PV:
        A(f"""
        s_cmp_lt_u32 {s(s_wave)}, 4
        s_cbranch_scc1 K_NOPV
        s_lshr_b32 {s(s_t)}, s2, 3
        s_mul_i32 {s(s_t)}, {s(s_t)}, 12
        s_add_u32 {s(s_t)}, {s(s_t)}, {s(s_wave)}
        s_mul_i32 {s(s_t)}, {s(s_t)}, {PV * 128}
        s_add_u32 {s(s_t)}, {s(s_t)}, {WS_P - 4 * PV * 128 + int(os.environ.get("PVO", "0"))}
        v_lshlrev_b32 {v(t2)}, 7, {v(lane)}
        s_mov_b64 exec, {(1 << PV) - 1}
        buffer_load_dword {v(jnk)}, {v(t2)}, {s(SW,4)}, {s(s_t)} offen {SC}
        s_mov_b64 exec, -1
K_NOPV:
""")
    EV = int(os.environ.get("EV", "0"))
    EO = int(os.environ.get("EO", "0"))
    if EV:
        A(f"""
        s_cmp_lt_u32 {s(s_wave)}, 4
        s_cbranch_scc1 K_NOEV
        s_mul_i32 {s(s_t)}, s2, {CH}
        s_mul_i32 {s(s_u)}, {s(s_wave)}, {EV * 16}
        s_add_u32 {s(s_t)}, {s(s_t)}, {s(s_u)}
        s_add_u32 {s(s_t)}, {s(s_t)}, {(EO * 16 - 4 * EV * 16) & 0xffffffff}
        v_add_u32 {v(t2)}, {s(s_t)}, {v(l16)}
        s_mov_b64 exec, {(1 << EV) - 1}
        buffer_load_dword {v(jnk)}, {v(t2)}, {s(SE,4)}, 0 idxen
        s_mov_b64 exec, -1
K_NOEV:
""")
    NWM = NWB = 0

    def p1words(xs):
        for x in xs:
            A(f"v_lshlrev_b32_sdwa {v(CA+x)}, 2, {v(CW+x)} dst_sel:BYTE_0 dst_unused:UNUSED_PAD src0_sel:DWORD src1_sel:DWORD")
        for x in xs:
            A(f"s_mov_b64 exec, {s(MK+2*x,2)}")
            A(f"ds_add_rtn_u32 {v(RK+x)}, {v(CA+x)}, {v(t3)} offset:{L_CNT}")
        A("s_mov_b64 exec, -1")

    LO = [0, 1, 2, 3]
    HI = [4, 5, 6, 7]
    A(warm("q1", 128, 0))
    A(f"K_PASS1:\nv_mov_b32 {v(t3)}, 4")
    stamp(1)
    A(warm("p0", 0, 5) + warm("p1", 128, 5))
    p1words(LO)
    A(f"""
    s_cmp_lg_u32 {s(s_hi)}, 0
    s_cbranch_scc1 K_HI1
K_HB1:
""")
    for x in LO:
        if "e2" in OPT:
            A(f"v_add_u32 {v(EI+x)}, {x}, {v(EB)}")
            continue
        A(f"v_lshrrev_b32 {v(EI+x)}, 20, {v(CW+x)}")
        A(f"v_add_u32 {v(EI+x)}, {v(EI+x)}, {v(EB)}")
    stamp(2)
    A(f"""
    v_lshlrev_b32 {v(t0)}, 2, {v(lane)}
    v_mov_b32 {v(t2)}, {L_FLAG}
    {"s_setprio 0" if "pq" in OPT else ""}
    s_waitcnt lgkmcnt(0)
    s_barrier
    {zstamp(10)}
    ds_read_b32 {v(t1)}, {v(t0)} offset:{L_CNT}
    ds_read_b32 {v(t2)}, {v(t2)}
""")
    if "pfl" in OPT:
        pass
    elif "pf4" in OPT:
        A(f"s_cmp_ge_u32 {s(s_wave)}, 4\ns_cbranch_scc1 K_NPFL\nbuffer_load_dword {v(epv)}, {v(tba)}, {s(SW,4)}, 0 offen {SC}\nK_NPFL:")
    elif "nopf" not in OPT:
        A(f"buffer_load_dword {v(epv)}, {v(tba)}, {s(SW,4)}, 0 offen {SC}")
    else:
        A(f"v_mov_b32 {v(epv)}, {s(s_tag)}")
    A(warm("r0", 0, 0))
    A(f"""
    s_waitcnt lgkmcnt(1)
    v_add_u32 {v(t3)}, 31, {v(t1)}
    v_and_b32 {v(t3)}, -32, {v(t3)}
    v_mov_b32 {v(t0)}, {v(t3)}
    s_nop 1
""")
    for d in DPP_SCAN:
        A(f"v_add_u32_dpp {v(t0)}, {v(t0)}, {v(t0)} {d}\ns_nop 1")
    A(f"""
    v_readlane_b32 {s(sB)}, {v(t0)}, 63
    v_sub_u32 {v(t0)}, {v(t0)}, {v(t3)}
    v_add_u32 {v(t0)}, {L_LA}, {v(t0)}
""")
    A(f"s_waitcnt lgkmcnt(0)\ns_cmp_eq_u32 {s(s_hi)}, 0\ns_cbranch_scc1 K_NOHB")
    for x in HI:
        A(f"ds_bpermute_b32 {v(CA+x)}, {v(CA+x)}, {v(t0)}")
    A("K_NOHB:")
    for x in LO:
        A(f"ds_bpermute_b32 {v(CA+x)}, {v(CA+x)}, {v(t0)}")
    A(f"""
    {f"buffer_load_dword {v(epv)}, {v(tba)}, {s(SW,4)}, 0 offen {SC}" if "pfl" in OPT else ""}
    v_readfirstlane_b32 {s(sA)}, {v(t2)}
    v_lshrrev_b32 {v(t2)}, 4, {v(lane)}
    s_cmp_gt_u32 {s(sB)}, {CAPB}
    s_cselect_b32 {s(s_t)}, 1, 0
    s_or_b32 {s(sA)}, {s(sA)}, {s(s_t)}
    s_cbranch_scc1 K_GOSLOW
    v_add_u32 {v(deg)}, {v(deg)}, {v(t1)}
    s_add_u32 {s(sB)}, {s(sB)}, 127
    s_lshr_b32 {s(sB)}, {s(sB)}, 7
    s_add_u32 {s(s_rem)}, {s(sB)}, {NWV - 1}
    s_sub_u32 {s(s_rem)}, {s(s_rem)}, {s(s_wave)}
    s_lshr_b32 {s(s_rem)}, {s(s_rem)}, 4
    s_lshr_b32 {s(s_t)}, {s(sB)}, 4
    s_mul_i32 {s(s_t)}, {s(s_t)}, {s(s_wave)}
    s_and_b32 {s(sB)}, {s(sB)}, {NWV - 1}
    s_min_u32 {s(sB)}, {s(sB)}, {s(s_wave)}
    s_add_u32 {s(s_t)}, {s(s_t)}, {s(sB)}
    s_lshl_b32 {s(s_t)}, {s(s_t)}, 7
    s_lshl_b32 {s(s_u)}, {s(s_rem)}, 5
    s_waitcnt lgkmcnt(0)
    {zstamp(7)}
""")
    for x in LO:
        A(f"v_add_u32 {v(CA+x)}, {v(CA+x)}, {v(RK+x)}")
    for x in LO:
        A(f"s_mov_b64 exec, {s(MK+2*x,2)}")
        A(f"ds_write2st64_b32 {v(CA+x)}, {v(CW+x)}, {v(EI+x)} offset0:0 offset1:{NE*4//256}")
    A(f"""
    s_mov_b64 exec, -1
    s_cmp_lg_u32 {s(s_hi)}, 0
    s_cbranch_scc1 K_HI2
K_HB2:
    s_cmp_lg_u32 {s(s_wave)}, 15
    s_cbranch_scc1 K_NOGAP
    v_mul_u32_u24 {v(t3)}, {PCS}, {v(lane)}
    v_add_u32 {v(t3)}, {L_PB}, {v(t3)}
    v_mov_b64 {v(nn,2)}, 0
    v_mov_b64 {v(dd,2)}, 0
    ds_write_b128 {v(t3)}, {v(nn,4)}
    ds_write_b128 {v(t3)}, {v(nn,4)} offset:{PCS}
K_NOGAP:
    v_mul_u32_u24 {v(t2)}, {s(s_u)}, {v(t2)}
    v_add3_u32 {v(la_w)}, {v(t2)}, {v(cw0)}, {s(s_t)}
    v_mul_u32_u24 {v(la_e)}, {s(s_u)}, {v(grp)}
    v_add3_u32 {v(la_e)}, {v(la_e)}, {v(ce0)}, {s(s_t)}
    v_add3_u32 {v(tab)}, {v(tb0)}, {v(t2)}, {s(s_t)}
    {zstamp(8)}
    {f"s_cmp_ge_u32 {s(s_wave)}, 4" if "pf4" in OPT else ""}
    {"s_cbranch_scc1 K_PFD" if "pf4" in OPT else ""}
    s_waitcnt vmcnt({int("r0" in OPT)})
K_PFC:
    v_cmp_ne_u32 vcc, {s(s_tag)}, {v(epv)}
    s_cbranch_vccnz K_PFR
    {zstamp(9)}
""")
    WO = int(os.environ.get("WO", "0"))
    WN = int(os.environ.get("WN", "4"))
    WB0 = int(os.environ.get("WB0", "0"))
    if WO:
        A(f"""
        s_sub_u32 {s(sA)}, {s(s_wave)}, {WB0}
        s_cmp_ge_u32 {s(sA)}, {WN}
        s_cbranch_scc1 K_NOWO
        s_lshr_b32 {s(sA)}, s2, 3
        s_mul_i32 {s(sA)}, {s(sA)}, {WO * WN * 8192}
        s_add_u32 {s(sA)}, {s(sA)}, {WS_P - WB0 * 8192}
        v_lshlrev_b32 {v(nn)}, 7, v0
""")
        for k in range(WO):
            A(f"buffer_load_dword {v(jnk)}, {v(nn)}, {s(SW,4)}, {s(sA)} offen {SC}\ns_add_u32 {s(sA)}, {s(sA)}, {WN * 8192}")
        A("K_NOWO:")
    A(f"""
K_PFD:
    s_waitcnt lgkmcnt(0)
    s_barrier
""")
    stamp(3)
    if "tl" in OPT:
        A(f"v_mov_b32 {v(tl)}, 0\nv_writelane_b32 {v(tl)}, {s(STR[3])}, 0\ns_mov_b32 s95, 1")
    if "p3" in OPT:
        A("s_setprio 3")

    def dma(u):
        so = [s(s_o3), s(s_o2), s(s_o1), "0"]
        srd = SP0 if u == 0 else SP1
        return [f"buffer_load_dwordx4 {v(lw+q)}, {s(srd,4)}, {so[q]} idxen offset:{q*PCS} {os.environ.get('PSC', 'sc1')} lds" for q in range(4)]

    def idx():
        return [f"v_and_or_b32 {v(lw+q)}, {v(lw+q)}, {s(s_msk)}, {v(dq)}" for q in range(4)]

    def eload():
        return f"buffer_load_dwordx2 {v(A5,2)}, {v(le)}, {s(SE,4)}, 0 idxen " + os.environ.get("ESC", "")

    def ohcmp():
        return f"v_cmp_gt_u32 vcc, {s(s_ne)}, {v(le)}"

    def ohsel():
        return [f"v_cndmask_b32 {v(A5+2)}, 0, {v(OH)}, vcc", f"v_cndmask_b32 {v(A5+3)}, 0, {v(OH+1)}, vcc"]

    def lists():
        return [f"ds_read_b128 {v(lw,4)}, {v(la_w)}", f"ds_read_b32 {v(le)}, {v(la_e)}"]

    def laup():
        return [f"v_add_u32 {v(x)}, 32, {v(x)}" for x in (la_w, la_e)]

    def flush():
        o = [f"v_cvt_f64_f32 {v(C64+2*i,2)}, {v(acc+i)}" for i in range(8)]
        o2 = [f"ds_add_f64 {v(ha + i%2)}, {v(C64+2*i,2)} offset:{(i//2)*256}" for i in range(8)]
        return o, o2

    def qaddr(fill):
        o = [f"v_mov_b32_dpp {v(qa)}, {v(tab)} row_newbcast:0 row_mask:0xf bank_mask:0xf",
             f"v_mov_b32_dpp {v(qa+1)}, {v(tab)} row_newbcast:0 row_mask:0xf bank_mask:0xf"]
        o += fill[:2]
        o += [f"v_permlane16_swap_b32 {v(qa)}, {v(qa+1)}"]
        o += fill[2:4]
        o += [f"v_add_u32 {v(qa)}, {v(qa)}, {v(j4)}", f"v_add_u32 {v(qa+1)}, {v(qa+1)}, {v(j4)}"]
        o += fill[4:]
        for n in range(4):
            for k in range(2):
                o.append(f"ds_read_b32 {v(B5[n]+2+k)}, {v(qa+k)} offset:{L_QT + n*128}")
        return o

    zacc = [f"v_mov_b64 {v(acc+2*n,2)}, 0" for n in range(4)]
    haup = [f"v_lshlrev_b32 {v(ha+k)}, 1, {v(qa+k)}" for k in range(2)]

    def hread():
        o = []
        for n in range(2):
            for m in range(8):
                o.append(f"ds_read_b64_tr_b16 {v(D[n]+2*m,2)}, {v(TA[n][m>>2])} offset:{(m&3)*PCS}")
        return o

    def mf(n):
        return f"v_mfma_f32_32x32x16_bf16 {v(D[n%2],16)}, {v(A5,4)}, {v(B5[n],4)}, {v(D[n%2],16)}"

    if "ef" in OPT:
        A(lists()[::-1])
        A(f"ds_read_b32 {v(tab)}, {v(tab)}\ns_waitcnt lgkmcnt(2)")
        A(eload())
        A("s_waitcnt lgkmcnt(1)")
        A(idx())
        A(dma(0))
    else:
        A(lists())
        A(f"ds_read_b32 {v(tab)}, {v(tab)}\ns_waitcnt lgkmcnt(2)")
        A(idx())
        A(dma(0))
        A("s_waitcnt lgkmcnt(1)")
        A(eload())
    A(f"""
    s_and_b32 {s(s_u)}, {s(s_wave)}, 3
    s_lshl_b32 {s(s_u)}, {s(s_u)}, 5
    v_lshrrev_b32 {v(t1)}, 4, {v(lane)}
    v_lshl_add_u32 {v(rem+1)}, {v(t1)}, 3, {s(s_u)}
    s_xor_b32 {s(s_t)}, {s(s_wave)}, 15
    s_or_b32 {s(s_t)}, s2, {s(s_t)}
    s_cbranch_scc1 K_EPD
    v_mov_b32 {v(t0)}, {WS_EPOCH}
    v_mov_b32 {v(t2)}, {s(s_tag)}
    global_store_dword {v(t0)}, {v(t2)}, s[24:25]
K_EPD:
    s_waitcnt lgkmcnt(0)
""")
    A(f"""
    ; ---- epilogue addresses (registers that the loop leaves alone)
    s_mov_b32 {s(s_epx)}, 0
    s_mov_b32 {s(SO)}, s20
    s_and_b32 {s(SO+1)}, s21, 0xffff
    s_mov_b32 {s(SO+2)}, {N * 128}
    s_mov_b32 {s(SO+3)}, 0x20000
    v_mul_u32_u24 {v(EB)}, {PBW}, {v(t1)}
    v_bfe_u32 {v(t0)}, {v(lane)}, 2, 2
    v_lshl_add_u32 {v(EB)}, {v(t0)}, 7, {v(EB)}
    v_and_b32 {v(t0)}, 3, {v(lane)}
    v_lshl_add_u32 {v(EB)}, {v(t0)}, 3, {v(EB)}
    s_add_u32 {s(s_u)}, {s(s_u)}, {L_PB + 16}
    v_add_u32 {v(EB)}, {s(s_u)}, {v(EB)}
    v_and_b32 {v(t0)}, 15, {v(lane)}
    s_and_b32 {s(s_t)}, {s(s_wave)}, 12
    s_lshl_b32 {s(s_t)}, {s(s_t)}, 2
    v_add_u32 {v(t0)}, {s(s_t)}, {v(t0)}
    v_mul_u32_u24 {v(rem)}, {HB_STRIDE}, {v(t0)}
    v_lshl_add_u32 {v(rem)}, {v(t1)}, 4, {v(rem)}
    v_add_u32 {v(rem)}, {L_HBHI}, {v(rem)}
    v_lshlrev_b32 {v(rem+2)}, 2, {v(t0)}
    ds_bpermute_b32 {v(rem+2)}, {v(rem+2)}, {v(deg)}
    v_lshl_add_u32 {v(rem+1)}, {v(t0)}, 15, {v(rem+1)}
    v_lshlrev_b32 {v(t2)}, 4, v0
    s_mul_i32 {s(sA)}, {s(s_wave)}, {HB_STRIDE}
    s_add_u32 {s(sA)}, {s(sA)}, {L_HBHI}
    v_lshl_add_u32 {v(t3)}, {v(lane)}, 2, {s(sA)}
    s_cmp_eq_u32 {s(s_rem)}, 0
    s_cbranch_scc1 K_DONE
""")
    A(ohcmp())
    A(f"""
    v_and_b32 {v(tab)}, 63, {v(tab)}
    v_lshlrev_b32 {v(tab)}, 9, {v(tab)}
""")
    A(ohsel())
    A(f"v_mov_b32 {v(t0)}, {v(tab)}")
    A(laup())
    A(f"v_mov_b32_dpp {v(t0)}, {v(tab)} row_shr:1 row_mask:0xf bank_mask:0xf")
    A(qaddr(zacc))
    A(haup)
    A(f"""
    v_cmp_ne_u32 vcc, {v(t0)}, {v(tab)}
    s_or_b32 {s(s_chg)}, vcc_lo, vcc_hi
    s_lshr_b32 {s(s_t)}, {s(s_chg)}, 16
    s_or_b32 {s(s_chg)}, {s(s_chg)}, {s(s_t)}
    s_setprio 3
    {"s_waitcnt vmcnt(0)" if "pw" in OPT or "ef" in OPT else ""}
""")
    stamp(4)
    A(f"""
    s_cmp_eq_u32 {s(s_safe)}, 0
    s_cbranch_scc0 K_LOOP_S
""")

    def compute(u, safe, mid, tail):
        o = []
        pair = "rp" in OPT and not safe
        for bb in range(2):
            b = 2 * u + bb
            cur = D[bb]
            N_, D_ = (t0, d2) if pair and bb == 0 else (nn, dd)
            if not safe and bb and not pair:
                o += [f"v_rcp_f32 {v(rr)}, {v(dd)}", f"v_rcp_f32 {v(rr+1)}, {v(dd+1)}"]
            o += [f"v_exp_f32 {v(EX+i)}, {v(cur+i)}" for i in range(16)]
            if bb == 0:
                o += mid
            if not safe:
                if bb and not pair:
                    o.append(f"v_max3_f32 {v(guard)}, {v(guard)}, {v(dd)}, {v(dd+1)}")
                    o.append(f"v_pk_fma_f32 {v(acc+2*(b-1),2)}, {v(nn,2)}, {v(rr,2)}, {v(acc+2*(b-1),2)}")
                o.append(f"v_pk_add_f32 {v(D_,2)}, {v(EX,2)}, 1.0 op_sel_hi:[1,0]")
                n_ = v(cur, 2)
                for k in range(1, 8):
                    e_, z_ = v(EX + 2 * k, 2), v(cur + 2 * k, 2)
                    o.append(f"v_pk_fma_f32 {v(tt,2)}, {n_}, {e_}, {n_}")
                    o.append(f"v_pk_fma_f32 {v(N_,2)}, {z_}, {v(D_,2)}, {v(tt,2)}")
                    o.append(f"v_pk_fma_f32 {v(D_,2)}, {v(D_,2)}, {e_}, {v(D_,2)}")
                    n_ = v(N_, 2)
            else:
                for k in range(8):
                    o.append(f"v_pk_add_f32 {v(EX+2*k,2)}, {v(EX+2*k,2)}, 1.0 op_sel_hi:[1,0]")
                for i in range(16):
                    o.append(f"v_rcp_f32 {v(EX+i)}, {v(EX+i)}")
                for k in range(8):
                    o.append(f"v_pk_fma_f32 {v(acc+2*b,2)}, {v(cur+2*k,2)}, {v(EX+2*k,2)}, {v(acc+2*b,2)}")
        if pair:
            o += [f"v_pk_mul_f32 {v(tt,2)}, {v(d2,2)}, {v(dd,2)}",
                  f"v_rcp_f32 {v(rr)}, {v(tt)}", f"v_rcp_f32 {v(rr+1)}, {v(tt+1)}",
                  f"v_pk_mul_f32 {v(t0,2)}, {v(t0,2)}, {v(dd,2)}",
                  f"v_pk_mul_f32 {v(nn,2)}, {v(nn,2)}, {v(d2,2)}",
                  f"v_max3_f32 {v(guard)}, {v(guard)}, {v(tt)}, {v(tt+1)}",
                  f"v_pk_fma_f32 {v(acc+4*u,2)}, {v(t0,2)}, {v(rr,2)}, {v(acc+4*u,2)}",
                  f"v_pk_fma_f32 {v(acc+4*u+2,2)}, {v(nn,2)}, {v(rr,2)}, {v(acc+4*u+2,2)}"]
        elif not safe:
            o += [f"v_rcp_f32 {v(rr)}, {v(dd)}", f"v_rcp_f32 {v(rr+1)}, {v(dd+1)}",
                  f"v_max3_f32 {v(guard)}, {v(guard)}, {v(dd)}, {v(dd+1)}",
                  f"v_pk_fma_f32 {v(acc+4*u+2,2)}, {v(nn,2)}, {v(rr,2)}, {v(acc+4*u+2,2)}"]
        if "tl" in OPT:
            o += [TM + " s[98:99]", "s_waitcnt lgkmcnt(0)", "s_mov_b32 m0, s95", f"v_writelane_b32 {v(tl)}, s98, m0",
                  f"s_mov_b32 m0, {s(s_m0)}", "s_add_u32 s95, s95, 1"]
        return o + tail

    PL = int(os.environ.get("PL", "3"))

    def loop(safe):
        sf = "S" if safe else "F"
        rot = f"v_mov_b32_dpp {v(tab)}, {v(tab)} row_shl:1 row_mask:0xf bank_mask:0xf bound_ctrl:0"
        st = ["s_waitcnt vmcnt(1)"] + hread()
        st += [f"s_cmp_gt_u32 {s(s_rem)}, {PL}", f"s_cbranch_scc0 K_PRIO_{sf}", f"K_PB_{sf}:"]
        st += ["s_waitcnt vmcnt(0) lgkmcnt(8)", mf(0), "s_waitcnt lgkmcnt(0)", (mf(1) if "ms" not in OPT else "s_nop 0")] + dma(1) + lists()
        st += [f"s_lshr_b32 {s(s_chg)}, {s(s_chg)}, 1", f"s_sub_u32 {s(s_rem)}, {s(s_rem)}, 1", "s_nop 1"]
        st += compute(0, safe, [rot], ["s_waitcnt lgkmcnt(0)"] + idx() + [ohcmp()])
        st += ["s_waitcnt vmcnt(0)"] + hread()
        if "tail" in OPT:
            st += [f"s_cmp_eq_u32 {s(s_rem)}, 0", "s_waitcnt lgkmcnt(8)", mf(2), "s_waitcnt lgkmcnt(0)", mf(3), f"s_cbranch_scc1 K_TL_{sf}"]
            st += dma(0) + [eload()] + ohsel() + laup() + [f"K_TB_{sf}:"]
        else:
            st += ["s_waitcnt lgkmcnt(8)", mf(2), "s_waitcnt lgkmcnt(0)", mf(3)] + dma(0) + [eload()]
            st += ohsel() + laup() + ["s_nop 0"]
        st += compute(1, safe, [], [])
        if "E" in ABL: st = [x for x in st if not x.startswith("buffer_load_dwordx2")]
        if "X" in ABL: st = [x if not x.endswith(" lds") else "s_nop 0" for x in st]
        if "A" in ABL: st = [x for x in st if not x.startswith("ds_read_b64_tr")]
        A(f".p2align 6\nK_LOOP_{sf}:")
        A(st)
        c, a = flush()
        A(f"""
        s_cmp_eq_u32 {s(s_rem)}, 0
        s_cbranch_scc1 K_LAST_{sf}
        s_bitcmp1_b32 {s(s_chg)}, 0
        {"s_cbranch_scc0" if "C" not in ABL else "s_branch"} K_LOOP_{sf}
""")
        A(qaddr(c) + a + zacc + haup)
        A(f"s_branch K_LOOP_{sf}")
        A(f"""
K_PRIO_{sf}:
""")
        if "tail" in OPT:
            A(f"""
        s_setprio 2
        s_cmp_gt_u32 {s(s_rem)}, 1
        s_cbranch_scc1 K_PB_{sf}
        s_setprio 1
        s_branch K_PB_{sf}
K_TL_{sf}:
        s_setprio 0
        global_load_lds_dwordx4 {v(t2)}, s[16:17]
        s_mov_b32 {s(s_epx)}, 1
        s_nop 5
        s_branch K_TB_{sf}
""")
        else:
            A(f"""
        s_setprio 2
        s_cmp_eq_u32 {s(s_rem)}, 3
        s_cbranch_scc1 K_PB_{sf}
        s_setprio 1
        s_cmp_eq_u32 {s(s_rem)}, 2
        s_cbranch_scc1 K_PB_{sf}
        s_setprio 0
        s_branch K_PB_{sf}
""")
        A(f"""
K_LAST_{sf}:
""")
        A(c + a)
        if safe:
            A("s_branch K_DONE")
    loop(False)

    W2 = B5[0]
    A(f"""
K_DONE:
    s_setprio 0
    s_cmp_eq_u32 {s(s_slow)}, 0
    s_cbranch_scc0 K_NEXTCHUNK
K_FIN:
""")
    if "tl" in OPT:
        A(f"""
        s_lshl_b32 {s(s_t)}, s2, 12
        s_add_u32 {s(s_t)}, {s(s_t)}, {WS_STAMP + (1 << 20)}
        v_lshl_add_u32 {v(t0)}, v0, 2, {s(s_t)}
        global_store_dword {v(t0)}, {v(tl)}, s[24:25]
""")
    stamp(5)
    A(f"""
    s_cmp_lg_u32 {s(s_epx)}, 0
    s_cbranch_scc1 K_W2D
    global_load_lds_dwordx4 {v(t2)}, s[16:17]
K_W2D:
    s_waitcnt lgkmcnt(0)
    s_barrier
""")
    stamp(6)
    H = D[0]
    for k in range(3):
        A(f"ds_read_b128 {v(H+4*k,4)}, {v(t2)} offset:{k*16384}")
    A(f"s_cmp_ge_u32 {s(s_wave)}, 8")
    A(f"v_add_u32 {v(ha)}, {16*HB_STRIDE}, {v(t3)}\nv_add_u32 {v(ha+1)}, {32*HB_STRIDE}, {v(t3)}")

    def s1(ks):
        for k in ks:
            A(f"s_waitcnt lgkmcnt({2 - k if k < 2 else 2})")
            A(f"v_cvt_f32_f64 {v(EX+2*k)}, {v(H+4*k,2)}")
            A(f"v_cvt_f32_f64 {v(EX+2*k+1)}, {v(H+4*k+2,2)}")
        for k in ks:
            A(f"v_and_b32 {v(EX+8+2*k)}, 0xffff0000, {v(EX+2*k)}")
            A(f"v_and_b32 {v(EX+9+2*k)}, 0xffff0000, {v(EX+2*k+1)}")
        for k in ks:
            A(f"v_pk_add_f32 {v(EX+2*k,2)}, {v(EX+2*k,2)}, {v(EX+8+2*k,2)} neg_lo:[0,1] neg_hi:[0,1]")
        for k in ks:
            A(f"v_cvt_pk_bf16_f32 {v(H+4*k)}, {v(EX+8+2*k)}, {v(EX+9+2*k)}")
            A(f"v_cvt_pk_bf16_f32 {v(H+4*k+1)}, {v(EX+2*k)}, {v(EX+2*k+1)}")
        for k in ks:
            A(f"ds_write2st64_b32 {v([t3, ha, ha+1][k])}, {v(H+4*k)}, {v(H+4*k+1)} offset0:0 offset1:{HB_LO//256}")
    s1([0, 1])
    A(f"v_add_f32 {v(EX)}, {v(EX)}, {v(EX+1)}\nv_add_f32 {v(EX+2)}, {v(EX+2)}, {v(EX+3)}")
    A(f"v_cmp_u_f32 {s(sA,2)}, {v(EX)}, {v(EX+2)}")
    A("s_cbranch_scc1 K_S1D")
    s1([2])
    A(f"v_cmp_u_f32 vcc, {v(EX+4)}, {v(EX+5)}\ns_or_b64 {s(sA,2)}, {s(sA,2)}, vcc")
    A(f"""
K_S1D:
    v_cmp_lt_f32 vcc, {f32(2.0**120)}, {v(guard)}
    s_or_b64 vcc, vcc, {s(sA,2)}
    v_mov_b32 {v(t2)}, {L_FLAG + 4}
    s_cbranch_vccz K_NOFL
    ds_write_b32 {v(t2)}, {v(t2)}
K_NOFL:
    s_waitcnt vmcnt(0) lgkmcnt(0)
    s_barrier
    ds_read_b32 {v(t2)}, {v(t2)}
    s_cmp_ge_u32 {s(s_wave)}, 12
    s_cbranch_scc1 K_IDLE
""")
    for ks in range(4):
        for h2 in range(2):
            A(f"ds_read_b64_tr_b16 {v(D[1]+4*ks+2*h2,2)}, {v(EB)} offset:{ks*4*PBW + h2*512}")
    HF = [D[0], EX]
    for ks in range(4):
        A(f"ds_read_b128 {v(HF[0]+4*ks,4)}, {v(rem)} offset:{ks*64}")
        A(f"ds_read_b128 {v(HF[1]+4*ks,4)}, {v(rem)} offset:{ks*64 + HB_LO}")
    A(f"""
    v_cvt_f32_u32 {v(le)}, {v(rem+2)}
    v_mul_f32 {v(le)}, {f32(0.25)}, {v(le)}
    s_lshl_b32 {s(s_t)}, {s(s_b)}, 7
    s_mov_b32 {s(s_u)}, {f32(-LN2)}
    s_waitcnt lgkmcnt(8)
    v_readfirstlane_b32 {s(sA)}, {v(t2)}
    v_lshlrev_b32 {v(acc)}, 16, {v(b2r)}
    v_and_b32 {v(acc+1)}, 0xffff0000, {v(b2r)}
    v_lshlrev_b32 {v(acc+2)}, 16, {v(b2r+1)}
    v_and_b32 {v(acc+3)}, 0xffff0000, {v(b2r+1)}
    s_cmp_lg_u32 {s(s_safe)}, 0
    s_cbranch_scc1 K_GEMM
    s_cmp_eq_u32 {s(sA)}, 0
    {"s_cbranch_scc0 K_RESTART" if ABL == [""] else ""}
K_GEMM:
""")
    O = [nn, tt]
    for ks in range(4):
        for hl in range(2):
            A(f"s_waitcnt lgkmcnt({7 - 2*ks - hl})")
            c = "0" if ks == 0 else v(O[hl], 4)
            A(f"v_mfma_f32_16x16x32_bf16 {v(O[hl],4)}, {v(D[1]+4*ks,4)}, {v(HF[hl]+4*ks,4)}, {c}")
    for i in range(4):
        A(f"v_mul_f32 {v(acc+i)}, {v(le)}, {v(acc+i)}")
    A("s_nop 3")
    for i in range(4):
        A(f"v_add_f32 {v(nn+i)}, {v(nn+i)}, {v(tt+i)}")
    for i in range(4):
        A(f"v_fma_f32 {v(nn+i)}, {v(nn+i)}, {s(s_u)}, {v(acc+i)}")
    A(f"""
    v_cvt_pk_bf16_f32 {v(acc)}, {v(nn)}, {v(nn+1)}
    v_cvt_pk_bf16_f32 {v(acc+1)}, {v(nn+2)}, {v(nn+3)}
    buffer_store_dwordx2 {v(acc,2)}, {v(rem+1)}, {s(SO,4)}, {s(s_t)} offen {os.environ.get('ST3', '')}
""")
    if STAMP:
        A("s_waitcnt vmcnt(0)\n" + TM + " s[20:21]\ns_waitcnt lgkmcnt(0)")
        A(f"""
    v_cmp_eq_u32 vcc, 0, {v(lane)}
    s_and_saveexec_b64 {s(sA,2)}, vcc
    s_lshl_b32 {s(s_t)}, s2, 4
    s_add_u32 {s(s_t)}, {s(s_t)}, {s(s_wave)}
    s_lshl_b32 {s(s_t)}, {s(s_t)}, 6
    s_add_u32 {s(s_t)}, {s(s_t)}, {WS_STAMP}
    v_mov_b32 {v(t0)}, {s(s_t)}
""")
        for n_, i in enumerate([0, 10, 7, 8, 9, 1, 2, 3, 4, 5, 6]):
            A(f"v_mov_b32 {v(D[0]+n_)}, {s(STR[i]) if i else s(s_x)}")
        A(f"v_mov_b32 {v(D[0]+11)}, s20")
        for i in range(3):
            A(f"global_store_dwordx4 {v(t0)}, {v(D[0]+4*i,4)}, s[24:25] offset:{16*i}")
    A(f"""
K_END:
    s_endpgm
K_IDLE:
    s_waitcnt lgkmcnt(0)
    v_readfirstlane_b32 {s(sA)}, {v(t2)}
    s_cmp_lg_u32 {s(s_safe)}, 0
    s_cbranch_scc1 K_END
    s_cmp_eq_u32 {s(sA)}, 0
    {"s_cbranch_scc0 K_RESTART" if ABL == [""] else ""}
    s_endpgm
""")

    A(f"""
K_HI1:
    v_subrev_u32 {v(t0)}, 64, {v(rem)}
""")
    for i in range(4):
        A(f"v_cmp_lt_i32 {s(MK+8+2*i,2)}, {4*i}, {v(t0)}")
    A(f"""
    v_cmp_lt_i32 vcc, 64, {v(t0)}
    s_cbranch_vccz K_HI1N
    v_mov_b32 {v(t0)}, {L_FLAG}
    ds_write_b32 {v(t0)}, {v(t3)}
K_HI1N:
""")
    if "mx" in OPT:
        A([f"v_subrev_u32 {v(CW+4+i)}, {s(s_tag)}, {v(CW+4+i)}" for i in range(4)])
    p1words(HI)
    for x in HI:
        A(f"v_lshrrev_b32 {v(EI+x)}, 20, {v(CW+x)}")
        A(f"v_add_u32 {v(EI+x)}, {v(EI+x)}, {v(EB)}")
    A("s_branch K_HB1\nK_HI2:")
    for x in HI:
        A(f"v_add_u32 {v(CA+x)}, {v(CA+x)}, {v(RK+x)}")
    for x in HI:
        A(f"s_mov_b64 exec, {s(MK+2*x,2)}")
        A(f"ds_write2st64_b32 {v(CA+x)}, {v(CW+x)}, {v(EI+x)} offset0:0 offset1:{NE*4//256}")
    A("s_mov_b64 exec, -1\ns_branch K_HB2")
    verify_rare("A")
    A(f"""
K_PFR:
    s_sub_u32 {s(s_to)}, {s(s_to)}, 1
    s_cbranch_scc1 K_END
    buffer_load_dword {v(epv)}, {v(tba)}, {s(SW,4)}, 0 offen {SC}
    s_waitcnt vmcnt(0)
    s_branch K_PFC
""")
    A(".p2align 4\n.type K_TABLE,@object\nK_TABLE:")
    T = lane_table()
    for piece in range(4):
        for l in range(64):
            A(".long " + ", ".join(str(x & 0xffffffff) for x in T[l][4*piece:4*piece+4]))
    A(".size K_TABLE, 4096")
    A("K_HOT_END:")
    A(f"""
K_RESTART:
    s_mov_b32 {s(s_safe)}, 1
    s_mov_b32 {s(s_slow)}, 0
    s_waitcnt lgkmcnt(0)
    s_barrier
""")
    zero_hsum()
    A(tab_pre())
    poll("B")
    rec_loads("B")
    if "mx" in OPT:
        A("s_waitcnt vmcnt(0)")
        A([f"v_subrev_u32 {v(CW+i)}, {s(s_tag)}, {v(CW+i)}" for i in range(4)])
    A(f"""
    v_and_b32 {v(tba)}, {"0xff" if "pf4" in OPT else "0x3fc"}, v0
    v_lshlrev_b32 {v(tba)}, {6 if "pf4" in OPT else 4}, {v(tba)}
    v_add_u32 {v(tba)}, {WS_PF}, {v(tba)}
""")
    A("K_ROUND:")
    prefill()
    A(f"""
    s_waitcnt vmcnt(0) lgkmcnt(0)
    s_barrier
    s_branch K_PASS1
K_GOSLOW:
    s_mov_b32 {s(SS)}, s8
    s_and_b32 {s(SS+1)}, s9, 0xffff
    s_mov_b32 {s(SS+2)}, {E * 4}
    s_mov_b32 {s(SS+3)}, 0x20000
    s_mov_b32 {s(SD_)}, s10
    s_and_b32 {s(SD_+1)}, s11, 0xffff
    s_mov_b32 {s(SD_+2)}, {E * 4}
    s_mov_b32 {s(SD_+3)}, 0x20000
    s_mov_b32 {s(s_slow)}, 1
    s_mov_b32 {s(s_chunk)}, -1
K_NEXTCHUNK:
    s_add_u32 {s(s_chunk)}, {s(s_chunk)}, 1
    s_cmp_lt_u32 {s(s_chunk)}, {NB}
    s_cbranch_scc0 K_FIN
    s_waitcnt vmcnt(0) lgkmcnt(0)
    s_barrier
    s_mul_i32 {s(s_t)}, {s(s_chunk)}, {CH * 4}
    v_lshlrev_b32 {v(t0)}, 2, v0
""")
    for k in range(3):
        A(f"buffer_load_dword {v(RK+k)}, {v(t0)}, {s(SD_,4)}, {s(s_t)} offen")
        A(f"buffer_load_dword {v(RK+4+k)}, {v(t0)}, {s(SS,4)}, {s(s_t)} offen")
        A(f"s_add_u32 {s(s_t)}, {s(s_t)}, 4096")
    A(f"""
    s_mul_i32 {s(s_t)}, {s(s_chunk)}, {CH}
    s_movk_i32 {s(s_u)}, {CH}
    v_mov_b32 {v(EB)}, {s(s_t)}
    v_mov_b32 {v(CW+3)}, 0
    s_mov_b64 {s(MK+6,2)}, 0
    s_mov_b32 {s(s_hi)}, 0
    s_waitcnt vmcnt(0)
""")
    for k in range(3):
        A(f"""
        v_add_u32 {v(t1)}, {1024*k}, v0
        v_lshrrev_b32 {v(t2)}, 8, {v(RK+k)}
        v_lshl_or_b32 {v(t2)}, {v(RK+4+k)}, 6, {v(t2)}
        v_lshl_or_b32 {v(CW+k)}, {v(t1)}, 20, {v(t2)}
        v_and_b32 {v(RK+k)}, 255, {v(RK+k)}
        v_cmp_eq_u32 vcc, {s(s_b)}, {v(RK+k)}
        v_cmp_gt_u32 {s(sA,2)}, {s(s_u)}, {v(t1)}
        s_and_b64 {s(MK+2*k,2)}, vcc, {s(sA,2)}
""")
    A("s_branch K_ROUND")
    loop(True)
    return nvgpr, (102 if STAMP or DL[0] >= 0 else 96)


def kd(name, vg, sg):
    acc = (vg + 3) // 4 * 4
    return f""".p2align 6
.amdhsa_kernel {name}
  .amdhsa_next_free_vgpr {vg}
  .amdhsa_next_free_sgpr {sg}
  .amdhsa_accum_offset {acc}
  .amdhsa_group_segment_fixed_size 0
  .amdhsa_kernarg_size 88
  .amdhsa_user_sgpr_count 2
  .amdhsa_user_sgpr_kernarg_segment_ptr 1
  .amdhsa_system_sgpr_workgroup_id_x 1
  .amdhsa_float_denorm_mode_32 3
.end_amdhsa_kernel
"""


def main():
    ref = open(f"cdna_kernels/{NAME}.s.ref").read().split("\n")
    head = [l for l in ref if l.startswith(";") and "@launch" not in l and "Override" not in l and "grid=ceil" not in l]
    A = Asm()
    v2, s2 = gen_k2(A)
    out = "\n".join(head) + "\n"
    out += f"; @launch grid=({NB},1,1) block=(1024,1,1) lds={L_END}\n"
    out += '.amdgcn_target "amdgcn-amd-amdhsa--gfx950"\n.text\n'
    out += A.text()
    out += '.section .rodata,"a"\n' + kd(KERN, v2, s2)
    path = sys.argv[1] if len(sys.argv) > 1 else f"cdna_kernels/{NAME}.s"
    open(path, "w").write(out)
    print("vgprs", v2, "lds", L_END, "->", path)


if __name__ == "__main__":
    main()
```

```python
import sys, struct, os

NAME = "gather_scatter__edge_featured_mpnn_mpnn__graph"
N, E = 10000, 640000
NB, CH = 256, 2500
LOG2E = 1.4426950408889634
LN2 = 0.6931471805599453
STAMP = int(os.environ.get("STAMP", "0"))
TM = "s_memtime" if STAMP == 2 else "s_memrealtime"
DL = [int(x) for x in os.environ.get("DL", "-1:0").split(":")]
ABL = os.environ.get("ABL", "").split(",")
OPT = os.environ.get("OPT", "").split(",")
WS_STAMP = 24 << 20


def f32(x):
    return struct.unpack("<I", struct.pack("<f", x))[0]


KERN = NAME + "_kernel"
RECB = 10240
WS_PF = NB * RECB + 4096
WS_TAB = WS_PF + NB * 64
WS_P = WS_TAB + NB * 4096
WS_END = WS_P + N * 256
WS_EPOCH = NB * RECB + 2048

NWV = 16
L_QT = 40 * 1024
L_CNT = L_QT + 40 * 512
L_FLAG = L_CNT + 256
L_LA = L_CNT + 512
NE = 4096
L_LB = L_LA + NE * 4
L_PB = L_LB + NE * 4
PCS = 1040
PBW = 4 * PCS
L_END = L_PB + NWV * PBW + 16
CAPB = (NE - 128) * 4
PADW = (16383 << 6)
PADE = 0x7FFFFFF
HB_STRIDE = 272
L_HBHI = L_LA
HB_LO = 16384
L_SA = L_PB + 16 + 9 * PCS
L_STG = L_SA
L_C1 = L_STG + 10240
L_S1 = L_C1 + 1024
L_K1 = L_S1 + 1024
L_WA = L_K1 + 1024
L_WB = L_WA + 16384
L_WC = L_WB + 16384
L_PO = L_QT
assert L_WC + 12 * 320 <= L_END and L_SA % 16 == 0
SC = "sc1"


class Asm:
    def __init__(self):
        self.lines = []

    def __call__(self, s):
        if isinstance(s, list):
            s = "\n".join(s)
        for ln in s.split("\n"):
            ln = ln.strip()
            if ln:
                self.lines.append(("" if ln.endswith(":") or ln.startswith(".") else "    ") + ln)

    def text(self):
        return "\n".join(self.lines) + "\n"


class Regs:
    def __init__(self, first):
        self.n = first

    def a(self, cnt=1, align=1):
        self.n = (self.n + align - 1) // align * align
        r = self.n
        self.n += cnt
        return r


def v(r, n=1):
    return f"v{r}" if n == 1 else f"v[{r}:{r + n - 1}]"


def s(r, n=1):
    return f"s{r}" if n == 1 else f"s[{r}:{r + n - 1}]"


DPP_SCAN = ["row_shr:1 row_mask:0xf bank_mask:0xf bound_ctrl:0", "row_shr:2 row_mask:0xf bank_mask:0xf bound_ctrl:0",
            "row_shr:4 row_mask:0xf bank_mask:0xf bound_ctrl:0", "row_shr:8 row_mask:0xf bank_mask:0xf bound_ctrl:0",
            "row_bcast:15 row_mask:0xa bank_mask:0xf", "row_bcast:31 row_mask:0xc bank_mask:0xf"]
K1_CNT = 10240
K1_ST = K1_CNT + 2560
K1_LDS = 24576 + 64 * 272
ST1 = os.environ.get('ST1', '')
ST2 = os.environ.get('ST2', '')
NPW = 250


def lane_table():
    T = []
    for l in range(64):
        i, h = l & 31, l >> 5
        idx = 2 * (i >> 3) + ((i >> 1) & 1)
        grp = 2 * ((i >> 2) & 1) + (i & 1)
        par = (l >> 3) & 1
        ta = h * 512 + par * 320 + ((l >> 4) & 1) * 32 + (l & 3) * 8
        real = (l >> 2) & 1
        xa = L_PB + 16 + ((l >> 3) & 1) * PCS + (l & 7) * 128
        f = ((l >> 1) & 7) ^ (l >> 4)
        T.append([xa + f * 16, xa + (f ^ 4) * 16, L_WB + (8 * (l >> 4) + ((l >> 2) & 3)) * 256 + (l & 3) * 8, L_QT + (l >> 4) * 2048 + (l & 15) * 4,
                  4 * i, L_LB + 4 * idx, grp, L_LA + (l & 8) * 2,
                  0x3f803f80 if grp == 2 * h else 0, 0x3f803f80 if grp == 2 * h + 1 else 0,
                  ((l & 7) ^ (4 * ((l >> 4) & 1))) * 8, (l & 15) * 32 + L_LA,
                  ta if real else -16, ta + 128 if real else 1024, ta ^ 64 if real else -16, (ta ^ 64) + 128 if real else 1024])
    return T


def gen_k2(A):
    R = Regs(1)
    lane = R.a()
    t0, t1, t2, t3 = R.a(), R.a(), R.a(), R.a()
    guard, deg, l16, EB = R.a(), R.a(), R.a(), R.a()
    rem = R.a(3, 2)
    LC = R.a(16, 2)
    la_w, la_e, le, tab = LC, LC + 1, LC + 2, LC + 3
    j4, ce0, grp, cw0 = LC + 4, LC + 5, LC + 6, LC + 7
    OH, dq, tb0 = LC + 8, LC + 10, LC + 11
    TA = [[LC + 12, LC + 13], [LC + 14, LC + 15]]
    lw = R.a(4, 2)
    qa, ha = R.a(2, 2), R.a(2, 2)
    b2r = R.a(2, 2)
    nn, dd, tt, rr = [R.a(2, 2) for _ in range(4)]
    acc = R.a(8, 2)
    A5 = R.a(4, 2)
    B5 = [R.a(4, 2) for _ in range(4)]
    D = [R.a(16, 2) for _ in range(2)]
    EX = R.a(16, 2)
    d2 = R.a(2, 2)
    tl = d2
    tba, epv = R.a(), R.a()
    jnk = rem + 3
    nvgpr = R.n
    assert nvgpr <= 128, nvgpr
    assert t0 % 2 == 0 and LC == rem + 4
    CW, RK, CA, EI = D[0], D[0] + 8, D[1], D[1] + 8
    C64 = EX
    QB, QA, QA2, QD = EX, EX + 8, acc, nn
    assert rr == nn + 6

    rb, lam = A5, A5 + 1
    SP0, SP1, SE, SW, SO, SS, SD_, SXR = 28, 32, 36, 40, 44, 48, 52, 72
    MK = 56
    s_b = 76
    s_wave, s_o3, s_o2, s_o1, s_msk, s_x, s_rem, s_epx, s_slow, s_safe, s_chunk = range(78, 89)
    s_t, s_u = 89, 90
    sA, sB = 26, 27
    s_m0, s_chg, s_hi, s_tag, s_to, s_ep = 0, 3, 77, 91, 1, 85
    s_oh = MK
    s_ne = SE + 2
    STR = [92, 4, 6, 96, 98, 12, 14, 100, 72, 74, 94]

    def pstamp(i):
        return f"s_waitcnt lgkmcnt(0)\n{TM} {s(STR[i],2)}\ns_waitcnt lgkmcnt(0)" if "pa" in OPT else ""

    def zstamp(i):
        return f"s_waitcnt lgkmcnt(0)\n{TM} {s(STR[i],2)}\ns_waitcnt lgkmcnt(0)" if "pz" in OPT else ""

    def ystamp(i):
        return f"s_waitcnt lgkmcnt(0)\n{TM} {s(STR[i],2)}\ns_waitcnt lgkmcnt(0)" if "py" in OPT else ""

    def stamp(i):
        if "pa" in OPT and i in (3, 4, 7):
            return
        if "pz" in OPT and i in (10, 7, 8, 9, 1):
            return
        if "py" in OPT and i in (8, 9, 3, 4, 1, 2):
            return
        if DL[0] == i:
            A(f"""
            s_cmp_lg_u32 {s(s_wave)}, 0
            s_cbranch_scc1 K_DLX
K_DL:
            s_sleep 2
            s_waitcnt lgkmcnt(0)
            s_memrealtime {s(STR[i],2)}
            s_waitcnt lgkmcnt(0)
            s_sub_u32 {s(STR[i])}, {s(STR[i])}, {s(s_x)}
            s_cmp_lt_u32 {s(STR[i])}, {DL[1]*100}
            s_cbranch_scc1 K_DL
K_DLX:
""")
        if STAMP:
            A(f"s_waitcnt lgkmcnt(0)\n{TM} {s(STR[i],2)}\ns_waitcnt lgkmcnt(0)")

    def tab_pre():
        return [f"v_lshrrev_b32 {v(EB)}, 2, v0", f"s_lshl_b32 {s(s_u)}, {s(s_b)}, 4", f"s_add_u32 {s(s_u)}, {s(s_u)}, {WS_TAB}",
                f"v_lshl_add_u32 {v(tba)}, {v(EB)}, 12, {s(s_u)}",
                f"v_and_b32 {v(lam)}, 48, {v(l16)}", f"v_mul_u32_u24 {v(rb)}, {RECB}, {v(EB)}",
                f"v_add_u32 {v(rb)}, {v(rb)}, {v(lam)}", f"v_mul_u32_u24 {v(EB)}, {CH}, {v(EB)}"]

    def poll(tag, issued=False):
        SL = int(os.environ.get("SLEEP", "0"))
        A(f"""
        {'' if issued is None else 's_branch K_POLL1' + tag}
K_POLL{tag}:
        {"s_mov_b64 exec, vcc" if "pm" in OPT else ""}
        {f"s_sleep {SL}" if SL else ""}
K_POLL1{tag}:
        buffer_load_dwordx3 {v(rem,3)}, {v(tba)}, {s(SW,4)}, 0 offen {SC}
        s_sub_u32 {s(s_to)}, {s(s_to)}, 1
        s_cbranch_scc1 K_END
K_POLL2{tag}:
        s_waitcnt vmcnt(0)
K_POLL3{tag}:
        v_cmp_ne_u32 vcc, {s(s_tag)}, {v(rem+1)}
        s_cbranch_vccnz K_POLL{tag}
        {"s_mov_b64 exec, -1" if "pm" in OPT else ""}
""")

    def rec_loads(tag):
        A(f"""
        v_add_u32_sdwa {v(rb)}, {v(rb)}, {v(rem)} dst_sel:DWORD dst_unused:UNUSED_PAD src0_sel:DWORD src1_sel:WORD_0
        v_lshrrev_b32 {v(rem)}, 16, {v(rem)}
        {"v_lshrrev_b32 " + v(EB) + ", 2, " + v(t0) if "e2" in OPT else ""}
        {"v_min_u32 " + v(EB) + ", 639000, " + v(EB) if "e2" in OPT else ""}
        buffer_load_dwordx4 {v(CW,4)}, {v(rb)}, {s(SW,4)}, 0 offen {SC}
        v_cmp_lt_u32 vcc, 64, {v(rem)}
        v_sub_u32 {v(rem)}, {v(rem)}, {v(lam)}
        s_cmp_lg_u64 vcc, 0
        s_cselect_b32 {s(s_hi)}, 1, 0
        s_cbranch_scc0 K_NOHI{tag}
        s_mov_b64 exec, vcc
        buffer_load_dwordx4 {v(CW+4,4)}, {v(rb)}, {s(SW,4)}, 0 offen offset:64 {SC}
        s_mov_b64 exec, -1
K_NOHI{tag}:
""")
        for i in range(4):
            A(f"v_cmp_lt_i32 {s(MK+2*i,2)}, {4*i}, {v(rem)}")

    def verify(tag):
        A(f"""
K_VER{tag}:
        s_waitcnt vmcnt(0)
K_VER1{tag}:
""")
        for i in range(4):
            A(f"v_cndmask_b32 {v(CA+i)}, 0, {v(CW+i)}, {s(MK+2*i,2)}")
        A(f"""
        v_add3_u32 {v(t2)}, {v(CA)}, {v(CA+1)}, {v(CA+2)}
        s_cmp_lg_u32 {s(s_hi)}, 0
        v_add_u32 {v(t2)}, {v(t2)}, {v(CA+3)}
        s_cbranch_scc1 K_VHI{tag}
K_VHB{tag}:
        s_nop 1
        v_add_u32_dpp {v(t2)}, {v(t2)}, {v(t2)} quad_perm:[1,0,3,2] row_mask:0xf bank_mask:0xf
        s_nop 1
        v_add_u32_dpp {v(t2)}, {v(t2)}, {v(t2)} quad_perm:[2,3,0,1] row_mask:0xf bank_mask:0xf
        v_cmp_ne_u32 vcc, {v(t2)}, {v(rem+2)}
        s_cbranch_vccnz K_VRE{tag}
K_VOK{tag}:
""")
        if "mx" in OPT:
            A([f"v_subrev_u32 {v(CW+i)}, {s(s_tag)}, {v(CW+i)}" for i in range(4)])

    def verify_rare(tag):
        A(f"""
K_VHI{tag}:
        v_subrev_u32 {v(t3)}, 64, {v(rem)}
""")
        for i in range(4):
            A(f"v_cmp_lt_i32 {s(MK+8+2*i,2)}, {4*i}, {v(t3)}")
        A(f"v_cmp_lt_i32 vcc, 64, {v(t3)}\ns_cbranch_vccnz K_VOK{tag}")
        for i in range(4):
            A(f"v_cndmask_b32 {v(CA+i)}, 0, {v(CW+4+i)}, {s(MK+8+2*i,2)}")
        A(f"""
        v_add3_u32 {v(t2)}, {v(t2)}, {v(CA)}, {v(CA+1)}
        v_add3_u32 {v(t2)}, {v(t2)}, {v(CA+2)}, {v(CA+3)}
        s_branch K_VHB{tag}
K_VRE{tag}:
        s_sub_u32 {s(s_to)}, {s(s_to)}, 1
        s_cbranch_scc1 K_END
        buffer_load_dwordx4 {v(CW,4)}, {v(rb)}, {s(SW,4)}, 0 offen {SC}
        buffer_load_dwordx4 {v(CW+4,4)}, {v(rb)}, {s(SW,4)}, 0 offen offset:64 {SC}
        s_branch K_VER{tag}
""")

    def warm(opt, half, w0):
        if opt not in OPT:
            return []
        return [f"s_lshr_b32 {s(sA)}, s2, 3", f"s_mul_i32 {s(sA)}, {s(sA)}, 40000",
                f"s_mul_i32 {s(sB)}, {s(s_wave)}, 2560", f"s_add_u32 {s(sA)}, {s(sA)}, {s(sB)}",
                f"s_add_u32 {s(sA)}, {s(sA)}, {WS_P + (N*128 if half else 0)}", f"v_lshlrev_b32 {v(nn)}, 6, {v(lane)}",
                "s_mov_b32 exec_hi, 0xff",
                f"buffer_load_dword {v(jnk)}, {v(nn)}, {s(SW,4)}, {s(sA)} offen {SC}",
                "s_mov_b64 exec, -1"]

    def prefill():
        A(f"""
        v_mov_b32 {v(D[1])}, {PADW}
        v_mov_b32 {v(D[1]+1)}, {PADW}
        v_mov_b64 {v(D[1]+2,2)}, {v(D[1],2)}
        v_mov_b32 {v(D[1]+4)}, {PADE}
        v_mov_b32 {v(D[1]+5)}, {PADE}
        v_mov_b64 {v(D[1]+6,2)}, {v(D[1]+4,2)}
        v_lshlrev_b32 {v(t2)}, 4, v0
        v_add_u32 {v(t2)}, {L_LA}, {v(t2)}
        v_mov_b32 {v(D[1]+8)}, 0
        v_lshlrev_b32 {v(t3)}, 2, {v(lane)}
        ds_write_b128 {v(t2)}, {v(D[1],4)}
        ds_write_b128 {v(t2)}, {v(D[1]+4,4)} offset:{NE*4}
        ds_write2st64_b32 {v(t3)}, {v(D[1]+8)}, {v(D[1]+8)} offset0:{L_CNT//256} offset1:{L_CNT//256 + 1}
""")

    def zero_hsum():
        A(f"""
        v_mov_b64 {v(D[1]+12,2)}, 0
        v_mov_b64 {v(D[1]+14,2)}, 0
        v_mov_b32 {v(guard)}, 0
        v_mov_b32 {v(deg)}, 0
        v_lshlrev_b32 {v(t2)}, 4, v0
        ds_write_b128 {v(t2)}, {v(D[1]+12,4)}
        ds_write_b128 {v(t2)}, {v(D[1]+12,4)} offset:16384
        v_lshlrev_b32 {v(t3)}, 3, v0
        ds_write_b64 {v(t3)}, {v(D[1]+12,2)} offset:32768
""")

    CBL = L_PB + 16 + 5 * PCS
    U = B5[0]
    DS_, SR_, CB_, RK_, WW_ = U, U + 4, U + 8, U + 12, acc
    h_w1b, h_b1, h_b2, h_cnt, h_stg, h_tr = LC, LC + 1, LC + 2, LC + 3, LC + 4, LC + 5
    h_wc, h_cbl = A5 + 2, A5 + 3
    j_x, j_q, j_w, j_rec, j_tab = 48, 49, 50, 51, 52
    A(f"""
.globl {KERN}
.p2align 8
.type {KERN},@function
{KERN}:
    ; the first wave pulls the kernel's own code towards the caches
    s_getpc_b64 {s(sA,2)}
K_PC2:
    v_lshlrev_b32 {v(t1)}, {os.environ.get("CSH", "7")}, v0
    v_cmp_gt_u32 vcc, K_HOT_END-K_PC2, {v(t1)}
    s_and_b64 exec, exec, vcc
    s_cbranch_execz K_NOCP
    global_load_dword {v(jnk)}, {v(t1)}, {s(sA,2)}
K_NOCP:
    s_mov_b64 exec, -1
    s_cmp_ge_u32 s2, {NB}
    s_cbranch_scc1 K_END
    s_load_dwordx16 s[4:19], s[0:1], 0
    s_load_dwordx4 s[20:23], s[0:1], 64
    s_load_dwordx2 s[24:25], s[0:1], 80
    {TM + " " + s(STR[0],2) if STAMP or DL[0] >= 0 else ""}
    v_lshlrev_b32 {v(t0)}, 4, v0
    v_lshrrev_b32 {v(t1)}, 6, v0
    s_mul_i32 {s(s_o1)}, s2, {CH * 4}
    v_readfirstlane_b32 {s(s_wave)}, {v(t1)}
    v_min_u32 {v(t2)}, {CH * 4 - 16}, {v(t0)}
    v_add_u32 {v(rr)}, {s(s_o1)}, {v(t2)}
    s_and_b32 {s(s_b)}, s2, 7
    s_lshr_b32 {s(s_t)}, s2, 3
    s_lshl4_add_u32 {s(s_t)}, {s(s_b)}, {s(s_t)}
    s_lshl4_add_u32 {s(s_b)}, {s(s_b)}, {s(s_t)}
    ; own x row (tid-640)>>3, swizzled 16-B slot
    v_xor_b32 {v(t1)}, v0, {v(t0)}
    v_and_b32 {v(t1)}, 0x70, {v(t1)}
    v_lshrrev_b32 {v(t3)}, 3, v0
    v_lshl_add_u32 {v(t1)}, {v(t3)}, 15, {v(t1)}
    s_lshl_b32 {s(s_t)}, {s(s_b)}, 7
    s_sub_u32 {s(s_t)}, {s(s_t)}, {80 << 15}
    v_add_u32 {v(t1)}, {s(s_t)}, {v(t1)}
    v_min_u32 {v(t1)}, {N * 128 - 16}, {v(t1)}
    {f"v_and_b32 {v(t3)}, 0x30, v0" if "sw" in OPT else ""}
    {f"v_lshlrev_b32 {v(t3)}, 2, {v(t3)}" if "sw" in OPT else ""}
    {f"v_xor_b32 {v(t3)}, {v(t3)}, {v(t0)}" if "sw" in OPT else ""}
    s_mul_i32 {s(s_t)}, {s(s_wave)}, {PCS}
    s_add_u32 m0, {s(s_t)}, {L_PB + 16 - 10 * PCS}
    s_lshl_b32 {s(s_u)}, {s(s_wave)}, 10
    s_sub_u32 {s(s_t)}, {s(s_wave)}, 10
    s_waitcnt lgkmcnt(0)
""")
    if "s1" in OPT:
        slots = [(2, 0), (2, 1), (0, 0), (4, 0), (10, 0), (10, 1), (10, 2), (5, 0), (1, 0), (1, 1), (1, 2), (6, 0), (7, 0), (8, 0), (3, 0), (3, 1)]
        pt = sum(p << (4 * i) for i, (p, o) in enumerate(slots)); ot = sum(o << (2 * i) for i, (p, o) in enumerate(slots))
        A(f"""
        s_cselect_b32 {s(MK+8)}, 1, 0
        s_cmp_lg_u32 {s(s_wave)}, 15
        s_cbranch_scc1 K_NOS1
        s_bfe_u32 {s(MK)}, s2, 0x40003
        s_mov_b32 {s(MK+2)}, {pt & 0xffffffff}
        s_mov_b32 {s(MK+3)}, {pt >> 32}
        s_lshl_b32 {s(MK+1)}, {s(MK)}, 2
        s_lshr_b64 {s(MK+2,2)}, {s(MK+2,2)}, {s(MK+1)}
        s_and_b32 {s(MK+2)}, {s(MK+2)}, 15
        s_lshl_b32 {s(MK+2)}, {s(MK+2)}, 3
        s_load_dwordx2 {s(MK+4,2)}, s[0:1], {s(MK+2)}
        s_lshl_b32 {s(MK+1)}, {s(MK)}, 1
        s_lshr_b32 {s(MK+1)}, {ot}, {s(MK+1)}
        s_and_b32 {s(MK+1)}, {s(MK+1)}, 3
        s_lshl_b32 {s(MK+1)}, {s(MK+1)}, 21
        s_waitcnt lgkmcnt(0)
        s_load_dword {s(MK+6)}, {s(MK+4,2)}, {s(MK+1)}
K_NOS1:
        s_cmp_lg_u32 {s(MK+8)}, 0
""")
    if "st" in OPT:
        tg = [("s[8:9]", "s2x"), ("s[4:5]", 0), ("s[12:13]", 0), ("s[24:25]", 0), ("s[24:25]", 2 << 20), ("s[24:25]", 4 << 20),
              ("s[14:15]", 0), ("s[6:7]", 0), ("s[6:7]", 2 << 20), ("s[6:7]", 4 << 20), ("s[16:17]", 0), ("s[18:19]", 0)]
        for n_, (b_, o_) in enumerate(tg):
            if o_ == "s2x":
                A(f"s_load_dword {s(MK+n_)}, {b_}, {s(s_o1)}")
            elif o_ == 0:
                A(f"s_load_dword {s(MK+n_)}, {b_}, 0")
            else:
                A(f"s_load_dword {s(MK+n_)}, {b_}, {s(s_o2 if o_ == 2 << 20 else s_o3)}")
    A(f"""
    s_cbranch_scc0 K_XL
    global_load_dwordx4 {v(DS_,4)}, {v(rr)}, s[10:11]
K_XL:
    s_cmp_lt_u32 {s(s_t)}, 5
    s_cbranch_scc0 K_XM
    global_load_lds_dwordx4 {v(t1)}, s[4:5]
K_XM:
    s_add_u32 m0, {s(s_u)}, {L_WA}
    v_and_b32 {v(lane)}, 63, v0
    global_load_lds_dwordx4 {v(t3 if "sw" in OPT else t0)}, s[12:13]
    v_lshlrev_b32 {v(l16)}, 4, {v(lane)}
K_XD:
    {pstamp(7)}
    {"s_mov_b32 " + s(s_x) + ", " + s(STR[0]) if STAMP or DL[0] >= 0 else ""}
""")
    A(f"""
    v_mov_b64 {v(dd,2)}, 0
    v_mov_b64 {v(tt,2)}, 0
    v_add_u32 {v(h_cnt)}, {L_C1}, {v(l16)}
    ds_write_b128 {v(h_cnt)}, {v(dd,4)}
    ds_write_b128 {v(h_cnt)}, {v(dd,4)} offset:2048
    s_cmp_ge_u32 {s(s_wave)}, 10
    s_cbranch_scc1 K_NOSRC
    global_load_dwordx4 {v(SR_,4)}, {v(rr)}, s[8:9]
K_NOSRC:
    s_cmp_lg_u32 {s(s_wave)}, 15
    s_cbranch_scc1 K_NOWCL
    v_add_u32 {v(t1)}, {128 * 256}, {v(l16)}
    global_load_dwordx4 {v(lw,4)}, {v(t1)}, s[12:13]
K_NOWCL:
    v_mov_b32 {v(t1)}, {WS_EPOCH}
    global_load_dword {v(epv)}, {v(t1)}, s[24:25]
""")
    IP = int(os.environ.get("IP", "0"))
    if IP & 1:
        zero_hsum()
    if IP & 2:
        prefill()
    A(f"""
    s_mov_b32 {s(SW)}, s24
    s_and_b32 {s(SW+1)}, s25, 0xffff
    s_mov_b32 {s(SW+2)}, {WS_END}
    s_mov_b32 {s(SW+3)}, 0x20000
    s_mov_b32 {s(SE)}, s6
    s_or_b32 {s(SE+1)}, s7, {8 << 16}
    s_mov_b32 {s(SE+2)}, {E}
    s_mov_b32 {s(SE+3)}, 0x20000
    s_lshl_b32 {s(s_u)}, {s(s_wave)}, 10
    s_add_u32 m0, {s(s_u)}, {L_WB}
    v_add_u32 {v(h_w1b)}, 16384, {v(t0)}
    v_and_b32 {v(t1)}, 15, {v(lane)}
    s_and_b32 {s(s_u)}, {s(s_wave)}, 7
    s_lshl_b32 {s(j_w)}, {s(s_u)}, 5
    v_lshl_add_u32 {v(h_b1)}, {v(t1)}, 1, {s(j_w)}
    v_lshrrev_b32 {v(t1)}, 1, v0
    v_and_b32 {v(h_b2)}, 0x78, {v(t1)}
    s_cmp_ge_u32 {s(s_wave)}, 10
    s_cbranch_scc1 K_PROLE
    v_add_u32 {v(h_stg)}, {L_STG}, {v(t0)}
    v_lshlrev_b32 {v(h_tr)}, 2, v0
    v_add_u32 {v(h_tr)}, {L_C1}, {v(h_tr)}
    s_mul_i32 {s(j_rec)}, s2, {RECB}
    s_lshl_b32 {s(j_tab)}, s2, 12
    s_add_u32 {s(j_tab)}, {s(j_tab)}, {WS_TAB}
    v_lshlrev_b32 {v(WW_)}, 22, v0
    v_add_u32 {v(WW_+1)}, {1 << 20}, {v(WW_)}
    v_add_u32 {v(WW_+2)}, {2 << 20}, {v(WW_)}
    v_add_u32 {v(WW_+3)}, {3 << 20}, {v(WW_)}
    v_mov_b32 {v(t3)}, 4
    s_mov_b32 {s(s_t)}, {L_C1}
    v_cmp_gt_u32 vcc, {CH // 4}, v0
    s_waitcnt lgkmcnt(0)
    s_mov_b64 {s(MK,2)}, vcc
    {pstamp(3) if "pb" in OPT else ""}
    s_barrier
    {pstamp(3) if "pb" not in OPT else ""}
    s_mov_b64 exec, {s(MK,2)}
    s_waitcnt vmcnt(3)
    {pstamp(4)}
""")
    for i in range(4):
        A(f"v_and_b32 {v(CB_+i)}, 255, {v(DS_+i)}")
        A(f"v_lshl_add_u32 {v(CB_+i)}, {v(CB_+i)}, 2, {s(s_t)}")
        A(f"ds_add_rtn_u32 {v(RK_+i)}, {v(CB_+i)}, {v(t3)}")
    for i in range(4):
        A(f"v_lshrrev_b32 {v(DS_+i)}, 8, {v(DS_+i)}")
        A(f"v_or_b32 {v(WW_+i)}, {v(WW_+i)}, {v(DS_+i)}")
    C4, P4 = U + 16, U + 20
    A(f"""
    s_mov_b64 exec, -1
    s_waitcnt vmcnt(2) lgkmcnt(0)
    s_barrier
""")
    stamp(10)
    A(f"""
    ds_read_b128 {v(C4,4)}, {v(h_cnt)}
""")
    A(f"""
    s_waitcnt lgkmcnt(0)
    v_add_u32 {v(DS_+1)}, {v(C4)}, {v(C4+1)}
    v_add_u32 {v(DS_+2)}, {v(DS_+1)}, {v(C4+2)}
    v_add_u32 {v(DS_+3)}, {v(DS_+2)}, {v(C4+3)}
    v_mov_b32 {v(t1)}, {v(DS_+3)}
    s_nop 1
""")
    for d in DPP_SCAN:
        A(f"v_add_u32_dpp {v(t1)}, {v(t1)}, {v(t1)} {d}\ns_nop 1")
    A(f"""
    v_sub_u32 {v(P4)}, {v(t1)}, {v(DS_+3)}
    v_add_u32 {v(P4+1)}, {v(P4)}, {v(C4)}
    v_add_u32 {v(P4+2)}, {v(P4)}, {v(DS_+1)}
    v_add_u32 {v(P4+3)}, {v(P4)}, {v(DS_+2)}
    ds_write_b128 {v(h_cnt)}, {v(P4,4)} offset:1024
    s_mov_b64 exec, {s(MK,2)}
    s_mov_b32 {s(s_t)}, {L_STG}
""")
    for i in range(4):
        A(f"ds_read_b32 {v(DS_+i)}, {v(CB_+i)} offset:1024")
    A(ystamp(8) + "\ns_waitcnt vmcnt(0)\n" + ystamp(9))
    A(f"v_readfirstlane_b32 {s(s_tag)}, {v(epv)}")
    for i in range(4):
        A(f"v_lshl_add_u32 {v(WW_+i)}, {v(SR_+i)}, 6, {v(WW_+i)}")
    A(f"""
    s_mul_i32 {s(s_to)}, {s(s_tag)}, 0x9e3779b1
    s_add_u32 {s(s_to)}, {s(s_to)}, 0x7f4a7c15
    s_cmp_eq_u32 {s(s_to)}, {s(s_tag)}
    s_addc_u32 {s(s_tag)}, {s(s_to)}, 0
    s_mov_b32 {s(s_to)}, 0x40000
""")
    if "mx" in OPT:
        A([f"v_add_u32 {v(WW_+i)}, {s(s_tag)}, {v(WW_+i)}" for i in range(4)])
    for i in range(4):
        A(f"s_waitcnt lgkmcnt(3)")
        A(f"v_add3_u32 {v(DS_+i)}, {v(DS_+i)}, {v(RK_+i)}, {s(s_t)}")
        A(f"ds_write_b32 {v(DS_+i)}, {v(WW_+i)}")
    for i in range(4):
        A(f"ds_add_u32 {v(CB_+i)}, {v(WW_+i)} offset:2048")
    A(f"""
    s_mov_b64 exec, -1
    global_load_lds_dwordx4 {v(h_w1b)}, s[12:13]
    global_load_ushort {v(qa)}, {v(h_b1)}, s[14:15]
    global_load_dwordx2 {v(b2r,2)}, {v(h_b2)}, s[18:19]
    v_mov_b32 {v(C4+1)}, {s(s_tag)}
    v_mov_b32 {v(C4+3)}, {s(s_tag)}
    s_cmp_ge_u32 {s(s_wave)}, 4
    s_waitcnt lgkmcnt(0)
    {ystamp(3)}
    s_barrier
    {ystamp(4)}
    ds_read_b128 {v(DS_,4)}, {v(h_stg)}
    s_cbranch_scc1 K_NOTABR
    ds_read2st64_b32 {v(P4,2)}, {v(h_tr)} offset0:0 offset1:4
    ds_read_b32 {v(C4+2)}, {v(h_tr)} offset:2048
K_NOTABR:
    s_waitcnt lgkmcnt(0)
    buffer_store_dwordx4 {v(DS_,4)}, {v(t0)}, {s(SW,4)}, {s(j_rec)} offen {SC}
    s_cbranch_scc1 K_AJOIN
    v_lshl_or_b32 {v(C4)}, {v(P4)}, 16, {v(P4+1)}
    buffer_store_dwordx4 {v(C4,4)}, {v(t0)}, {s(SW,4)}, {s(j_tab)} offen {SC}
    s_branch K_AJOIN
K_PROLE:
    ; ================= P role (waves 10..13 compute, 10..15 copy out) =================
    s_waitcnt lgkmcnt(0)
    s_barrier
    v_and_b32 {v(t1)}, 31, {v(lane)}
    v_lshrrev_b32 {v(t2)}, 5, {v(lane)}
    s_sub_u32 {s(s_u)}, {s(s_wave)}, 10
    s_lshl_b32 {s(s_t)}, {s(s_u)}, 6
    s_add_u32 {s(s_t)}, {s(s_t)}, {L_WA}
    v_bfe_u32 {v(nn)}, {v(lane)}, 2, 2
    {f"v_xor_b32 {v(rr)}, {s(s_u)}, {v(nn)}" if "sw" in OPT else ""}
    {f"s_mov_b32 {s(s_t)}, {L_WA}" if "sw" in OPT else ""}
    v_lshl_add_u32 {v(nn)}, {v(t2)}, 3, {v(nn)}
    v_lshlrev_b32 {v(nn)}, 8, {v(nn)}
    v_and_b32 {v(t3)}, 1, {v(lane)}
    v_lshl_add_u32 {v(nn)}, {v(t3)}, 5, {v(nn)}
    v_and_b32 {v(t3)}, 16, {v(lane)}
    v_add3_u32 {v(nn)}, {v(nn)}, {v(t3)}, {s(s_t)}
    v_and_b32 {v(t3)}, 2, {v(lane)}
    v_lshl_add_u32 {v(nn)}, {v(t3)}, 2, {v(nn)}
    {f"v_lshl_add_u32 {v(nn)}, {v(rr)}, 6, {v(nn)}" if "sw" in OPT else ""}
    v_lshrrev_b32 {v(t3)}, 3, {v(t1)}
    v_lshlrev_b32 {v(nn+1)}, 7, {v(t1)}
    v_lshl_add_u32 {v(nn+1)}, {v(t3)}, 4, {v(nn+1)}
    v_add_u32 {v(nn+1)}, {L_PB + 16}, {v(nn+1)}
    v_bfe_u32 {v(t3)}, {v(lane)}, 1, 3
    v_xor_b32 {v(t3)}, {v(t3)}, {v(t2)}
""")
    for q in range(4):
        A(f"v_xor_b32 {v(acc+q)}, {2*q}, {v(t3)}")
        A(f"v_lshl_add_u32 {v(acc+q)}, {v(acc+q)}, 4, {v(nn+1)}")
    A(f"""
    v_mul_u32_u24 {v(nn+1)}, 272, {v(t1)}
    v_lshl_add_u32 {v(nn+1)}, {v(t2)}, 5, {v(nn+1)}
    s_lshl_b32 {s(s_t)}, {s(s_u)}, 6
    v_add_u32 {v(nn+1)}, {s(s_t)}, {v(nn+1)}
    ; copy-out: u = tid - 640 (+384): row = u>>4, piece = u&15
    v_subrev_u32 {v(t1)}, 640, v0
    v_lshrrev_b32 {v(t2)}, 4, {v(t1)}
    v_and_b32 {v(t3)}, 0xf0, {v(l16)}
    v_mul_u32_u24 {v(dd)}, 272, {v(t2)}
    v_add_u32 {v(dd)}, {v(dd)}, {v(t3)}
    v_and_b32 {v(t3)}, 0x70, {v(l16)}
    v_lshl_add_u32 {v(dd+1)}, {v(t2)}, 15, {v(t3)}
    s_lshl_b32 {s(s_t)}, {s(s_b)}, 7
    v_add_u32 {v(dd+1)}, {s(s_t)}, {v(dd+1)}
    v_add_u32 {v(tt)}, {24 << 15}, {v(dd+1)}
    v_bfe_u32 {v(t3)}, {v(lane)}, 3, 1
    v_mul_u32_u24 {v(t3)}, {N * 128}, {v(t3)}
    v_add_u32 {v(t3)}, {WS_P}, {v(t3)}
    v_cmp_gt_u32 vcc, {N * 128}, {v(tt)}
    v_add_u32 {v(dd+1)}, {v(dd+1)}, {v(t3)}
    v_add_u32 {v(tt)}, {v(tt)}, {v(t3)}
    s_mov_b32 {s(sA)}, {f32(-LOG2E)}
    s_mov_b32 {s(sB)}, {f32(-LOG2E)}
    s_mov_b64 {s(MK,2)}, vcc
    {"s_setprio 2" if "pp" in OPT else ""}
""")
    EP0 = int(os.environ.get("EP0", "0"))
    if EP0:
        A(f"""
        s_cmp_lg_u32 {s(s_wave)}, 14
        s_cbranch_scc1 K_NOEP0
        s_lshr_b32 {s(s_t)}, s2, 3
        s_mul_i32 {s(s_t)}, {s(s_t)}, {EP0 * 1024}
        s_add_u32 {s(s_t)}, {s(s_t)}, 320000
        v_add_u32 {v(t1)}, {s(s_t)}, {v(l16)}
""")
        for k in range(EP0):
            A(f"buffer_load_dword {v(jnk)}, {v(t1)}, {s(SE,4)}, 0 idxen\nv_add_u32 {v(t1)}, 1024, {v(t1)}")
        A(f"s_waitcnt vmcnt({1 + EP0})\ns_branch K_EP0D\nK_NOEP0:")
    A(f"""
    s_waitcnt vmcnt(1)
K_EP0D:
    s_barrier
    global_load_lds_dwordx4 {v(h_w1b)}, s[12:13]
    global_load_ushort {v(qa)}, {v(h_b1)}, s[14:15]
    global_load_dwordx2 {v(b2r,2)}, {v(h_b2)}, s[18:19]
    s_cmp_ge_u32 {s(s_wave)}, 14
    s_cbranch_scc1 K_PWC
""")
    WF, XA, XB2, D0 = U, U + 16, U + 32, U + 48
    for q in range(4):
        A(f"ds_read_b128 {v(XA+4*q,4)}, {v(acc+q)}")
        for h2 in range(2):
            A(f"ds_read_b64_tr_b16 {v(WF+4*q+2*h2,2)}, {v(nn)} offset:{(16*q+4*h2)*256}")
    for q in range(4):
        A(f"ds_read_b128 {v(XB2+4*q,4)}, {v(acc+q)} offset:{4*PCS}")
    for q in range(4):
        A(f"s_waitcnt lgkmcnt({13 - 3*q})")
        A(f"v_mfma_f32_32x32x16_bf16 {v(D0,16)}, {v(WF+4*q,4)}, {v(XA+4*q,4)}, {'0' if q == 0 else v(D0,16)}")
    for q in range(4):
        A(f"s_waitcnt lgkmcnt({3 - q})")
        A(f"v_mfma_f32_32x32x16_bf16 {v(XA,16)}, {v(WF+4*q,4)}, {v(XB2+4*q,4)}, {'0' if q == 0 else v(XA,16)}")
    A("s_nop 3")
    for r in range(16):
        A(f"v_mul_f32 {v(D0+r)}, {s(sA)}, {v(D0+r)}")
    for r in range(8):
        A(f"v_cvt_pk_bf16_f32 {v(D0+r)}, {v(D0+2*r)}, {v(D0+2*r+1)}")
    A(f"""
    ds_write_b128 {v(nn+1)}, {v(D0,4)} offset:{L_PO}
    ds_write_b128 {v(nn+1)}, {v(D0+4,4)} offset:{L_PO + 16}
""")
    for r in range(0, 16, 2):
        A(f"v_pk_mul_f32 {v(XA+r,2)}, {v(XA+r,2)}, {s(sA,2)}")
    for r in range(8):
        A(f"v_cvt_pk_bf16_f32 {v(XA+r)}, {v(XA+2*r)}, {v(XA+2*r+1)}")
    A(f"""
    ds_write_b128 {v(nn+1)}, {v(XA,4)} offset:{L_PO + 32*272}
    ds_write_b128 {v(nn+1)}, {v(XA+4,4)} offset:{L_PO + 32*272 + 16}
    s_branch K_PB3
K_PWC:
    s_getpc_b64 {s(MK+2,2)}
K_PC:
    s_add_u32 {s(MK+2)}, {s(MK+2)}, K_TABLE-K_PC
    s_addc_u32 {s(MK+3)}, {s(MK+3)}, 0
    s_and_b32 {s(s_t)}, {s(s_wave)}, 1
    s_mul_i32 {s(s_u)}, {s(s_t)}, {2*PCS}
    s_add_u32 m0, {s(s_u)}, {CBL}
    s_lshl_b32 {s(s_t)}, {s(s_t)}, 11
    v_add_u32 {v(t1)}, {s(s_t)}, {v(l16)}
    global_load_lds_dwordx4 {v(t1)}, {s(MK+2,2)}
    s_add_u32 m0, m0, {PCS - 1024}
    s_nop 0
    global_load_lds_dwordx4 {v(t1)}, {s(MK+2,2)} offset:1024
    s_cmp_eq_u32 {s(s_wave)}, 14
    s_cbranch_scc1 K_EPF
    v_lshrrev_b32 {v(t1)}, 4, {v(lane)}
    v_mul_u32_u24 {v(t1)}, 320, {v(t1)}
    v_and_b32 {v(t2)}, 0xf0, {v(l16)}
    v_add_u32 {v(t1)}, {v(t1)}, {v(t2)}
    v_add_u32 {v(t1)}, {L_WC}, {v(t1)}
""")
    for i in range(4):
        A(f"v_lshlrev_b32 {v(U+2*i)}, 16, {v(lw+i)}")
        A(f"v_and_b32 {v(U+2*i+1)}, 0xffff0000, {v(lw+i)}")
    for i in range(4):
        A(f"v_pk_mul_f32 {v(U+2*i,2)}, {v(U+2*i,2)}, {s(sA,2)}")
    for i in range(8):
        A(f"v_and_b32 {v(U+8+i)}, 0xffff0000, {v(U+i)}")
    for i in range(8):
        A(f"v_sub_f32 {v(U+i)}, {v(U+i)}, {v(U+8+i)}")
    for i in range(4):
        A(f"v_cvt_pk_bf16_f32 {v(U+16+i)}, {v(U+8+2*i)}, {v(U+9+2*i)}")
        A(f"v_cvt_pk_bf16_f32 {v(U+20+i)}, {v(U+2*i)}, {v(U+1+2*i)}")
    A(f"""
    ds_write_b128 {v(t1)}, {v(U+16,4)}
    ds_write_b128 {v(t1)}, {v(U+20,4)} offset:{8*320}
    s_branch K_PB3
K_EPF:
""")
    EPF = int(os.environ.get("EPF", "0"))
    EPX = int(os.environ.get("EPX", "0"))
    if EPF:
        if EPX:
            A(f"s_lshr_b32 {s(s_t)}, s2, 3\ns_mul_i32 {s(s_t)}, {s(s_t)}, {EPF * 1024}")
        else:
            A(f"s_mul_i32 {s(s_t)}, s2, {CH}")
        A(f"v_add_u32 {v(t1)}, {s(s_t)}, {v(l16)}")
        for k in range(EPF):
            A(f"buffer_load_dword {v(jnk)}, {v(t1)}, {s(SE,4)}, 0 idxen\nv_add_u32 {v(t1)}, 1024, {v(t1)}")
    A(f"""
K_PB3:
    s_waitcnt lgkmcnt(0)
    {ystamp(3)}
    s_barrier
""")
    pst = f"""
    buffer_store_dwordx4 {v(D[0],4)}, {v(dd+1)}, {s(SW,4)}, 0 offen {SC}
    s_cmp_ge_u32 {s(s_wave)}, 14
    s_cbranch_scc1 K_PSD
    s_mov_b64 exec, {s(MK,2)}
    s_waitcnt lgkmcnt(0)
    buffer_store_dwordx4 {v(D[0]+4,4)}, {v(tt)}, {s(SW,4)}, 0 offen {SC}
    s_mov_b64 exec, -1
K_PSD:
"""
    A(f"""
    ds_read_b128 {v(D[0],4)}, {v(dd)} offset:{L_PO}
    ds_read_b128 {v(D[0]+4,4)}, {v(dd)} offset:{L_PO + 24*272}
    s_waitcnt lgkmcnt(1)
""")
    if "pd" not in OPT:
        A(pst)
    else:
        A("s_waitcnt vmcnt(0)")
    A(f"""
K_AJOIN:
""")
    stamp(7)
    TR = D[0]
    if not IP & 1:
        zero_hsum()
    if not IP & 2:
        prefill()
    A(tab_pre())
    A(f"""
    s_add_u32 {s(SP0)}, s24, {WS_P - 3*PCS}
    s_addc_u32 {s(SP0+1)}, s25, {2 << 16}
    s_mov_b32 {s(SP0+2)}, {N * 64}
    s_mov_b32 {s(SP0+3)}, 0x20000
    s_add_u32 {s(SP1)}, s24, {WS_P - 3*PCS + N*128}
    s_addc_u32 {s(SP1+1)}, s25, {2 << 16}
    s_mov_b32 {s(SP1+2)}, {N * 64}
    s_mov_b32 {s(SP1+3)}, 0x20000
    s_movk_i32 {s(s_o3)}, {3*PCS}
    s_movk_i32 {s(s_o2)}, {2*PCS}
    s_movk_i32 {s(s_o1)}, {PCS}
    s_mov_b32 {s(s_msk)}, 0xfffc0
    s_mov_b32 {s(s_safe)}, 0
    s_mov_b32 {s(s_slow)}, 0
    s_mul_i32 {s(s_m0)}, {s(s_wave)}, {PBW}
    s_add_u32 {s(s_m0)}, {s(s_m0)}, {L_PB + 16}
    v_lshrrev_b32 {v(t2)}, 5, {v(lane)}
    v_bfe_u32 {v(t3)}, {v(lane)}, 2, 2
    v_lshl_add_u32 {v(t2)}, {v(t2)}, 3, {v(t3)}
    v_mul_u32_u24 {v(t2)}, 320, {v(t2)}
    v_and_b32 {v(t3)}, 16, {v(lane)}
    v_lshl_add_u32 {v(t2)}, {v(t3)}, 1, {v(t2)}
    v_and_b32 {v(t3)}, 3, {v(lane)}
    v_lshl_add_u32 {v(t2)}, {v(t3)}, 3, {v(t2)}
    v_add_u32 {v(h_wc)}, {L_WC}, {v(t2)}
    v_add_u32 {v(h_cbl)}, {CBL}, {v(l16)}
    s_lshr_b32 {s(s_t)}, {s(s_wave)}, 3
    s_mul_i32 {s(j_x)}, {s(s_t)}, {2*PCS}
    s_lshl_b32 {s(s_t)}, {s(s_t)}, 13
    s_lshl_b32 {s(s_u)}, {s(j_w)}, 1
    s_add_u32 {s(j_q)}, {s(s_t)}, {s(s_u)}
""")
    A(f"""
    {"s_setprio 0" if "pp" in OPT and "pq" not in OPT else ""}
    s_mov_b32 m0, {s(s_m0)}
    s_cmp_lt_u32 {s(s_wave)}, 4
    s_cbranch_scc1 K_J2
    s_sub_u32 {s(sB)}, {s(s_wave)}, 10
    s_cmp_lt_u32 {s(sB)}, 4
    s_cbranch_scc1 K_J2
    s_waitcnt vmcnt(1)
K_J2:
    s_waitcnt vmcnt(2) lgkmcnt(0)
    s_barrier
""")
    stamp(8)
    A(f"""
    s_cmp_lt_u32 {s(s_wave)}, 10
    s_cbranch_scc1 K_TAGD
    v_readfirstlane_b32 {s(s_tag)}, {v(epv)}
    s_nop 0
    s_mul_i32 {s(s_to)}, {s(s_tag)}, 0x9e3779b1
    s_add_u32 {s(s_to)}, {s(s_to)}, 0x7f4a7c15
    s_cmp_eq_u32 {s(s_to)}, {s(s_tag)}
    s_addc_u32 {s(s_tag)}, {s(s_to)}, 0
    s_mov_b32 {s(s_to)}, 0x40000
K_TAGD:
""")
    if "pd" in OPT:
        A(f"s_cmp_lt_u32 {s(s_wave)}, 10\ns_cbranch_scc1 K_PSD\n" + pst)
    for k in range(4):
        A(f"ds_read_b128 {v(LC+4*k,4)}, {v(h_cbl)} offset:{k*PCS}")
    A(f"""
    s_waitcnt lgkmcnt(3)
    v_add_u32 {v(la_w)}, {s(j_x)}, {v(la_w)}
    v_add_u32 {v(la_e)}, {s(j_x)}, {v(la_e)}
    v_add_u32 {v(le)}, {s(j_w)}, {v(le)}
    v_add_u32 {v(ha)}, {s(j_q)}, {v(tab)}
    ds_read_b128 {v(QA,4)}, {v(la_w)}
    ds_read_b128 {v(QA+4,4)}, {v(la_e)}
""")
    for ks in range(2):
        for h2 in range(2):
            A(f"ds_read_b64_tr_b16 {v(QB+4*ks+2*h2,2)}, {v(le)} offset:{(32*ks + 4*h2)*256}")
    A(f"""
    ds_read_b128 {v(QA2,4)}, {v(la_w)} offset:{4*PCS}
    ds_read_b128 {v(QA2+4,4)}, {v(la_e)} offset:{4*PCS}
""")
    for n in range(4):
        A(f"ds_read_b64_tr_b16 {v(B5[n],2)}, {v(h_wc)} offset:{64*n}")
    A("s_waitcnt lgkmcnt(12)")
    for a in (TA[0][0], TA[0][1], TA[1][0], TA[1][1]):
        A(f"v_add_u32 {v(a)}, {s(s_m0)}, {v(a)}")
    A(f"""
    s_mov_b32 {s(s_t)}, {f32(-LOG2E)}
    v_lshlrev_b32 {v(qa)}, 16, {v(qa)}
    v_mul_f32 {v(qa)}, {s(s_t)}, {v(qa)}
    s_waitcnt lgkmcnt(4)
    v_mfma_f32_16x16x32_bf16 {v(QD,4)}, {v(QA,4)}, {v(QB,4)}, 0
    v_mfma_f32_16x16x32_bf16 {v(QD,4)}, {v(QA+4,4)}, {v(QB+4,4)}, {v(QD,4)}
    v_mfma_f32_16x16x32_bf16 {v(QD+4,4)}, {v(QA2,4)}, {v(QB,4)}, 0
    v_mfma_f32_16x16x32_bf16 {v(QD+4,4)}, {v(QA2+4,4)}, {v(QB+4,4)}, {v(QD+4,4)}
""")

    def qpart(base, off):
        for r in range(4):
            A(f"v_fma_f32 {v(base+r)}, {v(base+r)}, {s(s_t)}, {v(qa)}")
        for r in range(4):
            A(f"v_and_b32 {v(QA+r)}, 0xffff0000, {v(base+r)}")
        for r in range(4):
            A(f"v_sub_f32 {v(base+r)}, {v(base+r)}, {v(QA+r)}")
        for r in range(4):
            A(f"v_cvt_pk_bf16_f32 {v(base+r)}, {v(QA+r)}, {v(base+r)}")
        for r in range(0, 4, 2):
            A(f"ds_write2st64_b32 {v(ha)}, {v(base+r)}, {v(base+r+1)} offset0:{(off + r*512)//256} offset1:{(off + r*512 + 512)//256}")
    def pfnew():
        poll("A")
        stamp(9)
        rec_loads("A")
        A(f"""
    v_and_b32 {v(tba)}, {"0xff" if "pf4" in OPT else "0x3fc"}, v0
    v_lshlrev_b32 {v(tba)}, {6 if "pf4" in OPT else 4}, {v(tba)}
    v_add_u32 {v(tba)}, {WS_PF}, {v(tba)}
    s_cmp_lt_u32 {s(s_wave)}, 10
    s_cbranch_scc1 K_VERA
    ; this wave's P stores are complete (the poll waited for them): the last of the six waves publishes the flag
    s_mov_b64 exec, 1
    v_mov_b32 {v(t2)}, {L_FLAG + 8}
    v_mov_b32 {v(t3)}, 1
    ds_add_rtn_u32 {v(t2)}, {v(t2)}, {v(t3)}
    s_mov_b64 exec, -1
    v_mov_b32 {v(t3)}, {s(s_tag)}
    v_lshlrev_b32 {v(lw)}, 2, {v(lane)}
    s_lshl_b32 {s(sA)}, s2, 6
    s_add_u32 {s(sA)}, {s(sA)}, {WS_PF}
    s_waitcnt lgkmcnt(0)
    v_readfirstlane_b32 {s(s_u)}, {v(t2)}
    s_cmp_lg_u32 {s(s_u)}, 5
    s_cbranch_scc1 K_VERA
    s_mov_b64 exec, 0xffff
    buffer_store_dword {v(t3)}, {v(lw)}, {s(SW,4)}, {s(sA)} offen {SC}
    s_mov_b64 exec, -1
    s_waitcnt vmcnt(1)
    s_branch K_VER1A
""")

    A("s_nop 5")
    qpart(QD, 0)
    A(f"s_cmp_ge_u32 {s(s_wave)}, 8\ns_cbranch_scc1 K_QD\ns_mov_b32 exec_hi, 0")
    qpart(QD + 4, 32 * 512)
    A(f"""
    s_mov_b32 exec_hi, -1
""")
    if os.environ.get("PFV", "0") == "1":
        A("K_QD:")
        pfnew()
    else:
        A(f"""
K_QD:
    s_cmp_lt_u32 {s(s_wave)}, 10
    s_cbranch_scc1 K_POLL1A
    s_mov_b64 exec, 1
    v_mov_b32 {v(t2)}, {L_FLAG + 8}
    v_mov_b32 {v(t3)}, 1
    s_waitcnt vmcnt(0)
    ds_add_rtn_u32 {v(t2)}, {v(t2)}, {v(t3)}
    s_mov_b64 exec, -1
    buffer_load_dwordx3 {v(rem,3)}, {v(tba)}, {s(SW,4)}, 0 offen {SC}
    v_mov_b32 {v(t3)}, {s(s_tag)}
    v_lshlrev_b32 {v(lw)}, 2, {v(lane)}
    s_lshl_b32 {s(sA)}, s2, 6
    s_add_u32 {s(sA)}, {s(sA)}, {WS_PF}
    s_waitcnt lgkmcnt(0)
    v_readfirstlane_b32 {s(s_u)}, {v(t2)}
    s_cmp_lg_u32 {s(s_u)}, 5
    s_cbranch_scc1 K_POLL2A
    s_mov_b64 exec, 0xffff
    buffer_store_dword {v(t3)}, {v(lw)}, {s(SW,4)}, {s(sA)} offen {SC}
    s_mov_b64 exec, -1
    s_waitcnt vmcnt(1)
    s_branch K_POLL3A
""")
        poll("A", None)
        stamp(9)
        rec_loads("A")
        A(f"""
    v_and_b32 {v(tba)}, {"0xff" if "pf4" in OPT else "0x3fc"}, v0
    v_lshlrev_b32 {v(tba)}, {6 if "pf4" in OPT else 4}, {v(tba)}
    v_add_u32 {v(tba)}, {WS_PF}, {v(tba)}
""")
    verify("A")
    PV = int(os.environ.get("PV", "0"))
    if PV:
        A(f"""
        s_cmp_lt_u32 {s(s_wave)}, 4
        s_cbranch_scc1 K_NOPV
        s_lshr_b32 {s(s_t)}, s2, 3
        s_mul_i32 {s(s_t)}, {s(s_t)}, 12
        s_add_u32 {s(s_t)}, {s(s_t)}, {s(s_wave)}
        s_mul_i32 {s(s_t)}, {s(s_t)}, {PV * 128}
        s_add_u32 {s(s_t)}, {s(s_t)}, {WS_P - 4 * PV * 128 + int(os.environ.get("PVO", "0"))}
        v_lshlrev_b32 {v(t2)}, 7, {v(lane)}
        s_mov_b64 exec, {(1 << PV) - 1}
        buffer_load_dword {v(jnk)}, {v(t2)}, {s(SW,4)}, {s(s_t)} offen {SC}
        s_mov_b64 exec, -1
K_NOPV:
""")
    EV = int(os.environ.get("EV", "0"))
    EO = int(os.environ.get("EO", "0"))
    if EV:
        A(f"""
        s_cmp_lt_u32 {s(s_wave)}, 4
        s_cbranch_scc1 K_NOEV
        s_mul_i32 {s(s_t)}, s2, {CH}
        s_mul_i32 {s(s_u)}, {s(s_wave)}, {EV * 16}
        s_add_u32 {s(s_t)}, {s(s_t)}, {s(s_u)}
        s_add_u32 {s(s_t)}, {s(s_t)}, {(EO * 16 - 4 * EV * 16) & 0xffffffff}
        v_add_u32 {v(t2)}, {s(s_t)}, {v(l16)}
        s_mov_b64 exec, {(1 << EV) - 1}
        buffer_load_dword {v(jnk)}, {v(t2)}, {s(SE,4)}, 0 idxen
        s_mov_b64 exec, -1
K_NOEV:
""")
    NWM = NWB = 0

    def p1words(xs):
        for x in xs:
            A(f"v_lshlrev_b32_sdwa {v(CA+x)}, 2, {v(CW+x)} dst_sel:BYTE_0 dst_unused:UNUSED_PAD src0_sel:DWORD src1_sel:DWORD")
        for x in xs:
            A(f"s_mov_b64 exec, {s(MK+2*x,2)}")
            A(f"ds_add_rtn_u32 {v(RK+x)}, {v(CA+x)}, {v(t3)} offset:{L_CNT}")
        A("s_mov_b64 exec, -1")

    LO = [0, 1, 2, 3]
    HI = [4, 5, 6, 7]
    A(warm("q1", 128, 0))
    A(f"K_PASS1:\nv_mov_b32 {v(t3)}, 4")
    stamp(1)
    A(warm("p0", 0, 5) + warm("p1", 128, 5))
    p1words(LO)
    A(f"""
    s_cmp_lg_u32 {s(s_hi)}, 0
    s_cbranch_scc1 K_HI1
K_HB1:
""")
    for x in LO:
        if "e2" in OPT:
            A(f"v_add_u32 {v(EI+x)}, {x}, {v(EB)}")
            continue
        A(f"v_lshrrev_b32 {v(EI+x)}, 20, {v(CW+x)}")
        A(f"v_add_u32 {v(EI+x)}, {v(EI+x)}, {v(EB)}")
    stamp(2)
    A(f"""
    v_lshlrev_b32 {v(t0)}, 2, {v(lane)}
    v_mov_b32 {v(t2)}, {L_FLAG}
    {"s_setprio 0" if "pq" in OPT else ""}
    s_waitcnt lgkmcnt(0)
    s_barrier
    {zstamp(10)}
    ds_read_b32 {v(t1)}, {v(t0)} offset:{L_CNT}
    ds_read_b32 {v(t2)}, {v(t2)}
""")
    if "pfl" in OPT:
        pass
    elif "pf4" in OPT:
        A(f"s_cmp_ge_u32 {s(s_wave)}, 4\ns_cbranch_scc1 K_NPFL\nbuffer_load_dword {v(epv)}, {v(tba)}, {s(SW,4)}, 0 offen {SC}\nK_NPFL:")
    elif "nopf" not in OPT:
        A(f"buffer_load_dword {v(epv)}, {v(tba)}, {s(SW,4)}, 0 offen {SC}")
    else:
        A(f"v_mov_b32 {v(epv)}, {s(s_tag)}")
    A(warm("r0", 0, 0))
    A(f"""
    s_waitcnt lgkmcnt(1)
    v_add_u32 {v(t3)}, 31, {v(t1)}
    v_and_b32 {v(t3)}, -32, {v(t3)}
    v_mov_b32 {v(t0)}, {v(t3)}
    s_nop 1
""")
    for d in DPP_SCAN:
        A(f"v_add_u32_dpp {v(t0)}, {v(t0)}, {v(t0)} {d}\ns_nop 1")
    A(f"""
    v_readlane_b32 {s(sB)}, {v(t0)}, 63
    v_sub_u32 {v(t0)}, {v(t0)}, {v(t3)}
    v_add_u32 {v(t0)}, {L_LA}, {v(t0)}
""")
    A(f"s_waitcnt lgkmcnt(0)\ns_cmp_eq_u32 {s(s_hi)}, 0\ns_cbranch_scc1 K_NOHB")
    for x in HI:
        A(f"ds_bpermute_b32 {v(CA+x)}, {v(CA+x)}, {v(t0)}")
    A("K_NOHB:")
    for x in LO:
        A(f"ds_bpermute_b32 {v(CA+x)}, {v(CA+x)}, {v(t0)}")
    A(f"""
    {f"buffer_load_dword {v(epv)}, {v(tba)}, {s(SW,4)}, 0 offen {SC}" if "pfl" in OPT else ""}
    v_readfirstlane_b32 {s(sA)}, {v(t2)}
    v_lshrrev_b32 {v(t2)}, 4, {v(lane)}
    s_cmp_gt_u32 {s(sB)}, {CAPB}
    s_cselect_b32 {s(s_t)}, 1, 0
    s_or_b32 {s(sA)}, {s(sA)}, {s(s_t)}
    s_cbranch_scc1 K_GOSLOW
    v_add_u32 {v(deg)}, {v(deg)}, {v(t1)}
    s_add_u32 {s(sB)}, {s(sB)}, 127
    s_lshr_b32 {s(sB)}, {s(sB)}, 7
    s_add_u32 {s(s_rem)}, {s(sB)}, {NWV - 1}
    s_sub_u32 {s(s_rem)}, {s(s_rem)}, {s(s_wave)}
    s_lshr_b32 {s(s_rem)}, {s(s_rem)}, 4
    s_lshr_b32 {s(s_t)}, {s(sB)}, 4
    s_mul_i32 {s(s_t)}, {s(s_t)}, {s(s_wave)}
    s_and_b32 {s(sB)}, {s(sB)}, {NWV - 1}
    s_min_u32 {s(sB)}, {s(sB)}, {s(s_wave)}
    s_add_u32 {s(s_t)}, {s(s_t)}, {s(sB)}
    s_lshl_b32 {s(s_t)}, {s(s_t)}, 7
    s_lshl_b32 {s(s_u)}, {s(s_rem)}, 5
    s_waitcnt lgkmcnt(0)
    {zstamp(7)}
""")
    for x in LO:
        A(f"v_add_u32 {v(CA+x)}, {v(CA+x)}, {v(RK+x)}")
    for x in LO:
        A(f"s_mov_b64 exec, {s(MK+2*x,2)}")
        A(f"ds_write2st64_b32 {v(CA+x)}, {v(CW+x)}, {v(EI+x)} offset0:0 offset1:{NE*4//256}")
    A(f"""
    s_mov_b64 exec, -1
    s_cmp_lg_u32 {s(s_hi)}, 0
    s_cbranch_scc1 K_HI2
K_HB2:
    s_cmp_lg_u32 {s(s_wave)}, 15
    s_cbranch_scc1 K_NOGAP
    v_mul_u32_u24 {v(t3)}, {PCS}, {v(lane)}
    v_add_u32 {v(t3)}, {L_PB}, {v(t3)}
    v_mov_b64 {v(nn,2)}, 0
    v_mov_b64 {v(dd,2)}, 0
    ds_write_b128 {v(t3)}, {v(nn,4)}
    ds_write_b128 {v(t3)}, {v(nn,4)} offset:{PCS}
K_NOGAP:
    v_mul_u32_u24 {v(t2)}, {s(s_u)}, {v(t2)}
    v_add3_u32 {v(la_w)}, {v(t2)}, {v(cw0)}, {s(s_t)}
    v_mul_u32_u24 {v(la_e)}, {s(s_u)}, {v(grp)}
    v_add3_u32 {v(la_e)}, {v(la_e)}, {v(ce0)}, {s(s_t)}
    v_add3_u32 {v(tab)}, {v(tb0)}, {v(t2)}, {s(s_t)}
    {zstamp(8)}
    {f"s_cmp_ge_u32 {s(s_wave)}, 4" if "pf4" in OPT else ""}
    {"s_cbranch_scc1 K_PFD" if "pf4" in OPT else ""}
    s_waitcnt vmcnt({int("r0" in OPT)})
K_PFC:
    v_cmp_ne_u32 vcc, {s(s_tag)}, {v(epv)}
    s_cbranch_vccnz K_PFR
    {zstamp(9)}
""")
    WO = int(os.environ.get("WO", "0"))
    WN = int(os.environ.get("WN", "4"))
    WB0 = int(os.environ.get("WB0", "0"))
    if WO:
        A(f"""
        s_sub_u32 {s(sA)}, {s(s_wave)}, {WB0}
        s_cmp_ge_u32 {s(sA)}, {WN}
        s_cbranch_scc1 K_NOWO
        s_lshr_b32 {s(sA)}, s2, 3
        s_mul_i32 {s(sA)}, {s(sA)}, {WO * WN * 8192}
        s_add_u32 {s(sA)}, {s(sA)}, {WS_P - WB0 * 8192}
        v_lshlrev_b32 {v(nn)}, 7, v0
""")
        for k in range(WO):
            A(f"buffer_load_dword {v(jnk)}, {v(nn)}, {s(SW,4)}, {s(sA)} offen {SC}\ns_add_u32 {s(sA)}, {s(sA)}, {WN * 8192}")
        A("K_NOWO:")
    A(f"""
K_PFD:
    s_waitcnt lgkmcnt(0)
    s_barrier
""")
    stamp(3)
    if "tl" in OPT:
        A(f"v_mov_b32 {v(tl)}, 0\nv_writelane_b32 {v(tl)}, {s(STR[3])}, 0\ns_mov_b32 s95, 1")
    if "p3" in OPT:
        A("s_setprio 3")

    def dma(u):
        so = [s(s_o3), s(s_o2), s(s_o1), "0"]
        srd = SP0 if u == 0 else SP1
        return [f"buffer_load_dwordx4 {v(lw+q)}, {s(srd,4)}, {so[q]} idxen offset:{q*PCS} {os.environ.get('PSC', 'sc1')} lds" for q in range(4)]

    def idx():
        return [f"v_and_or_b32 {v(lw+q)}, {v(lw+q)}, {s(s_msk)}, {v(dq)}" for q in range(4)]

    def eload():
        return f"buffer_load_dwordx2 {v(A5,2)}, {v(le)}, {s(SE,4)}, 0 idxen " + os.environ.get("ESC", "")

    def ohcmp():
        return f"v_cmp_gt_u32 vcc, {s(s_ne)}, {v(le)}"

    def ohsel():
        return [f"v_cndmask_b32 {v(A5+2)}, 0, {v(OH)}, vcc", f"v_cndmask_b32 {v(A5+3)}, 0, {v(OH+1)}, vcc"]

    def lists():
        return [f"ds_read_b128 {v(lw,4)}, {v(la_w)}", f"ds_read_b32 {v(le)}, {v(la_e)}"]

    def laup():
        return [f"v_add_u32 {v(x)}, 32, {v(x)}" for x in (la_w, la_e)]

    def flush():
        o = [f"v_cvt_f64_f32 {v(C64+2*i,2)}, {v(acc+i)}" for i in range(8)]
        o2 = [f"ds_add_f64 {v(ha + i%2)}, {v(C64+2*i,2)} offset:{(i//2)*256}" for i in range(8)]
        return o, o2

    def qaddr(fill):
        o = [f"v_mov_b32_dpp {v(qa)}, {v(tab)} row_newbcast:0 row_mask:0xf bank_mask:0xf",
             f"v_mov_b32_dpp {v(qa+1)}, {v(tab)} row_newbcast:0 row_mask:0xf bank_mask:0xf"]
        o += fill[:2]
        o += [f"v_permlane16_swap_b32 {v(qa)}, {v(qa+1)}"]
        o += fill[2:4]
        o += [f"v_add_u32 {v(qa)}, {v(qa)}, {v(j4)}", f"v_add_u32 {v(qa+1)}, {v(qa+1)}, {v(j4)}"]
        o += fill[4:]
        for n in range(4):
            for k in range(2):
                o.append(f"ds_read_b32 {v(B5[n]+2+k)}, {v(qa+k)} offset:{L_QT + n*128}")
        return o

    zacc = [f"v_mov_b64 {v(acc+2*n,2)}, 0" for n in range(4)]
    haup = [f"v_lshlrev_b32 {v(ha+k)}, 1, {v(qa+k)}" for k in range(2)]

    def hread():
        o = []
        for n in range(2):
            for m in range(8):
                o.append(f"ds_read_b64_tr_b16 {v(D[n]+2*m,2)}, {v(TA[n][m>>2])} offset:{(m&3)*PCS}")
        return o

    def mf(n):
        return f"v_mfma_f32_32x32x16_bf16 {v(D[n%2],16)}, {v(A5,4)}, {v(B5[n],4)}, {v(D[n%2],16)}"

    if "ef" in OPT:
        A(lists()[::-1])
        A(f"ds_read_b32 {v(tab)}, {v(tab)}\ns_waitcnt lgkmcnt(2)")
        A(eload())
        A("s_waitcnt lgkmcnt(1)")
        A(idx())
        A(dma(0))
    else:
        A(lists())
        A(f"ds_read_b32 {v(tab)}, {v(tab)}\ns_waitcnt lgkmcnt(2)")
        A(idx())
        A(dma(0))
        A("s_waitcnt lgkmcnt(1)")
        A(eload())
    A(f"""
    s_and_b32 {s(s_u)}, {s(s_wave)}, 3
    s_lshl_b32 {s(s_u)}, {s(s_u)}, 5
    v_lshrrev_b32 {v(t1)}, 4, {v(lane)}
    v_lshl_add_u32 {v(rem+1)}, {v(t1)}, 3, {s(s_u)}
    s_xor_b32 {s(s_t)}, {s(s_wave)}, 15
    s_or_b32 {s(s_t)}, s2, {s(s_t)}
    s_cbranch_scc1 K_EPD
    v_mov_b32 {v(t0)}, {WS_EPOCH}
    v_mov_b32 {v(t2)}, {s(s_tag)}
    global_store_dword {v(t0)}, {v(t2)}, s[24:25]
K_EPD:
    s_waitcnt lgkmcnt(0)
""")
    A(f"""
    ; ---- epilogue addresses (registers that the loop leaves alone)
    s_mov_b32 {s(s_epx)}, 0
    s_mov_b32 {s(SO)}, s20
    s_and_b32 {s(SO+1)}, s21, 0xffff
    s_mov_b32 {s(SO+2)}, {N * 128}
    s_mov_b32 {s(SO+3)}, 0x20000
    v_mul_u32_u24 {v(EB)}, {PBW}, {v(t1)}
    v_bfe_u32 {v(t0)}, {v(lane)}, 2, 2
    v_lshl_add_u32 {v(EB)}, {v(t0)}, 7, {v(EB)}
    v_and_b32 {v(t0)}, 3, {v(lane)}
    v_lshl_add_u32 {v(EB)}, {v(t0)}, 3, {v(EB)}
    s_add_u32 {s(s_u)}, {s(s_u)}, {L_PB + 16}
    v_add_u32 {v(EB)}, {s(s_u)}, {v(EB)}
    v_and_b32 {v(t0)}, 15, {v(lane)}
    s_and_b32 {s(s_t)}, {s(s_wave)}, 12
    s_lshl_b32 {s(s_t)}, {s(s_t)}, 2
    v_add_u32 {v(t0)}, {s(s_t)}, {v(t0)}
    v_mul_u32_u24 {v(rem)}, {HB_STRIDE}, {v(t0)}
    v_lshl_add_u32 {v(rem)}, {v(t1)}, 4, {v(rem)}
    v_add_u32 {v(rem)}, {L_HBHI}, {v(rem)}
    v_lshlrev_b32 {v(rem+2)}, 2, {v(t0)}
    ds_bpermute_b32 {v(rem+2)}, {v(rem+2)}, {v(deg)}
    v_lshl_add_u32 {v(rem+1)}, {v(t0)}, 15, {v(rem+1)}
    v_lshlrev_b32 {v(t2)}, 4, v0
    s_mul_i32 {s(sA)}, {s(s_wave)}, {HB_STRIDE}
    s_add_u32 {s(sA)}, {s(sA)}, {L_HBHI}
    v_lshl_add_u32 {v(t3)}, {v(lane)}, 2, {s(sA)}
    s_cmp_eq_u32 {s(s_rem)}, 0
    s_cbranch_scc1 K_DONE
""")
    A(ohcmp())
    A(f"""
    v_and_b32 {v(tab)}, 63, {v(tab)}
    v_lshlrev_b32 {v(tab)}, 9, {v(tab)}
""")
    A(ohsel())
    A(f"v_mov_b32 {v(t0)}, {v(tab)}")
    A(laup())
    A(f"v_mov_b32_dpp {v(t0)}, {v(tab)} row_shr:1 row_mask:0xf bank_mask:0xf")
    A(qaddr(zacc))
    A(haup)
    A(f"""
    v_cmp_ne_u32 vcc, {v(t0)}, {v(tab)}
    s_or_b32 {s(s_chg)}, vcc_lo, vcc_hi
    s_lshr_b32 {s(s_t)}, {s(s_chg)}, 16
    s_or_b32 {s(s_chg)}, {s(s_chg)}, {s(s_t)}
    s_setprio 3
    {"s_waitcnt vmcnt(0)" if "pw" in OPT or "ef" in OPT else ""}
""")
    stamp(4)
    A(f"""
    s_cmp_eq_u32 {s(s_safe)}, 0
    s_cbranch_scc0 K_LOOP_S
""")

    def compute(u, safe, mid, tail):
        o = []
        pair = "rp" in OPT and not safe
        for bb in range(2):
            b = 2 * u + bb
            cur = D[bb]
            N_, D_ = (t0, d2) if pair and bb == 0 else (nn, dd)
            if not safe and bb and not pair:
                o += [f"v_rcp_f32 {v(rr)}, {v(dd)}", f"v_rcp_f32 {v(rr+1)}, {v(dd+1)}"]
            o += [f"v_exp_f32 {v(EX+i)}, {v(cur+i)}" for i in range(16)]
            if bb == 0:
                o += mid
            if not safe:
                if bb and not pair:
                    o.append(f"v_max3_f32 {v(guard)}, {v(guard)}, {v(dd)}, {v(dd+1)}")
                    o.append(f"v_pk_fma_f32 {v(acc+2*(b-1),2)}, {v(nn,2)}, {v(rr,2)}, {v(acc+2*(b-1),2)}")
                o.append(f"v_pk_add_f32 {v(D_,2)}, {v(EX,2)}, 1.0 op_sel_hi:[1,0]")
                n_ = v(cur, 2)
                for k in range(1, 8):
                    e_, z_ = v(EX + 2 * k, 2), v(cur + 2 * k, 2)
                    o.append(f"v_pk_fma_f32 {v(tt,2)}, {n_}, {e_}, {n_}")
                    o.append(f"v_pk_fma_f32 {v(N_,2)}, {z_}, {v(D_,2)}, {v(tt,2)}")
                    o.append(f"v_pk_fma_f32 {v(D_,2)}, {v(D_,2)}, {e_}, {v(D_,2)}")
                    n_ = v(N_, 2)
            else:
                for k in range(8):
                    o.append(f"v_pk_add_f32 {v(EX+2*k,2)}, {v(EX+2*k,2)}, 1.0 op_sel_hi:[1,0]")
                for i in range(16):
                    o.append(f"v_rcp_f32 {v(EX+i)}, {v(EX+i)}")
                for k in range(8):
                    o.append(f"v_pk_fma_f32 {v(acc+2*b,2)}, {v(cur+2*k,2)}, {v(EX+2*k,2)}, {v(acc+2*b,2)}")
        if pair:
            o += [f"v_pk_mul_f32 {v(tt,2)}, {v(d2,2)}, {v(dd,2)}",
                  f"v_rcp_f32 {v(rr)}, {v(tt)}", f"v_rcp_f32 {v(rr+1)}, {v(tt+1)}",
                  f"v_pk_mul_f32 {v(t0,2)}, {v(t0,2)}, {v(dd,2)}",
                  f"v_pk_mul_f32 {v(nn,2)}, {v(nn,2)}, {v(d2,2)}",
                  f"v_max3_f32 {v(guard)}, {v(guard)}, {v(tt)}, {v(tt+1)}",
                  f"v_pk_fma_f32 {v(acc+4*u,2)}, {v(t0,2)}, {v(rr,2)}, {v(acc+4*u,2)}",
                  f"v_pk_fma_f32 {v(acc+4*u+2,2)}, {v(nn,2)}, {v(rr,2)}, {v(acc+4*u+2,2)}"]
        elif not safe:
            o += [f"v_rcp_f32 {v(rr)}, {v(dd)}", f"v_rcp_f32 {v(rr+1)}, {v(dd+1)}",
                  f"v_max3_f32 {v(guard)}, {v(guard)}, {v(dd)}, {v(dd+1)}",
                  f"v_pk_fma_f32 {v(acc+4*u+2,2)}, {v(nn,2)}, {v(rr,2)}, {v(acc+4*u+2,2)}"]
        if "tl" in OPT:
            o += [TM + " s[98:99]", "s_waitcnt lgkmcnt(0)", "s_mov_b32 m0, s95", f"v_writelane_b32 {v(tl)}, s98, m0",
                  f"s_mov_b32 m0, {s(s_m0)}", "s_add_u32 s95, s95, 1"]
        return o + tail

    PL = int(os.environ.get("PL", "3"))

    def loop(safe):
        sf = "S" if safe else "F"
        rot = f"v_mov_b32_dpp {v(tab)}, {v(tab)} row_shl:1 row_mask:0xf bank_mask:0xf bound_ctrl:0"
        st = ["s_waitcnt vmcnt(1)"] + hread()
        st += [f"s_cmp_gt_u32 {s(s_rem)}, {PL}", f"s_cbranch_scc0 K_PRIO_{sf}", f"K_PB_{sf}:"]
        st += ["s_waitcnt vmcnt(0) lgkmcnt(8)", mf(0), "s_waitcnt lgkmcnt(0)", (mf(1) if "ms" not in OPT else "s_nop 0")] + dma(1) + lists()
        st += [f"s_lshr_b32 {s(s_chg)}, {s(s_chg)}, 1", f"s_sub_u32 {s(s_rem)}, {s(s_rem)}, 1", "s_nop 1"]
        st += compute(0, safe, [rot], ["s_waitcnt lgkmcnt(0)"] + idx() + [ohcmp()])
        st += ["s_waitcnt vmcnt(0)"] + hread()
        if "tail" in OPT:
            st += [f"s_cmp_eq_u32 {s(s_rem)}, 0", "s_waitcnt lgkmcnt(8)", mf(2), "s_waitcnt lgkmcnt(0)", mf(3), f"s_cbranch_scc1 K_TL_{sf}"]
            st += dma(0) + [eload()] + ohsel() + laup() + [f"K_TB_{sf}:"]
        else:
            st += ["s_waitcnt lgkmcnt(8)", mf(2), "s_waitcnt lgkmcnt(0)", mf(3)] + dma(0) + [eload()]
            st += ohsel() + laup() + ["s_nop 0"]
        st += compute(1, safe, [], [])
        if "E" in ABL: st = [x for x in st if not x.startswith("buffer_load_dwordx2")]
        if "X" in ABL: st = [x if not x.endswith(" lds") else "s_nop 0" for x in st]
        if "A" in ABL: st = [x for x in st if not x.startswith("ds_read_b64_tr")]
        A(f".p2align 6\nK_LOOP_{sf}:")
        A(st)
        c, a = flush()
        A(f"""
        s_cmp_eq_u32 {s(s_rem)}, 0
        s_cbranch_scc1 K_LAST_{sf}
        s_bitcmp1_b32 {s(s_chg)}, 0
        {"s_cbranch_scc0" if "C" not in ABL else "s_branch"} K_LOOP_{sf}
""")
        A(qaddr(c) + a + zacc + haup)
        A(f"s_branch K_LOOP_{sf}")
        A(f"""
K_PRIO_{sf}:
""")
        if "tail" in OPT:
            A(f"""
        s_setprio 2
        s_cmp_gt_u32 {s(s_rem)}, 1
        s_cbranch_scc1 K_PB_{sf}
        s_setprio 1
        s_branch K_PB_{sf}
K_TL_{sf}:
        s_setprio 0
        global_load_lds_dwordx4 {v(t2)}, s[16:17]
        s_mov_b32 {s(s_epx)}, 1
        s_nop 5
        s_branch K_TB_{sf}
""")
        else:
            A(f"""
        s_setprio 2
        s_cmp_eq_u32 {s(s_rem)}, 3
        s_cbranch_scc1 K_PB_{sf}
        s_setprio 1
        s_cmp_eq_u32 {s(s_rem)}, 2
        s_cbranch_scc1 K_PB_{sf}
        s_setprio 0
        s_branch K_PB_{sf}
""")
        A(f"""
K_LAST_{sf}:
""")
        A(c + a)
        if safe:
            A("s_branch K_DONE")
    loop(False)

    W2 = B5[0]
    A(f"""
K_DONE:
    s_setprio 0
    s_cmp_eq_u32 {s(s_slow)}, 0
    s_cbranch_scc0 K_NEXTCHUNK
K_FIN:
""")
    if "tl" in OPT:
        A(f"""
        s_lshl_b32 {s(s_t)}, s2, 12
        s_add_u32 {s(s_t)}, {s(s_t)}, {WS_STAMP + (1 << 20)}
        v_lshl_add_u32 {v(t0)}, v0, 2, {s(s_t)}
        global_store_dword {v(t0)}, {v(tl)}, s[24:25]
""")
    stamp(5)
    A(f"""
    s_cmp_lg_u32 {s(s_epx)}, 0
    s_cbranch_scc1 K_W2D
    global_load_lds_dwordx4 {v(t2)}, s[16:17]
K_W2D:
    s_waitcnt lgkmcnt(0)
    s_barrier
""")
    stamp(6)
    H = D[0]
    for k in range(3):
        A(f"ds_read_b128 {v(H+4*k,4)}, {v(t2)} offset:{k*16384}")
    A(f"s_cmp_ge_u32 {s(s_wave)}, 8")
    A(f"v_add_u32 {v(ha)}, {16*HB_STRIDE}, {v(t3)}\nv_add_u32 {v(ha+1)}, {32*HB_STRIDE}, {v(t3)}")

    def s1(ks):
        for k in ks:
            A(f"s_waitcnt lgkmcnt({2 - k if k < 2 else 2})")
            A(f"v_cvt_f32_f64 {v(EX+2*k)}, {v(H+4*k,2)}")
            A(f"v_cvt_f32_f64 {v(EX+2*k+1)}, {v(H+4*k+2,2)}")
        for k in ks:
            A(f"v_and_b32 {v(EX+8+2*k)}, 0xffff0000, {v(EX+2*k)}")
            A(f"v_and_b32 {v(EX+9+2*k)}, 0xffff0000, {v(EX+2*k+1)}")
        for k in ks:
            A(f"v_pk_add_f32 {v(EX+2*k,2)}, {v(EX+2*k,2)}, {v(EX+8+2*k,2)} neg_lo:[0,1] neg_hi:[0,1]")
        for k in ks:
            A(f"v_cvt_pk_bf16_f32 {v(H+4*k)}, {v(EX+8+2*k)}, {v(EX+9+2*k)}")
            A(f"v_cvt_pk_bf16_f32 {v(H+4*k+1)}, {v(EX+2*k)}, {v(EX+2*k+1)}")
        for k in ks:
            A(f"ds_write2st64_b32 {v([t3, ha, ha+1][k])}, {v(H+4*k)}, {v(H+4*k+1)} offset0:0 offset1:{HB_LO//256}")
    s1([0, 1])
    A(f"v_add_f32 {v(EX)}, {v(EX)}, {v(EX+1)}\nv_add_f32 {v(EX+2)}, {v(EX+2)}, {v(EX+3)}")
    A(f"v_cmp_u_f32 {s(sA,2)}, {v(EX)}, {v(EX+2)}")
    A("s_cbranch_scc1 K_S1D")
    s1([2])
    A(f"v_cmp_u_f32 vcc, {v(EX+4)}, {v(EX+5)}\ns_or_b64 {s(sA,2)}, {s(sA,2)}, vcc")
    A(f"""
K_S1D:
    v_cmp_lt_f32 vcc, {f32(2.0**120)}, {v(guard)}
    s_or_b64 vcc, vcc, {s(sA,2)}
    v_mov_b32 {v(t2)}, {L_FLAG + 4}
    s_cbranch_vccz K_NOFL
    ds_write_b32 {v(t2)}, {v(t2)}
K_NOFL:
    s_waitcnt vmcnt(0) lgkmcnt(0)
    s_barrier
    ds_read_b32 {v(t2)}, {v(t2)}
    s_cmp_ge_u32 {s(s_wave)}, 12
    s_cbranch_scc1 K_IDLE
""")
    for ks in range(4):
        for h2 in range(2):
            A(f"ds_read_b64_tr_b16 {v(D[1]+4*ks+2*h2,2)}, {v(EB)} offset:{ks*4*PBW + h2*512}")
    HF = [D[0], EX]
    for ks in range(4):
        A(f"ds_read_b128 {v(HF[0]+4*ks,4)}, {v(rem)} offset:{ks*64}")
        A(f"ds_read_b128 {v(HF[1]+4*ks,4)}, {v(rem)} offset:{ks*64 + HB_LO}")
    A(f"""
    v_cvt_f32_u32 {v(le)}, {v(rem+2)}
    v_mul_f32 {v(le)}, {f32(0.25)}, {v(le)}
    s_lshl_b32 {s(s_t)}, {s(s_b)}, 7
    s_mov_b32 {s(s_u)}, {f32(-LN2)}
    s_waitcnt lgkmcnt(8)
    v_readfirstlane_b32 {s(sA)}, {v(t2)}
    v_lshlrev_b32 {v(acc)}, 16, {v(b2r)}
    v_and_b32 {v(acc+1)}, 0xffff0000, {v(b2r)}
    v_lshlrev_b32 {v(acc+2)}, 16, {v(b2r+1)}
    v_and_b32 {v(acc+3)}, 0xffff0000, {v(b2r+1)}
    s_cmp_lg_u32 {s(s_safe)}, 0
    s_cbranch_scc1 K_GEMM
    s_cmp_eq_u32 {s(sA)}, 0
    {"s_cbranch_scc0 K_RESTART" if ABL == [""] else ""}
K_GEMM:
""")
    O = [nn, tt]
    for ks in range(4):
        for hl in range(2):
            A(f"s_waitcnt lgkmcnt({7 - 2*ks - hl})")
            c = "0" if ks == 0 else v(O[hl], 4)
            A(f"v_mfma_f32_16x16x32_bf16 {v(O[hl],4)}, {v(D[1]+4*ks,4)}, {v(HF[hl]+4*ks,4)}, {c}")
    for i in range(4):
        A(f"v_mul_f32 {v(acc+i)}, {v(le)}, {v(acc+i)}")
    A("s_nop 3")
    for i in range(4):
        A(f"v_add_f32 {v(nn+i)}, {v(nn+i)}, {v(tt+i)}")
    for i in range(4):
        A(f"v_fma_f32 {v(nn+i)}, {v(nn+i)}, {s(s_u)}, {v(acc+i)}")
    A(f"""
    v_cvt_pk_bf16_f32 {v(acc)}, {v(nn)}, {v(nn+1)}
    v_cvt_pk_bf16_f32 {v(acc+1)}, {v(nn+2)}, {v(nn+3)}
    buffer_store_dwordx2 {v(acc,2)}, {v(rem+1)}, {s(SO,4)}, {s(s_t)} offen {os.environ.get('ST3', '')}
""")
    if STAMP:
        A("s_waitcnt vmcnt(0)\n" + TM + " s[20:21]\ns_waitcnt lgkmcnt(0)")
        A(f"""
    v_cmp_eq_u32 vcc, 0, {v(lane)}
    s_and_saveexec_b64 {s(sA,2)}, vcc
    s_lshl_b32 {s(s_t)}, s2, 4
    s_add_u32 {s(s_t)}, {s(s_t)}, {s(s_wave)}
    s_lshl_b32 {s(s_t)}, {s(s_t)}, 6
    s_add_u32 {s(s_t)}, {s(s_t)}, {WS_STAMP}
    v_mov_b32 {v(t0)}, {s(s_t)}
""")
        for n_, i in enumerate([0, 10, 7, 8, 9, 1, 2, 3, 4, 5, 6]):
            A(f"v_mov_b32 {v(D[0]+n_)}, {s(STR[i]) if i else s(s_x)}")
        A(f"v_mov_b32 {v(D[0]+11)}, s20")
        for i in range(3):
            A(f"global_store_dwordx4 {v(t0)}, {v(D[0]+4*i,4)}, s[24:25] offset:{16*i}")
    A(f"""
K_END:
    s_endpgm
K_IDLE:
    s_waitcnt lgkmcnt(0)
    v_readfirstlane_b32 {s(sA)}, {v(t2)}
    s_cmp_lg_u32 {s(s_safe)}, 0
    s_cbranch_scc1 K_END
    s_cmp_eq_u32 {s(sA)}, 0
    {"s_cbranch_scc0 K_RESTART" if ABL == [""] else ""}
    s_endpgm
""")

    A(f"""
K_HI1:
    v_subrev_u32 {v(t0)}, 64, {v(rem)}
""")
    for i in range(4):
        A(f"v_cmp_lt_i32 {s(MK+8+2*i,2)}, {4*i}, {v(t0)}")
    A(f"""
    v_cmp_lt_i32 vcc, 64, {v(t0)}
    s_cbranch_vccz K_HI1N
    v_mov_b32 {v(t0)}, {L_FLAG}
    ds_write_b32 {v(t0)}, {v(t3)}
K_HI1N:
""")
    if "mx" in OPT:
        A([f"v_subrev_u32 {v(CW+4+i)}, {s(s_tag)}, {v(CW+4+i)}" for i in range(4)])
    p1words(HI)
    for x in HI:
        A(f"v_lshrrev_b32 {v(EI+x)}, 20, {v(CW+x)}")
        A(f"v_add_u32 {v(EI+x)}, {v(EI+x)}, {v(EB)}")
    A("s_branch K_HB1\nK_HI2:")
    for x in HI:
        A(f"v_add_u32 {v(CA+x)}, {v(CA+x)}, {v(RK+x)}")
    for x in HI:
        A(f"s_mov_b64 exec, {s(MK+2*x,2)}")
        A(f"ds_write2st64_b32 {v(CA+x)}, {v(CW+x)}, {v(EI+x)} offset0:0 offset1:{NE*4//256}")
    A("s_mov_b64 exec, -1\ns_branch K_HB2")
    verify_rare("A")
    A(f"""
K_PFR:
    s_sub_u32 {s(s_to)}, {s(s_to)}, 1
    s_cbranch_scc1 K_END
    buffer_load_dword {v(epv)}, {v(tba)}, {s(SW,4)}, 0 offen {SC}
    s_waitcnt vmcnt(0)
    s_branch K_PFC
""")
    A(".p2align 4\n.type K_TABLE,@object\nK_TABLE:")
    T = lane_table()
    for piece in range(4):
        for l in range(64):
            A(".long " + ", ".join(str(x & 0xffffffff) for x in T[l][4*piece:4*piece+4]))
    A(".size K_TABLE, 4096")
    A("K_HOT_END:")
    A(f"""
K_RESTART:
    s_mov_b32 {s(s_safe)}, 1
    s_mov_b32 {s(s_slow)}, 0
    s_waitcnt lgkmcnt(0)
    s_barrier
""")
    zero_hsum()
    A(tab_pre())
    poll("B")
    rec_loads("B")
    if "mx" in OPT:
        A("s_waitcnt vmcnt(0)")
        A([f"v_subrev_u32 {v(CW+i)}, {s(s_tag)}, {v(CW+i)}" for i in range(4)])
    A(f"""
    v_and_b32 {v(tba)}, {"0xff" if "pf4" in OPT else "0x3fc"}, v0
    v_lshlrev_b32 {v(tba)}, {6 if "pf4" in OPT else 4}, {v(tba)}
    v_add_u32 {v(tba)}, {WS_PF}, {v(tba)}
""")
    A("K_ROUND:")
    prefill()
    A(f"""
    s_waitcnt vmcnt(0) lgkmcnt(0)
    s_barrier
    s_branch K_PASS1
K_GOSLOW:
    s_mov_b32 {s(SS)}, s8
    s_and_b32 {s(SS+1)}, s9, 0xffff
    s_mov_b32 {s(SS+2)}, {E * 4}
    s_mov_b32 {s(SS+3)}, 0x20000
    s_mov_b32 {s(SD_)}, s10
    s_and_b32 {s(SD_+1)}, s11, 0xffff
    s_mov_b32 {s(SD_+2)}, {E * 4}
    s_mov_b32 {s(SD_+3)}, 0x20000
    s_mov_b32 {s(s_slow)}, 1
    s_mov_b32 {s(s_chunk)}, -1
K_NEXTCHUNK:
    s_add_u32 {s(s_chunk)}, {s(s_chunk)}, 1
    s_cmp_lt_u32 {s(s_chunk)}, {NB}
    s_cbranch_scc0 K_FIN
    s_waitcnt vmcnt(0) lgkmcnt(0)
    s_barrier
    s_mul_i32 {s(s_t)}, {s(s_chunk)}, {CH * 4}
    v_lshlrev_b32 {v(t0)}, 2, v0
""")
    for k in range(3):
        A(f"buffer_load_dword {v(RK+k)}, {v(t0)}, {s(SD_,4)}, {s(s_t)} offen")
        A(f"buffer_load_dword {v(RK+4+k)}, {v(t0)}, {s(SS,4)}, {s(s_t)} offen")
        A(f"s_add_u32 {s(s_t)}, {s(s_t)}, 4096")
    A(f"""
    s_mul_i32 {s(s_t)}, {s(s_chunk)}, {CH}
    s_movk_i32 {s(s_u)}, {CH}
    v_mov_b32 {v(EB)}, {s(s_t)}
    v_mov_b32 {v(CW+3)}, 0
    s_mov_b64 {s(MK+6,2)}, 0
    s_mov_b32 {s(s_hi)}, 0
    s_waitcnt vmcnt(0)
""")
    for k in range(3):
        A(f"""
        v_add_u32 {v(t1)}, {1024*k}, v0
        v_lshrrev_b32 {v(t2)}, 8, {v(RK+k)}
        v_lshl_or_b32 {v(t2)}, {v(RK+4+k)}, 6, {v(t2)}
        v_lshl_or_b32 {v(CW+k)}, {v(t1)}, 20, {v(t2)}
        v_and_b32 {v(RK+k)}, 255, {v(RK+k)}
        v_cmp_eq_u32 vcc, {s(s_b)}, {v(RK+k)}
        v_cmp_gt_u32 {s(sA,2)}, {s(s_u)}, {v(t1)}
        s_and_b64 {s(MK+2*k,2)}, vcc, {s(sA,2)}
""")
    A("s_branch K_ROUND")
    loop(True)
    return nvgpr, (102 if STAMP or DL[0] >= 0 else 96)


def kd(name, vg, sg):
    acc = (vg + 3) // 4 * 4
    return f""".p2align 6
.amdhsa_kernel {name}
  .amdhsa_next_free_vgpr {vg}
  .amdhsa_next_free_sgpr {sg}
  .amdhsa_accum_offset {acc}
  .amdhsa_group_segment_fixed_size 0
  .amdhsa_kernarg_size 88
  .amdhsa_user_sgpr_count 2
  .amdhsa_user_sgpr_kernarg_segment_ptr 1
  .amdhsa_system_sgpr_workgroup_id_x 1
  .amdhsa_float_denorm_mode_32 3
.end_amdhsa_kernel
"""


def main():
    ref = open(f"cdna_kernels/{NAME}.s.ref").read().split("\n")
    head = [l for l in ref if l.startswith(";") and "@launch" not in l and "Override" not in l and "grid=ceil" not in l]
    A = Asm()
    v2, s2 = gen_k2(A)
    out = "\n".join(head) + "\n"
    out += f"; @launch grid=({NB},1,1) block=(1024,1,1) lds={L_END}\n"
    out += '.amdgcn_target "amdgcn-amd-amdhsa--gfx950"\n.text\n'
    out += A.text()
    out += '.section .rodata,"a"\n' + kd(KERN, v2, s2)
    path = sys.argv[1] if len(sys.argv) > 1 else f"cdna_kernels/{NAME}.s"
    open(path, "w").write(out)
    print("vgprs", v2, "lds", L_END, "->", path)


if __name__ == "__main__":
    main()
```
